```python
import torch

def _softmax(x, axis=-1):
    return torch.softmax(x, dim=axis)
def _gelu(x):
    return torch.nn.functional.gelu(x, approximate="tanh")
def _silu(x):
    return torch.nn.functional.silu(x)
def _sigmoid(x):
    return torch.sigmoid(x)
def _layernorm(x, axis=-1, eps=1e-5):
    m = x.mean(dim=axis, keepdim=True)
    v = x.var(dim=axis, keepdim=True, unbiased=False)
    return (x - m) / torch.sqrt(v + eps)
def _scatter_add(tgt, idx, src, axis=0):
    return tgt.clone().index_add_(axis, idx, src)
def _segment_sum(src, seg, n):
    out = torch.zeros((n,) + src.shape[1:], dtype=src.dtype)
    return out.index_add_(0, seg, src)
def _pad(x, pw):
    flat = tuple(v for pair in reversed(pw) for v in pair)
    return torch.nn.functional.pad(x, flat)

kernel_name = 'gated_mix__grouped_kv_mqa__sliding_block__prompt'

def setup_inputs():

    _w = (lambda a: (lambda t: t.to(torch.bfloat16) if t.is_floating_point() else t)(torch.as_tensor(a)))
    def _A_setup():
        B, S, D, H = 1, 2048, 512, 32
        Dh = D // H
        return {
            "x": _w((lambda *s: torch.randn(*s, dtype=torch.bfloat16) * 0.05)(B, S, D)),
            "wq": _w((lambda *s: torch.randn(*s, dtype=torch.bfloat16) * 1.6)(D, H * Dh)),
            "wk": _w((lambda *s: torch.randn(*s, dtype=torch.bfloat16) * 1.6)(D, Dh)),
            "wv": _w((lambda *s: torch.randn(*s, dtype=torch.bfloat16) * 0.2)(D, Dh)),
            "wo": _w((lambda *s: torch.randn(*s, dtype=torch.bfloat16) * 0.2)(H * Dh, D)),
        }
    _A_in = _A_setup()

    def _B_setup():
        B, S, D = 1, 2048, 512
        return {
            "x": _w((lambda *s: torch.randn(*s, dtype=torch.bfloat16) * 0.05)(B, S, D)),
            "wqkv": _w((lambda *s: torch.randn(*s, dtype=torch.bfloat16) * 1.6)(D, 3 * D)),
            "wo": _w((lambda *s: torch.randn(*s, dtype=torch.bfloat16) * 0.05)(D, D)),
        }
    _B_in = _B_setup()

    return {
        "A_x": _A_in["x"],
        "A_wq": _A_in["wq"],
        "A_wk": _A_in["wk"],
        "A_wv": _A_in["wv"],
        "A_wo": _A_in["wo"],
        "B_x": _B_in["x"],
        "B_wqkv": _B_in["wqkv"],
        "B_wo": _B_in["wo"],
        "gate_w": _w((lambda *s: torch.randn(*s, dtype=torch.bfloat16) * 0.05)(512) * 16.0),
    }

def reference(A_x, A_wq, A_wk, A_wv, A_wo, B_x, B_wqkv, B_wo, gate_w):
    def _A_ref(x, wq, wk, wv, wo):
        B, S, D = x.shape
        H = 32
        Dh = D // H
        q = (lambda x, *d: x.permute(*d))((x @ wq).reshape(B, S, H, Dh), 0, 2, 1, 3)
        k = x @ wk
        v = x @ wv
        scores = torch.einsum("bhqd,bkd->bhqk", q, k) * (Dh ** -0.5)
        p = _softmax(scores, axis=-1)
        o = torch.einsum("bhqk,bkd->bhqd", p, v)
        return (lambda x, *d: x.permute(*d))(o, 0, 2, 1, 3).reshape(B, S, H * Dh) @ wo

    def _B_ref(x, wqkv, wo):
        B, S, D = x.shape
        H = 32; Dh = D // H; W = 256
        qkv = (lambda x, *d: x.permute(*d))((x @ wqkv).reshape(B, S, 3, H, Dh), 2, 0, 3, 1, 4)
        q, k, v = qkv[0], qkv[1], qkv[2]
        scores = torch.einsum("bhqd,bhkd->bhqk", q, k) * (Dh ** -0.5)
        idx = torch.arange(S)
        mask = (idx[:, None] - idx[None, :] >= 0) & (idx[:, None] - idx[None, :] < W)
        scores = torch.where(mask[None, None], scores, -1e9)
        p = _softmax(scores, axis=-1)
        o = torch.einsum("bhqk,bhkd->bhqd", p, v)
        return (lambda x, *d: x.permute(*d))(o, 0, 2, 1, 3).reshape(B, S, D) @ wo

    x = A_x
    g = _sigmoid((x * gate_w).sum(-1, keepdims=True))
    a = _A_ref(x, A_wq, A_wk, A_wv, A_wo)
    b = _B_ref(x, B_wqkv, B_wo)
    return g * a + (1 - g) * b
```

```python
import re

class Asm:
    def __init__(self):
        self.lines = []
        self._uid = 0
    def __call__(self, s=""):
        for ln in s.split("\n"):
            self.lines.append(("    " + ln.strip()) if ln.strip() and not ln.strip().endswith(":") else ln.strip())
    def raw(self, s):
        self.lines.extend(s.split("\n"))
    def label(self, name):
        self.lines.append(name + ":")
    def uid(self, p="L"):
        self._uid += 1
        return f"{p}_{self._uid}"
    def text(self):
        return "\n".join(self.lines) + "\n"

def vr(a, n=1):
    return f"v{a}" if n == 1 else f"v[{a}:{a+n-1}]"
def sr(a, n=1):
    return f"s{a}" if n == 1 else f"s[{a}:{a+n-1}]"
def ar(a, n=1):
    return f"a{a}" if n == 1 else f"a[{a}:{a+n-1}]"

_reg = re.compile(r"^(-?)(abs\()?([vsa])(\d+|\[(\d+):(\d+)\])\)?$")
def regs_of(op):
    op = op.strip()
    op = op.replace("|", "")
    if op in ("vcc",): return {("s", "vcc_lo"), ("s", "vcc_hi")}
    if op in ("vcc_lo", "vcc_hi"): return {("s", op)}
    if op == "exec": return {("s", "exec")}
    if op == "m0": return {("s", "m0")}
    m = _reg.match(op)
    if not m: return set()
    k = m.group(3)
    if m.group(5) is not None:
        return {(k, i) for i in range(int(m.group(5)), int(m.group(6)) + 1)}
    return {(k, int(m.group(4)))}

TRANS = ("v_exp_f32", "v_log_f32", "v_rcp_f32", "v_rsq_f32", "v_sqrt_f32", "v_sin_f32", "v_cos_f32", "v_exp_f16", "v_rcp_iflag_f32")

class Ins:
    def __init__(self, text, idx):
        self.text = text; self.idx = idx
        t = text.split(";")[0].strip()
        parts = t.split(None, 1)
        self.op = parts[0]
        rest = parts[1] if len(parts) > 1 else ""
        ops = []; cur = ""; d = 0
        for ch in rest:
            if ch == "[": d += 1
            if ch == "]": d -= 1
            if ch == "," and d == 0:
                ops.append(cur); cur = ""
            else: cur += ch
        if cur.strip(): ops.append(cur)
        self.mods = ""
        if ops:
            l = ops[-1].strip().split(None, 1)
            ops[-1] = l[0]
            if len(l) > 1: self.mods = l[1]
        self.ops = [o.strip() for o in ops]
        op = re.sub(r"_(e32|e64|sdwa|dpp)$", "", self.op)
        self.base = op
        self.is_mfma = op.startswith("v_mfma") or op.startswith("v_smfmac")
        self.is_valu = op.startswith("v_") and not self.is_mfma
        self.is_trans = op in TRANS
        self.is_salu = op.startswith("s_")
        self.is_vmem = op.startswith("buffer_") or op.startswith("global_")
        self.is_ds = op.startswith("ds_")
        self.w = set(); self.r = set()
        R = [regs_of(o) for o in self.ops]
        if self.is_mfma:
            self.w = R[0]; self.srcA = R[1]; self.srcB = R[2]; self.srcC = R[3] if len(R) > 3 else set()
            if op.startswith("v_smfmac"):
                self.srcB = self.srcB | self.srcC; self.srcC = set(self.w)
            self.r = self.srcA | self.srcB | self.srcC
            self.passes = 8 if "32x32" in op else 4
        elif self.is_valu:
            if op.startswith("v_cmp"):
                self.w = R[0]; self.r = set().union(*R[1:])
                if op.startswith("v_cmpx"): self.w |= {("s", "exec")}
            elif op in ("v_permlane32_swap_b32", "v_permlane16_swap_b32", "v_swap_b32"):
                self.w = R[0] | R[1]; self.r = R[0] | R[1]
            elif op in ("v_add_co_u32", "v_sub_co_u32", "v_addc_co_u32"):
                self.w = R[0] | R[1]; self.r = set().union(*R[2:])
            else:
                self.w = R[0]; self.r = set().union(*R[1:]) if len(R) > 1 else set()
                if op in ("v_fmac_f32", "v_dot2c_f32_bf16") or "UNUSED_PRESERVE" in self.mods or op == "v_writelane_b32": self.r |= R[0]
                if op == "v_cndmask_b32" and len(self.ops) == 3: self.r |= regs_of("vcc")
        elif self.is_vmem:
            if op in ("buffer_inv", "buffer_wbl2"):
                pass
            elif "lds" in self.mods.split() or "_lds_" in op:
                self.r = set().union(*R) | {("s", "m0")}
            elif "_load" in op:
                self.w = R[0]; self.r = set().union(*R[1:])
            elif "atomic" in op:
                self.r = set().union(*R)
                if "sc0" in self.mods.split(): self.w = R[0]
            else:
                self.r = set().union(*R)
                self.store_data = R[0] if op.startswith("buffer_") else R[1]
        elif self.is_ds:
            if "read" in op or "permute" in op or "swizzle" in op:
                self.w = R[0]; self.r = set().union(*R[1:])
            elif "rtn" in op:
                self.w = R[0]; self.r = set().union(*R[1:])
            else:
                self.r = set().union(*R)
        elif self.is_salu:
            if op.startswith("s_cmp") or op.startswith("s_cbranch") or op in ("s_branch", "s_waitcnt", "s_nop", "s_barrier", "s_endpgm", "s_sleep", "s_setprio"):
                self.r = set().union(*R) if R else set()
            else:
                self.w = R[0] if R else set(); self.r = set().union(*R[1:]) if len(R) > 1 else set()
                if "saveexec" in op: self.w |= {("s", "exec")}; self.r |= {("s", "exec")}
    def states(self):
        if self.base == "s_nop": return int(self.ops[0], 0) + 1
        return 1

def isv(x): return x[0] in ("v", "a")

def check_seq(seq, errs, tag):
    n = len(seq)
    for i, p in enumerate(seq):
        need_max = 20
        dist = 0
        for j in range(i + 1, n):
            c = seq[j]
            need = 0; why = ""
            if p.is_valu:
                pw_v = {x for x in p.w if isv(x)}; pw_s = {x for x in p.w if x[0] == "s"}
                if c.is_mfma and pw_v & c.r: need, why = 2, "VALU->MFMA"
                if c.is_mfma and ("s", "exec") in p.w: need, why = 4, "VALU exec->MFMA"
                if p.is_trans and c.is_valu and not c.is_trans and pw_v & c.r: need, why = max(need, 1), "trans->VALU"
                if p.is_trans and (c.is_vmem or c.is_ds) and pw_v & c.r: need, why = max(need, 1), "trans->mem"
                if c.base in ("v_readfirstlane_b32", "v_readlane_b32") and pw_v & c.r: need, why = max(need, 1), "VALU->readlane"
                if c.base.startswith("v_permlane") and pw_v & c.r: need, why = max(need, 2), "VALU->permlane"
                if c.is_valu and "dpp" in c.op and pw_v & c.r: need, why = max(need, 2), "VALU->dpp"
                if c.is_vmem and pw_s & c.r: need, why = max(need, 5), "VALU sgpr->VMEM"
                if c.is_valu and pw_s & c.r: need, why = max(need, 2), "VALU sgpr->VALU"
                if c.is_salu and pw_s & c.r: need, why = max(need, 1), "VALU sgpr->SALU(pad)"
                if ("sdwa" in p.op or "op_sel" in p.mods) and c.is_valu and pw_v & (c.r | c.w) and not p.base.startswith("v_pk"): need, why = max(need, 1), "sdwa/opsel"
            if p.is_mfma:
                P = p.passes
                big = {4: 8, 8: 12}[P]; ov = {4: 6, 8: 10}[P]; war = {4: 3, 8: 7}[P]
                if c.is_mfma:
                    if p.w & (c.srcA | c.srcB): need, why = big, "MFMA D->AB"
                    elif p.w & c.srcC and not (p.w == c.srcC and P == c.passes): need, why = ov, "MFMA D->C overlap"
                    elif p.w & c.w and not (p.w == c.srcC): need, why = max(need, big), "MFMA WAW(cons)"
                else:
                    if (c.is_valu or c.is_vmem or c.is_ds) and p.w & (c.r | c.w): need, why = big, "MFMA D->VALU/mem"
                    if c.is_valu and p.srcC & c.w: need, why = max(need, war), "MFMA C WAR"
            if p.is_salu and ("s", "m0") in p.w and c.is_vmem and ("s", "m0") in c.r: need, why = 1, "m0->lds dma"
            if p.is_vmem and hasattr(p, "store_data") and len(p.store_data) >= 3 and (p.store_data & c.w):
                need, why = (2 if c.is_valu else 1), "store data WAR"
            if need > dist:
                errs.append(f"[{tag}] {why}: need {need} have {dist}: line {p.idx}: {p.text.strip()}  ->  line {c.idx}: {c.text.strip()}")
            dist += c.states()
            if dist >= need_max: break

def check_hazards(text):
    lines = text.split("\n")
    ins = []; labels = {}
    for k, ln in enumerate(lines, 1):
        t = ln.split(";")[0].strip()
        if not t or t.startswith("."): continue
        if t.endswith(":"):
            labels[t[:-1]] = len(ins); continue
        ins.append(Ins(ln, k))
    errs = []
    seg = []
    for x in ins:
        seg.append(x)
        if x.base in ("s_endpgm", "s_branch"):
            check_seq(seg, errs, "lin"); seg = []
    if seg: check_seq(seg, errs, "lin")
    for i, x in enumerate(ins):
        if x.base.startswith("s_cbranch") or x.base == "s_branch":
            tgt = labels.get(x.ops[0])
            if tgt is None: continue
            pre = []
            for y in reversed(ins[max(0, i - 24):i + 1]):
                if pre and y.base in ("s_endpgm", "s_branch"): break
                pre.append(y)
            pre.reverse()
            post = []
            for y in ins[tgt:tgt + 24]:
                post.append(y)
                if y.base in ("s_endpgm", "s_branch"): break
            e2 = []
            check_seq(pre + post, e2, "br")
            errs += e2
    return sorted(set(errs))
```

```python
import sys, math, struct
from asmlib import Asm, vr, sr, check_hazards

NAME = "gated_mix__grouped_kv_mqa__sliding_block__prompt"
def f2u(x): return struct.unpack("<I", struct.pack("<f", x))[0]
CSCALE = 0.25 * math.log2(math.e)

WS_QA = 0
WS_QB = 2 << 20
WS_KVA = 4 << 20
WS_G = (4 << 20) + 0x40000
WS_KVB = 5 << 20
WS_O = 10 << 20
WS_SIZE = 16 << 20
TB = 2080
OOB = 0x40000000
ONES = 0x3F803F80

A = Asm()

def srd(d, ptr, size):
    A(f"s_mov_b32 s{d}, s{ptr}")
    A(f"s_and_b32 s{d+1}, s{ptr+1}, 0xffff")
    A(f"s_mov_b32 s{d+2}, {size:#x}")
    A(f"s_mov_b32 s{d+3}, 0x00020000")

def kernel_begin(k):
    A.raw(f".globl {k}\n.p2align 8\n.type {k},@function\n{k}:")

def kd(k, nv, lds=0):
    acc = (nv + 3) // 4 * 4
    return f""".p2align 6
.amdhsa_kernel {k}
  .amdhsa_next_free_vgpr {nv}
  .amdhsa_next_free_sgpr 102
  .amdhsa_accum_offset {acc}
  .amdhsa_group_segment_fixed_size 0
  .amdhsa_kernarg_size 96
  .amdhsa_user_sgpr_count 2
  .amdhsa_user_sgpr_kernarg_segment_ptr 1
  .amdhsa_system_sgpr_workgroup_id_x 1
.end_amdhsa_kernel
"""

def decode_wg(s_hg, s_rb, tmp):
    A(f"s_and_b32 s{s_hg}, s2, 1")
    A(f"s_lshl_b32 s{s_hg}, s{s_hg}, 2")
    A(f"s_bfe_u32 s{tmp}, s2, 0x20003")
    A(f"s_add_u32 s{s_hg}, s{s_hg}, s{tmp}")
    A(f"s_bfe_u32 s{s_rb}, s2, 0x20001")
    A(f"s_lshl_b32 s{s_rb}, s{s_rb}, 3")
    A(f"s_bfe_u32 s{tmp}, s2, 0x30005")
    A(f"s_add_u32 s{s_rb}, s{s_rb}, s{tmp}")

MF = "v_mfma_f32_32x32x16_bf16"

def gen_k1():
    k = "proj_kernel"
    kernel_begin(k)
    sW, sHG, sRB, sSTR, sWO, sRING, sT, sT2, sTY = 16, 17, 18, 19, 20, 21, 22, 23, 24
    A("s_cmp_ge_u32 s2, 256")
    A("s_cbranch_scc1 K1_exit")
    A("s_load_dwordx4 s[28:31], s[0:1], 0")
    A("s_load_dwordx4 s[32:35], s[0:1], 16")
    A("s_load_dwordx2 s[36:37], s[0:1], 48")
    A("s_load_dwordx2 s[38:39], s[0:1], 64")
    A("s_load_dwordx2 s[40:41], s[0:1], 88")
    vL, vXd, vWd, vXa, vWa, vT, vT2, vG = 1, 2, 3, 4, 8, 9, 10, 12
    ACC = 16
    FR = 48
    PK = 84
    A("v_lshrrev_b32 v9, 6, v0")
    A("v_and_b32 v1, 63, v0")
    A(f"v_readfirstlane_b32 s{sW}, v9")
    decode_wg(sHG, sRB, sT)
    A(f"v_lshrrev_b32 v{vT}, 3, v0")
    A(f"v_lshrrev_b32 v{vT2}, 1, v{vT}")
    A(f"v_xor_b32 v{vT2}, v{vT2}, v0")
    A(f"v_and_b32 v{vT2}, 7, v{vT2}")
    A(f"v_lshlrev_b32 v{vT2}, 4, v{vT2}")
    A(f"v_lshl_add_u32 v{vXd}, v{vT}, 10, v{vT2}")
    A(f"v_and_b32 v{vT}, 31, v{vL}")
    A(f"v_lshrrev_b32 v{vT2}, 5, v{vL}")
    A(f"v_bfe_u32 v11, v{vL}, 1, 3")
    A(f"v_xor_b32 v{vT2}, v{vT2}, v11")
    for q in range(4):
        A(f"v_xor_b32 v11, {2*q}, v{vT2}")
        A(f"v_lshlrev_b32 v11, 4, v11")
        A(f"v_lshl_add_u32 v{vXa+q}, v{vT}, 7, v11")
    A(f"v_lshrrev_b32 v{vT}, 5, v{vL}")
    A(f"v_lshlrev_b32 v{vT}, 3, v{vT}")
    A(f"v_bfe_u32 v{vT2}, v{vL}, 2, 2")
    A(f"v_add_u32 v{vT}, v{vT}, v{vT2}")
    A(f"v_and_b32 v{vT2}, 3, v{vL}")
    A(f"v_lshlrev_b32 v{vT2}, 3, v{vT2}")
    A(f"v_bfe_u32 v11, v{vL}, 4, 1")
    A(f"v_lshl_add_u32 v{vT2}, v11, 5, v{vT2}")
    A(f"v_lshl_add_u32 v{vWa}, v{vT}, 6, v{vT2}")
    A("s_waitcnt lgkmcnt(0)")
    srd(4, 28, 2048 * 1024)
    srd(12, 40, WS_SIZE)
    A(f"s_lshr_b32 s{sTY}, s{sW}, 1")
    A(f"s_cmp_eq_u32 s{sTY}, 0")
    A("s_cselect_b32 s8, s30, s36")
    A("s_cselect_b32 s9, s31, s37")
    A("s_and_b32 s9, s9, 0xffff")
    A(f"s_cmp_eq_u32 s{sTY}, 0")
    A(f"s_cselect_b32 s{sSTR}, 1, 3")
    A("s_mov_b32 s11, 0x00020000")
    A(f"s_cselect_b32 s{sT}, 1, s{sTY}")
    A(f"s_mul_i32 s10, s{sSTR}, {512*1024:#x}")
    A(f"s_mul_i32 s{sSTR}, s{sSTR}, 1024")
    A(f"s_sub_u32 s{sT}, s{sT}, 1")
    A(f"s_lshl_b32 s{sWO}, s{sT}, 10")
    A(f"s_lshl_b32 s{sT}, s{sHG}, 7")
    A(f"s_add_u32 s{sWO}, s{sWO}, s{sT}")
    A(f"s_and_b32 s{sT}, s{sW}, 1")
    A(f"s_lshl_b32 s{sT}, s{sT}, 6")
    A(f"s_add_u32 s{sWO}, s{sWO}, s{sT}")
    A(f"s_lshl_b32 s{sRING}, s{sW}, 13")
    A(f"s_add_u32 s{sRING}, s{sRING}, 65536")
    A(f"v_lshrrev_b32 v{vT}, 2, v{vL}")
    A(f"v_mul_lo_u32 v{vT}, v{vT}, s{sSTR}")
    A(f"v_and_b32 v{vT2}, 3, v{vL}")
    A(f"v_lshl_add_u32 v{vWd}, v{vT2}, 4, v{vT}")
    A(f"v_add_u32 v{vWa}, s{sRING}, v{vWa}")
    A(f"s_lshl_b32 s{sSTR}, s{sSTR}, 4")
    A(f"v_lshlrev_b32 v{vT}, 4, v{vL}")
    A(f"s_cmp_ge_u32 s{sHG}, 2")
    A("s_cbranch_scc1 K1_noextra")
    A(f"s_cmp_ge_u32 s{sW}, 3")
    A("s_cbranch_scc1 K1_noextra")
    A(f"s_cmp_eq_u32 s{sW}, 2")
    A("s_cbranch_scc1 K1_gatepf")
    A(f"s_cmp_eq_u32 s{sW}, 0")
    A("s_cselect_b32 s44, s32, s34")
    A("s_cselect_b32 s45, s33, s35")
    A(f"s_lshl_b32 s{sT}, s{sW}, 14")
    A(f"s_add_u32 s{sT}, s{sT}, 131072")
    A("s_and_b32 s45, s45, 0xffff")
    A("s_mov_b32 s46, 16384")
    A("s_mov_b32 s47, 0x00020000")
    A(f"s_mov_b32 s{sT2}, 0")
    for i in range(16):
        A(f"s_add_u32 m0, s{sT}, {i*1024}")
        A(f"s_mov_b32 s{sT2}, {i*1024}")
        A(f"buffer_load_dwordx4 v{vT}, s[44:47], s{sT2} offen lds")
    A("s_branch K1_noextra")
    A.label("K1_gatepf")
    srd(44, 38, 1024)
    A(f"buffer_load_dwordx4 v[{vG}:{vG+3}], v{vT}, s[44:47], 0 offen")
    A.label("K1_noextra")
    A(f"s_lshl_b32 s{sT}, s{sRB}, 16")
    A(f"s_lshl_b32 s{sT2}, s{sW}, 10")
    for kb in range(8):
        A(f"s_add_u32 m0, s{sT2}, {kb*8192}")
        if kb: A(f"s_add_u32 s{sT}, s{sT}, 128")
        else: A("s_nop 0")
        A(f"buffer_load_dwordx4 v{vXd}, s[4:7], s{sT} offen lds")
    def wdma(s):
        A(f"s_add_u32 m0, s{sRING}, {(s%8)*1024}")
        A("s_nop 0")
        A(f"buffer_load_dwordx4 v{vWd}, s[8:11], s{sWO} offen lds")
        A(f"s_add_u32 s{sWO}, s{sWO}, s{sSTR}")
    for s in range(8): wdma(s)
    A("s_waitcnt vmcnt(8)")
    A("s_barrier")
    def reads(s):
        b = FR + 12 * (s % 3)
        A(f"ds_read_b64_tr_b16 v[{b}:{b+1}], v{vWa} offset:{(s%8)*1024}")
        A(f"ds_read_b64_tr_b16 v[{b+2}:{b+3}], v{vWa} offset:{(s%8)*1024+256}")
        A(f"ds_read_b128 v[{b+4}:{b+7}], v{vXa+(s&3)} offset:{(s>>2)*8192}")
        A(f"ds_read_b128 v[{b+8}:{b+11}], v{vXa+(s&3)} offset:{(s>>2)*8192+4096}")
    def mainloop(vtype):
        A("s_waitcnt vmcnt(6)")
        reads(0); reads(1)
        for s in range(32):
            if s + 2 < 32:
                A(f"s_waitcnt vmcnt({min(31, s+7) - (s+2)})")
                reads(s + 2)
                A("s_waitcnt lgkmcnt(8)")
            else:
                A(f"s_waitcnt lgkmcnt({4 if s == 30 else 0})")
            if s + 8 < 32: wdma(s + 8)
            b = FR + 12 * (s % 3)
            for i in range(2):
                c = "0" if s == 0 else vr(ACC + 16 * i, 16)
                if vtype: A(f"{MF} {vr(ACC+16*i,16)}, {vr(b+4+4*i,4)}, {vr(b,4)}, {c}")
                else:     A(f"{MF} {vr(ACC+16*i,16)}, {vr(b,4)}, {vr(b+4+4*i,4)}, {c}")
    A(f"s_cmp_eq_u32 s{sTY}, 3")
    A("s_cbranch_scc1 K1_vtype")
    mainloop(False)
    A(f"s_mov_b32 s{sT}, {f2u(CSCALE):#x}")
    A(f"s_cmp_eq_u32 s{sTY}, 2")
    A(f"s_cselect_b32 s{sT}, 1.0, s{sT}")
    A(f"s_lshl_b32 s25, s{sHG}, 2")
    A(f"s_and_b32 s26, s{sW}, 1")
    A(f"s_lshl_b32 s26, s26, 1")
    A("s_add_u32 s25, s25, s26")
    A(f"s_lshl_b32 s26, s{sRB}, 1")
    A(f"s_cmp_eq_u32 s{sTY}, 2")
    A("s_cbranch_scc1 K1_kaddr")
    A("s_lshl_b32 s26, s26, 15")
    A("s_lshl_b32 s25, s25, 10")
    A("s_add_u32 s25, s25, s26")
    A(f"s_lshl_b32 s26, s{sTY}, 21")
    A("s_add_u32 s25, s25, s26")
    A("s_mov_b32 s26, 32768")
    A("s_mov_b32 s27, 1024")
    A("s_branch K1_qkstore")
    A.label("K1_kaddr")
    A("s_lshl_b32 s25, s25, 6")
    A("s_add_u32 s25, s25, s26")
    A(f"s_mul_i32 s25, s25, {TB}")
    A(f"s_add_u32 s25, s25, {WS_KVB:#x}")
    A(f"s_mov_b32 s26, {TB}")
    A(f"s_mov_b32 s27, {64*TB}")
    A.label("K1_qkstore")
    A(f"v_lshlrev_b32 v{vT}, 4, v{vL}")
    A("s_nop 7")
    for i in range(2):
        for hh in range(2):
            b = ACC + 16 * i + 8 * hh
            p = PK + 4 * ((2*i+hh) & 1)
            for r in range(8): A(f"v_mul_f32 v{b+r}, s{sT}, v{b+r}")
            for r in range(4): A(f"v_cvt_pk_bf16_f32 v{p+r}, v{b+2*r}, v{b+2*r+1}")
            A(f"s_mul_i32 s42, s26, {i}")
            A(f"s_mul_i32 s43, s27, {hh}")
            A("s_add_u32 s42, s42, s43")
            A("s_add_u32 s42, s42, s25")
            A(f"buffer_store_dwordx4 {vr(p,4)}, v{vT}, s[12:15], s42 offen")
    A("s_branch K1_extras")
    A.label("K1_vtype")
    mainloop(True)
    A(f"v_bfe_u32 v{vT}, v{vL}, 4, 1")
    A(f"s_mov_b32 s42, {64*TB}")
    A(f"v_mul_lo_u32 v{vT}, v{vT}, s42")
    A(f"v_add_u32 v11, {1024+512}, v{vT}")
    A(f"v_lshrrev_b32 v{vT2}, 5, v{vL}")
    A(f"v_lshl_add_u32 v{vT}, v{vT2}, 8, v{vT}")
    A(f"v_and_b32 v{vT2}, 15, v{vL}")
    A(f"v_lshl_add_u32 v{vT}, v{vT2}, 4, v{vT}")
    A(f"s_lshl_b32 s25, s{sHG}, 2")
    A(f"s_and_b32 s26, s{sW}, 1")
    A(f"s_lshl_b32 s26, s26, 1")
    A("s_add_u32 s25, s25, s26")
    A("s_lshl_b32 s25, s25, 6")
    A(f"s_lshl_b32 s26, s{sRB}, 1")
    A("s_add_u32 s25, s25, s26")
    A(f"s_mul_i32 s25, s25, {TB}")
    A(f"s_add_u32 s25, s25, {WS_KVB:#x}")
    for r in range(4): A(f"v_mov_b32 v{FR+r}, {ONES:#x}")
    for i in range(2):
        for s in range(2):
            b = ACC + 16 * i + 8 * s
            p = PK + 4 * ((2*i+s) & 1)
            for r in range(4): A(f"v_cvt_pk_bf16_f32 v{p+r}, v{b+2*r}, v{b+2*r+1}")
            A(f"buffer_store_dwordx4 {vr(p,4)}, v{vT}, s[12:15], s25 offen offset:{1024 + i*TB + s*528}")
            A(f"buffer_store_dwordx4 {vr(FR,4)}, v11, s[12:15], s25 offen offset:{i*TB + s*528}")
    A.label("K1_extras")
    A(f"s_cmp_ge_u32 s{sHG}, 2")
    A("s_cbranch_scc1 K1_exit")
    A(f"s_cmp_ge_u32 s{sW}, 3")
    A("s_cbranch_scc1 K1_exit")
    A(f"s_lshl_b32 s{sT}, s{sHG}, 12")
    for q in range(4): A(f"v_add_u32 v{vXa+q}, s{sT}, v{vXa+q}")
    A(f"s_lshl_b32 s26, s{sRB}, 1")
    A(f"s_add_u32 s26, s26, s{sHG}")
    A(f"s_cmp_eq_u32 s{sW}, 2")
    A("s_cbranch_scc1 K1_gate")
    A(f"s_lshl_b32 s{sT}, s{sW}, 14")
    A(f"s_add_u32 s{sT}, s{sT}, 131072")
    A(f"v_lshrrev_b32 v{vT}, 5, v{vL}")
    A(f"v_lshlrev_b32 v{vT}, 3, v{vT}")
    A(f"v_bfe_u32 v{vT2}, v{vL}, 2, 2")
    A(f"v_add_u32 v{vT}, v{vT}, v{vT2}")
    A(f"v_and_b32 v{vT2}, 3, v{vL}")
    A(f"v_lshlrev_b32 v{vT2}, 3, v{vT2}")
    A(f"v_lshl_add_u32 v{vWa}, v{vT}, 5, v{vT2}")
    A(f"v_add_u32 v{vWa}, s{sT}, v{vWa}")
    A(f"s_mul_i32 s25, s26, {TB}")
    A(f"s_add_u32 s25, s25, {WS_KVA:#x}")
    A("s_cmp_eq_u32 s16, 1")
    A("s_cbranch_scc1 K1_xv")
    def xloop(mode):
        def rd(s):
            b = FR + 12 * (s % 3)
            if mode == "g":
                A(f"ds_read_b128 v[{b}:{b+3}], v{vWa} offset:{s*32}")
            else:
                A(f"ds_read_b64_tr_b16 v[{b}:{b+1}], v{vWa} offset:{s*512}")
                A(f"ds_read_b64_tr_b16 v[{b+2}:{b+3}], v{vWa} offset:{s*512+128}")
            A(f"ds_read_b128 v[{b+4}:{b+7}], v{vXa+(s&3)} offset:{(s>>2)*8192}")
        n = 2 if mode == "g" else 3
        rd(0); rd(1)
        for s in range(32):
            if s + 2 < 32:
                rd(s + 2); A(f"s_waitcnt lgkmcnt({2*n})")
            else:
                A(f"s_waitcnt lgkmcnt({n if s == 30 else 0})")
            b = FR + 12 * (s % 3)
            c = "0" if s == 0 else vr(ACC, 16)
            if mode == "v": A(f"{MF} {vr(ACC,16)}, {vr(b+4,4)}, {vr(b,4)}, {c}")
            else:           A(f"{MF} {vr(ACC,16)}, {vr(b,4)}, {vr(b+4,4)}, {c}")
        A("s_nop 15")
    xloop("k")
    A(f"v_lshlrev_b32 v{vT}, 4, v{vL}")
    for r in range(4): A(f"v_cvt_pk_bf16_f32 v{PK+r}, v{ACC+2*r}, v{ACC+2*r+1}")
    A(f"buffer_store_dwordx4 {vr(PK,4)}, v{vT}, s[12:15], s25 offen")
    A("s_endpgm")
    A.label("K1_xv")
    xloop("v")
    A(f"v_lshrrev_b32 v{vT2}, 5, v{vL}")
    A(f"v_lshlrev_b32 v{vT}, 8, v{vT2}")
    A(f"v_and_b32 v{vT2}, 15, v{vL}")
    A(f"v_lshl_add_u32 v{vT}, v{vT2}, 4, v{vT}")
    A(f"v_bfe_u32 v{vT2}, v{vL}, 4, 1")
    A(f"v_lshl_add_u32 v{vT}, v{vT2}, 30, v{vT}")
    A(f"v_mov_b32 v11, {1024+512}")
    for r in range(4): A(f"v_mov_b32 v{FR+r}, {ONES:#x}")
    for s in range(2):
        for r in range(4): A(f"v_cvt_pk_bf16_f32 v{PK+4*s+r}, v{ACC+8*s+2*r}, v{ACC+8*s+2*r+1}")
        A(f"buffer_store_dwordx4 {vr(PK+4*s,4)}, v{vT}, s[12:15], s25 offen offset:{1024+s*528}")
        A(f"buffer_store_dwordx4 {vr(FR,4)}, v11, s[12:15], s25 offen offset:{s*528}")
    A("s_endpgm")
    A.label("K1_gate")
    A(f"v_lshlrev_b32 v{vT}, 4, v{vL}")
    A(f"v_add_u32 v{vT}, s{sRING}, v{vT}")
    A(f"ds_write_b128 v{vT}, {vr(vG,4)}")
    A(f"v_lshrrev_b32 v{vT2}, 5, v{vL}")
    A(f"v_lshlrev_b32 v{vWa}, 4, v{vT2}")
    A(f"v_add_u32 v{vWa}, s{sRING}, v{vWa}")
    A("s_waitcnt lgkmcnt(0)")
    xloop("g")
    A(f"v_mul_f32 v{vT}, {f2u(-math.log2(math.e)):#x}, v{ACC}")
    A(f"v_exp_f32 v{vT}, v{vT}")
    A("s_nop 0")
    A(f"v_add_f32 v{vT}, 1.0, v{vT}")
    A(f"v_rcp_f32 v{vT}, v{vT}")
    A(f"v_lshlrev_b32 v{vT2}, 2, v{vL}")
    A(f"v_lshrrev_b32 v11, 5, v{vL}")
    A(f"v_lshl_add_u32 v{vT2}, v11, 30, v{vT2}")
    A("s_lshl_b32 s25, s26, 7")
    A(f"s_add_u32 s25, s25, {WS_G:#x}")
    A(f"buffer_store_dword v{vT}, v{vT2}, s[12:15], s25 offen")
    A.label("K1_exit")
    A("s_endpgm")
    return k, 96

def tile_code(Sc, P, qk, pv1, pv0, extra):
    d = {}
    for i in range(16): d[f"e{i}"] = f"v_exp_f32 v{Sc+i}, v{Sc+i}"
    for i in range(8): d[f"c{i}"] = f"v_cvt_pk_bf16_f32 v{P+i}, v{Sc+2*i}, v{Sc+2*i+1}"
    d["PV1"] = pv1; d["QK"] = qk; d["PV0"] = pv0
    order = "e0 X0 e1 PV1 e2 X1 e3 e4 X2 e5 X3 e6 QK e7 c0 c1 c2 c3 e8 X4 e9 e10 X5 e11 PV0 e12 X6 e13 e14 e15 c4 c5 c6 c7"
    for x in order.split():
        if x[0] == "X":
            if extra.get(x): A(extra[x])
        elif d[x]: A(d[x])

def gen_k2():
    k = "attn_kernel"
    kernel_begin(k)
    sW, sHG, sRB, sT, sT2, sKV, sCnt, sRT, sHD = 16, 17, 18, 22, 23, 24, 25, 26, 27
    vL, vK, vV, vT, vT2, vG = 1, 2, 3, 4, 5, 6
    NEG = 16; S0 = 32; S1 = 48; P = 64; KB = [72, 76]; VB = [80, 88]; Q = 96; O = 112
    A("s_cmp_ge_u32 s2, 256")
    A("s_cbranch_scc1 K2_exit")
    A("s_load_dwordx2 s[40:41], s[0:1], 88")
    A("v_lshrrev_b32 v4, 6, v0")
    A("v_and_b32 v1, 63, v0")
    A(f"v_readfirstlane_b32 s{sW}, v4")
    decode_wg(sHG, sRB, sT)
    A(f"v_lshlrev_b32 v{vK}, 4, v{vL}")
    A(f"v_and_b32 v{vT}, 31, v{vL}")
    A(f"v_lshrrev_b32 v{vT2}, 5, v{vL}")
    A(f"v_lshlrev_b32 v{vT2}, 8, v{vT2}")
    A(f"v_lshl_add_u32 v{vV}, v{vT}, 4, v{vT2}")
    A(f"v_add_u32 v{vV}, 1024, v{vV}")
    A(f"v_mov_b32 v{vT2}, {OOB:#x}")
    A(f"v_cmp_gt_u32 vcc, 16, v{vT}")
    A("s_nop 1")
    A(f"v_cndmask_b32 v{vV}, v{vT2}, v{vV}, vcc")
    A(f"v_and_b32 v{vT}, 27, v{vT}")
    A(f"v_mov_b32 v{vT2}, {1024+512}")
    A(f"v_cmp_eq_u32 vcc, 16, v{vT}")
    A("s_nop 1")
    A(f"v_cndmask_b32 v{vV}, v{vV}, v{vT2}, vcc")
    A("s_waitcnt lgkmcnt(0)")
    srd(12, 40, WS_SIZE)
    A(f"s_and_b32 s{sT}, s{sW}, 1")
    A(f"s_lshl_b32 s{sRT}, s{sRB}, 1")
    A(f"s_add_u32 s{sRT}, s{sRT}, s{sT}")
    A(f"s_lshr_b32 s{sHD}, s{sW}, 1")
    A(f"s_lshl_b32 s{sT}, s{sRT}, 15")
    A(f"s_lshl_b32 s{sT2}, s{sHG}, 12")
    A(f"s_add_u32 s{sT}, s{sT}, s{sT2}")
    A(f"s_mov_b32 s{sT2}, {WS_KVA:#x}")
    A(f"buffer_load_dwordx4 {vr(KB[1],4)}, v{vK}, s[12:15], s{sT2} offen")
    for q in range(4):
        A(f"buffer_load_dwordx4 {vr(Q+4*q,4)}, v{vK}, s[12:15], s{sT} offen offset:{q*1024}")
    A(f"s_mul_i32 s{sKV}, s{sHD}, {16*TB}")
    A(f"s_add_u32 s{sKV}, s{sKV}, {WS_KVA:#x}")
    A(f"buffer_load_dwordx4 {vr(KB[0],4)}, v{vK}, s[12:15], s{sKV} offen")
    A(f"buffer_load_dwordx4 {vr(VB[0],4)}, v{vV}, s[12:15], s{sKV} offen")
    A(f"buffer_load_dwordx4 {vr(VB[0]+4,4)}, v{vV}, s[12:15], s{sKV} offen offset:528")
    A(f"v_and_b32 v{vT}, 31, v{vL}")
    A(f"v_lshlrev_b32 v{vT}, 2, v{vT}")
    A(f"s_lshl_b32 s{sT}, s{sRT}, 7")
    A(f"s_add_u32 s{sT}, s{sT}, {WS_G:#x}")
    A(f"buffer_load_dword v{vG}, v{vT}, s[12:15], s{sT} offen")
    for r in range(4): A(f"v_mov_b32 v{VB[1]+4+r}, 0")
    for r in range(4): A(f"v_mov_b32 v{P+4+r}, 0")
    A("s_waitcnt vmcnt(4)")
    for q in range(4):
        A(f"{MF} {vr(O+16*q,16)}, {vr(KB[1],4)}, {vr(Q+4*q,4)}, 0")
    A(f"buffer_load_dwordx4 {vr(KB[1],4)}, v{vK}, s[12:15], s{sKV} offen offset:{TB}")
    A("s_nop 7")
    A(f"v_max3_f32 v{vT}, v{O}, v{O+1}, v{O+2}")
    A(f"v_max3_f32 v{vT2}, v{O+3}, v{O+4}, v{O+5}")
    idx = list(range(O + 6, O + 64))
    t = [vT, vT2]; n = 0
    while idx:
        a, b = idx.pop(0), idx.pop(0)
        A(f"v_max3_f32 v{t[n&1]}, v{t[n&1]}, v{a}, v{b}"); n += 1
    A(f"v_max_f32 v{vT}, v{vT}, v{vT2}")
    A(f"v_mov_b32 v{vT2}, v{vT}")
    A("s_nop 1")
    A(f"v_permlane32_swap_b32 v{vT}, v{vT2}")
    A(f"v_max_f32 v{vT}, v{vT}, v{vT2}")
    for r in range(16): A(f"v_sub_f32 v{NEG+r}, 0, v{vT}")
    for r in range(64): A(f"v_mov_b32 v{O+r}, 0")
    A("s_waitcnt vmcnt(4)")
    A(f"{MF} {vr(S0,16)}, {vr(KB[0],4)}, {vr(Q,4)}, {vr(NEG,16)}")
    A(f"s_mov_b32 s{sCnt}, 8")
    A("s_nop 7")
    A("s_nop 2")
    A.raw(".p2align 6")
    A.label("K2_aloop")
    for kb in range(2):
        for q in range(4):
            t = kb * 4 + q
            Sc, Sn = (S0, S1) if t % 2 == 0 else (S1, S0)
            Kq = KB[kb] if q < 3 else KB[1 - kb]
            nq = (q + 1) % 4
            Vp = VB[kb] if q > 0 else VB[1 - kb]
            Op = O + 16 * ((q - 1) % 4); Oc = O + 16 * q
            ex = {}
            if q == 0:
                o = (kb + 1) * TB
                ex["X1"] = f"buffer_load_dwordx4 {vr(VB[1-kb],4)}, v{vV}, s[12:15], s{sKV} offen offset:{o}" if o + 528 + 0 < 4096 else None
                ex["X3"] = f"buffer_load_dwordx4 {vr(VB[1-kb]+4,4)}, v{vV}, s[12:15], s{sKV} offen offset:{o+528}"
                if kb == 1:
                    ex["X0"] = f"s_add_u32 s{sKV}, s{sKV}, {2*TB}"
                    ex["X1"] = f"buffer_load_dwordx4 {vr(VB[1-kb],4)}, v{vV}, s[12:15], s{sKV} offen"
                    ex["X3"] = f"buffer_load_dwordx4 {vr(VB[1-kb]+4,4)}, v{vV}, s[12:15], s{sKV} offen offset:528"
                ex["X5"] = "s_waitcnt vmcnt(3)"
            if q == 3:
                ex["X3"] = "s_waitcnt vmcnt(2)"
                if kb == 0: ex["X4"] = f"buffer_load_dwordx4 {vr(KB[0],4)}, v{vK}, s[12:15], s{sT2} offen"
                else:       ex["X4"] = f"buffer_load_dwordx4 {vr(KB[1],4)}, v{vK}, s[12:15], s{sKV} offen offset:{TB}"
                if kb == 0: ex["X2"] = f"s_add_u32 s{sT2}, s{sKV}, {2*TB}"
                if kb == 1:
                    ex["X5"] = f"s_sub_u32 s{sCnt}, s{sCnt}, 1"
                    ex["X6"] = f"s_cmp_lg_u32 s{sCnt}, 0"
            tile_code(Sc, P,
                      f"{MF} {vr(Sn,16)}, {vr(Kq,4)}, {vr(Q+4*nq,4)}, {vr(NEG,16)}",
                      f"{MF} {vr(Op,16)}, {vr(Vp+4,4)}, {vr(P+4,4)}, {vr(Op,16)}",
                      f"{MF} {vr(Oc,16)}, {vr(VB[kb],4)}, {vr(P,4)}, {vr(Oc,16)}", ex)
    A("s_cbranch_scc1 K2_aloop")
    A("s_nop 0")
    A(f"{MF} {vr(O+48,16)}, {vr(VB[1]+4,4)}, {vr(P+4,4)}, {vr(O+48,16)}")
    A(f"s_lshl_b32 s{sT}, s{sHG}, 2")
    A(f"s_add_u32 s28, s{sT}, s{sHD}")
    A(f"s_lshl_b32 s{sT}, s{sRT}, 5")
    A(f"s_add_u32 s{sT}, s{sT}, s28")
    A(f"s_lshl_b32 s29, s{sT}, 10")
    A(f"s_add_u32 s{sT}, s29, {WS_QB:#x}")
    A("s_waitcnt vmcnt(0)")
    A(f"buffer_load_dwordx4 {vr(Q,4)}, v{vK}, s[12:15], s{sT} offen")
    A(f"s_lshl_b32 s{sKV}, s28, 6")
    A(f"s_add_u32 s{sKV}, s{sKV}, s{sRT}")
    A(f"s_mul_i32 s{sKV}, s{sKV}, {TB}")
    A(f"s_add_u32 s{sKV}, s{sKV}, {WS_KVB:#x}")
    A(f"buffer_load_dwordx4 {vr(KB[0],4)}, v{vK}, s[12:15], s{sKV} offen")
    A(f"buffer_load_dwordx4 {vr(VB[0],4)}, v{vV}, s[12:15], s{sKV} offen")
    A(f"buffer_load_dwordx4 {vr(VB[0]+4,4)}, v{vV}, s[12:15], s{sKV} offen offset:528")
    A(f"s_sub_u32 s{sKV}, s{sKV}, {TB}")
    A(f"buffer_load_dwordx4 {vr(KB[1],4)}, v{vK}, s[12:15], s{sKV} offen")
    A(f"s_mul_i32 s{sT}, s{sW}, {4*2304}")
    A(f"v_add_u32 v{vT}, s{sT}, v{vK}")
    A(f"v_lshlrev_b32 v{vT2}, 2, v{vL}")
    A(f"v_add_u32 v{vT2}, s{sT}, v{vT2}")
    for q in range(4):
        if q == 3: A("s_nop 3")
        A(f"ds_write_b128 v{vT}, {vr(O+16*q,4)} offset:{q*2304}")
        A(f"ds_write_b128 v{vT}, {vr(O+16*q+4,4)} offset:{q*2304+1024}")
        A(f"ds_write_b32 v{vT2}, v{O+16*q+8} offset:{q*2304+2048}")
    OB = Q + 4 + 12
    OB = 176
    CF = 192
    for r in range(16):
        c0 = (r & 3) + 8 * (r >> 2)
        A(f"s_mov_b32 s{48+2*r}, {(1 << c0) - 1:#x}")
        A(f"s_mov_b32 s{49+2*r}, {(1 << (c0 + 4)) - 1:#x}")
    A(f"v_mov_b32 v{vT}, {f2u(-1e38):#x}")
    for r in range(16):
        A(f"v_cndmask_b32_e64 v{CF+r}, 0, v{vT}, s[{48+2*r}:{49+2*r}]")
    for r in range(16): A(f"v_mov_b32 v{OB+r}, 0")
    for r in range(4): A(f"v_mov_b32 v{VB[1]+4+r}, 0")
    for r in range(4): A(f"v_mov_b32 v{P+4+r}, 0")
    A("s_waitcnt vmcnt(3)")
    A(f"{MF} {vr(S0,16)}, {vr(KB[0],4)}, {vr(Q,4)}, {vr(CF,16)}")
    A("s_nop 7")
    A("s_nop 3")
    A(f"v_max3_f32 v7, v{S0}, v{S0+1}, v{S0+2}")
    A(f"v_max3_f32 v8, v{S0+3}, v{S0+4}, v{S0+5}")
    for i in range(5):
        A(f"v_max3_f32 v{7+(i&1)}, v{7+(i&1)}, v{S0+6+2*i}, v{S0+7+2*i}")
    A("v_max_f32 v7, v7, v8")
    A("v_mov_b32 v8, v7")
    A("s_nop 1")
    A("v_permlane32_swap_b32 v7, v8")
    A("v_max_f32 v7, v7, v8")
    A(f"v_sub_f32 v{NEG}, 0, v7")
    for r in range(16): A(f"v_sub_f32 v{S0+r}, v{S0+r}, v7")
    for r in range(1, 16): A(f"v_mov_b32 v{NEG+r}, v{NEG}")
    for r in range(16):
        A(f"v_cndmask_b32_e64 v{CF+r}, v{vT}, v{NEG}, s[{48+2*r}:{49+2*r}]")
    for j in range(9):
        Sc, Sn = (S0, S1) if j % 2 == 0 else (S1, S0)
        ex = {}
        if j < 8:
            ex["X1"] = f"buffer_load_dwordx4 {vr(VB[(j+1)%2],4)}, v{vV}, s[12:15], s{sKV} offen"
            ex["X2"] = f"buffer_load_dwordx4 {vr(VB[(j+1)%2]+4,4)}, v{vV}, s[12:15], s{sKV} offen offset:528"
            ex["X3"] = "s_waitcnt vmcnt(2)"
            if j < 7:
                ex["X4"] = f"s_sub_u32 s{sKV}, s{sKV}, {TB}"
                ex["X5"] = f"buffer_load_dwordx4 {vr(KB[j%2],4)}, v{vK}, s[12:15], s{sKV} offen"
            qk = f"{MF} {vr(Sn,16)}, {vr(KB[(j+1)%2],4)}, {vr(Q,4)}, {vr(CF if j == 7 else NEG,16)}"
            ex["X6"] = f"s_cmp_eq_u32 s{sRT}, {j}"
        else:
            qk = None
            ex["X3"] = "s_waitcnt vmcnt(0)"
        tile_code(Sc, P, qk,
                  f"{MF} {vr(OB,16)}, {vr(VB[(j+1)%2]+4,4)}, {vr(P+4,4)}, {vr(OB,16)}",
                  f"{MF} {vr(OB,16)}, {vr(VB[j%2],4)}, {vr(P,4)}, {vr(OB,16)}", ex)
        if j < 8: A(f"s_cbranch_scc1 K2_bdone{j%2}")
    A.label("K2_bdone0")
    A("s_nop 1")
    A(f"{MF} {vr(OB,16)}, {vr(VB[0]+4,4)}, {vr(P+4,4)}, {vr(OB,16)}")
    A("s_branch K2_bfin")
    A.label("K2_bdone1")
    A("s_nop 0")
    A(f"{MF} {vr(OB,16)}, {vr(VB[1]+4,4)}, {vr(P+4,4)}, {vr(OB,16)}")
    A.label("K2_bfin")
    A("s_waitcnt vmcnt(0) lgkmcnt(0)")
    A("s_barrier")
    A(f"s_and_b32 s{sT}, s{sW}, 1")
    A(f"s_lshl_b32 s{sT}, s{sT}, 2")
    A(f"s_add_u32 s{sT}, s{sT}, s{sHD}")
    A(f"s_mul_i32 s{sT}, s{sT}, 2304")
    A(f"v_add_u32 v{vT}, s{sT}, v{vK}")
    A(f"v_lshlrev_b32 v{vT2}, 2, v{vL}")
    A(f"v_add_u32 v{vT2}, s{sT}, v{vT2}")
    for i in range(4):
        A(f"ds_read_b128 {vr(O+16*i,4)}, v{vT} offset:{i*8*2304}")
        A(f"ds_read_b128 {vr(O+16*i+4,4)}, v{vT} offset:{i*8*2304+1024}")
        A(f"ds_read_b32 v{O+16*i+8}, v{vT2} offset:{i*8*2304+2048}")
    A(f"v_rcp_f32 v7, v{OB+8}")
    A(f"v_sub_f32 v8, 1.0, v{vG}")
    A("v_mul_f32 v7, v7, v8")
    for r in range(8): A(f"v_mul_f32 v{OB+r}, v{OB+r}, v7")
    for r in range(4): A(f"v_cvt_pk_bf16_f32 v{P+r}, v{OB+2*r}, v{OB+2*r+1}")
    A(f"s_lshl_b32 s{sT}, s{sRT}, 6")
    A(f"s_add_u32 s{sT}, s{sT}, s28")
    A(f"s_lshl_b32 s{sT}, s{sT}, 10")
    A(f"s_add_u32 s{sT}, s{sT}, {WS_O:#x}")
    A(f"s_add_u32 s{sT2}, s{sT}, {32*1024}")
    A(f"buffer_store_dwordx4 {vr(P,4)}, v{vK}, s[12:15], s{sT2} offen")
    A("s_waitcnt lgkmcnt(0)")
    for r in range(9):
        A(f"v_add_f32 v{O+r}, v{O+r}, v{O+16+r}")
        A(f"v_add_f32 v{O+32+r}, v{O+32+r}, v{O+48+r}")
    for r in range(9):
        A(f"v_add_f32 v{O+r}, v{O+r}, v{O+32+r}")
    A(f"v_rcp_f32 v7, v{O+8}")
    A("s_nop 0")
    A(f"v_mul_f32 v7, v7, v{vG}")
    for r in range(8): A(f"v_mul_f32 v{O+r}, v{O+r}, v7")
    for r in range(4): A(f"v_cvt_pk_bf16_f32 v{P+4+r}, v{O+2*r}, v{O+2*r+1}")
    A(f"buffer_store_dwordx4 {vr(P+4,4)}, v{vK}, s[12:15], s{sT} offen")
    A.label("K2_exit")
    A("s_endpgm")
    return k, 208

def gen_k3():
    k = "outp_kernel"
    kernel_begin(k)
    sW, sCB, sRB, sT, sT2, sO = 16, 17, 18, 22, 23, 24
    vL, vWd, vWa, vT, vT2, vK = 1, 2, 3, 4, 5, 6
    ACC = 16; OF = 32
    WF = 160
    A("s_cmp_ge_u32 s2, 256")
    A("s_cbranch_scc1 K3_exit")
    A("s_load_dwordx2 s[28:29], s[0:1], 32")
    A("s_load_dwordx2 s[30:31], s[0:1], 56")
    A("s_load_dwordx2 s[32:33], s[0:1], 72")
    A("s_load_dwordx2 s[40:41], s[0:1], 88")
    A("v_lshrrev_b32 v4, 6, v0")
    A("v_and_b32 v1, 63, v0")
    A(f"v_readfirstlane_b32 s{sW}, v4")
    decode_wg(sCB, sRB, sT)
    A(f"v_lshlrev_b32 v{vK}, 4, v{vL}")
    A(f"v_lshrrev_b32 v{vT}, 2, v{vL}")
    A(f"v_lshlrev_b32 v{vT}, 10, v{vT}")
    A(f"v_and_b32 v{vT2}, 3, v{vL}")
    A(f"v_lshl_add_u32 v{vWd}, v{vT2}, 4, v{vT}")
    A(f"v_lshrrev_b32 v{vT}, 5, v{vL}")
    A(f"v_lshlrev_b32 v{vT}, 2, v{vT}")
    A(f"v_bfe_u32 v{vT2}, v{vL}, 2, 2")
    A(f"v_add_u32 v{vT}, v{vT}, v{vT2}")
    A(f"v_and_b32 v{vT2}, 3, v{vL}")
    A(f"v_lshlrev_b32 v{vT2}, 3, v{vT2}")
    A(f"v_bfe_u32 v7, v{vL}, 4, 1")
    A(f"v_lshl_add_u32 v{vT2}, v7, 5, v{vT2}")
    A(f"v_lshl_add_u32 v{vWa}, v{vT}, 6, v{vT2}")
    A(f"s_lshr_b32 s{sT}, s{sW}, 1")
    A(f"s_lshl_b32 s25, s{sT}, 15")
    A(f"v_add_u32 v{vWa}, s25, v{vWa}")
    A("s_waitcnt lgkmcnt(0)")
    srd(12, 40, WS_SIZE)
    srd(4, 32, 2048 * 1024)
    A(f"s_cmp_lt_u32 s{sW}, 4")
    A("s_cselect_b32 s8, s28, s30")
    A("s_cselect_b32 s9, s29, s31")
    A("s_and_b32 s9, s9, 0xffff")
    A(f"s_mov_b32 s10, {512*1024:#x}")
    A("s_mov_b32 s11, 0x00020000")
    A(f"s_and_b32 s{sT}, s{sW}, 1")
    A(f"s_lshl_b32 s26, s{sT}, 14")
    A("s_add_u32 s26, s26, s25")
    A(f"s_lshl_b32 s27, s{sT}, 18")
    A(f"s_lshl_b32 s{sT2}, s{sCB}, 7")
    A(f"s_add_u32 s27, s27, s{sT2}")
    A(f"s_bfe_u32 s34, s{sW}, 0x10001")
    A(f"s_lshl_b32 s{sT2}, s34, 6")
    A(f"s_add_u32 s27, s27, s{sT2}")
    for i in range(16):
        A(f"s_add_u32 m0, s26, {i*1024}")
        if i: A("s_add_u32 s27, s27, 16384")
        else: A("s_nop 0")
        A(f"buffer_load_dwordx4 v{vWd}, s[8:11], s27 offen lds")
    A(f"s_lshl_b32 s35, s{sRB}, 1")
    A(f"s_add_u32 s35, s35, s{sT}")
    A(f"s_lshl_b32 s{sO}, s35, 16")
    A(f"s_lshr_b32 s{sT2}, s{sW}, 2")
    A(f"s_lshl_b32 s{sT2}, s{sT2}, 15")
    A(f"s_add_u32 s{sO}, s{sO}, s{sT2}")
    A(f"s_add_u32 s{sO}, s{sO}, {WS_O:#x}")
    for s in range(32):
        if s and s % 4 == 0: A(f"s_add_u32 s{sO}, s{sO}, 4096")
        A(f"buffer_load_dwordx4 {vr(OF+4*s,4)}, v{vK}, s[12:15], s{sO} offen offset:{(s%4)*1024}")
    A("s_waitcnt vmcnt(32)")
    A("s_barrier")
    def rd(s):
        b = WF + 4 * (s % 3)
        A(f"ds_read_b64_tr_b16 v[{b}:{b+1}], v{vWa} offset:{s*1024}")
        A(f"ds_read_b64_tr_b16 v[{b+2}:{b+3}], v{vWa} offset:{s*1024+512}")
    rd(0); rd(1)
    for s in range(32):
        if s + 2 < 32:
            rd(s + 2); A(f"s_waitcnt vmcnt({31-s}) lgkmcnt(4)")
        else:
            A(f"s_waitcnt vmcnt({31-s}) lgkmcnt({2 if s == 30 else 0})")
        c = "0" if s == 0 else vr(ACC, 16)
        A(f"{MF} {vr(ACC,16)}, {vr(WF+4*(s%3),4)}, {vr(OF+4*s,4)}, {c}")
    A("s_barrier")
    A(f"s_and_b32 s{sT2}, s{sW}, 3")
    A(f"s_lshl_b32 s{sT2}, s{sT2}, 12")
    A(f"v_add_u32 v{vT}, s{sT2}, v{vK}")
    A("s_nop 7")
    A(f"s_cmp_lt_u32 s{sW}, 4")
    A("s_cbranch_scc1 K3_lo")
    for i in range(4): A(f"ds_write_b128 v{vT}, {vr(ACC+4*i,4)} offset:{i*1024}")
    A("s_waitcnt lgkmcnt(0)")
    A("s_barrier")
    A("s_endpgm")
    A.label("K3_lo")
    A("s_barrier")
    for i in range(4): A(f"ds_read_b128 {vr(OF+4*i,4)}, v{vT} offset:{i*1024}")
    A(f"v_and_b32 v{vT}, 31, v{vL}")
    A(f"v_lshlrev_b32 v{vT}, 10, v{vT}")
    A(f"v_lshrrev_b32 v{vT2}, 5, v{vL}")
    A(f"v_lshl_add_u32 v{vT}, v{vT2}, 3, v{vT}")
    A(f"s_lshl_b32 s{sT}, s35, 15")
    A(f"s_lshl_b32 s{sT2}, s{sCB}, 7")
    A(f"s_add_u32 s{sT}, s{sT}, s{sT2}")
    A(f"s_lshl_b32 s{sT2}, s34, 6")
    A(f"s_add_u32 s{sT}, s{sT}, s{sT2}")
    A("s_waitcnt lgkmcnt(0)")
    for r in range(16): A(f"v_add_f32 v{ACC+r}, v{ACC+r}, v{OF+r}")
    for r in range(8): A(f"v_cvt_pk_bf16_f32 v{OF+16+r}, v{ACC+2*r}, v{ACC+2*r+1}")
    for g in range(4): A(f"buffer_store_dwordx2 {vr(OF+16+2*g,2)}, v{vT}, s[4:7], s{sT} offen offset:{g*16}")
    A.label("K3_exit")
    A("s_endpgm")
    return k, 176

def main():
    hdr = open("cdna_kernels/" + NAME + ".s.ref").read().split("\n")
    head = [l for l in hdr if l.startswith(";") and "@launch" not in l and "Override launch" not in l and "grid=ceil" not in l]
    out = "\n".join(head) + "\n"
    out += "; @launch kernel=proj_kernel grid=(256,1,1) block=(512,1,1) lds=163840\n"
    out += f"; @launch kernel=attn_kernel grid=(256,1,1) block=(512,1,1) lds={32*2304}\n"
    out += "; @launch kernel=outp_kernel grid=(256,1,1) block=(512,1,1) lds=131072\n"
    out += '.amdgcn_target "amdgcn-amd-amdhsa--gfx950"\n.text\n'
    ks = [gen_k1(), gen_k2(), gen_k3()]
    body = A.text()
    errs = check_hazards(body)
    for e in errs: print("HAZARD", e, file=sys.stderr)
    out += body
    out += '.section .rodata,"a"\n'
    for k, nv in ks: out += kd(k, nv)
    path = sys.argv[1] if len(sys.argv) > 1 else "cdna_kernels/" + NAME + ".s"
    open(path, "w").write(out)
    print("wrote", path, len(out), "bytes;", len(errs), "hazard warnings")
main()
```

```python
import sys, math, struct
from asmlib import Asm, vr, sr, check_hazards

NAME = "gated_mix__grouped_kv_mqa__sliding_block__prompt"
def f2u(x): return struct.unpack("<I", struct.pack("<f", x))[0]
CSCALE = 0.25 * math.log2(math.e)
OPT = dict(a[2:].split("=") if "=" in a else (a[2:], "1") for a in sys.argv[1:] if a.startswith("--"))
PROF = "prof" in OPT

TB = 2176
WS_KVA = 0
WS_FL = 0x40000
FL_KVA, FL_KVB, FL_OB, FL_OA = WS_FL, WS_FL + 0x1000, WS_FL + 0x4000, WS_FL + 0x6000
WS_KVB = 0x100000
WS_O = 0x600000
WS_PROF = 15 << 20
WS_SIZE = 16 << 20
OOB = 0x40000000
ONES = 0x3F803F80
L_X, L_WQ, L_WKV, L_QX, L_GATE, L_CNT, L_COMB = 0, 65536, 131072, 147456, 155648, 156672, 131072
L_G = L_CNT + 256
SPIN = 50000
MF = "v_mfma_f32_32x32x16_bf16"
A = Asm()

sW, sHG, sRB, sNON = 16, 17, 18, 19
sT, sT2, sT3, sT4 = 24, 25, 26, 27
sJ, sKV, sCnt, sHEAD, sRT0, sA0, sA1, sA2 = 28, 29, 30, 31, 32, 33, 34, 35
sSP = 36
P_X, P_WQ, P_WK, P_WV, P_AWO, P_WQKV, P_BWO, P_GATE, P_OUT, P_DBG, P_WS = 44, 46, 48, 50, 52, 56, 58, 60, 62, 64, 66
vL, vK, vV, vT, vT2, vT3 = 1, 2, 3, 4, 5, 6

def srd(d, ptr, size):
    A(f"s_mov_b32 s{d}, s{ptr}")
    A(f"s_and_b32 s{d+1}, s{ptr+1}, 0xffff")
    A(f"s_mov_b32 s{d+2}, {size:#x}")
    A(f"s_mov_b32 s{d+3}, 0x00020000")

NST = [0]
def stamp(real=False):
    if not PROF: return
    i = NST[0]; NST[0] += 1
    assert 70 + 2 * i + 1 <= 101, "too many stamps"
    A(f"{'s_memrealtime' if real else 's_memtime'} s[{70+2*i}:{71+2*i}]")
def stamp_flush():
    if not PROF: return
    stamp(); stamp(real=True)
    A("s_waitcnt lgkmcnt(0)")
    A("s_lshl_b32 s68, s2, 4")
    A(f"s_add_u32 s68, s68, s{sW}")
    A("s_lshl_b32 s68, s68, 6")
    A(f"s_add_u32 s68, s68, {WS_PROF:#x}")
    A("v_mov_b32 v251, 0")
    for i in range(NST[0]):
        A(f"v_mov_b32 v250, s{70+2*i}")
        A(f"buffer_store_dword v250, v251, s[12:15], s68 offen offset:{4*i}")
    A("s_waitcnt vmcnt(0)")

def poll_flags(va, soff, n2=None, slp=2, vd=None):
    vd = vd if vd is not None else vT2
    l = A.uid("poll"); d = A.uid("polld")
    A(f"s_mov_b32 s{sSP}, {SPIN}")
    A.label(l)
    A(f"buffer_load_dword v{vd}, v{va}, s[12:15], s{soff} offen sc1")
    if n2 is not None: A(f"buffer_load_dword v{vd+1}, v{va}, s[12:15], s{soff} offen offset:{n2} sc1")
    A("s_waitcnt vmcnt(0)")
    A(f"v_cmp_ne_u32 vcc, s{sNON}, v{vd}")
    if n2 is not None:
        A(f"v_cmp_ne_u32 s[38:39], s{sNON}, v{vd+1}")
        A("s_nop 1")
        A("s_or_b64 vcc, vcc, s[38:39]")
    else:
        A("s_nop 1")
    A(f"s_cbranch_vccz {d}")
    A(f"s_sub_u32 s{sSP}, s{sSP}, 1")
    A(f"s_cbranch_scc1 {d}")
    A(f"s_sleep {slp}")
    A(f"s_branch {l}")
    A.label(d)

def flag_store(soff):
    A(f"v_mov_b32 v{vT}, s{sNON}")
    A(f"v_mov_b32 v{vT2}, 0")
    A("s_mov_b64 exec, 1")
    A(f"buffer_store_dword v{vT}, v{vT2}, s[12:15], s{soff} offen sc1")
    A("s_mov_b64 exec, -1")

def team_add(cnt, last_label=None, n=4):
    A(f"v_mov_b32 v{vT}, {L_CNT + 4*cnt}")
    A(f"v_mov_b32 v{vT2}, 1")
    A("s_mov_b64 exec, 1")
    if last_label:
        A(f"ds_add_rtn_u32 v{vT2}, v{vT}, v{vT2}")
        A("s_waitcnt lgkmcnt(0)")
        A("s_mov_b64 exec, -1")
        A(f"v_readfirstlane_b32 s{sT}, v{vT2}")
        A("s_nop 1")
        A(f"s_cmp_lg_u32 s{sT}, {n-1}")
        A(f"s_cbranch_scc1 {last_label}")
    else:
        A(f"ds_add_u32 v{vT}, v{vT2}")
        A("s_mov_b64 exec, -1")

def team_wait(cnt, n=4, slp=2):
    l = A.uid("tw"); d = A.uid("twd")
    A(f"v_mov_b32 v{vT}, {L_CNT + 4*cnt}")
    A(f"s_mov_b32 s{sSP}, {SPIN}")
    A.label(l)
    A(f"ds_read_b32 v{vT2}, v{vT}")
    A("s_waitcnt lgkmcnt(0)")
    A(f"v_readfirstlane_b32 s{sT}, v{vT2}")
    A("s_nop 1")
    A(f"s_cmp_ge_u32 s{sT}, {n}")
    A(f"s_cbranch_scc1 {d}")
    A(f"s_sub_u32 s{sSP}, s{sSP}, 1")
    A(f"s_cbranch_scc1 {d}")
    A(f"s_sleep {slp}")
    A(f"s_branch {l}")
    A.label(d)

def tile_code(Sc, P, qk, pv1, pv0, extra):
    d = {}
    for i in range(16): d[f"e{i}"] = f"v_exp_f32 v{Sc+i}, v{Sc+i}"
    for i in range(8): d[f"c{i}"] = f"v_cvt_pk_bf16_f32 v{P+i}, v{Sc+2*i}, v{Sc+2*i+1}"
    d["PV1"] = pv1; d["QK"] = qk; d["PV0"] = pv0
    order = "e0 X0 e1 PV1 e2 X1 e3 e4 X2 e5 X3 e6 QK e7 c0 c1 c2 c3 e8 X4 e9 e10 X5 e11 PV0 e12 X6 e13 e14 e15 c4 c5 c6 c7"
    for x in order.split():
        if x[0] == "X":
            if extra.get(x): A(extra[x])
        elif d[x]: A(d[x])

NEG, S0, S1, P = 16, 32, 48, 64

def lane_max_all(regs, dst, tmp):
    regs = list(regs)
    A(f"v_max3_f32 v{dst}, v{regs[0]}, v{regs[1]}, v{regs[2]}")
    A(f"v_max3_f32 v{tmp}, v{regs[3]}, v{regs[4]}, v{regs[5]}")
    rest = regs[6:]; t = [dst, tmp]; n = 0
    while rest:
        a, b = rest.pop(0), rest.pop(0)
        A(f"v_max3_f32 v{t[n&1]}, v{t[n&1]}, v{a}, v{b}"); n += 1
    A(f"v_max_f32 v{dst}, v{dst}, v{tmp}")
    A(f"v_mov_b32 v{tmp}, v{dst}")
    A("s_nop 1")
    A(f"v_permlane32_swap_b32 v{dst}, v{tmp}")
    A(f"v_max_f32 v{dst}, v{dst}, v{tmp}")

def mask_tuple(dst, v_true, v_false):
    for r in range(16):
        c0 = (r & 3) + 8 * (r >> 2)
        p = 40 + 2 * (r & 1)
        A(f"s_mov_b32 s{p}, {(1 << c0) - 1:#x}")
        A(f"s_mov_b32 s{p+1}, {(1 << (c0 + 4)) - 1:#x}")
        A(f"v_cndmask_b32_e64 v{dst+r}, {v_false}, {v_true}, s[{p}:{p+1}]")

def range_check(O, bad):
    A(f"v_max3_f32 v{vT}, |v{O}|, |v{O+1}|, |v{O+2}|")
    A(f"v_max3_f32 v{vT2}, |v{O+3}|, |v{O+4}|, |v{O+5}|")
    A(f"v_max3_f32 v{vT}, v{vT}, |v{O+6}|, |v{O+7}|")
    A(f"s_mov_b32 s{sT}, {f2u(2.0**-60):#x}")
    A(f"s_mov_b32 s{sT2}, {f2u(2.0**40):#x}")
    A(f"s_mov_b32 s{sT3}, {f2u(2.0**120):#x}")
    A(f"v_add_f32 v{vT}, v{vT}, v{vT2}")
    A(f"v_cmp_nlt_f32 vcc, s{sT}, v{O+8}")
    A(f"v_cmp_ngt_f32 s[38:39], s{sT2}, v{O+8}")
    A(f"v_cmp_ngt_f32 s[40:41], s{sT3}, v{vT}")
    A("s_nop 1")
    A("s_or_b64 vcc, vcc, s[38:39]")
    A("s_or_b64 vcc, vcc, s[40:41]")
    A(f"s_cbranch_vccnz {bad}")

def slow_path(name, ret, Qr, O, s_base, s_n, step, masks, KB, VB, MK):
    lp1, lp2 = A.uid("sp1"), A.uid("sp2")
    vM, vM2, vBig = 7, 8, 9
    A.label(name)
    A("s_waitcnt vmcnt(0) lgkmcnt(0)")
    A(f"v_mov_b32 v{vBig}, {f2u(-1e38):#x}")
    def set_mask():
        if not masks:
            return
        l0, l8, ld = A.uid("m0"), A.uid("m8"), A.uid("md")
        A(f"s_cmp_eq_u32 s{sA1}, 0")
        A(f"s_cbranch_scc1 {l0}")
        A(f"s_cmp_eq_u32 s{sA1}, 8")
        A(f"s_cbranch_scc1 {l8}")
        for r in range(16): A(f"v_mov_b32 v{MK+r}, 0")
        A(f"s_branch {ld}")
        A.label(l0); mask_tuple(MK, f"v{vBig}", "0"); A(f"s_branch {ld}")
        A.label(l8); mask_tuple(MK, "0", f"v{vBig}")
        A.label(ld)
    C = vr(MK, 16) if masks else "0"
    A(f"v_mov_b32 v{vM}, v{vBig}")
    A(f"s_mov_b32 s{sA0}, s{s_base}")
    A(f"s_mov_b32 s{sA1}, 0")
    A.label(lp1)
    A(f"buffer_load_dwordx4 {vr(KB,4)}, v{vK}, s[12:15], s{sA0} offen sc1")
    set_mask()
    A("s_waitcnt vmcnt(0)")
    A("s_nop 1")
    A(f"{MF} {vr(S0,16)}, {vr(KB,4)}, {vr(Qr,4)}, {C}")
    A(f"s_add_u32 s{sA0}, s{sA0}, {step & 0xffffffff:#x}")
    A(f"s_add_u32 s{sA1}, s{sA1}, 1")
    A("s_nop 15")
    for i in range(8): A(f"v_max3_f32 v{vM}, v{vM}, v{S0+2*i}, v{S0+2*i+1}")
    A(f"s_cmp_lt_u32 s{sA1}, s{s_n}")
    A(f"s_cbranch_scc1 {lp1}")
    A(f"v_mov_b32 v{vM2}, v{vM}")
    A("s_nop 1")
    A(f"v_permlane32_swap_b32 v{vM}, v{vM2}")
    A(f"v_max_f32 v{vM}, v{vM}, v{vM2}")
    for r in range(16): A(f"v_mov_b32 v{O+r}, 0")
    A(f"s_mov_b32 s{sA0}, s{s_base}")
    A(f"s_mov_b32 s{sA1}, 0")
    A.label(lp2)
    A(f"buffer_load_dwordx4 {vr(KB,4)}, v{vK}, s[12:15], s{sA0} offen sc1")
    A(f"buffer_load_dwordx4 {vr(VB,4)}, v{vV}, s[12:15], s{sA0} offen sc1")
    A(f"buffer_load_dwordx4 {vr(VB+4,4)}, v{vV}, s[12:15], s{sA0} offen offset:528 sc1")
    set_mask()
    A("s_waitcnt vmcnt(0)")
    A("s_nop 1")
    A(f"{MF} {vr(S0,16)}, {vr(KB,4)}, {vr(Qr,4)}, {C}")
    A(f"s_add_u32 s{sA0}, s{sA0}, {step & 0xffffffff:#x}")
    A(f"s_add_u32 s{sA1}, s{sA1}, 1")
    A("s_nop 15")
    for r in range(16): A(f"v_sub_f32 v{S0+r}, v{S0+r}, v{vM}")
    for r in range(16): A(f"v_exp_f32 v{S0+r}, v{S0+r}")
    A("s_nop 0")
    for i in range(8): A(f"v_cvt_pk_bf16_f32 v{P+i}, v{S0+2*i}, v{S0+2*i+1}")
    A("s_nop 1")
    A(f"{MF} {vr(O,16)}, {vr(VB,4)}, {vr(P,4)}, {vr(O,16)}")
    A(f"{MF} {vr(O,16)}, {vr(VB+4,4)}, {vr(P+4,4)}, {vr(O,16)}")
    A(f"s_cmp_lt_u32 s{sA1}, s{s_n}")
    A("s_nop 15")
    A(f"s_cbranch_scc1 {lp2}")
    A(f"s_branch {ret}")

def normalize_store(O, PK, soff):
    A(f"v_rcp_f32 v{vT}, v{O+8}")
    A("s_nop 0")
    for r in range(8): A(f"v_mul_f32 v{O+r}, v{O+r}, v{vT}")
    for r in range(4): A(f"v_cvt_pk_bf16_f32 v{PK+r}, v{O+2*r}, v{O+2*r+1}")
    A(f"buffer_store_dwordx4 {vr(PK,4)}, v{vK}, s[12:15], s{soff} offen sc1")

def tail_dma():
    A(f"v_and_b32 v{vT}, 7, v{vL}")
    A(f"v_lshlrev_b32 v{vT}, 5, v{vT}")
    A(f"s_lshl_b32 s{sT3}, s{sRB}, 8")
    A(f"s_add_u32 s{sT3}, s{sT3}, {FL_OA:#x}")
    A(f"s_and_b32 s{sT}, s{sW}, 1")
    A(f"s_and_b32 s{sT2}, s{sW}, 6")
    A(f"s_lshl_b32 s{sA0}, s{sT}, 15")
    A(f"s_lshl_b32 s{sT2}, s{sT2}, 10")
    A(f"s_add_u32 s{sA0}, s{sA0}, s{sT2}")
    A(f"s_lshl_b32 s{sA1}, s{sRB}, 1")
    A(f"s_add_u32 s{sA1}, s{sA1}, s{sT}")
    A(f"s_lshl_b32 s{sA1}, s{sA1}, 16")
    A(f"s_add_u32 s{sA1}, s{sA1}, s{sT2}")
    A(f"s_add_u32 s{sA1}, s{sA1}, {WS_O:#x}")
    poll_flags(vT, sT3, slp=1)
    stamp()
    for m in range(4):
        A(f"s_add_u32 m0, s{sA0}, {m*8192}")
        if m: A(f"s_add_u32 s{sA1}, s{sA1}, 8192")
        else: A("s_nop 0")
        A(f"buffer_load_dwordx4 v{vK}, s[12:15], s{sA1} offen sc1 lds")
        A(f"buffer_load_dwordx4 v{vK}, s[12:15], s{sA1} offen offset:1024 sc1 lds")

def gen():
    k = NAME + "_kernel"
    A.raw(f".globl {k}\n.p2align 8\n.type {k},@function\n{k}:")
    A("s_cmp_ge_u32 s2, 256")
    A("s_cbranch_scc1 L_exit")
    stamp(real=True); stamp()
    A("s_load_dwordx16 s[44:59], s[0:1], 0")
    A("s_load_dwordx8 s[60:67], s[0:1], 64")
    A("s_memrealtime s[22:23]")
    vXd, vWd, vXa, vWa = 7, 8, 9, 13
    A(f"v_lshrrev_b32 v{vT}, 6, v0")
    A(f"v_and_b32 v{vL}, 63, v0")
    A(f"v_readfirstlane_b32 s{sW}, v{vT}")
    A(f"s_and_b32 s{sRB}, s2, 7")
    A(f"s_lshl_b32 s{sRB}, s{sRB}, 2")
    A(f"s_bfe_u32 s{sT}, s2, 0x20003")
    A(f"s_add_u32 s{sRB}, s{sRB}, s{sT}")
    A(f"s_lshr_b32 s{sHG}, s2, 5")
    A(f"v_lshlrev_b32 v{vK}, 4, v{vL}")
    A(f"v_mov_b32 v{vT}, 0")
    A(f"v_lshlrev_b32 v{vT2}, 2, v{vL}")
    A(f"v_add_u32 v{vT2}, {L_CNT}, v{vT2}")
    A(f"ds_write_b32 v{vT2}, v{vT}")
    A(f"s_lshr_b32 s{sT}, s{sW}, 2")
    A(f"s_xor_b32 s{sT}, s{sT}, s{sHG}")
    A(f"s_and_b32 s{sT}, s{sT}, 1")
    A(f"s_xor_b32 s{sT}, s{sT}, 1")
    A(f"s_lshl_b32 s{sT}, s{sT}, 2")
    A(f"s_and_b32 s{sJ}, s{sW}, 3")
    A(f"s_add_u32 s{sT}, s{sT}, s{sJ}")
    A(f"s_lshl_b32 s{sT4}, s{sT}, 10")
    A(f"s_lshl_b32 s{sT}, s{sT}, 3")
    A(f"v_lshrrev_b32 v{vT}, 3, v{vL}")
    A(f"v_add_u32 v{vT}, s{sT}, v{vT}")
    A(f"v_lshrrev_b32 v{vT2}, 1, v{vT}")
    A(f"v_xor_b32 v{vT2}, v{vT2}, v{vL}")
    A(f"v_and_b32 v{vT2}, 7, v{vT2}")
    A(f"v_lshlrev_b32 v{vT2}, 4, v{vT2}")
    A(f"v_lshl_add_u32 v{vXd}, v{vT}, 10, v{vT2}")
    A(f"s_lshl_b32 s{sA0}, s{sRB}, 16")
    A(f"s_cmp_ge_u32 s{sW}, 4")
    A("s_cbranch_scc1 L_bteam")

    def dma_x(kb):
        A(f"s_add_u32 m0, s{sT4}, {L_X + kb*8192}")
        if kb: A(f"s_add_u32 s{sA0}, s{sA0}, 128")
        else: A("s_nop 0")
        A(f"buffer_load_dwordx4 v{vXd}, s[4:7], s{sA0} offen lds")

    def x_frag_addr(dst, s_off):
        A(f"v_and_b32 v{vT}, 31, v{vL}")
        A(f"v_lshrrev_b32 v{vT2}, 5, v{vL}")
        A(f"v_bfe_u32 v{vT3}, v{vL}, 1, 3")
        A(f"v_xor_b32 v{vT2}, v{vT2}, v{vT3}")
        A(f"v_lshl_add_u32 v{vT}, v{vT}, 7, s{s_off}")
        for q in range(4):
            A(f"v_xor_b32 v{vT3}, {2*q}, v{vT2}")
            A(f"v_lshl_add_u32 v{dst+q}, v{vT3}, 4, v{vT}")

    def tr_addr(dst, hmul, rowb, cgmul, s_off):
        A(f"v_lshrrev_b32 v{vT}, 5, v{vL}")
        A(f"v_bfe_u32 v{vT2}, v{vL}, 2, 2")
        A(f"v_mad_u32_u24 v{vT}, v{vT}, {hmul}, v{vT2}")
        A(f"v_and_b32 v{vT2}, 3, v{vL}")
        A(f"v_lshlrev_b32 v{vT2}, 3, v{vT2}")
        if cgmul:
            A(f"v_bfe_u32 v{vT3}, v{vL}, 4, 1")
            A(f"v_lshl_add_u32 v{vT2}, v{vT3}, {int(math.log2(cgmul))}, v{vT2}")
        A(f"v_lshl_add_u32 v{dst}, v{vT}, {int(math.log2(rowb))}, v{vT2}")
        A(f"v_add_u32 v{dst}, s{s_off}, v{dst}")

    def w128_dma_addr(dst, stride):
        A(f"v_lshrrev_b32 v{vT}, 3, v{vL}")
        if stride == 1024: A(f"v_lshlrev_b32 v{vT}, 10, v{vT}")
        else: A(f"v_mul_u32_u24 v{vT}, {stride}, v{vT}")
        A(f"v_lshrrev_b32 v{vT2}, 2, v{vL}")
        A(f"v_and_b32 v{vT2}, 4, v{vT2}")
        A(f"v_xor_b32 v{vT2}, v{vT2}, v{vL}")
        A(f"v_and_b32 v{vT2}, 7, v{vT2}")
        A(f"v_lshl_add_u32 v{dst}, v{vT2}, 4, v{vT}")

    def w128_tr_addr(dst, hmul, s_off, s_ct=None):
        A(f"v_lshrrev_b32 v{vT}, 5, v{vL}")
        A(f"v_bfe_u32 v{vT2}, v{vL}, 2, 2")
        A(f"v_mad_u32_u24 v{vT}, v{vT}, {hmul}, v{vT2}")
        A(f"v_and_b32 v{vT2}, 3, v{vL}")
        A(f"v_lshlrev_b32 v{vT2}, 3, v{vT2}")
        A(f"v_lshl_add_u32 v{vT}, v{vT}, 7, v{vT2}")
        A(f"v_bfe_u32 v{vT2}, v{vL}, 4, 1")
        A(f"v_lshl_add_u32 v{vT}, v{vT2}, 5, v{vT}")
        A(f"v_bfe_u32 v{vT2}, v{vL}, 3, 1")
        if s_ct is not None: A(f"v_xor_b32 v{vT2}, s{s_ct}, v{vT2}")
        A(f"v_lshl_add_u32 v{vT}, v{vT2}, 6, v{vT}")
        if s_off is None: A(f"v_mov_b32 v{dst}, v{vT}")
        else: A(f"v_add_u32 v{dst}, s{s_off}, v{vT}")

    def v_lane_addr():
        A(f"v_and_b32 v{vT}, 31, v{vL}")
        A(f"v_lshrrev_b32 v{vT2}, 5, v{vL}")
        A(f"v_lshlrev_b32 v{vT2}, 8, v{vT2}")
        A(f"v_lshl_add_u32 v{vV}, v{vT}, 4, v{vT2}")
        A(f"v_add_u32 v{vV}, 1024, v{vV}")
        A(f"v_mov_b32 v{vT2}, {OOB:#x}")
        A(f"v_cmp_gt_u32 s[38:39], 16, v{vT}")
        A(f"v_and_b32 v{vT}, 27, v{vT}")
        A(f"v_mov_b32 v{vT3}, {1024+512}")
        A(f"v_cndmask_b32_e64 v{vV}, v{vT2}, v{vV}, s[38:39]")
        A(f"v_cmp_eq_u32 s[38:39], 16, v{vT}")
        A("s_nop 1")
        A(f"v_cndmask_b32_e64 v{vV}, v{vV}, v{vT3}, s[38:39]")

    def chain(s0, n, FR, ACC, kstride, second, swap):
        def rd(s):
            b = FR + 8 * (s % 4)
            A(f"ds_read_b64_tr_b16 v[{b}:{b+1}], v{vWa} offset:{s*kstride}")
            A(f"ds_read_b64_tr_b16 v[{b+2}:{b+3}], v{vWa} offset:{s*kstride+second}")
            A(f"ds_read_b128 v[{b+4}:{b+7}], v{vXa+(s&3)} offset:{(s>>2)*8192}")
        for s in range(s0, s0 + 3): rd(s)
        for s in range(s0, s0 + n):
            if s + 3 < s0 + n: rd(s + 3)
            A(f"s_waitcnt lgkmcnt({3 * (min(s + 3, s0 + n - 1) - s)})")
            b = FR + 8 * (s % 4)
            c = "0" if s == 0 else vr(ACC, 16)
            if swap: A(f"{MF} {vr(ACC,16)}, {vr(b+4,4)}, {vr(b,4)}, {c}")
            else:    A(f"{MF} {vr(ACC,16)}, {vr(b,4)}, {vr(b+4,4)}, {c}")

    R = int(OPT.get("ring", 4))
    SL = [72, 84] + [176 + 12 * i for i in range(R - 2)]
    Q = 96; O = 112
    KT0 = 176 + 12 * (R - 2)
    w128_dma_addr(vWd, 1024)
    A(f"s_lshl_b32 s{sA1}, s{sW}, 14")
    A(f"s_lshl_b32 s{sT}, s{sHG}, 7")
    A(f"s_add_u32 s{sA1}, s{sA1}, s{sT}")
    A(f"s_lshl_b32 s{sA2}, s{sW}, 11")
    A("s_waitcnt lgkmcnt(0)")
    srd(4, P_X, 2048 * 1024)
    srd(8, P_WQ, 512 * 1024)
    A("s_barrier")
    for kb in range(8):
        dma_x(kb)
        A(f"s_add_u32 m0, s{sA2}, {L_WQ + kb*8192}")
        if kb: A(f"s_add_u32 s{sA1}, s{sA1}, {3*16*1024 + 8192}")
        else: A("s_nop 0")
        A(f"buffer_load_dwordx4 v{vWd}, s[8:11], s{sA1} offen lds")
        A(f"s_add_u32 m0, s{sA2}, {L_WQ + kb*8192 + 1024}")
        A(f"s_add_u32 s{sA1}, s{sA1}, 8192")
        A(f"buffer_load_dwordx4 v{vWd}, s[8:11], s{sA1} offen lds")
    stamp()
    srd(12, P_WS, WS_SIZE)
    A(f"s_and_b32 s{sT4}, s{sW}, 1")
    A(f"s_lshl_b32 s{sT2}, s{sT4}, 12")
    x_frag_addr(vXa, sT2)
    A(f"s_lshr_b32 s{sJ}, s{sW}, 1")
    A(f"s_mov_b32 s{sT2}, {L_WQ}")
    w128_tr_addr(vWa, 8, sT2, sJ)
    v_lane_addr()
    for q in range(4):
        for r in range(0, 10, 2): A(f"v_pk_mov_b32 v[{O+16*q+r}:{O+16*q+r+1}], 0, 0")
    for r in range(0, 4, 2): A(f"v_pk_mov_b32 v[{P+4+r}:{P+5+r}], 0, 0")
    A("s_waitcnt vmcnt(0)")
    A("s_barrier")
    stamp()
    chain(0, 32, 200, S0, 2048, 512, False)
    stamp()
    A(f"s_mov_b32 s{sT2}, {f2u(CSCALE):#x}")
    A(f"s_lshl_b32 s{sT3}, s{sT4}, 12")
    A(f"s_lshl_b32 s{sT4}, s{sJ}, 11")
    A(f"s_add_u32 s{sT4}, s{sT4}, s{sT3}")
    A(f"s_add_u32 s{sT4}, s{sT4}, {L_QX}")
    A(f"s_add_u32 s{sT3}, s{sT3}, {L_QX}")
    A(f"v_add_u32 v{vT}, s{sT4}, v{vK}")
    A(f"v_add_u32 v{vT3}, s{sT3}, v{vK}")
    A(f"s_mul_i32 s{sKV}, s{sJ}, {32*TB}")
    for r in range(0, 4, 2): A(f"v_pk_mov_b32 v[{SL[R-1]+8+r}:{SL[R-1]+9+r}], 0, 0")
    A("s_nop 0")
    for r in range(16): A(f"v_mul_f32 v{S0+r}, s{sT2}, v{S0+r}")
    for r in range(8): A(f"v_cvt_pk_bf16_f32 v{S1+r}, v{S0+2*r}, v{S0+2*r+1}")
    A(f"ds_write_b128 v{vT}, {vr(S1,4)}")
    A(f"ds_write_b128 v{vT}, {vr(S1+4,4)} offset:1024")
    A("s_waitcnt lgkmcnt(0)")
    A("s_barrier")
    stamp()
    for q in range(4): A(f"ds_read_b128 {vr(Q+4*q,4)}, v{vT3} offset:{q*1024}")
    A(f"v_mov_b32 v{vT3}, {L_CNT + 64}")
    A(f"ds_read_b32 v{vT3}, v{vT3}")
    team_wait(6, 1, 1)
    stamp()
    def kv_load(slot, part):
        b = SL[slot]
        if part == 0: return f"buffer_load_dwordx4 {vr(b,4)}, v{vK}, s[12:15], s{sKV} offen sc1"
        if part == 1: return f"buffer_load_dwordx4 {vr(b+4,4)}, v{vV}, s[12:15], s{sKV} offen sc1"
        return f"buffer_load_dwordx4 {vr(b+8,4)}, v{vV}, s[12:15], s{sKV} offen offset:528 sc1"
    A(f"buffer_load_dwordx4 {vr(KT0,4)}, v{vK}, s[12:15], 0 offen sc1")
    for t in range(R - 1):
        for part in range(3): A(kv_load(t, part))
        A(f"s_add_u32 s{sKV}, s{sKV}, {TB}")
    team_add(7)
    A(f"v_readfirstlane_b32 s{sNON}, v{vT3}")
    A(f"s_mov_b32 s{sCnt}, {32 // R}")
    A(f"s_waitcnt vmcnt({3*(R-1)})")
    T0 = [S0, S1, KT0 + 4, KT0 + 20]
    for q in range(4): A(f"{MF} {vr(T0[q],16)}, {vr(KT0,4)}, {vr(Q+4*q,4)}, 0")
    A("s_nop 7")
    A("s_nop 0")
    lane_max_all([T0[q] + r for q in range(4) for r in range(8)], vT, vT2)
    A(f"v_sub_f32 v{NEG}, 0, v{vT}")
    A(f"v_sub_f32 v{NEG+1}, 0, v{vT}")
    for r in range(2, 16, 2): A(f"v_pk_mov_b32 v[{NEG+r}:{NEG+r+1}], v[{NEG}:{NEG+1}], v[{NEG}:{NEG+1}] op_sel:[0,1]")
    A(f"s_waitcnt vmcnt({3*(R-2)})")
    A("s_nop 0")
    A(f"{MF} {vr(S0,16)}, {vr(SL[0],4)}, {vr(Q,4)}, {vr(NEG,16)}")
    A("s_nop 7")
    A("s_nop 3")
    stamp()
    if PROF: A("s_memtime s[68:69]")
    A.raw(".p2align 6")
    A.label("L_aloop")
    if PROF:
        A("s_waitcnt lgkmcnt(0)")
        A(f"s_mov_b32 m0, s{sCnt}")
        A("s_nop 0")
        A(f"v_writelane_b32 v255, s68, m0")
        A("s_memtime s[68:69]")
    for kb in range(R):
        for q in range(4):
            Sc, Sn = (S0, S1) if q % 2 == 0 else (S1, S0)
            cur, prv, nxt = SL[kb], SL[(kb - 1) % R], SL[(kb + 1) % R]
            Kq = cur if q < 3 else nxt
            nq = (q + 1) % 4
            Vp = cur if q > 0 else prv
            Op = O + 16 * ((q - 1) % 4); Oc = O + 16 * q
            ex = {}
            if q < 3: ex["X4"] = kv_load((kb - 1) % R, q)
            if q == 3:
                ex["X1"] = f"s_add_u32 s{sKV}, s{sKV}, {TB}"
                ex["X3"] = f"s_waitcnt vmcnt({3*(R-2)})"
                if kb == R - 1:
                    ex["X5"] = f"s_sub_u32 s{sCnt}, s{sCnt}, 1"
                    ex["X6"] = f"s_cmp_lg_u32 s{sCnt}, 0"
            tile_code(Sc, P,
                      f"{MF} {vr(Sn,16)}, {vr(Kq,4)}, {vr(Q+4*nq,4)}, {vr(NEG,16)}",
                      f"{MF} {vr(Op,16)}, {vr(Vp+8,4)}, {vr(P+4,4)}, {vr(Op,16)}",
                      f"{MF} {vr(Oc,16)}, {vr(cur+4,4)}, {vr(P,4)}, {vr(Oc,16)}", ex)
    A("s_cbranch_scc1 L_aloop")
    A("s_nop 0")
    A(f"{MF} {vr(O+48,16)}, {vr(SL[R-1]+8,4)}, {vr(P+4,4)}, {vr(O+48,16)}")
    stamp()
    A(f"s_mul_i32 s{sT}, s{sW}, 4608")
    A(f"s_add_u32 s{sT}, s{sT}, {L_COMB}")
    A(f"s_xor_b32 s{sT2}, s{sW}, 2")
    A(f"s_mul_i32 s{sT2}, s{sT2}, 4608")
    A(f"s_add_u32 s{sT2}, s{sT2}, {L_COMB}")
    A(f"v_add_u32 v{vT}, s{sT}, v{vK}")
    A(f"v_lshlrev_b32 v{vT3}, 2, v{vL}")
    A(f"v_add_u32 v{vT2}, s{sT}, v{vT3}")
    A(f"v_add_u32 v7, s{sT2}, v{vK}")
    A(f"v_add_u32 v8, s{sT2}, v{vT3}")
    A(f"s_cmp_eq_u32 s{sJ}, 0")
    A("s_cbranch_scc1 L_a_kh0")
    for i in range(2):
        A(f"ds_write_b128 v{vT}, {vr(O+16*i,4)} offset:{i*2304}")
        A(f"ds_write_b128 v{vT}, {vr(O+16*i+4,4)} offset:{i*2304+1024}")
        A(f"ds_write_b32 v{vT2}, v{O+16*i+8} offset:{i*2304+2048}")
    for r in range(0, 8, 2): A(f"v_pk_mov_b32 v[{Q+r}:{Q+r+1}], v[{Q+8+r}:{Q+9+r}], v[{Q+8+r}:{Q+9+r}] op_sel:[0,1]")
    A("s_waitcnt lgkmcnt(0)")
    A("s_nop 2")
    for i in range(2):
        for r in range(0, 10, 2): A(f"v_pk_mov_b32 v[{O+16*i+r}:{O+16*i+r+1}], v[{O+32+16*i+r}:{O+33+16*i+r}], v[{O+32+16*i+r}:{O+33+16*i+r}] op_sel:[0,1]")
    A("s_branch L_a_x")
    A.label("L_a_kh0")
    A("s_nop 7")
    for i in range(2):
        A(f"ds_write_b128 v{vT}, {vr(O+32+16*i,4)} offset:{i*2304}")
        A(f"ds_write_b128 v{vT}, {vr(O+32+16*i+4,4)} offset:{i*2304+1024}")
        A(f"ds_write_b32 v{vT2}, v{O+32+16*i+8} offset:{i*2304+2048}")
    A.label("L_a_x")
    A("s_waitcnt vmcnt(0) lgkmcnt(0)")
    A("s_barrier")
    for i in range(2):
        A(f"ds_read_b128 {vr(S0+16*i,4)}, v7 offset:{i*2304}")
        A(f"ds_read_b128 {vr(S0+16*i+4,4)}, v7 offset:{i*2304+1024}")
        A(f"ds_read_b32 v{S0+16*i+8}, v8 offset:{i*2304+2048}")
    A(f"s_and_b32 s{sT4}, s{sW}, 1")
    A(f"s_lshl_b32 s{sA2}, s{sRB}, 1")
    A(f"s_add_u32 s{sA2}, s{sA2}, s{sT4}")
    A(f"s_lshl_b32 s{sA2}, s{sA2}, 6")
    A(f"s_lshl_b32 s{sT4}, s{sHG}, 2")
    A(f"s_add_u32 s{sA2}, s{sA2}, s{sT4}")
    A(f"s_lshl_b32 s{sT4}, s{sJ}, 1")
    A(f"s_add_u32 s{sA2}, s{sA2}, s{sT4}")
    A(f"s_lshl_b32 s{sA2}, s{sA2}, 10")
    A(f"s_add_u32 s{sA2}, s{sA2}, {WS_O:#x}")
    A(f"s_mov_b32 s{sKV}, 0")
    A(f"s_mov_b32 s{sCnt}, 64")
    A("s_waitcnt lgkmcnt(0)")
    for i in range(2):
        for r in range(9): A(f"v_add_f32 v{O+16*i+r}, v{O+16*i+r}, v{S0+16*i+r}")
    for i in range(2):
        range_check(O + 16 * i, f"L_a_slow{i}")
        A.label(f"L_a_ok{i}")
        normalize_store(O + 16 * i, P + 4 * i, sA2)
        if i == 0: A(f"s_add_u32 s{sA2}, s{sA2}, 1024")
    A("s_waitcnt vmcnt(0)")
    stamp()
    A("s_barrier")
    tail_dma()
    for m in range(4):
        A(f"s_waitcnt vmcnt({2*(3-m)})")
        A("s_barrier")
    if PROF:
        A("s_lshl_b32 s68, s2, 2")
        A(f"s_add_u32 s68, s68, s{sW}")
        A("s_lshl_b32 s68, s68, 8")
        A(f"s_add_u32 s68, s68, {WS_PROF + 0x80000:#x}")
        A(f"v_lshlrev_b32 v248, 2, v{vL}")
        A("buffer_store_dword v255, v248, s[12:15], s68 offen")
    stamp_flush()
    A("s_endpgm")
    for i in range(2):
        slow_path(f"L_a_slow{i}", f"L_a_ok{i}", Q + 4 * i, O + 16 * i, sKV, sCnt, TB, False, SL[0], SL[0] + 4, None)

    NST[0] = 2
    A.label("L_bteam")
    A(f"s_setprio {OPT.get('bprio', 2)}")
    A(f"s_lshl_b32 s{sA2}, s{sJ}, 10")
    A(f"s_or_b32 s{sT}, s2, s{sJ}")
    A("s_waitcnt lgkmcnt(0)")
    A(f"s_or_b32 s{sT2}, s22, 1")
    srd(4, P_X, 2048 * 1024)
    srd(20, P_DBG, 256)
    A(f"s_cmp_lg_u32 s{sT}, 0")
    A("s_cbranch_scc1 L_b_nononce")
    A(f"v_mov_b32 v{vT}, s{sT2}")
    A(f"v_mov_b32 v{vT2}, 0")
    A("s_mov_b64 exec, 1")
    A(f"buffer_store_dword v{vT}, v{vT2}, s[20:23], 0 offen sc1")
    A("s_mov_b64 exec, -1")
    A.label("L_b_nononce")
    A(f"s_cmp_lt_u32 s{sHG}, 2")
    A(f"s_cselect_b32 s40, s{P_WK}, s{P_WV}")
    A(f"s_cselect_b32 s41, s{P_WK+1}, s{P_WV+1}")
    A("s_and_b32 s41, s41, 0xffff")
    A(f"s_cmp_lt_u32 s{sHG}, 4")
    A("s_cselect_b32 s42, 16384, 0")
    A("s_mov_b32 s43, 0x00020000")
    A("s_barrier")
    for kb in range(8):
        dma_x(kb)
        if kb % 2 == 0:
            A(f"s_add_u32 m0, s{sA2}, {L_WKV + kb*2048}")
            A(f"s_add_u32 s{sT}, s{sA2}, {kb*2048}")
            A(f"buffer_load_dwordx4 v{vK}, s[40:43], s{sT} offen lds")
    stamp()
    srd(12, P_WS, WS_SIZE)
    A(f"s_and_b32 s{sT4}, s{sHG}, 1")
    A(f"s_lshl_b32 s{sT2}, s{sT4}, 12")
    x_frag_addr(vXa, sT2)
    A(f"s_mov_b32 s{sT2}, {L_WKV}")
    tr_addr(vWa, 8, 32, 0, sT2)
    v_lane_addr()
    vN = 14
    A(f"v_mov_b32 v{vN+1}, 0")
    def nonce_load(): A(f"buffer_load_dword v{vN}, v{vN+1}, s[20:23], 0 offen sc1")
    def nonce_wait():
        l = A.uid("nw"); d = A.uid("nwd")
        A(f"s_mov_b32 s{sSP}, {SPIN}")
        A.label(l)
        A("s_waitcnt vmcnt(0)")
        A(f"v_readfirstlane_b32 s{sNON}, v{vN}")
        A("s_nop 1")
        A(f"s_cmp_lg_u32 s{sNON}, 0")
        A(f"s_cbranch_scc1 {d}")
        A(f"s_sub_u32 s{sSP}, s{sSP}, 1")
        A(f"s_cbranch_scc1 {d}")
        nonce_load()
        A(f"s_branch {l}")
        A.label(d)
    ACC = 16
    A(f"s_lshl_b32 s{sRT0}, s{sRB}, 1")
    A(f"s_add_u32 s{sA0}, s{sRT0}, s{sT4}")
    A(f"s_mul_i32 s{sA0}, s{sA0}, {TB}")
    A(f"s_lshl_b32 s{sA1}, s{sRB}, 2")
    A(f"s_add_u32 s{sA1}, s{sA1}, s{sHG}")
    A(f"s_lshl_b32 s{sA1}, s{sA1}, 5")
    A(f"s_add_u32 s{sA1}, s{sA1}, {FL_KVA:#x}")
    A("s_waitcnt vmcnt(6)")
    team_add(4)
    A(f"s_cmp_lg_u32 s{sJ}, 0")
    A("s_cbranch_scc1 L_b_idle")
    A(f"s_cmp_ge_u32 s{sHG}, 4")
    A("s_cbranch_scc1 L_b_idle")
    def kv_unit(swap):
        team_wait(4, 4, 1)
        chain(0, 16, 64, ACC, 512, 128, swap)
        A("s_waitcnt vmcnt(0)")
        nonce_load()
        team_add(5)
        team_wait(5, 4, 1)
        chain(16, 16, 64, ACC, 512, 128, swap)
    A(f"s_cmp_ge_u32 s{sHG}, 2")
    A("s_cbranch_scc1 L_b_vunit")
    kv_unit(False)
    A("s_nop 7")
    A("s_nop 3")
    for r in range(4): A(f"v_cvt_pk_bf16_f32 v{64+r}, v{ACC+2*r}, v{ACC+2*r+1}")
    A(f"buffer_store_dwordx4 {vr(64,4)}, v{vK}, s[12:15], s{sA0} offen sc1")
    A("s_branch L_b_kvpub")
    A.label("L_b_vunit")
    A(f"v_lshrrev_b32 v{vT2}, 5, v{vL}")
    A(f"v_lshlrev_b32 v7, 8, v{vT2}")
    A(f"v_and_b32 v{vT2}, 15, v{vL}")
    A(f"v_lshl_add_u32 v7, v{vT2}, 4, v7")
    A(f"v_bfe_u32 v{vT2}, v{vL}, 4, 1")
    A(f"v_lshl_add_u32 v7, v{vT2}, 30, v7")
    A(f"v_cmp_eq_u32 s[38:39], 0, v{vL}")
    A(f"v_mov_b32 v{vT2}, {OOB:#x}")
    A(f"v_mov_b32 v8, {1024+512}")
    for r in range(4): A(f"v_mov_b32 v{100+r}, {ONES:#x}")
    A(f"v_cndmask_b32_e64 v8, v{vT2}, v8, s[38:39]")
    kv_unit(True)
    A("s_nop 7")
    A("s_nop 3")
    for s in range(2):
        for r in range(4): A(f"v_cvt_pk_bf16_f32 v{64+4*s+r}, v{ACC+8*s+2*r}, v{ACC+8*s+2*r+1}")
        A(f"buffer_store_dwordx4 {vr(64+4*s,4)}, v7, s[12:15], s{sA0} offen offset:{1024+s*528} sc1")
        A(f"buffer_store_dwordx4 {vr(100,4)}, v8, s[12:15], s{sA0} offen offset:{s*528} sc1")
    A.label("L_b_kvpub")
    nonce_wait()
    flag_store(sA1)
    A("s_branch L_b_pdone")
    A.label("L_b_idle")
    A("s_waitcnt vmcnt(0)")
    nonce_load()
    team_add(5)
    nonce_wait()
    A(f"v_mov_b32 v{vT}, {L_CNT + 64}")
    A(f"ds_write_b32 v{vT}, v{vN}")
    A.label("L_b_pdone")
    stamp()
    A("s_barrier")
    srd(8, P_WQKV, 512 * 3072)
    srd(40, P_GATE, 1024)
    A(f"s_mov_b32 m0, {L_GATE}")
    A(f"s_lshl_b32 s{sHEAD}, s{sHG}, 2")
    A(f"buffer_load_dwordx4 v{vK}, s[40:43], 0 offen lds")
    A(f"s_add_u32 s{sHEAD}, s{sHEAD}, s{sJ}")
    vD1, vX0, vW1, vW2, vG = 7, 9, 13, 8, 15
    w128_dma_addr(vD1, 3072)
    A(f"s_lshl_b32 s{sA0}, s{sJ}, 10")
    A(f"s_lshl_b32 s{sT2}, s{sHG}, 7")
    A(f"s_add_u32 s{sA0}, s{sA0}, s{sT2}")
    A(f"s_lshl_b32 s{sA1}, s{sJ}, 14")
    A(f"s_add_u32 s{sA1}, s{sA1}, {L_WQ}")
    A(f"s_mov_b32 s{sT2}, 0")
    x_frag_addr(vX0, sT2)
    w128_tr_addr(vW1, 8, sA1)
    A(f"v_xor_b32 v{vW2}, 64, v{vW1}")
    AC, FR = 16, 80
    for r in range(0, 64, 2): A(f"v_pk_mov_b32 v[{AC+r}:{AC+r+1}], 0, 0")
    A(f"s_mov_b32 s{sCnt}, 4")
    A("s_waitcnt lgkmcnt(0)")
    A("s_barrier")
    A(f"s_cmp_eq_u32 s{sJ}, 3")
    A("s_cbranch_scc1 L_b_gwave")
    team_wait(7, 4, 2)
    stamp()
    def p3_dma(slot):
        A(f"s_add_u32 m0, s{sA1}, {slot*2048}")
        A(f"s_add_u32 s{sT2}, s{sA0}, {8*3072}")
        A(f"buffer_load_dwordx4 v{vD1}, s[8:11], s{sA0} offen lds")
        A(f"s_add_u32 m0, s{sA1}, {slot*2048+1024}")
        A(f"s_add_u32 s{sA0}, s{sA0}, {16*3072}")
        A(f"buffer_load_dwordx4 v{vD1}, s[8:11], s{sT2} offen lds")
    def p3_rd(i):
        b = FR + 16 * (i & 1); sl = (i % 8) * 2048
        A(f"ds_read_b64_tr_b16 v[{b}:{b+1}], v{vW1} offset:{sl}")
        A(f"ds_read_b64_tr_b16 v[{b+2}:{b+3}], v{vW1} offset:{sl+512}")
        A(f"ds_read_b128 v[{b+8}:{b+11}], v{vX0+(i&3)} offset:{(i>>2)*8192}")
        A(f"ds_read_b128 v[{b+12}:{b+15}], v{vX0+(i&3)} offset:{(i>>2)*8192+4096}")
        A(f"ds_read_b64_tr_b16 v[{b+4}:{b+5}], v{vW2} offset:{sl}")
        A(f"ds_read_b64_tr_b16 v[{b+6}:{b+7}], v{vW2} offset:{sl+512}")
    for s in range(8): p3_dma(s)
    A("s_waitcnt vmcnt(14)")
    p3_rd(0)
    def p3_loop(name, swap):
        A.label(name)
        for i in range(8):
            A("s_waitcnt vmcnt(12)")
            p3_rd(i + 1)
            A("s_waitcnt lgkmcnt(6)")
            b = FR + 16 * (i & 1)
            n = 0
            for ct in range(2):
                for ri in range(2):
                    a = AC + 16 * (2 * ct + ri); wv, xv = vr(b + 4 * ct, 4), vr(b + 8 + 4 * ri, 4)
                    A(f"{MF} {vr(a,16)}, {xv if swap else wv}, {wv if swap else xv}, {vr(a,16)}")
                    if n == 0: p3_dma(i)
                    elif PACE: A(f"s_nop {PACE-1}")
                    n += 1
        for q in range(4): A(f"v_add_u32 v{vX0+q}, 16384, v{vX0+q}")
        A(f"s_sub_u32 s{sCnt}, s{sCnt}, 1")
        A(f"s_cmp_lg_u32 s{sCnt}, 0")
        A(f"s_cbranch_scc1 {name}")
    PACE = int(OPT.get("pace", 0))
    A(f"s_cmp_eq_u32 s{sJ}, 2")
    A("s_cbranch_scc1 L_p3v")
    p3_loop("L_p3qk", False)
    svst = NST[0]
    stamp()
    A(f"s_lshl_b32 s{sKV}, s{sHG}, 8")
    A(f"s_add_u32 s{sKV}, s{sKV}, s{sRT0}")
    A(f"s_mul_i32 s{sKV}, s{sKV}, {TB}")
    A(f"s_add_u32 s{sKV}, s{sKV}, {WS_KVB:#x}")
    A(f"s_mov_b32 s{sT2}, {f2u(CSCALE):#x}")
    A(f"v_add_u32 v{vT3}, {L_QX}, v{vK}")
    A("s_waitcnt lgkmcnt(0)")
    A(f"s_cmp_eq_u32 s{sJ}, 1")
    A("s_cbranch_scc1 L_p3k")
    for ct in range(2):
        for ri in range(2):
            for hh in range(2):
                a = AC + 16 * (2 * ct + ri) + 8 * hh; p = FR + 4 * ((2 * ri + hh) & 3)
                for r in range(8): A(f"v_mul_f32 v{a+r}, s{sT2}, v{a+r}")
                for r in range(4): A(f"v_cvt_pk_bf16_f32 v{p+r}, v{a+2*r}, v{a+2*r+1}")
                A(f"ds_write_b128 v{vT3}, {vr(p,4)} offset:{(4*ri + 2*ct + hh)*1024}")
        if ct == 0: A("s_waitcnt lgkmcnt(0)")
    A("s_waitcnt vmcnt(0) lgkmcnt(0)")
    A("s_branch L_p3done")
    A.label("L_p3k")
    for ct in range(2):
        for hh in range(2):
            for ri in range(2):
                a = AC + 16 * (2 * ct + ri) + 8 * hh; p = FR + 4 * (4 * ct + 2 * hh + ri)
                for r in range(4): A(f"v_cvt_pk_bf16_f32 v{p+r}, v{a+2*r}, v{a+2*r+1}")
                A(f"buffer_store_dwordx4 {vr(p,4)}, v{vK}, s[12:15], s{sKV} offen offset:{ri*TB} sc1")
            A(f"s_add_u32 s{sKV}, s{sKV}, {64*TB}")
    A("s_branch L_p3pub")
    A.label("L_p3v")
    p3_loop("L_p3vl", True)
    NST[0] = svst
    stamp()
    A(f"s_lshl_b32 s{sKV}, s{sHG}, 8")
    A(f"s_add_u32 s{sKV}, s{sKV}, s{sRT0}")
    A(f"s_mul_i32 s{sKV}, s{sKV}, {TB}")
    A(f"s_add_u32 s{sKV}, s{sKV}, {WS_KVB:#x}")
    A(f"s_mov_b32 s{sT3}, {64*TB}")
    A(f"v_lshrrev_b32 v{vT}, 2, v{vL}")
    A(f"v_mul_lo_u32 v{vT}, v{vT}, s{sT3}")
    A(f"v_bfe_u32 v{vT2}, v{vL}, 1, 1")
    A(f"v_mul_u32_u24 v{vT2}, {TB}, v{vT2}")
    A(f"v_add_u32 v{vT}, v{vT}, v{vT2}")
    A(f"v_and_b32 v{vT2}, 1, v{vL}")
    A(f"v_mul_u32_u24 v{vT2}, 528, v{vT2}")
    A(f"v_add3_u32 v{vT3}, v{vT}, v{vT2}, 0")
    A(f"v_cmp_gt_u32 s[38:39], 16, v{vL}")
    A(f"v_mov_b32 v{vT2}, {OOB:#x}")
    for r in range(4): A(f"v_mov_b32 v{120+r}, {ONES:#x}")
    A(f"v_cndmask_b32_e64 v{vT3}, v{vT2}, v{vT3}, s[38:39]")
    A(f"v_bfe_u32 v{vT}, v{vL}, 4, 1")
    A(f"v_mul_lo_u32 v{vT}, v{vT}, s{sT3}")
    A(f"v_lshrrev_b32 v{vT2}, 5, v{vL}")
    A(f"v_lshl_add_u32 v{vT}, v{vT2}, 8, v{vT}")
    A(f"v_and_b32 v{vT2}, 15, v{vL}")
    A(f"v_lshl_add_u32 v{vT}, v{vT2}, 4, v{vT}")
    A("s_waitcnt lgkmcnt(0)")
    A(f"buffer_store_dwordx4 {vr(120,4)}, v{vT3}, s[12:15], s{sKV} offen offset:{1024+512} sc1")
    for ct in range(2):
        for ri in range(2):
            for s in range(2):
                a = AC + 16 * (2 * ct + ri) + 8 * s; p = FR + 4 * (4 * ct + 2 * ri + s)
                for r in range(4): A(f"v_cvt_pk_bf16_f32 v{p+r}, v{a+2*r}, v{a+2*r+1}")
                A(f"buffer_store_dwordx4 {vr(p,4)}, v{vT}, s[12:15], s{sKV} offen offset:{1024+ri*TB+s*528} sc1")
        if ct == 0: A(f"s_add_u32 s{sKV}, s{sKV}, {128*TB}")
    A.label("L_p3pub")
    A("s_waitcnt vmcnt(0)")
    team_add(0, "L_p3done", 2)
    A(f"s_lshl_b32 s{sT3}, s{sHG}, 5")
    A(f"s_add_u32 s{sT3}, s{sT3}, s{sRB}")
    A(f"s_lshl_b32 s{sT3}, s{sT3}, 5")
    A(f"s_add_u32 s{sT3}, s{sT3}, {FL_KVB:#x}")
    flag_store(sT3)
    A("s_branch L_p3done")
    A.label("L_b_gwave")
    NST[0] = svst - 1
    A(f"v_lshlrev_b32 v{vT}, 5, v{vL}")
    A(f"s_mov_b32 s{sT3}, {FL_KVA:#x}")
    poll_flags(vT, sT3, n2=2048, slp=1)
    team_add(6)
    stamp()
    A(f"v_lshrrev_b32 v{vW1}, 5, v{vL}")
    A(f"v_lshlrev_b32 v{vW1}, 4, v{vW1}")
    A(f"v_add_u32 v{vW1}, {L_GATE}, v{vW1}")
    A(f"s_mov_b32 s{sCnt}, 8")
    A.label("L_gloop")
    for i in range(4):
        A(f"ds_read_b128 {vr(FR+12*i,4)}, v{vW1} offset:{i*32}")
        A(f"ds_read_b128 {vr(FR+12*i+4,4)}, v{vX0+i}")
        A(f"ds_read_b128 {vr(FR+12*i+8,4)}, v{vX0+i} offset:4096")
    A(f"v_add_u32 v{vW1}, 128, v{vW1}")
    for i in range(4):
        A(f"s_waitcnt lgkmcnt({9-3*i})")
        A(f"{MF} {vr(AC,16)}, {vr(FR+12*i,4)}, {vr(FR+12*i+4,4)}, {vr(AC,16)}")
        A(f"v_add_u32 v{vX0+i}, 8192, v{vX0+i}")
        A("s_nop 7")
        A(f"{MF} {vr(AC+16,16)}, {vr(FR+12*i,4)}, {vr(FR+12*i+8,4)}, {vr(AC+16,16)}")
        A("s_nop 7")
    A(f"s_sub_u32 s{sCnt}, s{sCnt}, 1")
    A(f"s_cmp_lg_u32 s{sCnt}, 0")
    A("s_cbranch_scc1 L_gloop")
    stamp()
    A("s_mov_b32 s38, 0")
    A("s_mov_b32 s39, -1")
    A("s_nop 1")
    A(f"v_cndmask_b32_e64 v{vG}, v{AC}, v{AC+16}, s[38:39]")
    A(f"v_mul_f32 v{vG}, {f2u(-math.log2(math.e)):#x}, v{vG}")
    A(f"v_exp_f32 v{vG}, v{vG}")
    A(f"v_lshlrev_b32 v{vT}, 2, v{vL}")
    A(f"v_add_f32 v{vG}, 1.0, v{vG}")
    A(f"v_rcp_f32 v{vG}, v{vG}")
    A(f"v_add_u32 v{vT}, {L_G}, v{vT}")
    A(f"ds_write_b32 v{vT}, v{vG}")
    A(f"v_min_u32 v{vT3}, 4, v{vL}")
    A(f"v_sub_u32 v{vT3}, s{sRB}, v{vT3}")
    A(f"v_max_i32 v{vT3}, 0, v{vT3}")
    A(f"v_lshlrev_b32 v{vT3}, 5, v{vT3}")
    A(f"s_lshl_b32 s{sT3}, s{sHG}, 10")
    A(f"s_add_u32 s{sT3}, s{sT3}, {FL_KVB:#x}")
    poll_flags(vT3, sT3, slp=4)
    A("s_waitcnt lgkmcnt(0)")
    A.label("L_p3done")
    team_add(1)
    QB = 96; OB = 104; KV = 136
    A(f"s_lshl_b32 s{sKV}, s{sHEAD}, 6")
    A(f"s_add_u32 s{sKV}, s{sKV}, s{sRT0}")
    A(f"s_mul_i32 s{sKV}, s{sKV}, {TB}")
    A(f"s_add_u32 s{sKV}, s{sKV}, {WS_KVB:#x}")
    sWL, sWG, sWN = 37, 54, 55
    srd(8, P_BWO, 512 * 1024)
    srd(20, P_AWO, 512 * 1024)
    vWd2 = 8
    w128_dma_addr(vWd2, 1024)
    A(f"s_lshl_b32 s{sWL}, s{sJ}, 14")
    A(f"s_lshl_b32 s{sWG}, s{sJ}, 17")
    A(f"s_lshl_b32 s{sT}, s{sHG}, 7")
    A(f"s_add_u32 s{sWG}, s{sWG}, s{sT}")
    A(f"s_mov_b32 s{sWN}, 0")
    WB = f"s_mov_b32 m0, s{sWL}\ns_add_u32 s{sWN}, s{sWN}, 1\nbuffer_load_dwordx4 v{vWd2}, s[8:11], s{sWG} offen lds"
    WA = f"s_add_u32 m0, s{sWL}, {L_WQ}\ns_add_u32 s{sWL}, s{sWL}, 1024\nbuffer_load_dwordx4 v{vWd2}, s[20:23], s{sWG} offen lds\ns_add_u32 s{sWG}, s{sWG}, 8192"
    A(f"s_lshl_b32 s{sT2}, s{sJ}, 10")
    A(f"s_add_u32 s{sT2}, s{sT2}, {L_QX}")
    A(f"v_add_u32 v7, s{sT2}, v{vK}")
    A(f"s_and_b32 s{sT2}, s{sJ}, 1")
    A(f"s_lshl_b32 s{sT2}, s{sT2}, 7")
    A(f"s_add_u32 s{sT2}, s{sT2}, {L_G}")
    A(f"v_and_b32 v9, 31, v{vL}")
    A(f"v_lshl_add_u32 v9, v9, 2, s{sT2}")
    stamp()
    team_wait(1)
    stamp()
    A(f"ds_read_b128 {vr(QB,4)}, v7")
    A(f"ds_read_b128 {vr(QB+4,4)}, v7 offset:4096")
    A(f"ds_read_b32 v{vG}, v9")
    A(f"s_add_u32 s{sA0}, s{sKV}, {TB}")
    A(f"s_add_u32 s{sA1}, s{sRT0}, 1")
    PRE = int(OPT.get("bpre", 4))
    def bkv(u):
        b = KV + 12 * u; o = []
        if u >= 2:
            o.append(f"s_cmp_ge_u32 s{sA1}, {u}")
            o.append(f"s_cselect_b32 s{sT}, s{sA0}, {OOB:#x}")
        sa = sT if u >= 2 else sA0
        o.append(f"buffer_load_dwordx4 {vr(b,4)}, v{vK}, s[12:15], s{sa} offen sc1")
        o.append(f"buffer_load_dwordx4 {vr(b+4,4)}, v{vV}, s[12:15], s{sa} offen sc1")
        o.append(f"buffer_load_dwordx4 {vr(b+8,4)}, v{vV}, s[12:15], s{sa} offen offset:528 sc1")
        if u < 9: o.append(f"s_sub_u32 s{sA0}, s{sA0}, {TB}")
        return "\n".join(o)
    order = []
    for u in range(PRE):
        A(bkv(u)); order += [("k", u), ("v", u), ("v2", u)]
    vBig = 7
    A(f"v_mov_b32 v{vBig}, {f2u(-1e38):#x}")
    mask_tuple(NEG, f"v{vBig}", "0")
    for i in range(2):
        for r in range(0, 10, 2): A(f"v_pk_mov_b32 v[{OB+16*i+r}:{OB+16*i+r+1}], 0, 0")
    A(f"s_waitcnt vmcnt({3*PRE-4}) lgkmcnt(0)")
    A(f"{MF} {vr(S0,16)}, {vr(KV,4)}, {vr(QB+4,4)}, {vr(NEG,16)}")
    A(f"{MF} {vr(S1,16)}, {vr(KV+12,4)}, {vr(QB,4)}, {vr(NEG,16)}")
    A("s_nop 7")
    A("s_nop 3")
    lane_max_all(range(S0, S0 + 32), vT, vT2)
    A(f"v_sub_f32 v{NEG}, 0, v{vT}")
    A(f"v_sub_f32 v{NEG+1}, 0, v{vT}")
    for r in range(32): A(f"v_sub_f32 v{S0+r}, v{S0+r}, v{vT}")
    for r in range(2, 16, 2): A(f"v_pk_mov_b32 v[{NEG+r}:{NEG+r+1}], v[{NEG}:{NEG+1}], v[{NEG}:{NEG+1}] op_sel:[0,1]")
    items = [(1, 0), (0, 1), (1, 1)]
    for u in range(2, 9): items += [(0, u), (1, u)]
    items += [(0, 9)]
    CF = KV
    waited = 3
    def need(tag):
        nonlocal waited
        k_ = order.index(tag)
        if k_ > waited:
            waited = k_
            return f"s_waitcnt vmcnt({len(order)-1-k_})"
        return None
    WPI = int(OPT.get("wpi", 1))
    wsteps = 0; nextu = PRE
    for n, (q, u) in enumerate(items):
        Sc, Sn = (S0, S1) if n % 2 == 0 else (S1, S0)
        ex = {}
        qk = None
        if n % 2 == 1 and nextu < 10:
            ex["X0"] = bkv(nextu); order += [("k", nextu), ("v", nextu), ("v2", nextu)]; nextu += 1
        if wsteps < 16:
            ex["X1"] = WB; ex["X2"] = WA; order += [("w", wsteps), ("w2", wsteps)]; wsteps += 1
        if n >= 1 and n + 1 < len(items):
            q2, u2 = items[n + 1]
            far = (q2, u2) in ((1, 8), (0, 9))
            ex["X3"] = need(("k", u2))
            qk = f"{MF} {vr(Sn,16)}, {vr(KV+12*u2,4)}, {vr(QB+4*q2,4)}, {vr(CF if far else NEG,16)}"
        if WPI == 2 and wsteps < 16:
            ex["X4"] = WB + "\n" + WA; order += [("w", wsteps), ("w2", wsteps)]; wsteps += 1
        ex["X5"] = need(("v2", u))
        pv1 = None
        if n >= 1:
            qp, up = items[n - 1]
            pv1 = f"{MF} {vr(OB+16*qp,16)}, {vr(KV+12*up+8,4)}, {vr(P+4,4)}, {vr(OB+16*qp,16)}"
        exit_here = (q == 1 and u in (1, 3, 5, 7))
        if exit_here: ex["X6"] = f"s_cmp_eq_u32 s{sA1}, {u}"
        tile_code(Sc, P, qk, pv1, f"{MF} {vr(OB+16*q,16)}, {vr(KV+12*u+4,4)}, {vr(P,4)}, {vr(OB+16*q,16)}", ex)
        if exit_here: A(f"s_cbranch_scc1 L_b_exit{u}")
        if n == 6: mask_tuple(CF, f"v{NEG}", f"v{vBig}")
    A("s_nop 1")
    A(f"{MF} {vr(OB,16)}, {vr(KV+12*9+8,4)}, {vr(P+4,4)}, {vr(OB,16)}")
    A.label("L_b_fin")
    stamp()
    A(f"s_lshl_b32 s{sA2}, s{sRT0}, 6")
    A(f"s_add_u32 s{sA2}, s{sA2}, s{sHEAD}")
    A(f"s_lshl_b32 s{sA2}, s{sA2}, 10")
    A(f"s_add_u32 s{sA2}, s{sA2}, {WS_O + 32*1024:#x}")
    A(f"s_min_u32 s{sCnt}, s{sA1}, 9")
    A.label("L_wloop")
    A(f"s_cmp_ge_u32 s{sWN}, 16")
    A("s_cbranch_scc1 L_wdone")
    A(WB); A(WA)
    A("s_branch L_wloop")
    A.label("L_wdone")
    A("s_nop 5")
    for i in range(2):
        range_check(OB + 16 * i, f"L_b_slow{i}")
        A.label(f"L_b_ok{i}")
        normalize_store(OB + 16 * i, P + 4 * i, sA2)
        if i == 0:
            A(f"s_add_u32 s{sA2}, s{sA2}, 65536")
            A(f"s_add_u32 s{sKV}, s{sKV}, {TB}")
            A(f"s_add_u32 s{sCnt}, s{sRT0}, 2")
            A(f"s_min_u32 s{sCnt}, s{sCnt}, 9")
    A("s_waitcnt vmcnt(0)")
    team_add(2, "L_b_ob_nl")
    A(f"s_lshl_b32 s{sT3}, s{sRB}, 8")
    A(f"s_lshl_b32 s{sT4}, s{sHG}, 5")
    A(f"s_add_u32 s{sT3}, s{sT3}, s{sT4}")
    A(f"s_add_u32 s{sT3}, s{sT3}, {FL_OB:#x}")
    flag_store(sT3)
    A.label("L_b_ob_nl")
    A(f"s_and_b32 s{sT4}, s{sJ}, 1")
    A(f"s_lshr_b32 s{sT3}, s{sJ}, 1")
    vWp = 13
    w128_tr_addr(vWp, 4, None, sT3)
    A(f"v_and_b32 v{vT3}, 7, v{vL}")
    A(f"v_lshlrev_b32 v{vT3}, 5, v{vT3}")
    A(f"s_lshl_b32 s{sT3}, s{sRB}, 8")
    A(f"s_add_u32 s{sT3}, s{sT3}, {FL_OB:#x}")
    A("s_waitcnt vmcnt(0)")
    team_add(3)
    poll_flags(vT3, sT3, slp=4)
    stamp()
    OF = 128; WF = 64; ACB = 16; ACA = 32
    A(f"s_add_u32 s{sA0}, s{sRT0}, s{sT4}")
    A(f"s_lshl_b32 s{sA0}, s{sA0}, 16")
    A(f"s_add_u32 s{sA0}, s{sA0}, {WS_O + 32*1024:#x}")
    OD = int(OPT.get("od", 8))
    def oload(s):
        if s and s % 4 == 0: A(f"s_add_u32 s{sA0}, s{sA0}, 4096")
        A(f"buffer_load_dwordx4 {vr(OF+4*s,4)}, v{vK}, s[12:15], s{sA0} offen offset:{(s%4)*1024} sc1")
    for s in range(OD): oload(s)
    team_wait(3)
    def wrd(s, base):
        b = WF + 4 * (s % 3)
        A(f"ds_read_b64_tr_b16 v[{b}:{b+1}], v{vWp} offset:{base+s*2048}")
        A(f"ds_read_b64_tr_b16 v[{b+2}:{b+3}], v{vWp} offset:{base+s*2048+1024}")
    wrd(0, 0); wrd(1, 0)
    for s in range(32):
        vm = min(31, s + OD - 1) - s
        if s + 2 < 32:
            wrd(s + 2, 0); A(f"s_waitcnt vmcnt({vm}) lgkmcnt(4)")
        else:
            A(f"s_waitcnt vmcnt({vm}) lgkmcnt({2 if s == 30 else 0})")
        c = "0" if s == 0 else vr(ACB, 16)
        A(f"{MF} {vr(ACB,16)}, {vr(WF+4*(s%3),4)}, {vr(OF+4*s,4)}, {c}")
        if s + OD < 32: oload(s + OD)
        if PACE: A(f"s_nop {PACE-1}")
    A(f"v_add_u32 v{vWp}, {L_WQ}, v{vWp}")
    A(f"v_sub_f32 v{vT3}, 1.0, v{vG}")
    for s in range(32):
        if s % 7 == 0 and s: A("s_waitcnt lgkmcnt(0)")
        A(f"ds_read_b64_tr_b16 v[{OF+4*s}:{OF+4*s+1}], v{vWp} offset:{s*2048}")
        A(f"ds_read_b64_tr_b16 v[{OF+4*s+2}:{OF+4*s+3}], v{vWp} offset:{s*2048+1024}")
    for r in range(16): A(f"v_mul_f32 v{ACB+r}, v{ACB+r}, v{vT3}")
    srd(4, P_OUT, 2048 * 1024)
    vO = 8; vOa = 9
    A(f"v_and_b32 v{vT}, 31, v{vL}")
    A(f"v_lshlrev_b32 v{vT}, 10, v{vT}")
    A(f"v_lshrrev_b32 v{vT2}, 5, v{vL}")
    A(f"v_lshl_add_u32 v{vO}, v{vT2}, 4, v{vT}")
    A(f"s_add_u32 s{sKV}, s{sRT0}, s{sT4}")
    A(f"s_lshl_b32 s{sKV}, s{sKV}, 15")
    A(f"s_lshl_b32 s{sT}, s{sHG}, 7")
    A(f"s_add_u32 s{sKV}, s{sKV}, s{sT}")
    A(f"s_lshr_b32 s{sT}, s{sJ}, 1")
    A(f"s_lshl_b32 s{sT}, s{sT}, 6")
    A(f"s_add_u32 s{sKV}, s{sKV}, s{sT}")
    A(f"s_lshl_b32 s{sT}, s{sT4}, 15")
    A(f"v_add_u32 v{vOa}, s{sT}, v{vK}")
    A(f"s_lshl_b32 s{sA2}, s{sRB}, 8")
    A(f"s_lshl_b32 s{sT}, s{sHG}, 5")
    A(f"s_add_u32 s{sA2}, s{sA2}, s{sT}")
    A(f"s_add_u32 s{sA2}, s{sA2}, {FL_OA:#x}")
    A("s_waitcnt lgkmcnt(0)")
    stamp()
    A("s_barrier")
    A("s_barrier")
    A(f"s_cmp_lg_u32 s{sJ}, 0")
    A("s_cbranch_scc1 L_b_noflag")
    flag_store(sA2)
    A.label("L_b_noflag")
    tail_dma()
    for m in range(4):
        A(f"s_waitcnt vmcnt({2*(3-m)})")
        A("s_barrier")
        for i in range(8): A(f"ds_read_b128 {vr(WF+4*i,4)}, v{vOa} offset:{(8*m+i)*1024}")
        for i in range(8):
            s = 8 * m + i
            A(f"s_waitcnt lgkmcnt({7-i})")
            c = "0" if s == 0 else vr(ACA, 16)
            A(f"{MF} {vr(ACA,16)}, {vr(OF+4*s,4)}, {vr(WF+4*i,4)}, {c}")
    A("s_nop 7")
    A("s_nop 3")
    for r in range(16): A(f"v_fmac_f32 v{ACB+r}, v{ACA+r}, v{vG}")
    for r in range(8): A(f"v_cvt_pk_bf16_f32 v{WF+r}, v{ACB+2*r}, v{ACB+2*r+1}")
    A("s_nop 1")
    for g in range(2):
        A(f"v_permlane32_swap_b32 v{WF+4*g}, v{WF+4*g+2}")
        A(f"v_permlane32_swap_b32 v{WF+4*g+1}, v{WF+4*g+3}")
    for g in range(2): A(f"buffer_store_dwordx4 {vr(WF+4*g,4)}, v{vO}, s[4:7], s{sKV} offen offset:{g*32}")
    if PROF: A("s_waitcnt vmcnt(0)")
    stamp_flush()
    A.label("L_exit")
    A("s_endpgm")
    for u in (1, 3, 5, 7):
        A.label(f"L_b_exit{u}")
        A("s_nop 0")
        A(f"{MF} {vr(OB+16,16)}, {vr(KV+12*u+8,4)}, {vr(P+4,4)}, {vr(OB+16,16)}")
        A("s_branch L_b_fin")
    for i in range(2):
        slow_path(f"L_b_slow{i}", f"L_b_ok{i}", QB + 4 * i, OB + 16 * i, sKV, sCnt, -TB, True, KV, KV + 4, KV + 16)
    return k

def main():
    hdr = open("cdna_kernels/" + NAME + ".s.ref").read().split("\n")
    head = [l for l in hdr if l.startswith(";") and "@launch" not in l]
    out = "\n".join(head) + "\n"
    out += "; @launch grid=(256,1,1) block=(512,1,1) lds=163840\n"
    out += '.amdgcn_target "amdgcn-amd-amdhsa--gfx950"\n.text\n'
    k = gen()
    body = A.text()
    errs = check_hazards(body)
    for e in errs: print("HAZARD", e, file=sys.stderr)
    out += body
    out += f""".section .rodata,"a"
.p2align 6
.amdhsa_kernel {k}
  .amdhsa_next_free_vgpr 256
  .amdhsa_next_free_sgpr 102
  .amdhsa_accum_offset 256
  .amdhsa_group_segment_fixed_size 0
  .amdhsa_kernarg_size 96
  .amdhsa_user_sgpr_count 2
  .amdhsa_user_sgpr_kernarg_segment_ptr 1
  .amdhsa_system_sgpr_workgroup_id_x 1
.end_amdhsa_kernel
"""
    paths = [a for a in sys.argv[1:] if a.endswith(".s")]
    path = paths[0] if paths else "f6.s"
    open(path, "w").write(out)
    print("wrote", path, len(out), "bytes;", len(errs), "hazard warnings")
main()
```

```python
import sys, math, struct, re
from asmlib import Asm, vr, sr, check_hazards

NAME = "gated_mix__grouped_kv_mqa__sliding_block__prompt"
def f2u(x): return struct.unpack("<I", struct.pack("<f", x))[0]
CSCALE = 0.25 * math.log2(math.e)
OPT = dict(a[2:].split("=") if "=" in a else (a[2:], "1") for a in sys.argv[1:] if a.startswith("--"))
for _k, _v in (("pace", "8"), ("pstart", "6"), ("touchfl", "1"), ("k3", "1")): OPT.setdefault(_k, _v)
PROF = "prof" in OPT

ROT = "norot" not in OPT
TB = 2176
WS_KVA = 0
WS_FL = 0x40000
FL_KVA, FL_KVB, FL_OB, FL_OA = WS_FL, WS_FL + 0x1000, WS_FL + 0x4000, WS_FL + 0x6000
WS_KVB = 0x100000
WS_O = 0x600000
WS_PROF = 15 << 20
WS_SIZE = 16 << 20
OOB = 0x40000000
ONES = 0x3F803F80
L_X, L_WQ, L_WKV, L_QX, L_GATE, L_CNT, L_COMB = 0, 65536, 131072, 147456, 155648, 156672, 131072
L_G = L_CNT + 256
SPIN = 50000
MF = "v_mfma_f32_32x32x16_bf16"
A = Asm()

sW, sHG, sRB, sNON = 16, 17, 18, 19
sT, sT2, sT3, sT4 = 24, 25, 26, 27
sJ, sKV, sCnt, sHEAD, sRT0, sA0, sA1, sA2 = 28, 29, 30, 31, 32, 33, 34, 35
sSP = 36
P_X, P_WQ, P_WK, P_WV, P_AWO, P_WQKV, P_BWO, P_GATE, P_OUT, P_DBG, P_WS = 44, 46, 48, 50, 52, 56, 58, 60, 62, 64, 66
vL, vK, vV, vT, vT2, vT3 = 1, 2, 3, 4, 5, 6
vV1 = 0

def srd(d, ptr, size):
    A(f"s_mov_b32 s{d}, s{ptr}")
    A(f"s_and_b32 s{d+1}, s{ptr+1}, 0xffff")
    A(f"s_mov_b32 s{d+2}, {size:#x}")
    A(f"s_mov_b32 s{d+3}, 0x00020000")

NST = [0]
KVP = OPT.get("prof") == "kv"
STOFF = [False]
def kstamp():
    if KVP: stamp(force=True)
def stamp(real=False, force=False):
    if not PROF: return
    if STOFF[0] and not force and not real: return
    i = NST[0]; NST[0] += 1
    assert 70 + 2 * i + 1 <= 101, "too many stamps"
    A(f"{'s_memrealtime' if real or OPT.get('prof') == 'rt' else 's_memtime'} s[{70+2*i}:{71+2*i}]")
def stamp_flush():
    if not PROF: return
    stamp(force=True); stamp(real=True)
    A("s_waitcnt lgkmcnt(0)")
    A("s_lshl_b32 s68, s2, 4")
    A(f"s_add_u32 s68, s68, s{sW}")
    A("s_lshl_b32 s68, s68, 6")
    A(f"s_add_u32 s68, s68, {WS_PROF:#x}")
    A("v_mov_b32 v251, 0")
    for i in range(NST[0]):
        A(f"v_mov_b32 v250, s{70+2*i}")
        A(f"buffer_store_dword v250, v251, s[12:15], s68 offen offset:{4*i}")
    A("s_waitcnt vmcnt(0)")

def poll_flags(va, soff, n2=None, slp=2, vd=None, x4=False):
    vd = vd if vd is not None else vT2
    l = A.uid("poll"); d = A.uid("polld")
    A(f"s_mov_b32 s{sSP}, {SPIN}")
    A.label(l)
    if x4: A(f"buffer_load_dwordx4 {vr(vd,4)}, v{va}, s[12:15], s{soff} offen sc1")
    else: A(f"buffer_load_dword v{vd}, v{va}, s[12:15], s{soff} offen sc1")
    if n2 is not None: A(f"buffer_load_dword v{vd+1}, v{va}, s[12:15], s{soff} offen offset:{n2} sc1")
    A("s_waitcnt vmcnt(0)")
    A(f"v_cmp_ne_u32 vcc, s{sNON}, v{vd}")
    if n2 is not None or x4:
        A(f"v_cmp_ne_u32 s[38:39], s{sNON}, v{vd+(2 if x4 else 1)}")
        A("s_nop 1")
        A("s_or_b64 vcc, vcc, s[38:39]")
    else:
        A("s_nop 1")
    A(f"s_cbranch_vccz {d}")
    A("s_mov_b64 exec, vcc")
    A(f"s_sub_u32 s{sSP}, s{sSP}, 1")
    A(f"s_cbranch_scc1 {d}")
    A(f"s_sleep {slp}")
    A(f"s_branch {l}")
    A.label(d)
    A("s_mov_b64 exec, -1")

def flag_store(soff):
    A(f"v_mov_b32 v{vT}, s{sNON}")
    A(f"v_mov_b32 v{vT2}, 0")
    A("s_mov_b64 exec, 1")
    A(f"buffer_store_dword v{vT}, v{vT2}, s[12:15], s{soff} offen sc1")
    A("s_mov_b64 exec, -1")

def team_add(cnt, last_label=None, n=4):
    A(f"v_mov_b32 v{vT}, {L_CNT + 4*cnt}")
    A(f"v_mov_b32 v{vT2}, 1")
    A("s_mov_b64 exec, 1")
    if last_label:
        A(f"ds_add_rtn_u32 v{vT2}, v{vT}, v{vT2}")
        A("s_waitcnt lgkmcnt(0)")
        A("s_mov_b64 exec, -1")
        A(f"v_readfirstlane_b32 s{sT}, v{vT2}")
        A("s_nop 1")
        A(f"s_cmp_lg_u32 s{sT}, {n-1}")
        A(f"s_cbranch_scc1 {last_label}")
    else:
        A(f"ds_add_u32 v{vT}, v{vT2}")
        A("s_mov_b64 exec, -1")

def team_wait(cnt, n=4, slp=2):
    l = A.uid("tw"); d = A.uid("twd")
    A(f"v_mov_b32 v{vT}, {L_CNT + 4*cnt}")
    A(f"s_mov_b32 s{sSP}, {SPIN}")
    A.label(l)
    A(f"ds_read_b32 v{vT2}, v{vT}")
    A("s_waitcnt lgkmcnt(0)")
    A(f"v_readfirstlane_b32 s{sT}, v{vT2}")
    A("s_nop 1")
    A(f"s_cmp_ge_u32 s{sT}, {n}")
    A(f"s_cbranch_scc1 {d}")
    A(f"s_sub_u32 s{sSP}, s{sSP}, 1")
    A(f"s_cbranch_scc1 {d}")
    A(f"s_sleep {slp}")
    A(f"s_branch {l}")
    A.label(d)

def tile_code(Sc, P, qk, pv1, pv0, extra):
    d = {}
    for i in range(16): d[f"e{i}"] = f"v_exp_f32 v{Sc+i}, v{Sc+i}"
    for i in range(8): d[f"c{i}"] = f"v_cvt_pk_bf16_f32 v{P+i}, v{Sc+2*i}, v{Sc+2*i+1}"
    d["PV1"] = pv1; d["QK"] = qk; d["PV0"] = pv0
    ABL = OPT.get("abl", "").split(",")
    if "nopv" in ABL: d["PV1"] = d["PV0"] = None
    if "nopv1" in ABL: d["PV1"] = None
    if "noqk" in ABL: d["QK"] = None
    if "noexp" in ABL:
        for i in range(16): d[f"e{i}"] = f"v_max_f32 v{Sc+i}, v{Sc+i}, v{Sc+i}\nv_max_f32 v{Sc+i}, v{Sc+i}, v{Sc+i}"
    if "smf" in ABL and pv0:
        m = re.match(r"\S+ (v\[\d+:\d+\]), v\[(\d+):\d+\]", pv1 or pv0)
        d["PV0"] = None
        if pv1: d["PV1"] = f"v_smfmac_f32_32x32x32_bf16 {m.group(1)}, v[{m.group(2)}:{int(m.group(2))+3}], v[{P}:{P+7}], v{vK}"
    order = "e0 X0 e1 PV1 e2 X1 e3 e4 X2 e5 X3 e6 QK e7 c0 c1 c2 c3 e8 X4 e9 e10 X5 e11 PV0 e12 X6 e13 e14 e15 c4 c5 c6 c7"
    for x in order.split():
        if x[0] == "X":
            if extra.get(x): A(extra[x])
        elif d[x]: A(d[x])

NEG, S0, S1, P = 16, 32, 48, 64

def lane_max_all(regs, dst, tmp):
    regs = list(regs)
    A(f"v_max3_f32 v{dst}, v{regs[0]}, v{regs[1]}, v{regs[2]}")
    A(f"v_max3_f32 v{tmp}, v{regs[3]}, v{regs[4]}, v{regs[5]}")
    rest = regs[6:]; t = [dst, tmp]; n = 0
    while rest:
        a, b = rest.pop(0), rest.pop(0)
        A(f"v_max3_f32 v{t[n&1]}, v{t[n&1]}, v{a}, v{b}"); n += 1
    A(f"v_max_f32 v{dst}, v{dst}, v{tmp}")
    A(f"v_mov_b32 v{tmp}, v{dst}")
    A("s_nop 1")
    A(f"v_permlane32_swap_b32 v{dst}, v{tmp}")
    A(f"v_max_f32 v{dst}, v{dst}, v{tmp}")

def mask_tuple(dst, v_true, v_false):
    for r in range(16):
        c0 = (r & 3) + 8 * (r >> 2)
        p = 40 + 2 * (r & 1)
        A(f"s_mov_b32 s{p}, {(1 << c0) - 1:#x}")
        A(f"s_mov_b32 s{p+1}, {(1 << (c0 + 4)) - 1:#x}")
        A(f"v_cndmask_b32_e64 v{dst+r}, {v_false}, {v_true}, s[{p}:{p+1}]")

def range_check(O, bad):
    A(f"v_max3_f32 v{vT}, |v{O}|, |v{O+1}|, |v{O+2}|")
    A(f"v_max3_f32 v{vT2}, |v{O+3}|, |v{O+4}|, |v{O+5}|")
    A(f"v_max3_f32 v{vT}, v{vT}, |v{O+6}|, |v{O+7}|")
    A(f"s_mov_b32 s{sT}, {f2u(2.0**-60):#x}")
    A(f"s_mov_b32 s{sT2}, {f2u(2.0**40):#x}")
    A(f"s_mov_b32 s{sT3}, {f2u(2.0**120):#x}")
    A(f"v_add_f32 v{vT}, v{vT}, v{vT2}")
    A(f"v_cmp_nlt_f32 vcc, s{sT}, v{O+8}")
    A(f"v_cmp_ngt_f32 s[38:39], s{sT2}, v{O+8}")
    A(f"v_cmp_ngt_f32 s[40:41], s{sT3}, v{vT}")
    A("s_nop 1")
    A("s_or_b64 vcc, vcc, s[38:39]")
    A("s_or_b64 vcc, vcc, s[40:41]")
    A(f"s_cbranch_vccnz {bad}")

def slow_path(name, ret, Qr, O, s_base, s_n, step, masks, KB, VB, MK):
    lp1, lp2 = A.uid("sp1"), A.uid("sp2")
    vM, vM2, vBig = 7, 8, 9
    A.label(name)
    A("s_waitcnt vmcnt(0) lgkmcnt(0)")
    A(f"v_mov_b32 v{vBig}, {f2u(-1e38):#x}")
    def set_mask():
        if not masks:
            return
        l0, l8, ld = A.uid("m0"), A.uid("m8"), A.uid("md")
        A(f"s_cmp_eq_u32 s{sA1}, 0")
        A(f"s_cbranch_scc1 {l0}")
        A(f"s_cmp_eq_u32 s{sA1}, 8")
        A(f"s_cbranch_scc1 {l8}")
        for r in range(16): A(f"v_mov_b32 v{MK+r}, 0")
        A(f"s_branch {ld}")
        A.label(l0); mask_tuple(MK, f"v{vBig}", "0"); A(f"s_branch {ld}")
        A.label(l8); mask_tuple(MK, "0", f"v{vBig}")
        A.label(ld)
    C = vr(MK, 16) if masks else "0"
    A(f"v_mov_b32 v{vM}, v{vBig}")
    A(f"s_mov_b32 s{sA0}, s{s_base}")
    A(f"s_mov_b32 s{sA1}, 0")
    A.label(lp1)
    A(f"buffer_load_dwordx4 {vr(KB,4)}, v{vK}, s[12:15], s{sA0} offen sc1")
    set_mask()
    A("s_waitcnt vmcnt(0)")
    A("s_nop 1")
    A(f"{MF} {vr(S0,16)}, {vr(KB,4)}, {vr(Qr,4)}, {C}")
    A(f"s_add_u32 s{sA0}, s{sA0}, {step & 0xffffffff:#x}")
    A(f"s_add_u32 s{sA1}, s{sA1}, 1")
    A("s_nop 15")
    for i in range(8): A(f"v_max3_f32 v{vM}, v{vM}, v{S0+2*i}, v{S0+2*i+1}")
    A(f"s_cmp_lt_u32 s{sA1}, s{s_n}")
    A(f"s_cbranch_scc1 {lp1}")
    A(f"v_mov_b32 v{vM2}, v{vM}")
    A("s_nop 1")
    A(f"v_permlane32_swap_b32 v{vM}, v{vM2}")
    A(f"v_max_f32 v{vM}, v{vM}, v{vM2}")
    for r in range(16): A(f"v_mov_b32 v{O+r}, 0")
    A(f"s_mov_b32 s{sA0}, s{s_base}")
    A(f"s_mov_b32 s{sA1}, 0")
    A.label(lp2)
    A(f"buffer_load_dwordx4 {vr(KB,4)}, v{vK}, s[12:15], s{sA0} offen sc1")
    A(f"buffer_load_dwordx4 {vr(VB,4)}, v{vV}, s[12:15], s{sA0} offen sc1")
    A(f"buffer_load_dwordx4 {vr(VB+4,4)}, v{vV1}, s[12:15], s{sA0} offen sc1")
    set_mask()
    A("s_waitcnt vmcnt(0)")
    A("s_nop 1")
    A(f"{MF} {vr(S0,16)}, {vr(KB,4)}, {vr(Qr,4)}, {C}")
    A(f"s_add_u32 s{sA0}, s{sA0}, {step & 0xffffffff:#x}")
    A(f"s_add_u32 s{sA1}, s{sA1}, 1")
    A("s_nop 15")
    for r in range(16): A(f"v_sub_f32 v{S0+r}, v{S0+r}, v{vM}")
    for r in range(16): A(f"v_exp_f32 v{S0+r}, v{S0+r}")
    A("s_nop 0")
    for i in range(8): A(f"v_cvt_pk_bf16_f32 v{P+i}, v{S0+2*i}, v{S0+2*i+1}")
    A("s_nop 1")
    A(f"{MF} {vr(O,16)}, {vr(VB,4)}, {vr(P,4)}, {vr(O,16)}")
    A(f"{MF} {vr(O,16)}, {vr(VB+4,4)}, {vr(P+4,4)}, {vr(O,16)}")
    A(f"s_cmp_lt_u32 s{sA1}, s{s_n}")
    A("s_nop 15")
    A(f"s_cbranch_scc1 {lp2}")
    A(f"s_branch {ret}")

def normalize_store(O, PK, soff):
    A(f"v_rcp_f32 v{vT}, v{O+8}")
    A("s_nop 0")
    for r in range(8): A(f"v_mul_f32 v{O+r}, v{O+r}, v{vT}")
    for r in range(4): A(f"v_cvt_pk_bf16_f32 v{PK+r}, v{O+2*r}, v{O+2*r+1}")
    A(f"buffer_store_dwordx4 {vr(PK,4)}, v{vK}, s[12:15], s{soff} offen sc1")

def tail_dma():
    A(f"v_and_b32 v{vT}, 7, v{vL}")
    A(f"v_lshlrev_b32 v{vT}, 5, v{vT}")
    A(f"s_lshl_b32 s{sT3}, s{sRB}, 8")
    A(f"s_add_u32 s{sT3}, s{sT3}, {FL_OA:#x}")
    A(f"s_and_b32 s{sT}, s{sW}, 1")
    A(f"s_and_b32 s{sT2}, s{sW}, 6")
    A(f"s_lshl_b32 s{sA0}, s{sT}, 15")
    A(f"s_lshl_b32 s{sT2}, s{sT2}, 10")
    A(f"s_add_u32 s{sA0}, s{sA0}, s{sT2}")
    A(f"s_lshl_b32 s{sA1}, s{sRB}, 1")
    A(f"s_add_u32 s{sA1}, s{sA1}, s{sT}")
    A(f"s_lshl_b32 s{sA1}, s{sA1}, 16")
    A(f"s_add_u32 s{sA1}, s{sA1}, s{sT2}")
    A(f"s_add_u32 s{sA1}, s{sA1}, {WS_O:#x}")
    poll_flags(vT, sT3, slp=1)
    stamp()
    for m in range(4):
        A(f"s_add_u32 m0, s{sA0}, {m*8192}")
        if m: A(f"s_add_u32 s{sA1}, s{sA1}, 8192")
        else: A("s_nop 0")
        A(f"buffer_load_dwordx4 v{vK}, s[12:15], s{sA1} offen sc1 lds")
        A(f"buffer_load_dwordx4 v{vK}, s[12:15], s{sA1} offen offset:1024 sc1 lds")

def gen():
    k = NAME + "_kernel"
    A.raw(f".globl {k}\n.p2align 8\n.type {k},@function\n{k}:")
    A("s_cmp_ge_u32 s2, 256")
    A("s_cbranch_scc1 L_exit")
    stamp(real=True); stamp()
    vXd, vWd, vXa, vWa = 7, 8, 9, 13
    A(f"v_lshrrev_b32 v{vT}, 6, v0")
    A(f"v_and_b32 v{vL}, 63, v0")
    A(f"v_readfirstlane_b32 s{sW}, v{vT}")
    A(f"v_lshlrev_b32 v{vT2}, 2, v{vL}")
    A(f"s_cmp_lg_u32 s{sW}, 3")
    A("s_cbranch_scc1 L_nozero")
    A(f"v_mov_b32 v{vT}, 0")
    A(f"v_add_u32 v{vT2}, {L_CNT}, v{vT2}")
    A(f"ds_write_b32 v{vT2}, v{vT}")
    A("s_waitcnt lgkmcnt(0)")
    A.label("L_nozero")
    A("s_load_dwordx16 s[44:59], s[0:1], 0")
    A("s_load_dwordx8 s[60:67], s[0:1], 64")
    A("s_memrealtime s[22:23]")
    A(f"s_and_b32 s{sHG}, s2, 1")
    A(f"s_lshl_b32 s{sHG}, s{sHG}, 2")
    if "oldmap" in OPT:
        A(f"s_bfe_u32 s{sT}, s2, 0x20003")
        A(f"s_add_u32 s{sHG}, s{sHG}, s{sT}")
        A(f"s_bfe_u32 s{sRB}, s2, 0x20001")
        A(f"s_lshl_b32 s{sRB}, s{sRB}, 3")
        A(f"s_lshr_b32 s{sT}, s2, 5")
        A(f"s_add_u32 s{sRB}, s{sRB}, s{sT}")
    else:
        A(f"s_bfe_u32 s{sT}, s2, 0x10003")
        A(f"s_add_u32 s{sHG}, s{sHG}, s{sT}")
        A(f"s_lshr_b32 s{sT}, s2, 7")
        A(f"s_lshl_b32 s{sT}, s{sT}, 1")
        A(f"s_add_u32 s{sHG}, s{sHG}, s{sT}")
        A(f"s_bfe_u32 s{sRB}, s2, 0x20001")
        A(f"s_lshl_b32 s{sRB}, s{sRB}, 3")
        A(f"s_bfe_u32 s{sT}, s2, 0x30004")
        A(f"s_add_u32 s{sRB}, s{sRB}, s{sT}")
    A(f"v_lshlrev_b32 v{vK}, 4, v{vL}")
    A("s_barrier")
    A(f"s_lshr_b32 s{sT}, s{sW}, 2")
    A(f"s_xor_b32 s{sT}, s{sT}, s{sHG}")
    A(f"s_and_b32 s{sT}, s{sT}, 1")
    A(f"s_xor_b32 s{sT}, s{sT}, 1")
    A(f"s_lshl_b32 s{sT}, s{sT}, 2")
    A(f"s_and_b32 s{sJ}, s{sW}, 3")
    A(f"s_add_u32 s{sT}, s{sT}, s{sJ}")
    A(f"s_lshl_b32 s{sT4}, s{sT}, 10")
    A(f"s_lshl_b32 s{sT}, s{sT}, 3")
    A(f"v_lshrrev_b32 v{vT}, 3, v{vL}")
    A(f"v_add_u32 v{vT}, s{sT}, v{vT}")
    A(f"v_lshrrev_b32 v{vT2}, 1, v{vT}")
    A(f"v_xor_b32 v{vT2}, v{vT2}, v{vL}")
    A(f"v_and_b32 v{vT2}, 7, v{vT2}")
    A(f"v_lshlrev_b32 v{vT2}, 4, v{vT2}")
    A(f"v_lshl_add_u32 v{vXd}, v{vT}, 10, v{vT2}")
    A(f"s_lshl_b32 s{sA0}, s{sRB}, 16")
    if ROT:
        A(f"s_and_b32 s37, s{sHG}, 2")
        A(f"s_add_u32 s37, s37, 4")
    else:
        A("s_mov_b32 s37, 0")
    A(f"s_cmp_ge_u32 s{sW}, 4")
    A("s_cbranch_scc1 L_bteam")

    sXR, sQR = 37, 54
    def dma_x_plain(kb):
        kb = [3, 0, 1, 2, 4, 5, 6, 7][kb] if "k3" in OPT else kb
        A(f"s_add_u32 m0, s{sT4}, {L_X + kb*8192 - kb*128}")
        A("s_nop 0")
        A(f"buffer_load_dwordx4 v{vXd}, s[4:7], s{sA0} offen offset:{kb*128} lds")
    def dma_x(kb):
        A(f"s_lshl_b32 s{sT2}, s{sXR}, 13")
        A(f"s_add_u32 m0, s{sT4}, s{sT2}")
        A(f"s_lshl_b32 s{sT2}, s{sXR}, 7")
        A(f"s_add_u32 s{sT2}, s{sT2}, s{sA0}")
        A(f"buffer_load_dwordx4 v{vXd}, s[4:7], s{sT2} offen lds")
        if kb < 7:
            A(f"s_add_u32 s{sXR}, s{sXR}, 1")
            A(f"s_and_b32 s{sXR}, s{sXR}, 7")

    def x_frag_addr(dst, s_off):
        A(f"v_and_b32 v{vT}, 31, v{vL}")
        A(f"v_lshrrev_b32 v{vT2}, 5, v{vL}")
        A(f"v_bfe_u32 v{vT3}, v{vL}, 1, 3")
        A(f"v_xor_b32 v{vT2}, v{vT2}, v{vT3}")
        A(f"v_lshl_add_u32 v{vT}, v{vT}, 7, s{s_off}")
        for q in range(4):
            A(f"v_xor_b32 v{vT3}, {2*q}, v{vT2}")
            A(f"v_lshl_add_u32 v{dst+q}, v{vT3}, 4, v{vT}")

    def tr_addr(dst, hmul, rowb, cgmul, s_off):
        A(f"v_lshrrev_b32 v{vT}, 5, v{vL}")
        A(f"v_bfe_u32 v{vT2}, v{vL}, 2, 2")
        A(f"v_mad_u32_u24 v{vT}, v{vT}, {hmul}, v{vT2}")
        A(f"v_and_b32 v{vT2}, 3, v{vL}")
        A(f"v_lshlrev_b32 v{vT2}, 3, v{vT2}")
        if cgmul:
            A(f"v_bfe_u32 v{vT3}, v{vL}, 4, 1")
            A(f"v_lshl_add_u32 v{vT2}, v{vT3}, {int(math.log2(cgmul))}, v{vT2}")
        A(f"v_lshl_add_u32 v{dst}, v{vT}, {int(math.log2(rowb))}, v{vT2}")
        A(f"v_add_u32 v{dst}, s{s_off}, v{dst}")

    def w128_dma_addr(dst, stride):
        A(f"v_lshrrev_b32 v{vT}, 3, v{vL}")
        if stride == 1024: A(f"v_lshlrev_b32 v{vT}, 10, v{vT}")
        else: A(f"v_mul_u32_u24 v{vT}, {stride}, v{vT}")
        A(f"v_lshrrev_b32 v{vT2}, 2, v{vL}")
        A(f"v_and_b32 v{vT2}, 4, v{vT2}")
        A(f"v_xor_b32 v{vT2}, v{vT2}, v{vL}")
        A(f"v_and_b32 v{vT2}, 7, v{vT2}")
        A(f"v_lshl_add_u32 v{dst}, v{vT2}, 4, v{vT}")

    def w128_tr_addr(dst, hmul, s_off, s_ct=None):
        A(f"v_lshrrev_b32 v{vT}, 5, v{vL}")
        A(f"v_bfe_u32 v{vT2}, v{vL}, 2, 2")
        A(f"v_mad_u32_u24 v{vT}, v{vT}, {hmul}, v{vT2}")
        A(f"v_and_b32 v{vT2}, 3, v{vL}")
        A(f"v_lshlrev_b32 v{vT2}, 3, v{vT2}")
        A(f"v_lshl_add_u32 v{vT}, v{vT}, 7, v{vT2}")
        A(f"v_bfe_u32 v{vT2}, v{vL}, 4, 1")
        A(f"v_lshl_add_u32 v{vT}, v{vT2}, 5, v{vT}")
        A(f"v_bfe_u32 v{vT2}, v{vL}, 3, 1")
        if s_ct is not None: A(f"v_xor_b32 v{vT2}, s{s_ct}, v{vT2}")
        A(f"v_lshl_add_u32 v{vT}, v{vT2}, 6, v{vT}")
        if s_off is None: A(f"v_mov_b32 v{dst}, v{vT}")
        else: A(f"v_add_u32 v{dst}, s{s_off}, v{vT}")

    def v_lane_addr():
        A(f"v_and_b32 v{vT}, 31, v{vL}")
        A(f"v_lshrrev_b32 v{vT2}, 5, v{vL}")
        A(f"v_lshlrev_b32 v{vT2}, 8, v{vT2}")
        A(f"v_lshl_add_u32 v{vV}, v{vT}, 4, v{vT2}")
        A(f"v_add_u32 v{vV}, 1024, v{vV}")
        A(f"v_mov_b32 v{vT2}, {OOB:#x}")
        A(f"v_cmp_gt_u32 s[38:39], 16, v{vT}")
        A(f"v_and_b32 v{vT}, 27, v{vT}")
        A(f"v_mov_b32 v{vT3}, 2048")
        A(f"v_cndmask_b32_e64 v{vV}, v{vT2}, v{vV}, s[38:39]")
        A(f"v_cmp_eq_u32 s[38:39], 16, v{vT}")
        A(f"v_add_u32 v{vV1}, 512, v{vV}")
        A("s_nop 0")
        A(f"v_cndmask_b32_e64 v{vV}, v{vV}, v{vT3}, s[38:39]")
        A(f"v_cndmask_b32_e64 v{vV1}, v{vV1}, v{vT3}, s[38:39]")

    def chain(s0, n, FR, ACC, kstride, second, swap):
        def rd(s):
            b = FR + 8 * (s % 4)
            A(f"ds_read_b64_tr_b16 v[{b}:{b+1}], v{vWa} offset:{s*kstride}")
            A(f"ds_read_b64_tr_b16 v[{b+2}:{b+3}], v{vWa} offset:{s*kstride+second}")
            A(f"ds_read_b128 v[{b+4}:{b+7}], v{vXa+(s&3)} offset:{(s>>2)*8192}")
        for s in range(s0, s0 + 3): rd(s)
        for s in range(s0, s0 + n):
            if s + 3 < s0 + n: rd(s + 3)
            A(f"s_waitcnt lgkmcnt({3 * (min(s + 3, s0 + n - 1) - s)})")
            b = FR + 8 * (s % 4)
            c = "0" if s == 0 else vr(ACC, 16)
            if swap: A(f"{MF} {vr(ACC,16)}, {vr(b+4,4)}, {vr(b,4)}, {c}")
            else:    A(f"{MF} {vr(ACC,16)}, {vr(b,4)}, {vr(b+4,4)}, {c}")

    R = int(OPT.get("ring", 4))
    SL = [72, 84] + [176 + 12 * i for i in range(R - 2)]
    Q = 96; O = 112
    KT0 = 176 + 12 * (R - 2)
    w128_dma_addr(vWd, 1024)
    A(f"s_lshl_b32 s{sA1}, s{sW}, 14")
    A(f"s_lshl_b32 s{sT}, s{sHG}, 7")
    A(f"s_add_u32 s{sA1}, s{sA1}, s{sT}")
    A(f"s_lshl_b32 s{sA2}, s{sW}, 11")
    A(f"s_add_u32 s{sA2}, s{sA2}, {L_WQ}")
    A("s_waitcnt lgkmcnt(0)")
    srd(4, P_X, 2048 * 1024)
    srd(8, P_WQ, 512 * 1024)
    if ROT: A(f"s_and_b32 s{sQR}, s{sRB}, 7")
    else: A(f"s_mov_b32 s{sQR}, 0")
    if "pf0" in OPT:
        A(f"s_lshr_b32 s{sT}, s2, 3")
        A(f"s_cmp_ge_u32 s{sW}, 2")
        A("s_cbranch_scc1 L_a_pfq")
        A(f"s_bfe_u32 s{sT2}, s2, 0x20001")
        A(f"s_lshl_b32 s{sT2}, s{sT2}, 19")
        A(f"s_lshl_b32 s{sT}, s{sT}, 14")
        A(f"s_add_u32 s{sT2}, s{sT2}, s{sT}")
        A(f"s_lshl_b32 s{sT}, s{sW}, 13")
        A(f"s_add_u32 s{sT2}, s{sT2}, s{sT}")
        A(f"v_lshlrev_b32 v{vT}, 7, v{vL}")
        A(f"buffer_load_dword v254, v{vT}, s[4:7], s{sT2} offen sc1")
        A("s_branch L_a_pfd")
        A.label("L_a_pfq")
        A(f"s_cmp_eq_u32 s{sW}, 3")
        A("s_cbranch_scc1 L_a_pfd")
        A(f"s_and_b32 s{sT2}, s2, 1")
        A(f"s_lshl_b32 s{sT2}, s{sT2}, 9")
        A(f"s_lshl_b32 s{sT}, s{sT}, 14")
        A(f"s_add_u32 s{sT2}, s{sT2}, s{sT}")
        A(f"v_lshrrev_b32 v{vT}, 2, v{vL}")
        A(f"v_lshlrev_b32 v{vT}, 10, v{vT}")
        A(f"v_and_b32 v{vT2}, 3, v{vL}")
        A(f"v_lshl_add_u32 v{vT}, v{vT2}, 7, v{vT}")
        A(f"buffer_load_dword v254, v{vT}, s[8:11], s{sT2} offen sc1")
        A.label("L_a_pfd")
    for kb in range(8):
        dma_x(kb)
        A(f"s_lshl_b32 s{sT2}, s{sQR}, 13")
        A(f"s_add_u32 m0, s{sA2}, s{sT2}")
        A(f"s_lshl_b32 s{sT2}, s{sQR}, 16")
        A(f"s_add_u32 s{sT2}, s{sT2}, s{sA1}")
        A(f"buffer_load_dwordx4 v{vWd}, s[8:11], s{sT2} offen lds")
        A(f"s_add_u32 m0, m0, 1024")
        A(f"s_add_u32 s{sT2}, s{sT2}, 8192")
        A(f"buffer_load_dwordx4 v{vWd}, s[8:11], s{sT2} offen lds")
        if kb < 7:
            A(f"s_add_u32 s{sQR}, s{sQR}, 1")
            A(f"s_and_b32 s{sQR}, s{sQR}, 7")
    stamp()
    srd(12, P_WS, WS_SIZE)
    A(f"s_and_b32 s{sT4}, s{sW}, 1")
    A(f"s_lshl_b32 s{sT2}, s{sT4}, 12")
    x_frag_addr(vXa, sT2)
    A(f"s_lshr_b32 s{sJ}, s{sW}, 1")
    A(f"s_mov_b32 s{sT2}, {L_WQ}")
    w128_tr_addr(vWa, 8, sT2, sJ)
    v_lane_addr()
    for q in range(4):
        for r in range(0, 10, 2): A(f"v_pk_mov_b32 v[{O+16*q+r}:{O+16*q+r+1}], 0, 0")
    for r in range(0, 4, 2): A(f"v_pk_mov_b32 v[{P+4+r}:{P+5+r}], 0, 0")
    A("s_waitcnt vmcnt(0)")
    team_add(5)
    team_wait(5, 8, 1)
    stamp()
    chain(0, 32, 200, S0, 2048, 512, False)
    stamp()
    A(f"s_mov_b32 s{sT2}, {f2u(CSCALE):#x}")
    A(f"s_lshl_b32 s{sT3}, s{sT4}, 12")
    A(f"s_lshl_b32 s{sT4}, s{sJ}, 11")
    A(f"s_add_u32 s{sT4}, s{sT4}, s{sT3}")
    A(f"s_add_u32 s{sT4}, s{sT4}, {L_QX}")
    A(f"s_add_u32 s{sT3}, s{sT3}, {L_QX}")
    A(f"v_add_u32 v{vT}, s{sT4}, v{vK}")
    A(f"v_add_u32 v{vT3}, s{sT3}, v{vK}")
    sKB, sKE = 37, 54
    A(f"s_mul_i32 s{sKB}, s{sJ}, {32*TB}")
    A(f"s_add_u32 s{sKE}, s{sKB}, {32*TB}")
    A(f"s_mul_i32 s{sA0}, s{sRB}, {TB}")
    A(f"s_add_u32 s{sKV}, s{sKB}, s{sA0}")
    for r in range(0, 4, 2): A(f"v_pk_mov_b32 v[{SL[R-1]+8+r}:{SL[R-1]+9+r}], 0, 0")
    A("s_nop 0")
    for r in range(16): A(f"v_mul_f32 v{S0+r}, s{sT2}, v{S0+r}")
    for r in range(8): A(f"v_cvt_pk_bf16_f32 v{S1+r}, v{S0+2*r}, v{S0+2*r+1}")
    A(f"ds_write_b128 v{vT}, {vr(S1,4)}")
    A(f"ds_write_b128 v{vT}, {vr(S1+4,4)} offset:1024")
    A("s_waitcnt lgkmcnt(0)")
    team_add(6)
    stamp()
    team_wait(6, 5, 1)
    stamp()
    for q in range(4): A(f"ds_read_b128 {vr(Q+4*q,4)}, v{vT3} offset:{q*1024}")
    A(f"v_mov_b32 v{vT3}, {L_CNT + 64}")
    A(f"ds_read_b32 v{vT3}, v{vT3}")
    def kv_load(slot, part):
        b = SL[slot]
        if part == 0: return f"buffer_load_dwordx4 {vr(b,4)}, v{vK}, s[12:15], s{sKV} offen sc1"
        if part == 1: return f"buffer_load_dwordx4 {vr(b+4,4)}, v{vV}, s[12:15], s{sKV} offen sc1"
        return f"buffer_load_dwordx4 {vr(b+8,4)}, v{vV1}, s[12:15], s{sKV} offen sc1"
    KADV = [f"s_add_u32 s{sKV}, s{sKV}, {TB}", f"s_cmp_eq_u32 s{sKV}, s{sKE}", f"s_cselect_b32 s{sKV}, s{sKB}, s{sKV}"]
    A(f"buffer_load_dwordx4 {vr(KT0,4)}, v{vK}, s[12:15], s{sA0} offen sc1")
    for t in range(R - 1):
        for part in range(3): A(kv_load(t, part))
        for x in KADV: A(x)
    A(f"s_mov_b32 s{sCnt}, {32 // R}")
    A("s_waitcnt lgkmcnt(0)")
    team_add(7)
    A(f"v_readfirstlane_b32 s{sNON}, v{vT3}")
    A(f"s_waitcnt vmcnt({3*(R-1)})")
    T0 = [S0, S1, KT0 + 4, KT0 + 20]
    for q in range(4): A(f"{MF} {vr(T0[q],16)}, {vr(KT0,4)}, {vr(Q+4*q,4)}, 0")
    A("s_nop 7")
    A("s_nop 0")
    lane_max_all([T0[q] + r for q in range(4) for r in range(8)], vT, vT2)
    A(f"v_sub_f32 v{NEG}, 0, v{vT}")
    A(f"v_sub_f32 v{NEG+1}, 0, v{vT}")
    for r in range(2, 16, 2): A(f"v_pk_mov_b32 v[{NEG+r}:{NEG+r+1}], v[{NEG}:{NEG+1}], v[{NEG}:{NEG+1}] op_sel:[0,1]")
    A(f"s_waitcnt vmcnt({3*(R-2)})")
    A("s_nop 0")
    A(f"{MF} {vr(S0,16)}, {vr(SL[0],4)}, {vr(Q,4)}, {vr(NEG,16)}")
    A("s_nop 7")
    A("s_nop 3")
    stamp()
    if PROF: A("s_memtime s[68:69]")
    A.raw(".p2align 6")
    A.label("L_aloop")
    if PROF:
        A("s_waitcnt lgkmcnt(0)")
        A(f"s_mov_b32 m0, s{sCnt}")
        A("s_nop 0")
        A(f"v_writelane_b32 v255, s68, m0")
        A("s_memtime s[68:69]")
    for kb in range(R):
        for q in range(4):
            Sc, Sn = (S0, S1) if q % 2 == 0 else (S1, S0)
            cur, prv, nxt = SL[kb], SL[(kb - 1) % R], SL[(kb + 1) % R]
            Kq = cur if q < 3 else nxt
            nq = (q + 1) % 4
            Vp = cur if q > 0 else prv
            Op = O + 16 * ((q - 1) % 4); Oc = O + 16 * q
            ex = {}
            if q < 3: ex["X4"] = kv_load((kb - 1) % R, q)
            if q == 3:
                ex["X0"], ex["X1"], ex["X2"] = KADV
                ex["X3"] = f"s_waitcnt vmcnt({3*(R-2)})"
                if kb == R - 1:
                    ex["X5"] = f"s_sub_u32 s{sCnt}, s{sCnt}, 1"
                    ex["X6"] = f"s_cmp_lt_u32 s{sCnt}, {32 // R - 1}"
            tile_code(Sc, P,
                      f"{MF} {vr(Sn,16)}, {vr(Kq,4)}, {vr(Q+4*nq,4)}, {vr(NEG,16)}",
                      f"{MF} {vr(Op,16)}, {vr(Vp+8,4)}, {vr(P+4,4)}, {vr(Op,16)}",
                      f"{MF} {vr(Oc,16)}, {vr(cur+4,4)}, {vr(P,4)}, {vr(Oc,16)}", ex)
    A("s_cbranch_scc0 L_afirst")
    A(f"s_cmp_lg_u32 s{sCnt}, 0")
    A("s_cbranch_scc1 L_aloop")
    A(f"{MF} {vr(O+48,16)}, {vr(SL[R-1]+8,4)}, {vr(P+4,4)}, {vr(O+48,16)}")
    stamp()
    A(f"s_mul_i32 s{sT}, s{sW}, 4608")
    A(f"s_add_u32 s{sT}, s{sT}, {L_COMB}")
    A(f"s_xor_b32 s{sT2}, s{sW}, 2")
    A(f"s_mul_i32 s{sT2}, s{sT2}, 4608")
    A(f"s_add_u32 s{sT2}, s{sT2}, {L_COMB}")
    A(f"v_add_u32 v{vT}, s{sT}, v{vK}")
    A(f"v_lshlrev_b32 v{vT3}, 2, v{vL}")
    A(f"v_add_u32 v{vT2}, s{sT}, v{vT3}")
    A(f"v_add_u32 v7, s{sT2}, v{vK}")
    A(f"v_add_u32 v8, s{sT2}, v{vT3}")
    A(f"s_cmp_eq_u32 s{sJ}, 0")
    A("s_cbranch_scc1 L_a_kh0")
    for i in range(2):
        A(f"ds_write_b128 v{vT}, {vr(O+16*i,4)} offset:{i*2304}")
        A(f"ds_write_b128 v{vT}, {vr(O+16*i+4,4)} offset:{i*2304+1024}")
        A(f"ds_write_b32 v{vT2}, v{O+16*i+8} offset:{i*2304+2048}")
    for r in range(0, 8, 2): A(f"v_pk_mov_b32 v[{Q+r}:{Q+r+1}], v[{Q+8+r}:{Q+9+r}], v[{Q+8+r}:{Q+9+r}] op_sel:[0,1]")
    A("s_waitcnt lgkmcnt(0)")
    A("s_nop 2")
    for i in range(2):
        for r in range(0, 10, 2): A(f"v_pk_mov_b32 v[{O+16*i+r}:{O+16*i+r+1}], v[{O+32+16*i+r}:{O+33+16*i+r}], v[{O+32+16*i+r}:{O+33+16*i+r}] op_sel:[0,1]")
    A("s_branch L_a_x")
    A.label("L_a_kh0")
    A("s_nop 7")
    for i in range(2):
        A(f"ds_write_b128 v{vT}, {vr(O+32+16*i,4)} offset:{i*2304}")
        A(f"ds_write_b128 v{vT}, {vr(O+32+16*i+4,4)} offset:{i*2304+1024}")
        A(f"ds_write_b32 v{vT2}, v{O+32+16*i+8} offset:{i*2304+2048}")
    A.label("L_a_x")
    A("s_waitcnt vmcnt(0) lgkmcnt(0)")
    A("s_barrier")
    for i in range(2):
        A(f"ds_read_b128 {vr(S0+16*i,4)}, v7 offset:{i*2304}")
        A(f"ds_read_b128 {vr(S0+16*i+4,4)}, v7 offset:{i*2304+1024}")
        A(f"ds_read_b32 v{S0+16*i+8}, v8 offset:{i*2304+2048}")
    A(f"s_and_b32 s{sT4}, s{sW}, 1")
    A(f"s_lshl_b32 s{sA2}, s{sRB}, 1")
    A(f"s_add_u32 s{sA2}, s{sA2}, s{sT4}")
    A(f"s_lshl_b32 s{sA2}, s{sA2}, 6")
    A(f"s_lshl_b32 s{sT4}, s{sHG}, 2")
    A(f"s_add_u32 s{sA2}, s{sA2}, s{sT4}")
    A(f"s_lshl_b32 s{sT4}, s{sJ}, 1")
    A(f"s_add_u32 s{sA2}, s{sA2}, s{sT4}")
    A(f"s_lshl_b32 s{sA2}, s{sA2}, 10")
    A(f"s_add_u32 s{sA2}, s{sA2}, {WS_O:#x}")
    A(f"s_mov_b32 s{sKV}, 0")
    A(f"s_mov_b32 s{sCnt}, 64")
    A("s_waitcnt lgkmcnt(0)")
    for i in range(2):
        for r in range(9): A(f"v_add_f32 v{O+16*i+r}, v{O+16*i+r}, v{S0+16*i+r}")
    for i in range(2):
        range_check(O + 16 * i, f"L_a_slow{i}")
        A.label(f"L_a_ok{i}")
        normalize_store(O + 16 * i, P + 4 * i, sA2)
        if i == 0: A(f"s_add_u32 s{sA2}, s{sA2}, 1024")
    A("s_waitcnt vmcnt(0)")
    stamp()
    A("s_barrier")
    tail_dma()
    for m in range(4):
        A(f"s_waitcnt vmcnt({2*(3-m)})")
        A("s_barrier")
    if PROF:
        A("s_lshl_b32 s68, s2, 2")
        A(f"s_add_u32 s68, s68, s{sW}")
        A("s_lshl_b32 s68, s68, 8")
        A(f"s_add_u32 s68, s68, {WS_PROF + 0x80000:#x}")
        A(f"v_lshlrev_b32 v248, 2, v{vL}")
        A("buffer_store_dword v255, v248, s[12:15], s68 offen")
    stamp_flush()
    A("s_endpgm")
    A.label("L_afirst")
    team_wait(9, 1, 1)
    A("s_branch L_aloop")
    for i in range(2):
        slow_path(f"L_a_slow{i}", f"L_a_ok{i}", Q + 4 * i, O + 16 * i, sKV, sCnt, TB, False, SL[0], SL[0] + 4, None)

    NST[0] = 2
    A.label("L_bteam")
    A(f"s_setprio {OPT.get('bprio', 2)}")
    A(f"s_lshl_b32 s{sA2}, s{sJ}, 10")
    A("s_mov_b32 s6, 0x200000")
    A("s_mov_b32 s7, 0x00020000")
    A(f"s_bitcmp0_b32 s{sHG}, 1")
    A("s_cselect_b32 s42, 16384, 0")
    A("s_mov_b32 s43, 0x00020000")
    A(f"s_or_b32 s{sT3}, s2, s{sJ}")
    A(f"s_cmp_lt_u32 s{sHG}, 4")
    A("s_waitcnt lgkmcnt(0)")
    A(f"s_cselect_b32 s40, s{P_WK}, s{P_WV}")
    A(f"s_cselect_b32 s41, s{P_WK+1}, s{P_WV+1}")
    A(f"s_mov_b32 s4, s{P_X}")
    A(f"s_and_b32 s5, s{P_X+1}, 0xffff")
    A("s_and_b32 s41, s41, 0xffff")
    for kb in range(8):
        dma_x_plain(kb)
        if kb % 2 == 0:
            A(f"s_add_u32 m0, s{sA2}, {L_WKV + kb*2048}")
            A(f"s_add_u32 s{sT}, s{sA2}, {kb*2048}")
            A(f"buffer_load_dwordx4 v{vK}, s[40:43], s{sT} offen lds")
    A(f"s_or_b32 s{sT2}, s22, 1")
    srd(20, P_DBG, 256)
    srd(12, P_WS, WS_SIZE)
    A(f"s_cmp_lg_u32 s{sT3}, 1")
    A("s_cbranch_scc1 L_b_nononce")
    A(f"s_cmp_lg_u32 s2, 0")
    A("s_cbranch_scc1 L_b_nononce")
    A(f"v_mov_b32 v{vT}, s{sT2}")
    A(f"v_mov_b32 v{vT2}, 0")
    A("s_mov_b64 exec, 1")
    A(f"buffer_store_dword v{vT}, v{vT2}, s[20:23], 0 offen sc1")
    A("s_mov_b64 exec, -1")
    A.label("L_b_nononce")
    if "notouch" not in OPT:
        A(f"s_cmp_lg_u32 s{sJ}, 3")
        A("s_cbranch_scc1 L_b_notouch")
        A(f"v_lshlrev_b32 v{vT}, 21, v{vL}")
        if "touchfl" in OPT:
            A(f"s_lshl_b32 s{sT2}, s2, 7")
            A(f"s_add_u32 s{sT2}, s{sT2}, {WS_FL - 2048:#x}")
            A(f"v_writelane_b32 v{vT}, s{sT2}, 5")
            A("s_mov_b64 exec, 0x3f")
        else:
            A("s_mov_b64 exec, 0x1f")
        A(f"buffer_load_dword v254, v{vT}, s[12:15], 0 offen offset:2048 sc1")
        A("s_mov_b64 exec, -1")
        A.label("L_b_notouch")
    stamp()
    A(f"s_and_b32 s{sT4}, s{sHG}, 1")
    A(f"s_lshl_b32 s{sT2}, s{sT4}, 12")
    x_frag_addr(vXa, sT2)
    A(f"s_mov_b32 s{sT2}, {L_WKV}")
    tr_addr(vWa, 8, 32, 0, sT2)
    v_lane_addr()
    vN = 14
    A(f"v_mov_b32 v{vN+1}, 0")
    def nonce_load(): A(f"buffer_load_dword v{vN}, v{vN+1}, s[20:23], 0 offen sc1")
    def nonce_wait():
        l = A.uid("nw"); d = A.uid("nwd")
        A(f"s_mov_b32 s{sSP}, {SPIN}")
        A.label(l)
        A("s_waitcnt vmcnt(0)")
        A(f"v_readfirstlane_b32 s{sNON}, v{vN}")
        A("s_nop 1")
        A(f"s_cmp_lg_u32 s{sNON}, 0")
        A(f"s_cbranch_scc1 {d}")
        A(f"s_sub_u32 s{sSP}, s{sSP}, 1")
        A(f"s_cbranch_scc1 {d}")
        nonce_load()
        A(f"s_branch {l}")
        A.label(d)
    ACC = 16
    A(f"s_lshl_b32 s{sRT0}, s{sRB}, 1")
    A(f"s_add_u32 s{sA0}, s{sRT0}, s{sT4}")
    A(f"s_mul_i32 s{sA0}, s{sA0}, {TB}")
    A(f"s_lshl_b32 s{sA1}, s{sRB}, 2")
    A(f"s_add_u32 s{sA1}, s{sA1}, s{sT4}")
    A(f"s_lshr_b32 s{sT2}, s{sHG}, 2")
    A(f"s_lshl_b32 s{sT2}, s{sT2}, 1")
    A(f"s_add_u32 s{sA1}, s{sA1}, s{sT2}")
    A(f"s_lshl_b32 s{sA1}, s{sA1}, {3 if 'dense' in OPT else 5}")
    A(f"s_add_u32 s{sA1}, s{sA1}, {FL_KVA:#x}")
    A("s_waitcnt vmcnt(6)")
    kstamp()
    ksv = NST[0]
    team_add(4)
    A(f"s_cmp_lg_u32 s{sJ}, 0")
    A("s_cbranch_scc1 L_b_idle")
    A(f"s_bitcmp1_b32 s{sHG}, 1")
    A("s_cbranch_scc1 L_b_idle")
    def kv_unit(swap):
        NST[0] = ksv
        team_wait(4, 4, 1)
        kstamp()
        chain(0, 16, 64, ACC, 512, 128, swap)
        kstamp()
        A("s_waitcnt vmcnt(0)")
        kstamp()
        nonce_load()
        team_add(5)
        team_add(8)
        team_wait(8, 4, 1)
        kstamp()
        chain(16, 16, 64, ACC, 512, 128, swap)
        kstamp()
    A(f"s_cmp_ge_u32 s{sHG}, 4")
    A("s_cbranch_scc1 L_b_vunit")
    kv_unit(False)
    A("s_nop 7")
    A("s_nop 3")
    for r in range(4): A(f"v_cvt_pk_bf16_f32 v{64+r}, v{ACC+2*r}, v{ACC+2*r+1}")
    A(f"buffer_store_dwordx4 {vr(64,4)}, v{vK}, s[12:15], s{sA0} offen sc1")
    A("s_branch L_b_kvpub")
    A.label("L_b_vunit")
    A(f"v_lshrrev_b32 v{vT2}, 5, v{vL}")
    A(f"v_lshlrev_b32 v7, 8, v{vT2}")
    A(f"v_and_b32 v{vT2}, 15, v{vL}")
    A(f"v_lshl_add_u32 v7, v{vT2}, 4, v7")
    A(f"v_bfe_u32 v{vT2}, v{vL}, 4, 1")
    A(f"v_lshl_add_u32 v7, v{vT2}, 30, v7")
    A(f"v_cmp_gt_u32 s[38:39], 8, v{vL}")
    A(f"v_mov_b32 v{vT2}, {OOB:#x}")
    for r in range(4): A(f"v_mov_b32 v{100+r}, {ONES:#x}")
    A(f"v_cndmask_b32_e64 v8, v{vT2}, v{vK}, s[38:39]")
    A(f"buffer_store_dwordx4 {vr(100,4)}, v8, s[12:15], s{sA0} offen offset:2048 sc1")
    kv_unit(True)
    A("s_nop 7")
    A("s_nop 3")
    for s in range(2):
        for r in range(4): A(f"v_cvt_pk_bf16_f32 v{64+4*s+r}, v{ACC+8*s+2*r}, v{ACC+8*s+2*r+1}")
        A(f"buffer_store_dwordx4 {vr(64+4*s,4)}, v7, s[12:15], s{sA0} offen offset:{1024+s*512} sc1")
    A.label("L_b_kvpub")
    nonce_wait()
    kstamp()
    flag_store(sA1)
    A("s_branch L_b_pdone")
    A.label("L_b_idle")
    if KVP:
        NST[0] = ksv
        for _ in range(6): kstamp()
    A(f"s_cmp_eq_u32 s{sJ}, 3")
    A("s_cbranch_scc1 L_b_idle1")
    A("s_waitcnt vmcnt(0)")
    A.label("L_b_idle1")
    A("s_waitcnt vmcnt(1)")
    nonce_load()
    team_add(5)
    team_add(8)
    nonce_wait()
    A(f"v_mov_b32 v{vT}, {L_CNT + 64}")
    A(f"ds_write_b32 v{vT}, v{vN}")
    A.label("L_b_pdone")
    stamp()
    if KVP: STOFF[0] = True
    srd(8, P_WQKV, 512 * 3072)
    srd(40, P_GATE, 1024)
    A(f"s_mov_b32 m0, {L_GATE}")
    A(f"s_lshl_b32 s{sHEAD}, s{sHG}, 2")
    A(f"buffer_load_dwordx4 v{vK}, s[40:43], 0 offen lds")
    A(f"s_add_u32 s{sHEAD}, s{sHEAD}, s{sJ}")
    vD1, vX0, vW1, vW2, vG = 7, 9, 13, 8, 15
    w128_dma_addr(vD1, 3072)
    A(f"s_lshl_b32 s{sA0}, s{sJ}, 10")
    A(f"s_lshl_b32 s{sT2}, s{sHG}, 7")
    A(f"s_add_u32 s{sA0}, s{sA0}, s{sT2}")
    A(f"s_lshl_b32 s{sA1}, s{sJ}, 14")
    A(f"s_add_u32 s{sA1}, s{sA1}, {L_WQ}")
    sP3W = 37
    A(f"s_add_u32 s{sP3W}, s{sA0}, {512*3072}")
    if ROT:
        A(f"s_and_b32 s{sT3}, s{sRB}, 3")
        A(f"s_cmp_eq_u32 s{sJ}, 3")
        A(f"s_cselect_b32 s{sT3}, 0, s{sT3}")
        A(f"s_lshl_b32 s{sT2}, s{sT3}, 14")
        A(f"s_mul_i32 s{sT3}, s{sT3}, {128*3072}")
        A(f"s_add_u32 s{sA0}, s{sA0}, s{sT3}")
    else:
        A(f"s_mov_b32 s{sT2}, 0")
    x_frag_addr(vX0, sT2)
    w128_tr_addr(vW1, 8, sA1)
    A(f"v_xor_b32 v{vW2}, 64, v{vW1}")
    AC, FR = 16, 80
    for r in range(0, 64, 2): A(f"v_pk_mov_b32 v[{AC+r}:{AC+r+1}], 0, 0")
    A(f"s_mov_b32 s{sCnt}, 4")
    A(f"s_cmp_eq_u32 s{sJ}, 3")
    A("s_cbranch_scc1 L_b_gwave")
    if "p3early" in OPT: team_wait(6, 4, 1)
    else: team_wait(7, 4, 2)
    stamp()
    if "nob" in OPT: A("s_branch L_b_skip")
    if "pf" in OPT:
        A(f"s_lshr_b32 s{sT}, s2, 3")
        A(f"s_and_b32 s{sT3}, s2, 1")
        A(f"s_lshl_b32 s{sT3}, s{sT3}, 9")
        A(f"s_mul_i32 s{sT2}, s{sT}, {16*3072}")
        A(f"s_add_u32 s{sT2}, s{sT2}, s{sT3}")
        A(f"s_lshl_b32 s{sT4}, s{sJ}, 10")
        A(f"s_add_u32 s{sT2}, s{sT2}, s{sT4}")
        A(f"v_lshrrev_b32 v{vT}, 2, v{vL}")
        A(f"v_and_b32 v{vT2}, 3, v{vL}")
        A(f"v_lshlrev_b32 v{vT2}, 7, v{vT2}")
        A(f"v_lshl_add_u32 v{vT3}, v{vT}, 10, v{vT2}")
        A(f"v_mul_u32_u24 v{vT}, 3072, v{vT}")
        A(f"v_add_u32 v{vT}, v{vT}, v{vT2}")
        A(f"buffer_load_dword v254, v{vT}, s[8:11], s{sT2} offen sc1")
        A(f"s_cmp_eq_u32 s{sJ}, 2")
        A("s_cbranch_scc1 L_b_nopf")
        A(f"s_cmp_eq_u32 s{sJ}, 0")
        A(f"s_cselect_b32 s40, s{P_BWO}, s{P_AWO}")
        A(f"s_cselect_b32 s41, s{P_BWO+1}, s{P_AWO+1}")
        A("s_and_b32 s41, s41, 0xffff")
        A(f"s_mov_b32 s42, {512*1024:#x}")
        A(f"s_lshl_b32 s{sT2}, s{sT}, 14")
        A(f"s_add_u32 s{sT2}, s{sT2}, s{sT3}")
        A(f"buffer_load_dword v254, v{vT3}, s[40:43], s{sT2} offen sc1")
        A.label("L_b_nopf")
    def p3_dma(slot):
        A(f"s_add_u32 m0, s{sA1}, {slot*2048}")
        A(f"s_add_u32 s{sT2}, s{sA0}, {8*3072}")
        A(f"buffer_load_dwordx4 v{vD1}, s[8:11], s{sA0} offen lds")
        A(f"s_add_u32 m0, s{sA1}, {slot*2048+1024}")
        A(f"s_add_u32 s{sA0}, s{sA0}, {16*3072}")
        A(f"buffer_load_dwordx4 v{vD1}, s[8:11], s{sT2} offen lds")
    def p3_wrap():
        A(f"s_cmp_ge_u32 s{sA0}, s{sP3W}")
        A(f"s_cselect_b32 s{sT2}, {512*3072}, 0")
        A(f"s_sub_u32 s{sA0}, s{sA0}, s{sT2}")
    def p3_rd(i):
        b = FR + 16 * (i & 1); sl = (i % 8) * 2048
        if i == 8:
            for q in range(4):
                A(f"v_add_u32 v{vX0+q}, 16384, v{vX0+q}")
                A(f"v_and_b32 v{vX0+q}, 0xffff, v{vX0+q}")
        A(f"ds_read_b64_tr_b16 v[{b}:{b+1}], v{vW1} offset:{sl}")
        A(f"ds_read_b64_tr_b16 v[{b+2}:{b+3}], v{vW1} offset:{sl+512}")
        A(f"ds_read_b128 v[{b+8}:{b+11}], v{vX0+(i&3)} offset:{((i%8)>>2)*8192}")
        A(f"ds_read_b128 v[{b+12}:{b+15}], v{vX0+(i&3)} offset:{((i%8)>>2)*8192+4096}")
        A(f"ds_read_b64_tr_b16 v[{b+4}:{b+5}], v{vW2} offset:{sl}")
        A(f"ds_read_b64_tr_b16 v[{b+6}:{b+7}], v{vW2} offset:{sl+512}")
    for s in range(8): p3_dma(s)
    p3_wrap()
    A("s_waitcnt vmcnt(14)")
    p3_rd(0)
    def p3_loop(name, swap):
        A.label(name)
        for i in range(8):
            A("s_waitcnt vmcnt(12)")
            p3_rd(i + 1)
            A("s_waitcnt lgkmcnt(6)")
            b = FR + 16 * (i & 1)
            n = 0
            for ct in range(2):
                for ri in range(2):
                    a = AC + 16 * (2 * ct + ri); wv, xv = vr(b + 4 * ct, 4), vr(b + 8 + 4 * ri, 4)
                    A(f"{MF} {vr(a,16)}, {xv if swap else wv}, {wv if swap else xv}, {vr(a,16)}")
                    if n == 0: p3_dma(i)
                    elif PACE: A(f"s_nop {PACE-1}")
                    n += 1
        p3_wrap()
        A(f"s_sub_u32 s{sCnt}, s{sCnt}, 1")
        A(f"s_cmp_eq_u32 s{sCnt}, 1")
        A(f"s_cselect_b32 s{sA0}, {OOB:#x}, s{sA0}")
        A(f"s_cmp_lg_u32 s{sCnt}, 0")
        A(f"s_cbranch_scc1 {name}")
    PACE = int(OPT.get("pace", 0))
    A(f"s_cmp_eq_u32 s{sJ}, 2")
    A("s_cbranch_scc1 L_p3v")
    p3_loop("L_p3qk", False)
    svst = NST[0]
    stamp()
    A(f"s_lshl_b32 s{sKV}, s{sHG}, 8")
    A(f"s_add_u32 s{sKV}, s{sKV}, s{sRT0}")
    A(f"s_mul_i32 s{sKV}, s{sKV}, {TB}")
    A(f"s_add_u32 s{sKV}, s{sKV}, {WS_KVB:#x}")
    A(f"s_mov_b32 s{sT2}, {f2u(CSCALE):#x}")
    A(f"v_add_u32 v{vT3}, {L_QX}, v{vK}")
    A("s_waitcnt lgkmcnt(0)")
    A(f"s_cmp_eq_u32 s{sJ}, 1")
    A("s_cbranch_scc1 L_p3k")
    team_wait(7, 4, 2)
    for ct in range(2):
        for ri in range(2):
            for hh in range(2):
                a = AC + 16 * (2 * ct + ri) + 8 * hh; p = FR + 4 * ((2 * ri + hh) & 3)
                for r in range(8): A(f"v_mul_f32 v{a+r}, s{sT2}, v{a+r}")
                for r in range(4): A(f"v_cvt_pk_bf16_f32 v{p+r}, v{a+2*r}, v{a+2*r+1}")
                A(f"ds_write_b128 v{vT3}, {vr(p,4)} offset:{(4*ri + 2*ct + hh)*1024}")
        if ct == 0: A("s_waitcnt lgkmcnt(0)")
    A("s_waitcnt vmcnt(0) lgkmcnt(0)")
    A("s_branch L_p3done")
    A.label("L_p3k")
    for ct in range(2):
        for hh in range(2):
            for ri in range(2):
                a = AC + 16 * (2 * ct + ri) + 8 * hh; p = FR + 4 * (4 * ct + 2 * hh + ri)
                for r in range(4): A(f"v_cvt_pk_bf16_f32 v{p+r}, v{a+2*r}, v{a+2*r+1}")
                A(f"buffer_store_dwordx4 {vr(p,4)}, v{vK}, s[12:15], s{sKV} offen offset:{ri*TB} sc1")
            A(f"s_add_u32 s{sKV}, s{sKV}, {64*TB}")
    A("s_branch L_p3pub")
    A.label("L_p3v")
    p3_loop("L_p3vl", True)
    NST[0] = svst
    stamp()
    A(f"s_lshl_b32 s{sKV}, s{sHG}, 8")
    A(f"s_add_u32 s{sKV}, s{sKV}, s{sRT0}")
    A(f"s_mul_i32 s{sKV}, s{sKV}, {TB}")
    A(f"s_add_u32 s{sKV}, s{sKV}, {WS_KVB:#x}")
    A(f"s_mov_b32 s{sT3}, {64*TB}")
    A(f"v_lshrrev_b32 v{vT}, 4, v{vL}")
    A(f"v_mul_lo_u32 v{vT}, v{vT}, s{sT3}")
    A(f"v_bfe_u32 v{vT2}, v{vL}, 3, 1")
    A(f"v_mul_u32_u24 v{vT2}, {TB}, v{vT2}")
    A(f"v_add_u32 v{vT}, v{vT}, v{vT2}")
    A(f"v_and_b32 v{vT2}, 7, v{vL}")
    A(f"v_lshl_add_u32 v{vT3}, v{vT2}, 4, v{vT}")
    for r in range(4): A(f"v_mov_b32 v{120+r}, {ONES:#x}")
    A(f"v_bfe_u32 v{vT}, v{vL}, 4, 1")
    A(f"v_mul_lo_u32 v{vT}, v{vT}, s{sT3}")
    A(f"v_lshrrev_b32 v{vT2}, 5, v{vL}")
    A(f"v_lshl_add_u32 v{vT}, v{vT2}, 8, v{vT}")
    A(f"v_and_b32 v{vT2}, 15, v{vL}")
    A(f"v_lshl_add_u32 v{vT}, v{vT2}, 4, v{vT}")
    A("s_waitcnt lgkmcnt(0)")
    A(f"buffer_store_dwordx4 {vr(120,4)}, v{vT3}, s[12:15], s{sKV} offen offset:2048 sc1")
    for ct in range(2):
        for ri in range(2):
            for s in range(2):
                a = AC + 16 * (2 * ct + ri) + 8 * s; p = FR + 4 * (4 * ct + 2 * ri + s)
                for r in range(4): A(f"v_cvt_pk_bf16_f32 v{p+r}, v{a+2*r}, v{a+2*r+1}")
                A(f"buffer_store_dwordx4 {vr(p,4)}, v{vT}, s[12:15], s{sKV} offen offset:{1024+ri*TB+s*512} sc1")
        if ct == 0: A(f"s_add_u32 s{sKV}, s{sKV}, {128*TB}")
    A.label("L_p3pub")
    A("s_waitcnt vmcnt(0)")
    team_add(0, "L_p3done", 2)
    A(f"s_lshl_b32 s{sT3}, s{sHG}, 5")
    A(f"s_add_u32 s{sT3}, s{sT3}, s{sRB}")
    A(f"s_lshl_b32 s{sT3}, s{sT3}, 5")
    A(f"s_add_u32 s{sT3}, s{sT3}, {FL_KVB:#x}")
    flag_store(sT3)
    A("s_branch L_p3done")
    A.label("L_b_gwave")
    NST[0] = svst - 1
    A(f"v_bfe_u32 v{vT3}, v{vL}, 1, 4")
    A(f"v_min_u32 v{vT3}, {2*R-2}, v{vT3}")
    A(f"v_add_u32 v{vT3}, s{sRB}, v{vT3}")
    A(f"v_and_b32 v{vT3}, 31, v{vT3}")
    A(f"v_and_b32 v{vT}, 32, v{vL}")
    A(f"v_add_u32 v{vT3}, v{vT3}, v{vT}")
    A(f"v_and_b32 v{vT}, 1, v{vT3}")
    A(f"v_lshrrev_b32 v{vT3}, 1, v{vT3}")
    A(f"v_lshl_add_u32 v{vT3}, v{vT3}, 2, v{vT}")
    A(f"v_and_b32 v{vT}, 1, v{vL}")
    A(f"v_lshl_add_u32 v{vT3}, v{vT}, 1, v{vT3}")
    A(f"v_lshlrev_b32 v{vT3}, 5, v{vT3}")
    if OPT.get("pstart", "5") == "5": team_wait(5, 8, 2)
    else: team_wait(6, 4, 1)
    A(f"s_mov_b32 s{sT3}, {FL_KVA:#x}")
    if KVP:
        NST[0] = 5
        kstamp()
    poll_flags(vT3, sT3, slp=int(OPT.get("pslp", 1)))
    if KVP:
        kstamp()
        A("s_waitcnt lgkmcnt(0)")
        A(f"s_sub_u32 s{70+2*NST[0]}, {SPIN}, s{sSP}")
        A(f"s_add_u32 s{70+2*NST[0]}, s{70+2*NST[0]}, s72")
        NST[0] = svst
    A("s_waitcnt lgkmcnt(0)")
    team_add(6)
    A(f"s_sleep {OPT.get('asl', 16)}")
    A(f"v_lshlrev_b32 v{vT}, 5, v{vL}")
    poll_flags(vT, sT3, n2=2048, slp=4)
    team_add(9)
    if "nob" in OPT: A("s_branch L_b_skip")
    stamp()
    A(f"v_lshrrev_b32 v{vW1}, 5, v{vL}")
    A(f"v_lshlrev_b32 v{vW1}, 4, v{vW1}")
    A(f"v_add_u32 v{vW1}, {L_GATE}, v{vW1}")
    A(f"s_mov_b32 s{sCnt}, 8")
    A.label("L_gloop")
    for i in range(4):
        A(f"ds_read_b128 {vr(FR+12*i,4)}, v{vW1} offset:{i*32}")
        A(f"ds_read_b128 {vr(FR+12*i+4,4)}, v{vX0+i}")
        A(f"ds_read_b128 {vr(FR+12*i+8,4)}, v{vX0+i} offset:4096")
    A(f"v_add_u32 v{vW1}, 128, v{vW1}")
    for i in range(4):
        A(f"s_waitcnt lgkmcnt({9-3*i})")
        A(f"{MF} {vr(AC,16)}, {vr(FR+12*i,4)}, {vr(FR+12*i+4,4)}, {vr(AC,16)}")
        A(f"v_add_u32 v{vX0+i}, 8192, v{vX0+i}")
        A("s_nop 7")
        A(f"{MF} {vr(AC+16,16)}, {vr(FR+12*i,4)}, {vr(FR+12*i+8,4)}, {vr(AC+16,16)}")
        A("s_nop 7")
    A(f"s_sub_u32 s{sCnt}, s{sCnt}, 1")
    A(f"s_cmp_lg_u32 s{sCnt}, 0")
    A("s_cbranch_scc1 L_gloop")
    stamp()
    A("s_mov_b32 s38, 0")
    A("s_mov_b32 s39, -1")
    A("s_nop 1")
    A(f"v_cndmask_b32_e64 v{vG}, v{AC}, v{AC+16}, s[38:39]")
    A(f"v_mul_f32 v{vG}, {f2u(-math.log2(math.e)):#x}, v{vG}")
    A(f"v_exp_f32 v{vG}, v{vG}")
    A(f"v_lshlrev_b32 v{vT}, 2, v{vL}")
    A(f"v_add_f32 v{vG}, 1.0, v{vG}")
    A(f"v_rcp_f32 v{vG}, v{vG}")
    A(f"v_add_u32 v{vT}, {L_G}, v{vT}")
    A(f"ds_write_b32 v{vT}, v{vG}")
    A(f"v_min_u32 v{vT3}, 4, v{vL}")
    A(f"v_sub_u32 v{vT3}, s{sRB}, v{vT3}")
    A(f"v_max_i32 v{vT3}, 0, v{vT3}")
    A(f"v_lshlrev_b32 v{vT3}, 5, v{vT3}")
    A(f"s_lshl_b32 s{sT3}, s{sHG}, 10")
    A(f"s_add_u32 s{sT3}, s{sT3}, {FL_KVB:#x}")
    poll_flags(vT3, sT3, slp=4)
    A("s_waitcnt lgkmcnt(0)")
    A.label("L_p3done")
    team_add(1)
    QB = 96; OB = 104; KV = 136
    A(f"s_lshl_b32 s{sKV}, s{sHEAD}, 6")
    A(f"s_add_u32 s{sKV}, s{sKV}, s{sRT0}")
    A(f"s_mul_i32 s{sKV}, s{sKV}, {TB}")
    A(f"s_add_u32 s{sKV}, s{sKV}, {WS_KVB:#x}")
    sWL, sWG, sWN = 37, 54, 55
    srd(8, P_BWO, 512 * 1024)
    srd(20, P_AWO, 512 * 1024)
    vWd2 = 8
    w128_dma_addr(vWd2, 1024)
    A(f"s_lshl_b32 s{sWL}, s{sJ}, 14")
    A(f"s_lshl_b32 s{sWG}, s{sJ}, 17")
    A(f"s_lshl_b32 s{sT}, s{sHG}, 7")
    A(f"s_add_u32 s{sWG}, s{sWG}, s{sT}")
    A(f"s_mov_b32 s{sWN}, 0")
    sWI, sWT = 56, 57
    if ROT:
        A(f"s_and_b32 s{sWI}, s{sRB}, 7")
        A(f"s_lshl_b32 s{sWI}, s{sWI}, 1")
    else:
        A(f"s_mov_b32 s{sWI}, 0")
    WB = (f"s_lshl_b32 s{sWT}, s{sWI}, 10\ns_add_u32 m0, s{sWL}, s{sWT}\ns_lshl_b32 s{sWT}, s{sWI}, 13\ns_add_u32 s{sWT}, s{sWT}, s{sWG}\n"
          f"buffer_load_dwordx4 v{vWd2}, s[8:11], s{sWT} offen lds\ns_add_u32 s{sWN}, s{sWN}, 1")
    WA = (f"s_add_u32 m0, m0, {L_WQ}\ns_add_u32 s{sWI}, s{sWI}, 1\nbuffer_load_dwordx4 v{vWd2}, s[20:23], s{sWT} offen lds\n"
          f"s_and_b32 s{sWI}, s{sWI}, 15")
    A(f"s_lshl_b32 s{sT2}, s{sJ}, 10")
    A(f"s_add_u32 s{sT2}, s{sT2}, {L_QX}")
    A(f"v_add_u32 v7, s{sT2}, v{vK}")
    A(f"s_and_b32 s{sT2}, s{sJ}, 1")
    A(f"s_lshl_b32 s{sT2}, s{sT2}, 7")
    A(f"s_add_u32 s{sT2}, s{sT2}, {L_G}")
    A(f"v_and_b32 v9, 31, v{vL}")
    A(f"v_lshl_add_u32 v9, v9, 2, s{sT2}")
    stamp()
    team_wait(1)
    stamp()
    A(f"ds_read_b128 {vr(QB,4)}, v7")
    A(f"ds_read_b128 {vr(QB+4,4)}, v7 offset:4096")
    A(f"ds_read_b32 v{vG}, v9")
    A(f"s_add_u32 s{sA0}, s{sKV}, {TB}")
    A(f"s_add_u32 s{sA1}, s{sRT0}, 1")
    PRE = int(OPT.get("bpre", 4))
    def bkv(u):
        b = KV + 12 * u; o = []
        if u >= 2:
            o.append(f"s_cmp_ge_u32 s{sA1}, {u}")
            o.append(f"s_cselect_b32 s{sT}, s{sA0}, {OOB:#x}")
        sa = sT if u >= 2 else sA0
        o.append(f"buffer_load_dwordx4 {vr(b,4)}, v{vK}, s[12:15], s{sa} offen sc1")
        o.append(f"buffer_load_dwordx4 {vr(b+4,4)}, v{vV}, s[12:15], s{sa} offen sc1")
        o.append(f"buffer_load_dwordx4 {vr(b+8,4)}, v{vV1}, s[12:15], s{sa} offen sc1")
        if u < 9: o.append(f"s_sub_u32 s{sA0}, s{sA0}, {TB}")
        return "\n".join(o)
    order = []
    for u in range(PRE):
        A(bkv(u)); order += [("k", u), ("v", u), ("v2", u)]
    vBig = 7
    A(f"v_mov_b32 v{vBig}, {f2u(-1e38):#x}")
    mask_tuple(NEG, f"v{vBig}", "0")
    for i in range(2):
        for r in range(0, 10, 2): A(f"v_pk_mov_b32 v[{OB+16*i+r}:{OB+16*i+r+1}], 0, 0")
    A(f"s_waitcnt vmcnt({3*PRE-4}) lgkmcnt(0)")
    A(f"{MF} {vr(S0,16)}, {vr(KV,4)}, {vr(QB+4,4)}, {vr(NEG,16)}")
    A(f"{MF} {vr(S1,16)}, {vr(KV+12,4)}, {vr(QB,4)}, {vr(NEG,16)}")
    A("s_nop 7")
    A("s_nop 3")
    lane_max_all(range(S0, S0 + 32), vT, vT2)
    A(f"v_sub_f32 v{NEG}, 0, v{vT}")
    A(f"v_sub_f32 v{NEG+1}, 0, v{vT}")
    for r in range(32): A(f"v_sub_f32 v{S0+r}, v{S0+r}, v{vT}")
    for r in range(2, 16, 2): A(f"v_pk_mov_b32 v[{NEG+r}:{NEG+r+1}], v[{NEG}:{NEG+1}], v[{NEG}:{NEG+1}] op_sel:[0,1]")
    items = [(1, 0), (0, 1), (1, 1)]
    for u in range(2, 9): items += [(0, u), (1, u)]
    items += [(0, 9)]
    CF = KV
    waited = 3
    def need(tag):
        nonlocal waited
        k_ = order.index(tag)
        if k_ > waited:
            waited = k_
            return f"s_waitcnt vmcnt({len(order)-1-k_})"
        return None
    WPI = int(OPT.get("wpi", 1))
    wsteps = 0; nextu = PRE
    for n, (q, u) in enumerate(items):
        Sc, Sn = (S0, S1) if n % 2 == 0 else (S1, S0)
        ex = {}
        qk = None
        if n % 2 == 1 and nextu < 10:
            ex["X0"] = bkv(nextu); order += [("k", nextu), ("v", nextu), ("v2", nextu)]; nextu += 1
        if wsteps < 16:
            ex["X1"] = WB; ex["X2"] = WA; order += [("w", wsteps), ("w2", wsteps)]; wsteps += 1
        if n >= 1 and n + 1 < len(items):
            q2, u2 = items[n + 1]
            far = (q2, u2) in ((1, 8), (0, 9))
            ex["X3"] = need(("k", u2))
            qk = f"{MF} {vr(Sn,16)}, {vr(KV+12*u2,4)}, {vr(QB+4*q2,4)}, {vr(CF if far else NEG,16)}"
        if WPI == 2 and wsteps < 16:
            ex["X4"] = WB + "\n" + WA; order += [("w", wsteps), ("w2", wsteps)]; wsteps += 1
        ex["X5"] = need(("v2", u))
        pv1 = None
        if n >= 1:
            qp, up = items[n - 1]
            pv1 = f"{MF} {vr(OB+16*qp,16)}, {vr(KV+12*up+8,4)}, {vr(P+4,4)}, {vr(OB+16*qp,16)}"
        exit_here = (q == 1 and u in (1, 3, 5, 7))
        if exit_here: ex["X6"] = f"s_cmp_eq_u32 s{sA1}, {u}"
        tile_code(Sc, P, qk, pv1, f"{MF} {vr(OB+16*q,16)}, {vr(KV+12*u+4,4)}, {vr(P,4)}, {vr(OB+16*q,16)}", ex)
        if exit_here: A(f"s_cbranch_scc1 L_b_exit{u}")
        if n == 6: mask_tuple(CF, f"v{NEG}", f"v{vBig}")
    A("s_nop 1")
    A(f"{MF} {vr(OB,16)}, {vr(KV+12*9+8,4)}, {vr(P+4,4)}, {vr(OB,16)}")
    A.label("L_b_fin")
    stamp()
    A(f"s_lshl_b32 s{sA2}, s{sRT0}, 6")
    A(f"s_add_u32 s{sA2}, s{sA2}, s{sHEAD}")
    A(f"s_lshl_b32 s{sA2}, s{sA2}, 10")
    A(f"s_add_u32 s{sA2}, s{sA2}, {WS_O + 32*1024:#x}")
    A(f"s_min_u32 s{sCnt}, s{sA1}, 9")
    A.label("L_wloop")
    A(f"s_cmp_ge_u32 s{sWN}, 16")
    A("s_cbranch_scc1 L_wdone")
    A(WB); A(WA)
    A("s_branch L_wloop")
    A.label("L_wdone")
    A("s_nop 5")
    for i in range(2):
        range_check(OB + 16 * i, f"L_b_slow{i}")
        A.label(f"L_b_ok{i}")
        normalize_store(OB + 16 * i, P + 4 * i, sA2)
        if i == 0:
            A(f"s_add_u32 s{sA2}, s{sA2}, 65536")
            A(f"s_add_u32 s{sKV}, s{sKV}, {TB}")
            A(f"s_add_u32 s{sCnt}, s{sRT0}, 2")
            A(f"s_min_u32 s{sCnt}, s{sCnt}, 9")
    A("s_waitcnt vmcnt(0)")
    team_add(2, "L_b_ob_nl")
    A(f"s_lshl_b32 s{sT3}, s{sRB}, 8")
    A(f"s_lshl_b32 s{sT4}, s{sHG}, 5")
    A(f"s_add_u32 s{sT3}, s{sT3}, s{sT4}")
    A(f"s_add_u32 s{sT3}, s{sT3}, {FL_OB:#x}")
    flag_store(sT3)
    A.label("L_b_ob_nl")
    A(f"s_and_b32 s{sT4}, s{sJ}, 1")
    A(f"s_lshr_b32 s{sT3}, s{sJ}, 1")
    vWp = 13
    w128_tr_addr(vWp, 4, None, sT3)
    A(f"v_and_b32 v{vT3}, 7, v{vL}")
    A(f"v_lshlrev_b32 v{vT3}, 5, v{vT3}")
    A(f"s_lshl_b32 s{sT3}, s{sRB}, 8")
    A(f"s_add_u32 s{sT3}, s{sT3}, {FL_OB:#x}")
    A("s_waitcnt vmcnt(0)")
    team_add(3)
    poll_flags(vT3, sT3, slp=4)
    stamp()
    OF = 128; WF = 64; ACB = 16; ACA = 32
    A(f"s_add_u32 s{sA0}, s{sRT0}, s{sT4}")
    A(f"s_lshl_b32 s{sA0}, s{sA0}, 16")
    A(f"s_add_u32 s{sA0}, s{sA0}, {WS_O + 32*1024:#x}")
    OD = int(OPT.get("od", 8))
    def oload(s):
        if s and s % 4 == 0: A(f"s_add_u32 s{sA0}, s{sA0}, 4096")
        A(f"buffer_load_dwordx4 {vr(OF+4*s,4)}, v{vK}, s[12:15], s{sA0} offen offset:{(s%4)*1024} sc1")
    for s in range(OD): oload(s)
    team_wait(3)
    def wrd(s, base):
        b = WF + 4 * (s % 3)
        A(f"ds_read_b64_tr_b16 v[{b}:{b+1}], v{vWp} offset:{base+s*2048}")
        A(f"ds_read_b64_tr_b16 v[{b+2}:{b+3}], v{vWp} offset:{base+s*2048+1024}")
    wrd(0, 0); wrd(1, 0)
    for s in range(32):
        vm = min(31, s + OD - 1) - s
        if s + 2 < 32:
            wrd(s + 2, 0); A(f"s_waitcnt vmcnt({vm}) lgkmcnt(4)")
        else:
            A(f"s_waitcnt vmcnt({vm}) lgkmcnt({2 if s == 30 else 0})")
        c = "0" if s == 0 else vr(ACB, 16)
        A(f"{MF} {vr(ACB,16)}, {vr(WF+4*(s%3),4)}, {vr(OF+4*s,4)}, {c}")
        if s + OD < 32: oload(s + OD)
        if PACE: A(f"s_nop {PACE-1}")
    A(f"v_add_u32 v{vWp}, {L_WQ}, v{vWp}")
    A(f"v_sub_f32 v{vT3}, 1.0, v{vG}")
    for s in range(32):
        if s % 7 == 0 and s: A("s_waitcnt lgkmcnt(0)")
        A(f"ds_read_b64_tr_b16 v[{OF+4*s}:{OF+4*s+1}], v{vWp} offset:{s*2048}")
        A(f"ds_read_b64_tr_b16 v[{OF+4*s+2}:{OF+4*s+3}], v{vWp} offset:{s*2048+1024}")
    for r in range(16): A(f"v_mul_f32 v{ACB+r}, v{ACB+r}, v{vT3}")
    A.label("L_b_skip")
    A(f"s_and_b32 s{sT4}, s{sJ}, 1")
    srd(4, P_OUT, 2048 * 1024)
    vO = 8; vOa = 9
    A(f"v_and_b32 v{vT}, 31, v{vL}")
    A(f"v_lshlrev_b32 v{vT}, 10, v{vT}")
    A(f"v_lshrrev_b32 v{vT2}, 5, v{vL}")
    A(f"v_lshl_add_u32 v{vO}, v{vT2}, 4, v{vT}")
    A(f"s_add_u32 s{sKV}, s{sRT0}, s{sT4}")
    A(f"s_lshl_b32 s{sKV}, s{sKV}, 15")
    A(f"s_lshl_b32 s{sT}, s{sHG}, 7")
    A(f"s_add_u32 s{sKV}, s{sKV}, s{sT}")
    A(f"s_lshr_b32 s{sT}, s{sJ}, 1")
    A(f"s_lshl_b32 s{sT}, s{sT}, 6")
    A(f"s_add_u32 s{sKV}, s{sKV}, s{sT}")
    A(f"s_lshl_b32 s{sT}, s{sT4}, 15")
    A(f"v_add_u32 v{vOa}, s{sT}, v{vK}")
    A(f"s_lshl_b32 s{sA2}, s{sRB}, 8")
    A(f"s_lshl_b32 s{sT}, s{sHG}, 5")
    A(f"s_add_u32 s{sA2}, s{sA2}, s{sT}")
    A(f"s_add_u32 s{sA2}, s{sA2}, {FL_OA:#x}")
    A("s_waitcnt lgkmcnt(0)")
    stamp()
    A("s_barrier")
    A("s_barrier")
    A(f"s_cmp_lg_u32 s{sJ}, 0")
    A("s_cbranch_scc1 L_b_noflag")
    flag_store(sA2)
    A.label("L_b_noflag")
    tail_dma()
    for m in range(4):
        A(f"s_waitcnt vmcnt({2*(3-m)})")
        A("s_barrier")
        for i in range(8): A(f"ds_read_b128 {vr(WF+4*i,4)}, v{vOa} offset:{(8*m+i)*1024}")
        for i in range(8):
            s = 8 * m + i
            A(f"s_waitcnt lgkmcnt({7-i})")
            c = "0" if s == 0 else vr(ACA, 16)
            A(f"{MF} {vr(ACA,16)}, {vr(OF+4*s,4)}, {vr(WF+4*i,4)}, {c}")
    A("s_nop 7")
    A("s_nop 3")
    for r in range(16): A(f"v_fmac_f32 v{ACB+r}, v{ACA+r}, v{vG}")
    for r in range(8): A(f"v_cvt_pk_bf16_f32 v{WF+r}, v{ACB+2*r}, v{ACB+2*r+1}")
    A("s_nop 1")
    for g in range(2):
        A(f"v_permlane32_swap_b32 v{WF+4*g}, v{WF+4*g+2}")
        A(f"v_permlane32_swap_b32 v{WF+4*g+1}, v{WF+4*g+3}")
    for g in range(2): A(f"buffer_store_dwordx4 {vr(WF+4*g,4)}, v{vO}, s[4:7], s{sKV} offen offset:{g*32}")
    if PROF: A("s_waitcnt vmcnt(0)")
    stamp_flush()
    A.label("L_exit")
    A("s_endpgm")
    for u in (1, 3, 5, 7):
        A.label(f"L_b_exit{u}")
        A("s_nop 0")
        A(f"{MF} {vr(OB+16,16)}, {vr(KV+12*u+8,4)}, {vr(P+4,4)}, {vr(OB+16,16)}")
        A("s_branch L_b_fin")
    for i in range(2):
        slow_path(f"L_b_slow{i}", f"L_b_ok{i}", QB + 4 * i, OB + 16 * i, sKV, sCnt, -TB, True, KV, KV + 4, KV + 16)
    return k

def main():
    hdr = open("cdna_kernels/" + NAME + ".s.ref").read().split("\n")
    head = [l for l in hdr if l.startswith(";") and "@launch" not in l]
    out = "\n".join(head) + "\n"
    out += "; @launch grid=(256,1,1) block=(512,1,1) lds=163840\n"
    out += '.amdgcn_target "amdgcn-amd-amdhsa--gfx950"\n.text\n'
    k = gen()
    body = A.text()
    errs = check_hazards(body)
    for e in errs: print("HAZARD", e, file=sys.stderr)
    out += body
    out += f""".section .rodata,"a"
.p2align 6
.amdhsa_kernel {k}
  .amdhsa_next_free_vgpr 256
  .amdhsa_next_free_sgpr 102
  .amdhsa_accum_offset 256
  .amdhsa_group_segment_fixed_size 0
  .amdhsa_kernarg_size 96
  .amdhsa_user_sgpr_count 2
  .amdhsa_user_sgpr_kernarg_segment_ptr 1
  .amdhsa_system_sgpr_workgroup_id_x 1
.end_amdhsa_kernel
"""
    paths = [a for a in sys.argv[1:] if a.endswith(".s")]
    path = paths[0] if paths else "f8.s"
    open(path, "w").write(out)
    print("wrote", path, len(out), "bytes;", len(errs), "hazard warnings")
main()
```

```python
import sys, math, struct, re
from asmlib import Asm, vr, sr, check_hazards

NAME = "gated_mix__grouped_kv_mqa__sliding_block__prompt"
def f2u(x): return struct.unpack("<I", struct.pack("<f", x))[0]
CSCALE = 0.25 * math.log2(math.e)
OPT = dict(a[2:].split("=") if "=" in a else (a[2:], "1") for a in sys.argv[1:] if a.startswith("--"))
for _k, _v in (("bfirst", "1"), ("cpf", "1"), ("pace", "0"), ("p3d", "4"), ("bpre", "3"), ("od", "4"), ("il", "2"), ("j4", "1"), ("pstart", "6"), ("touchfl", "1"), ("k3", "1")): OPT.setdefault(_k, _v)
PROF = "prof" in OPT

ROT = "norot" not in OPT
TB = 2176
WS_KVA = 0
WS_FL = 0x40000
FL_KVA, FL_KVB, FL_OB, FL_OA = WS_FL, WS_FL + 0x1000, WS_FL + 0x4000, WS_FL + 0x6000
WS_KVB = 0x100000
WS_O = 0x600000
WS_PROF = 15 << 20
WS_SIZE = 16 << 20
OOB = 0x40000000
ONES = 0x3F803F80
L_X, L_WQ, L_WKV, L_QX, L_GATE, L_CNT, L_COMB = 0, 65536, 131072, 147456, 155648, 156672, 131072
L_G = L_CNT + 256
SPIN = 50000
MF = "v_mfma_f32_32x32x16_bf16"
SMF = "v_smfmac_f32_32x32x32_bf16"
vIDX = 10
A = Asm()

sW, sHG, sRB, sNON = 16, 17, 18, 19
sT, sT2, sT3, sT4 = 24, 25, 26, 27
sJ, sKV, sCnt, sHEAD, sRT0, sA0, sA1, sA2 = 28, 29, 30, 31, 32, 33, 34, 35
sSP = 36
P_X, P_WQ, P_WK, P_WV, P_AWO, P_WQKV, P_BWO, P_GATE, P_OUT, P_DBG, P_WS = 44, 46, 48, 50, 52, 56, 58, 60, 62, 64, 66
vL, vK, vV, vT, vT2, vT3 = 1, 2, 3, 4, 5, 6
vV1 = 0

def srd(d, ptr, size):
    A(f"s_mov_b32 s{d}, s{ptr}")
    A(f"s_and_b32 s{d+1}, s{ptr+1}, 0xffff")
    A(f"s_mov_b32 s{d+2}, {size:#x}")
    A(f"s_mov_b32 s{d+3}, 0x00020000")

NST = [0]
KVP = OPT.get("prof") == "kv"
STOFF = [False]
def kstamp():
    if KVP: stamp(force=True)
def stamp(real=False, force=False):
    if not PROF: return
    if STOFF[0] and not force and not real: return
    i = NST[0]; NST[0] += 1
    assert 70 + 2 * i + 1 <= 101, "too many stamps"
    A(f"{'s_memrealtime' if real or OPT.get('prof') == 'rt' else 's_memtime'} s[{70+2*i}:{71+2*i}]")
def stamp_flush():
    if not PROF: return
    stamp(force=True); stamp(real=True)
    A("s_waitcnt lgkmcnt(0)")
    A("s_lshl_b32 s68, s2, 4")
    A(f"s_add_u32 s68, s68, s{sW}")
    A("s_lshl_b32 s68, s68, 6")
    A(f"s_add_u32 s68, s68, {WS_PROF:#x}")
    A("v_mov_b32 v251, 0")
    for i in range(NST[0]):
        A(f"v_mov_b32 v250, s{70+2*i}")
        A(f"buffer_store_dword v250, v251, s[12:15], s68 offen offset:{4*i}")
    A("s_waitcnt vmcnt(0)")

def poll_flags(va, soff, n2=None, slp=2, vd=None, x4=False):
    vd = vd if vd is not None else vT2
    l = A.uid("poll"); d = A.uid("polld")
    A(f"s_mov_b32 s{sSP}, {SPIN}")
    A.label(l)
    if x4: A(f"buffer_load_dwordx4 {vr(vd,4)}, v{va}, s[12:15], s{soff} offen sc1")
    else: A(f"buffer_load_dword v{vd}, v{va}, s[12:15], s{soff} offen sc1")
    if n2 is not None: A(f"buffer_load_dword v{vd+1}, v{va}, s[12:15], s{soff} offen offset:{n2} sc1")
    A("s_waitcnt vmcnt(0)")
    A(f"v_cmp_ne_u32 vcc, s{sNON}, v{vd}")
    if n2 is not None or x4:
        A(f"v_cmp_ne_u32 s[38:39], s{sNON}, v{vd+(2 if x4 else 1)}")
        A("s_nop 1")
        A("s_or_b64 vcc, vcc, s[38:39]")
    else:
        A("s_nop 1")
    A(f"s_cbranch_vccz {d}")
    A("s_mov_b64 exec, vcc")
    A(f"s_sub_u32 s{sSP}, s{sSP}, 1")
    A(f"s_cbranch_scc1 {d}")
    A(f"s_sleep {slp}")
    A(f"s_branch {l}")
    A.label(d)
    A("s_mov_b64 exec, -1")

def flag_store(soff):
    A(f"v_mov_b32 v{vT}, s{sNON}")
    A(f"v_mov_b32 v{vT2}, 0")
    A("s_mov_b64 exec, 1")
    A(f"buffer_store_dword v{vT}, v{vT2}, s[12:15], s{soff} offen sc1")
    A("s_mov_b64 exec, -1")

def team_add(cnt, last_label=None, n=4):
    A(f"v_mov_b32 v{vT}, {L_CNT + 4*cnt}")
    A(f"v_mov_b32 v{vT2}, 1")
    A("s_mov_b64 exec, 1")
    if last_label:
        A(f"ds_add_rtn_u32 v{vT2}, v{vT}, v{vT2}")
        A("s_waitcnt lgkmcnt(0)")
        A("s_mov_b64 exec, -1")
        A(f"v_readfirstlane_b32 s{sT}, v{vT2}")
        A("s_nop 1")
        A(f"s_cmp_lg_u32 s{sT}, {n-1}")
        A(f"s_cbranch_scc1 {last_label}")
    else:
        A(f"ds_add_u32 v{vT}, v{vT2}")
        A("s_mov_b64 exec, -1")

def team_wait(cnt, n=4, slp=2):
    l = A.uid("tw"); d = A.uid("twd")
    A(f"v_mov_b32 v{vT}, {L_CNT + 4*cnt}")
    A(f"s_mov_b32 s{sSP}, {SPIN}")
    A.label(l)
    A(f"ds_read_b32 v{vT2}, v{vT}")
    A("s_waitcnt lgkmcnt(0)")
    A(f"v_readfirstlane_b32 s{sT}, v{vT2}")
    A("s_nop 1")
    A(f"s_cmp_ge_u32 s{sT}, {n}")
    A(f"s_cbranch_scc1 {d}")
    A(f"s_sub_u32 s{sSP}, s{sSP}, 1")
    A(f"s_cbranch_scc1 {d}")
    A(f"s_sleep {slp}")
    A(f"s_branch {l}")
    A.label(d)

def pv(O, V, S):
    return f"{SMF} {vr(O,16)}, {vr(V,4)}, {vr(S,8)}, v{vIDX}"

def tile_code(Sc, qk, pv1, pv0, extra):
    d = {}
    for i in range(16): d[f"e{i}"] = f"v_exp_f32 v{Sc+i}, v{Sc+i}"
    d["PV1"] = pv1; d["QK"] = qk; d["PV0"] = pv0
    order = OPT.get("order", "e0 e1 PV1 X1 e2 e3 e4 X3 QK X2 e5 e6 e7 e8 e9 e10 X5 PV0 X4 e11 e12 e13 e14 e15").replace("_", " ")
    for x in order.split():
        if x[0] == "X":
            if extra.get(x): A(extra[x])
        elif d[x]: A(d[x])

NEG, S0, S1, P = 16, 32, 48, 64

def lane_max_all(regs, dst, tmp):
    regs = list(regs)
    A(f"v_max3_f32 v{dst}, v{regs[0]}, v{regs[1]}, v{regs[2]}")
    A(f"v_max3_f32 v{tmp}, v{regs[3]}, v{regs[4]}, v{regs[5]}")
    rest = regs[6:]; t = [dst, tmp]; n = 0
    while rest:
        a, b = rest.pop(0), rest.pop(0)
        A(f"v_max3_f32 v{t[n&1]}, v{t[n&1]}, v{a}, v{b}"); n += 1
    A(f"v_max_f32 v{dst}, v{dst}, v{tmp}")
    A(f"v_mov_b32 v{tmp}, v{dst}")
    A("s_nop 1")
    A(f"v_permlane32_swap_b32 v{dst}, v{tmp}")
    A(f"v_max_f32 v{dst}, v{dst}, v{tmp}")

def mask_tuple(dst, v_true, v_false):
    for r in range(16):
        c0 = (r & 3) + 8 * (r >> 2)
        p = 40 + 2 * (r & 1)
        A(f"s_mov_b32 s{p}, {(1 << c0) - 1:#x}")
        A(f"s_mov_b32 s{p+1}, {(1 << (c0 + 4)) - 1:#x}")
        A(f"v_cndmask_b32_e64 v{dst+r}, {v_false}, {v_true}, s[{p}:{p+1}]")

def range_check(O, bad):
    A(f"v_max3_f32 v{vT}, |v{O}|, |v{O+1}|, |v{O+2}|")
    A(f"v_max3_f32 v{vT2}, |v{O+3}|, |v{O+4}|, |v{O+5}|")
    A(f"v_max3_f32 v{vT}, v{vT}, |v{O+6}|, |v{O+7}|")
    A(f"s_mov_b32 s{sT}, {f2u(2.0**-60):#x}")
    A(f"s_mov_b32 s{sT2}, {f2u(2.0**40):#x}")
    A(f"s_mov_b32 s{sT3}, {f2u(2.0**120):#x}")
    A(f"v_add_f32 v{vT}, v{vT}, v{vT2}")
    A(f"v_cmp_nlt_f32 vcc, s{sT}, v{O+8}")
    A(f"v_cmp_ngt_f32 s[38:39], s{sT2}, v{O+8}")
    A(f"v_cmp_ngt_f32 s[40:41], s{sT3}, v{vT}")
    A("s_nop 1")
    A("s_or_b64 vcc, vcc, s[38:39]")
    A("s_or_b64 vcc, vcc, s[40:41]")
    A(f"s_cbranch_vccnz {bad}")

def slow_path(name, ret, Qr, O, s_base, s_n, step, masks, KB, VB, MK):
    lp1, lp2 = A.uid("sp1"), A.uid("sp2")
    vM, vM2, vBig = 7, 8, 9
    A.label(name)
    A("s_waitcnt vmcnt(0) lgkmcnt(0)")
    A(f"v_mov_b32 v{vBig}, {f2u(-1e38):#x}")
    def set_mask():
        if not masks:
            return
        l0, l8, ld = A.uid("m0"), A.uid("m8"), A.uid("md")
        A(f"s_cmp_eq_u32 s{sA1}, 0")
        A(f"s_cbranch_scc1 {l0}")
        A(f"s_cmp_eq_u32 s{sA1}, 8")
        A(f"s_cbranch_scc1 {l8}")
        for r in range(16): A(f"v_mov_b32 v{MK+r}, 0")
        A(f"s_branch {ld}")
        A.label(l0); mask_tuple(MK, f"v{vBig}", "0"); A(f"s_branch {ld}")
        A.label(l8); mask_tuple(MK, "0", f"v{vBig}")
        A.label(ld)
    C = vr(MK, 16) if masks else "0"
    A(f"v_mov_b32 v{vM}, v{vBig}")
    A(f"s_mov_b32 s{sA0}, s{s_base}")
    A(f"s_mov_b32 s{sA1}, 0")
    A.label(lp1)
    A(f"buffer_load_dwordx4 {vr(KB,4)}, v{vK}, s[12:15], s{sA0} offen sc1")
    set_mask()
    A("s_waitcnt vmcnt(0)")
    A("s_nop 1")
    A(f"{MF} {vr(S0,16)}, {vr(KB,4)}, {vr(Qr,4)}, {C}")
    A(f"s_add_u32 s{sA0}, s{sA0}, {step & 0xffffffff:#x}")
    A(f"s_add_u32 s{sA1}, s{sA1}, 1")
    A("s_nop 15")
    for i in range(8): A(f"v_max3_f32 v{vM}, v{vM}, v{S0+2*i}, v{S0+2*i+1}")
    A(f"s_cmp_lt_u32 s{sA1}, s{s_n}")
    A(f"s_cbranch_scc1 {lp1}")
    A(f"v_mov_b32 v{vM2}, v{vM}")
    A("s_nop 1")
    A(f"v_permlane32_swap_b32 v{vM}, v{vM2}")
    A(f"v_max_f32 v{vM}, v{vM}, v{vM2}")
    for r in range(16): A(f"v_mov_b32 v{O+r}, 0")
    A(f"s_mov_b32 s{sA0}, s{s_base}")
    A(f"s_mov_b32 s{sA1}, 0")
    A.label(lp2)
    A(f"buffer_load_dwordx4 {vr(KB,4)}, v{vK}, s[12:15], s{sA0} offen sc1")
    A(f"buffer_load_dwordx4 {vr(VB,4)}, v{vV}, s[12:15], s{sA0} offen sc1")
    A(f"buffer_load_dwordx4 {vr(VB+4,4)}, v{vV1}, s[12:15], s{sA0} offen sc1")
    set_mask()
    A("s_waitcnt vmcnt(0)")
    A("s_nop 1")
    A(f"{MF} {vr(S0,16)}, {vr(KB,4)}, {vr(Qr,4)}, {C}")
    A(f"s_add_u32 s{sA0}, s{sA0}, {step & 0xffffffff:#x}")
    A(f"s_add_u32 s{sA1}, s{sA1}, 1")
    A("s_nop 15")
    for r in range(16): A(f"v_sub_f32 v{S0+r}, v{S0+r}, v{vM}")
    for r in range(16): A(f"v_exp_f32 v{S0+r}, v{S0+r}")
    A("s_nop 2")
    A(pv(O, VB, S0))
    A(pv(O, VB + 4, S0 + 8))
    A(f"s_cmp_lt_u32 s{sA1}, s{s_n}")
    A("s_nop 15")
    A(f"s_cbranch_scc1 {lp2}")
    A(f"s_branch {ret}")

def normalize_store(O, PK, soff):
    A(f"v_rcp_f32 v{vT}, v{O+8}")
    A("s_nop 0")
    for r in range(8): A(f"v_mul_f32 v{O+r}, v{O+r}, v{vT}")
    for r in range(4): A(f"v_cvt_pk_bf16_f32 v{PK+r}, v{O+2*r}, v{O+2*r+1}")
    A(f"buffer_store_dwordx4 {vr(PK,4)}, v{vK}, s[12:15], s{soff} offen sc1")

def tail_dma():
    A(f"v_and_b32 v{vT}, 7, v{vL}")
    A(f"v_lshlrev_b32 v{vT}, 5, v{vT}")
    A(f"s_lshl_b32 s{sT3}, s{sRB}, 8")
    A(f"s_add_u32 s{sT3}, s{sT3}, {FL_OA:#x}")
    A(f"s_and_b32 s{sT}, s{sW}, 1")
    A(f"s_and_b32 s{sT2}, s{sW}, 6")
    A(f"s_lshl_b32 s{sA0}, s{sT}, 15")
    A(f"s_lshl_b32 s{sT2}, s{sT2}, 10")
    A(f"s_add_u32 s{sA0}, s{sA0}, s{sT2}")
    A(f"s_lshl_b32 s{sA1}, s{sRB}, 1")
    A(f"s_add_u32 s{sA1}, s{sA1}, s{sT}")
    A(f"s_lshl_b32 s{sA1}, s{sA1}, 16")
    A(f"s_add_u32 s{sA1}, s{sA1}, s{sT2}")
    A(f"s_add_u32 s{sA1}, s{sA1}, {WS_O:#x}")
    poll_flags(vT, sT3, slp=1)
    stamp()
    for m in range(4):
        A(f"s_add_u32 m0, s{sA0}, {m*8192}")
        if m: A(f"s_add_u32 s{sA1}, s{sA1}, 8192")
        else: A("s_nop 0")
        A(f"buffer_load_dwordx4 v{vK}, s[12:15], s{sA1} offen sc1 lds")
        A(f"buffer_load_dwordx4 v{vK}, s[12:15], s{sA1} offen offset:1024 sc1 lds")

def gen():
    k = NAME + "_kernel"
    A.raw(f".globl {k}\n.p2align 8\n.type {k},@function\n{k}:")
    A("s_cmp_ge_u32 s2, 256")
    A("s_cbranch_scc1 L_exit")
    stamp(real=True); stamp()
    vXd, vWd, vXa, vWa = 7, 8, 9, 13
    A(f"v_lshrrev_b32 v{vT}, 6, v0")
    A(f"v_and_b32 v{vL}, 63, v0")
    A(f"v_readfirstlane_b32 s{sW}, v{vT}")
    A(f"v_lshlrev_b32 v{vT2}, 2, v{vL}")
    A(f"s_cmp_lg_u32 s{sW}, 3")
    A("s_cbranch_scc1 L_nozero")
    A(f"v_mov_b32 v{vT}, 0")
    A(f"v_add_u32 v{vT2}, {L_CNT}, v{vT2}")
    A(f"ds_write_b32 v{vT2}, v{vT}")
    A("s_waitcnt lgkmcnt(0)")
    A.label("L_nozero")
    A("s_load_dwordx16 s[44:59], s[0:1], 0")
    A("s_load_dwordx8 s[60:67], s[0:1], 64")
    A("s_memrealtime s[22:23]")
    A(f"s_and_b32 s{sHG}, s2, 1")
    A(f"s_lshl_b32 s{sHG}, s{sHG}, 2")
    if "oldmap" in OPT:
        A(f"s_bfe_u32 s{sT}, s2, 0x20003")
        A(f"s_add_u32 s{sHG}, s{sHG}, s{sT}")
        A(f"s_bfe_u32 s{sRB}, s2, 0x20001")
        A(f"s_lshl_b32 s{sRB}, s{sRB}, 3")
        A(f"s_lshr_b32 s{sT}, s2, 5")
        A(f"s_add_u32 s{sRB}, s{sRB}, s{sT}")
    else:
        A(f"s_bfe_u32 s{sT}, s2, 0x10003")
        A(f"s_add_u32 s{sHG}, s{sHG}, s{sT}")
        A(f"s_lshr_b32 s{sT}, s2, 7")
        A(f"s_lshl_b32 s{sT}, s{sT}, 1")
        A(f"s_add_u32 s{sHG}, s{sHG}, s{sT}")
        A(f"s_bfe_u32 s{sRB}, s2, 0x20001")
        A(f"s_lshl_b32 s{sRB}, s{sRB}, 3")
        A(f"s_bfe_u32 s{sT}, s2, 0x30004")
        A(f"s_add_u32 s{sRB}, s{sRB}, s{sT}")
    A(f"v_lshlrev_b32 v{vK}, 4, v{vL}")
    A("s_barrier")
    A(f"s_lshr_b32 s{sT}, s{sW}, 2")
    A(f"s_xor_b32 s{sT}, s{sT}, s{sHG}")
    A(f"s_and_b32 s{sT}, s{sT}, 1")
    A(f"s_xor_b32 s{sT}, s{sT}, 1")
    A(f"s_lshl_b32 s{sT}, s{sT}, 2")
    A(f"s_and_b32 s{sJ}, s{sW}, 3")
    A(f"s_add_u32 s{sT}, s{sT}, s{sJ}")
    A(f"s_lshl_b32 s{sT4}, s{sT}, 10")
    A(f"s_lshl_b32 s{sT}, s{sT}, 3")
    A(f"v_lshrrev_b32 v{vT}, 3, v{vL}")
    A(f"v_add_u32 v{vT}, s{sT}, v{vT}")
    A(f"v_lshrrev_b32 v{vT2}, 1, v{vT}")
    A(f"v_xor_b32 v{vT2}, v{vT2}, v{vL}")
    A(f"v_and_b32 v{vT2}, 7, v{vT2}")
    A(f"v_lshlrev_b32 v{vT2}, 4, v{vT2}")
    A(f"v_lshl_add_u32 v{vXd}, v{vT}, 10, v{vT2}")
    A(f"s_lshl_b32 s{sA0}, s{sRB}, 16")
    if ROT:
        A(f"s_and_b32 s37, s{sHG}, 2")
        A(f"s_add_u32 s37, s37, 4")
    else:
        A("s_mov_b32 s37, 0")
    if "bfirst" in OPT:
        A(f"s_cmp_lt_u32 s{sW}, 4")
        A("s_cbranch_scc1 L_ateam")
        A.raw("; @@A_BEGIN")
        A.label("L_ateam")
    else:
        A(f"s_cmp_ge_u32 s{sW}, 4")
        A("s_cbranch_scc1 L_bteam")

    sXR, sQR = 37, 54
    def dma_x_plain(kb):
        kb = [3, 0, 1, 2, 4, 5, 6, 7][kb] if "k3" in OPT else kb
        A(f"s_add_u32 m0, s{sT4}, {L_X + kb*8192 - kb*128}")
        A("s_nop 0")
        A(f"buffer_load_dwordx4 v{vXd}, s[4:7], s{sA0} offen offset:{kb*128} lds")
    def dma_x(kb):
        A(f"s_lshl_b32 s{sT2}, s{sXR}, 13")
        A(f"s_add_u32 m0, s{sT4}, s{sT2}")
        A(f"s_lshl_b32 s{sT2}, s{sXR}, 7")
        A(f"s_add_u32 s{sT2}, s{sT2}, s{sA0}")
        A(f"buffer_load_dwordx4 v{vXd}, s[4:7], s{sT2} offen lds")
        if kb < 7:
            A(f"s_add_u32 s{sXR}, s{sXR}, 1")
            A(f"s_and_b32 s{sXR}, s{sXR}, 7")

    def x_frag_addr(dst, s_off):
        A(f"v_and_b32 v{vT}, 31, v{vL}")
        A(f"v_lshrrev_b32 v{vT2}, 5, v{vL}")
        A(f"v_bfe_u32 v{vT3}, v{vL}, 1, 3")
        A(f"v_xor_b32 v{vT2}, v{vT2}, v{vT3}")
        A(f"v_lshl_add_u32 v{vT}, v{vT}, 7, s{s_off}")
        for q in range(4):
            A(f"v_xor_b32 v{vT3}, {2*q}, v{vT2}")
            A(f"v_lshl_add_u32 v{dst+q}, v{vT3}, 4, v{vT}")

    def tr_addr(dst, hmul, rowb, cgmul, s_off):
        A(f"v_lshrrev_b32 v{vT}, 5, v{vL}")
        A(f"v_bfe_u32 v{vT2}, v{vL}, 2, 2")
        A(f"v_mad_u32_u24 v{vT}, v{vT}, {hmul}, v{vT2}")
        A(f"v_and_b32 v{vT2}, 3, v{vL}")
        A(f"v_lshlrev_b32 v{vT2}, 3, v{vT2}")
        if cgmul:
            A(f"v_bfe_u32 v{vT3}, v{vL}, 4, 1")
            A(f"v_lshl_add_u32 v{vT2}, v{vT3}, {int(math.log2(cgmul))}, v{vT2}")
        A(f"v_lshl_add_u32 v{dst}, v{vT}, {int(math.log2(rowb))}, v{vT2}")
        A(f"v_add_u32 v{dst}, s{s_off}, v{dst}")

    def w128_dma_addr(dst, stride):
        A(f"v_lshrrev_b32 v{vT}, 3, v{vL}")
        if stride == 1024: A(f"v_lshlrev_b32 v{vT}, 10, v{vT}")
        else: A(f"v_mul_u32_u24 v{vT}, {stride}, v{vT}")
        A(f"v_lshrrev_b32 v{vT2}, 2, v{vL}")
        A(f"v_and_b32 v{vT2}, 4, v{vT2}")
        A(f"v_xor_b32 v{vT2}, v{vT2}, v{vL}")
        A(f"v_and_b32 v{vT2}, 7, v{vT2}")
        A(f"v_lshl_add_u32 v{dst}, v{vT2}, 4, v{vT}")

    def w128_tr_addr(dst, hmul, s_off, s_ct=None):
        A(f"v_lshrrev_b32 v{vT}, 5, v{vL}")
        A(f"v_bfe_u32 v{vT2}, v{vL}, 2, 2")
        A(f"v_mad_u32_u24 v{vT}, v{vT}, {hmul}, v{vT2}")
        A(f"v_and_b32 v{vT2}, 3, v{vL}")
        A(f"v_lshlrev_b32 v{vT2}, 3, v{vT2}")
        A(f"v_lshl_add_u32 v{vT}, v{vT}, 7, v{vT2}")
        A(f"v_bfe_u32 v{vT2}, v{vL}, 4, 1")
        A(f"v_lshl_add_u32 v{vT}, v{vT2}, 5, v{vT}")
        A(f"v_bfe_u32 v{vT2}, v{vL}, 3, 1")
        if s_ct is not None: A(f"v_xor_b32 v{vT2}, s{s_ct}, v{vT2}")
        A(f"v_lshl_add_u32 v{vT}, v{vT2}, 6, v{vT}")
        if s_off is None: A(f"v_mov_b32 v{dst}, v{vT}")
        else: A(f"v_add_u32 v{dst}, s{s_off}, v{vT}")

    def v_lane_addr():
        A(f"v_and_b32 v{vT}, 31, v{vL}")
        A(f"v_lshrrev_b32 v{vT2}, 5, v{vL}")
        A(f"v_lshlrev_b32 v{vT2}, 8, v{vT2}")
        A(f"v_lshl_add_u32 v{vV}, v{vT}, 4, v{vT2}")
        A(f"v_add_u32 v{vV}, 1024, v{vV}")
        A(f"v_mov_b32 v{vT2}, {OOB:#x}")
        A(f"v_cmp_gt_u32 s[38:39], 16, v{vT}")
        A(f"v_and_b32 v{vT}, 27, v{vT}")
        A(f"v_mov_b32 v{vT3}, 2048")
        A(f"v_cndmask_b32_e64 v{vV}, v{vT2}, v{vV}, s[38:39]")
        A(f"v_cmp_eq_u32 s[38:39], 16, v{vT}")
        A(f"v_add_u32 v{vV1}, 512, v{vV}")
        A("s_nop 0")
        A(f"v_cndmask_b32_e64 v{vV}, v{vV}, v{vT3}, s[38:39]")
        A(f"v_cndmask_b32_e64 v{vV1}, v{vV1}, v{vT3}, s[38:39]")

    def chain(s0, n, FR, ACC, kstride, second, swap):
        def rd(s):
            b = FR + 8 * (s % 4)
            A(f"ds_read_b64_tr_b16 v[{b}:{b+1}], v{vWa} offset:{s*kstride}")
            A(f"ds_read_b64_tr_b16 v[{b+2}:{b+3}], v{vWa} offset:{s*kstride+second}")
            A(f"ds_read_b128 v[{b+4}:{b+7}], v{vXa+(s&3)} offset:{(s>>2)*8192}")
        for s in range(s0, s0 + 3): rd(s)
        for s in range(s0, s0 + n):
            if s + 3 < s0 + n: rd(s + 3)
            A(f"s_waitcnt lgkmcnt({3 * (min(s + 3, s0 + n - 1) - s)})")
            b = FR + 8 * (s % 4)
            c = "0" if s == 0 else vr(ACC, 16)
            if swap: A(f"{MF} {vr(ACC,16)}, {vr(b+4,4)}, {vr(b,4)}, {c}")
            else:    A(f"{MF} {vr(ACC,16)}, {vr(b,4)}, {vr(b+4,4)}, {c}")

    R = int(OPT.get("ring", 4))
    D = int(OPT.get("depth", R - 1))
    G1 = int(OPT.get("g1", 2 * R - 1 if R == 4 else 7))
    CHK = G1 - D
    assert 0 < CHK <= R and D < R
    SL = [72, 84] + [176 + 12 * i for i in range(R - 2)]
    Q = 96; O = 112
    KT0 = 176 + 12 * (R - 2) if R == 4 else SL[R - 2]
    w128_dma_addr(vWd, 1024)
    A(f"s_lshl_b32 s{sA1}, s{sW}, 14")
    A(f"s_lshl_b32 s{sT}, s{sHG}, 7")
    A(f"s_add_u32 s{sA1}, s{sA1}, s{sT}")
    A(f"s_lshl_b32 s{sA2}, s{sW}, 11")
    A(f"s_add_u32 s{sA2}, s{sA2}, {L_WQ}")
    A("s_waitcnt lgkmcnt(0)")
    srd(4, P_X, 2048 * 1024)
    srd(8, P_WQ, 512 * 1024)
    if "cpf" in OPT:
        A(f"s_cmp_lg_u32 s{sW}, 3")
        A("s_cbranch_scc1 L_nocpf")
        A("s_getpc_b64 s[38:39]")
        A.label("L_pc")
        A(f"s_sub_u32 s38, s38, L_pc-{k}")
        A("s_subb_u32 s39, s39, 0")
        A(f"s_lshr_b32 s{sT}, s2, 3")
        A(f"v_lshlrev_b32 v{vT}, 5, v{vL}")
        A(f"v_add_u32 v{vT}, s{sT}, v{vT}")
        A(f"v_lshlrev_b32 v{vT}, 7, v{vT}")
        A(f"v_cmp_gt_u32 vcc, L_code_end-{k}, v{vT}")
        A(f"v_mov_b32 v{vT3}, s39")
        A(f"v_add_co_u32 v{vT}, s[40:41], s38, v{vT}")
        A("s_nop 1")
        A(f"v_addc_co_u32 v{vT2}, s[40:41], 0, v{vT3}, s[40:41]")
        A("s_mov_b64 exec, vcc")
        A(f"global_load_dword v254, v[{vT}:{vT2}], off")
        A("s_mov_b64 exec, -1")
        A.label("L_nocpf")
    if ROT: A(f"s_and_b32 s{sQR}, s{sRB}, 7")
    else: A(f"s_mov_b32 s{sQR}, 0")
    if "pf0" in OPT:
        A(f"s_lshr_b32 s{sT}, s2, 3")
        A(f"s_cmp_ge_u32 s{sW}, 2")
        A("s_cbranch_scc1 L_a_pfq")
        A(f"s_bfe_u32 s{sT2}, s2, 0x20001")
        A(f"s_lshl_b32 s{sT2}, s{sT2}, 19")
        A(f"s_lshl_b32 s{sT}, s{sT}, 14")
        A(f"s_add_u32 s{sT2}, s{sT2}, s{sT}")
        A(f"s_lshl_b32 s{sT}, s{sW}, 13")
        A(f"s_add_u32 s{sT2}, s{sT2}, s{sT}")
        A(f"v_lshlrev_b32 v{vT}, 7, v{vL}")
        A(f"buffer_load_dword v254, v{vT}, s[4:7], s{sT2} offen sc1")
        A("s_branch L_a_pfd")
        A.label("L_a_pfq")
        A(f"s_cmp_eq_u32 s{sW}, 3")
        A("s_cbranch_scc1 L_a_pfd")
        A(f"s_and_b32 s{sT2}, s2, 1")
        A(f"s_lshl_b32 s{sT2}, s{sT2}, 9")
        A(f"s_lshl_b32 s{sT}, s{sT}, 14")
        A(f"s_add_u32 s{sT2}, s{sT2}, s{sT}")
        A(f"v_lshrrev_b32 v{vT}, 2, v{vL}")
        A(f"v_lshlrev_b32 v{vT}, 10, v{vT}")
        A(f"v_and_b32 v{vT2}, 3, v{vL}")
        A(f"v_lshl_add_u32 v{vT}, v{vT2}, 7, v{vT}")
        A(f"buffer_load_dword v254, v{vT}, s[8:11], s{sT2} offen sc1")
        A.label("L_a_pfd")
    for kb in range(8):
        dma_x(kb)
        A(f"s_lshl_b32 s{sT2}, s{sQR}, 13")
        A(f"s_add_u32 m0, s{sA2}, s{sT2}")
        A(f"s_lshl_b32 s{sT2}, s{sQR}, 16")
        A(f"s_add_u32 s{sT2}, s{sT2}, s{sA1}")
        A(f"buffer_load_dwordx4 v{vWd}, s[8:11], s{sT2} offen lds")
        A(f"s_add_u32 m0, m0, 1024")
        A(f"s_add_u32 s{sT2}, s{sT2}, 8192")
        A(f"buffer_load_dwordx4 v{vWd}, s[8:11], s{sT2} offen lds")
        if kb < 7:
            A(f"s_add_u32 s{sQR}, s{sQR}, 1")
            A(f"s_and_b32 s{sQR}, s{sQR}, 7")
    stamp()
    srd(12, P_WS, WS_SIZE)
    A(f"s_and_b32 s{sT4}, s{sW}, 1")
    A(f"s_lshl_b32 s{sT2}, s{sT4}, 12")
    x_frag_addr(vXa, sT2)
    A(f"s_lshr_b32 s{sJ}, s{sW}, 1")
    A(f"s_mov_b32 s{sT2}, {L_WQ}")
    w128_tr_addr(vWa, 8, sT2, sJ)
    v_lane_addr()
    for q in range(4):
        for r in range(0, 10, 2): A(f"v_pk_mov_b32 v[{O+16*q+r}:{O+16*q+r+1}], 0, 0")
    A("s_waitcnt vmcnt(0)")
    team_add(5)
    team_wait(5, 8, 1)
    stamp()
    chain(0, 32, 200, S0, 2048, 512, False)
    stamp()
    A(f"s_mov_b32 s{sT2}, {f2u(CSCALE):#x}")
    A(f"s_lshl_b32 s{sT3}, s{sT4}, 12")
    A(f"s_lshl_b32 s{sT4}, s{sJ}, 11")
    A(f"s_add_u32 s{sT4}, s{sT4}, s{sT3}")
    A(f"s_add_u32 s{sT4}, s{sT4}, {L_QX}")
    A(f"s_add_u32 s{sT3}, s{sT3}, {L_QX}")
    A(f"v_add_u32 v{vT}, s{sT4}, v{vK}")
    A(f"v_add_u32 v{vT3}, s{sT3}, v{vK}")
    sKB, sKE = 37, 54
    A(f"s_mul_i32 s{sKB}, s{sJ}, {32*TB}")
    A(f"s_add_u32 s{sKE}, s{sKB}, {32*TB}")
    A(f"s_mul_i32 s{sA0}, s{sRB}, {TB}")
    A(f"s_add_u32 s{sKV}, s{sKB}, s{sA0}")
    for r in range(0, 4, 2): A(f"v_pk_mov_b32 v[{SL[R-1]+8+r}:{SL[R-1]+9+r}], 0, 0")
    assert D < R - 1 or R == 4
    A(f"v_mov_b32 v{vIDX}, 0xdddddddd")
    A("s_nop 0")
    for r in range(16): A(f"v_mul_f32 v{S0+r}, s{sT2}, v{S0+r}")
    for r in range(8): A(f"v_cvt_pk_bf16_f32 v{S1+r}, v{S0+2*r}, v{S0+2*r+1}")
    A(f"ds_write_b128 v{vT}, {vr(S1,4)}")
    A(f"ds_write_b128 v{vT}, {vr(S1+4,4)} offset:1024")
    A("s_waitcnt lgkmcnt(0)")
    team_add(6)
    stamp()
    team_wait(6, 5, 1)
    stamp()
    for q in range(4): A(f"ds_read_b128 {vr(Q+4*q,4)}, v{vT3} offset:{q*1024}")
    A(f"v_mov_b32 v{vT3}, {L_CNT + 64}")
    A(f"ds_read_b32 v{vT3}, v{vT3}")
    def kv_load(slot, part):
        b = SL[slot]
        if part == 0: return f"buffer_load_dwordx4 {vr(b,4)}, v{vK}, s[12:15], s{sKV} offen sc1"
        if part == 1: return f"buffer_load_dwordx4 {vr(b+4,4)}, v{vV}, s[12:15], s{sKV} offen sc1"
        return f"buffer_load_dwordx4 {vr(b+8,4)}, v{vV1}, s[12:15], s{sKV} offen sc1"
    KADV = [f"s_add_u32 s{sKV}, s{sKV}, {TB}", f"s_cmp_eq_u32 s{sKV}, s{sKE}", f"s_cselect_b32 s{sKV}, s{sKB}, s{sKV}"]
    A(f"buffer_load_dwordx4 {vr(KT0,4)}, v{vK}, s[12:15], s{sA0} offen sc1")
    for t in range(D):
        for part in range(3): A(kv_load(t, part))
        for x in KADV: A(x)
    A(f"s_mov_b32 s{sCnt}, {32 // R - 1}")
    A("s_mov_b64 vcc, -1")
    A("s_waitcnt lgkmcnt(0)")
    team_add(7)
    A(f"v_readfirstlane_b32 s{sNON}, v{vT3}")
    A(f"s_waitcnt vmcnt({3*D})")
    T0 = [S0, S1, KT0 + 4, KT0 + 20] if R == 4 else [S0, S1, O + 32, O + 48]
    for q in range(4): A(f"{MF} {vr(T0[q],16)}, {vr(KT0,4)}, {vr(Q+4*q,4)}, 0")
    A("s_nop 7")
    A("s_nop 0")
    lane_max_all([T0[q] + r for q in range(4) for r in range(8)], vT, vT2)
    A(f"v_sub_f32 v{NEG}, 0, v{vT}")
    A(f"v_sub_f32 v{NEG+1}, 0, v{vT}")
    for r in range(2, 16, 2): A(f"v_pk_mov_b32 v[{NEG+r}:{NEG+r+1}], v[{NEG}:{NEG+1}], v[{NEG}:{NEG+1}] op_sel:[0,1]")
    A(f"s_waitcnt vmcnt({3*(D-1)})")
    A("s_nop 0")
    A(f"{MF} {vr(S0,16)}, {vr(SL[0],4)}, {vr(Q,4)}, {vr(NEG,16)}")
    if R == 4:
        A("s_nop 7")
        A("s_nop 3")
    else:
        for q in (2, 3):
            for r in range(0, 10, 2): A(f"v_pk_mov_b32 v[{O+16*q+r}:{O+16*q+r+1}], 0, 0")
        A("s_nop 1")
    stamp()
    if PROF: A("s_memtime s[68:69]")
    A.raw(".p2align 6")
    A.label("L_aloop")
    if PROF:
        A("s_waitcnt lgkmcnt(0)")
        A(f"s_add_u32 m0, s{sCnt}, 1")
        A("s_nop 0")
        A(f"v_writelane_b32 v255, s68, m0")
        A("s_memtime s[68:69]")
    for kb in range(R):
        for q in range(4):
            Sc, Sn = (S0, S1) if q % 2 == 0 else (S1, S0)
            cur, prv, nxt = SL[kb], SL[(kb - 1) % R], SL[(kb + 1) % R]
            Kq = cur if q < 3 else nxt
            nq = (q + 1) % 4
            Vp = cur if q > 0 else prv
            Op = O + 16 * ((q - 1) % 4); Oc = O + 16 * q
            ex = {}
            if q < 3: ex["X2"] = kv_load((kb + D) % R, q)
            if q == 0 and kb == CHK:
                ex["X1"] = "s_cbranch_vccnz L_afirst\nL_afirst_ret:"
            if q == 2: ex["X4"] = KADV[0]
            if q == 3:
                ex["X1"] = f"s_waitcnt vmcnt({3*(D-1)})"
                ex["X2"] = KADV[1]
                ex["X4"] = KADV[2]
                if kb == R - 1: ex["X4"] += f"\ns_sub_u32 s{sCnt}, s{sCnt}, 1"
            if "noload" in OPT.get("abl", ""):
                for x in ("X0", "X1", "X2", "X3", "X4"): ex.pop(x, None)
            if "nosalu" in OPT.get("abl", ""):
                for x in ("X1", "X2"): ex.pop(x, None)
            tile_code(Sc, f"{MF} {vr(Sn,16)}, {vr(Kq,4)}, {vr(Q+4*nq,4)}, {vr(NEG,16)}",
                      pv(Op, Vp + 8, Sn + 8), pv(Oc, cur + 4, Sc), ex)
    if CHK == R:
        A("s_cbranch_vccnz L_afirst")
    A("s_cbranch_scc0 L_aloop")
    A("s_nop 0")
    A(pv(O + 48, SL[R-1] + 8, S1 + 8))
    stamp()
    A(f"s_mul_i32 s{sT}, s{sW}, 4608")
    A(f"s_add_u32 s{sT}, s{sT}, {L_COMB}")
    A(f"s_xor_b32 s{sT2}, s{sW}, 2")
    A(f"s_mul_i32 s{sT2}, s{sT2}, 4608")
    A(f"s_add_u32 s{sT2}, s{sT2}, {L_COMB}")
    A(f"v_add_u32 v{vT}, s{sT}, v{vK}")
    A(f"v_lshlrev_b32 v{vT3}, 2, v{vL}")
    A(f"v_add_u32 v{vT2}, s{sT}, v{vT3}")
    A(f"v_add_u32 v7, s{sT2}, v{vK}")
    A(f"v_add_u32 v8, s{sT2}, v{vT3}")
    A(f"s_cmp_eq_u32 s{sJ}, 0")
    A("s_cbranch_scc1 L_a_kh0")
    for i in range(2):
        A(f"ds_write_b128 v{vT}, {vr(O+16*i,4)} offset:{i*2304}")
        A(f"ds_write_b128 v{vT}, {vr(O+16*i+4,4)} offset:{i*2304+1024}")
        A(f"ds_write_b32 v{vT2}, v{O+16*i+8} offset:{i*2304+2048}")
    for r in range(0, 8, 2): A(f"v_pk_mov_b32 v[{Q+r}:{Q+r+1}], v[{Q+8+r}:{Q+9+r}], v[{Q+8+r}:{Q+9+r}] op_sel:[0,1]")
    A("s_waitcnt lgkmcnt(0)")
    A("s_nop 2")
    for i in range(2):
        for r in range(0, 10, 2): A(f"v_pk_mov_b32 v[{O+16*i+r}:{O+16*i+r+1}], v[{O+32+16*i+r}:{O+33+16*i+r}], v[{O+32+16*i+r}:{O+33+16*i+r}] op_sel:[0,1]")
    A("s_branch L_a_x")
    A.label("L_a_kh0")
    A("s_nop 7")
    for i in range(2):
        A(f"ds_write_b128 v{vT}, {vr(O+32+16*i,4)} offset:{i*2304}")
        A(f"ds_write_b128 v{vT}, {vr(O+32+16*i+4,4)} offset:{i*2304+1024}")
        A(f"ds_write_b32 v{vT2}, v{O+32+16*i+8} offset:{i*2304+2048}")
    A.label("L_a_x")
    A("s_waitcnt vmcnt(0) lgkmcnt(0)")
    A("s_barrier")
    for i in range(2):
        A(f"ds_read_b128 {vr(S0+16*i,4)}, v7 offset:{i*2304}")
        A(f"ds_read_b128 {vr(S0+16*i+4,4)}, v7 offset:{i*2304+1024}")
        A(f"ds_read_b32 v{S0+16*i+8}, v8 offset:{i*2304+2048}")
    A(f"s_and_b32 s{sT4}, s{sW}, 1")
    A(f"s_lshl_b32 s{sA2}, s{sRB}, 1")
    A(f"s_add_u32 s{sA2}, s{sA2}, s{sT4}")
    A(f"s_lshl_b32 s{sA2}, s{sA2}, 6")
    A(f"s_lshl_b32 s{sT4}, s{sHG}, 2")
    A(f"s_add_u32 s{sA2}, s{sA2}, s{sT4}")
    A(f"s_lshl_b32 s{sT4}, s{sJ}, 1")
    A(f"s_add_u32 s{sA2}, s{sA2}, s{sT4}")
    A(f"s_lshl_b32 s{sA2}, s{sA2}, 10")
    A(f"s_add_u32 s{sA2}, s{sA2}, {WS_O:#x}")
    A(f"s_mov_b32 s{sKV}, 0")
    A(f"s_mov_b32 s{sCnt}, 64")
    A("s_waitcnt lgkmcnt(0)")
    for i in range(2):
        for r in range(9): A(f"v_add_f32 v{O+16*i+r}, v{O+16*i+r}, v{S0+16*i+r}")
    for i in range(2):
        range_check(O + 16 * i, f"L_a_slow{i}")
        A.label(f"L_a_ok{i}")
        normalize_store(O + 16 * i, P + 4 * i, sA2)
        if i == 0: A(f"s_add_u32 s{sA2}, s{sA2}, 1024")
    A("s_waitcnt vmcnt(0)")
    stamp()
    A("s_barrier")
    tail_dma()
    for m in range(4):
        A(f"s_waitcnt vmcnt({2*(3-m)})")
        A("s_barrier")
    if PROF:
        A("s_lshl_b32 s68, s2, 2")
        A(f"s_add_u32 s68, s68, s{sW}")
        A("s_lshl_b32 s68, s68, 8")
        A(f"s_add_u32 s68, s68, {WS_PROF + 0x80000:#x}")
        A(f"v_lshlrev_b32 v248, 2, v{vL}")
        A("buffer_store_dword v255, v248, s[12:15], s68 offen")
    stamp_flush()
    A("s_endpgm")
    A.label("L_afirst")
    team_wait(9, 1, 1)
    A("s_mov_b64 vcc, 0")
    A("s_branch L_aloop" if CHK == R else "s_branch L_afirst_ret")
    for i in range(2):
        slow_path(f"L_a_slow{i}", f"L_a_ok{i}", Q + 4 * i, O + 16 * i, sKV, sCnt, TB, False, SL[0], SL[0] + 4, None)

    NST[0] = 2
    if "bfirst" in OPT: A.raw("; @@A_END")
    A.label("L_bteam")
    A(f"s_setprio {OPT.get('bprio', 2)}")
    A(f"s_lshl_b32 s{sA2}, s{sJ}, 10")
    A("s_mov_b32 s6, 0x200000")
    A("s_mov_b32 s7, 0x00020000")
    A(f"s_bitcmp0_b32 s{sHG}, 1")
    A("s_cselect_b32 s42, 16384, 0")
    A("s_mov_b32 s43, 0x00020000")
    A(f"s_or_b32 s{sT3}, s2, s{sJ}")
    A(f"s_cmp_lt_u32 s{sHG}, 4")
    A("s_waitcnt lgkmcnt(0)")
    A(f"s_cselect_b32 s40, s{P_WK}, s{P_WV}")
    A(f"s_cselect_b32 s41, s{P_WK+1}, s{P_WV+1}")
    A(f"s_mov_b32 s4, s{P_X}")
    A(f"s_and_b32 s5, s{P_X+1}, 0xffff")
    A("s_and_b32 s41, s41, 0xffff")
    for kb in range(8):
        dma_x_plain(kb)
        if kb % 2 == 0:
            A(f"s_add_u32 m0, s{sA2}, {L_WKV + kb*2048}")
            A(f"s_add_u32 s{sT}, s{sA2}, {kb*2048}")
            A(f"buffer_load_dwordx4 v{vK}, s[40:43], s{sT} offen lds")
    A(f"s_or_b32 s{sT2}, s22, 1")
    srd(20, P_DBG, 256)
    srd(12, P_WS, WS_SIZE)
    A(f"s_cmp_lg_u32 s{sT3}, 1")
    A("s_cbranch_scc1 L_b_nononce")
    A(f"s_cmp_lg_u32 s2, 0")
    A("s_cbranch_scc1 L_b_nononce")
    A(f"v_mov_b32 v{vT}, s{sT2}")
    A(f"v_mov_b32 v{vT2}, 0")
    A("s_mov_b64 exec, 1")
    A(f"buffer_store_dword v{vT}, v{vT2}, s[20:23], 0 offen sc1")
    A("s_mov_b64 exec, -1")
    A.label("L_b_nononce")
    if "notouch" not in OPT:
        A(f"s_cmp_lg_u32 s{sJ}, 3")
        A("s_cbranch_scc1 L_b_notouch")
        A(f"v_lshlrev_b32 v{vT}, 21, v{vL}")
        if "touchfl" in OPT:
            A(f"s_lshl_b32 s{sT2}, s2, 7")
            A(f"s_add_u32 s{sT2}, s{sT2}, {WS_FL - 2048:#x}")
            A(f"v_writelane_b32 v{vT}, s{sT2}, 5")
            A("s_mov_b64 exec, 0x3f")
        else:
            A("s_mov_b64 exec, 0x1f")
        A(f"buffer_load_dword v254, v{vT}, s[12:15], 0 offen offset:2048 sc1")
        A("s_mov_b64 exec, -1")
        A.label("L_b_notouch")
    stamp()
    A(f"s_and_b32 s{sT4}, s{sHG}, 1")
    A(f"s_lshl_b32 s{sT2}, s{sT4}, 12")
    x_frag_addr(vXa, sT2)
    A(f"s_mov_b32 s{sT2}, {L_WKV}")
    tr_addr(vWa, 8, 32, 0, sT2)
    v_lane_addr()
    vN = 14
    A(f"v_mov_b32 v{vN+1}, 0")
    def nonce_load(): A(f"buffer_load_dword v{vN}, v{vN+1}, s[20:23], 0 offen sc1")
    def nonce_wait():
        l = A.uid("nw"); d = A.uid("nwd")
        A(f"s_mov_b32 s{sSP}, {SPIN}")
        A.label(l)
        A("s_waitcnt vmcnt(0)")
        A(f"v_readfirstlane_b32 s{sNON}, v{vN}")
        A("s_nop 1")
        A(f"s_cmp_lg_u32 s{sNON}, 0")
        A(f"s_cbranch_scc1 {d}")
        A(f"s_sub_u32 s{sSP}, s{sSP}, 1")
        A(f"s_cbranch_scc1 {d}")
        nonce_load()
        A(f"s_branch {l}")
        A.label(d)
    ACC = 16
    A(f"s_lshl_b32 s{sRT0}, s{sRB}, 1")
    A(f"s_add_u32 s{sA0}, s{sRT0}, s{sT4}")
    A(f"s_mul_i32 s{sA0}, s{sA0}, {TB}")
    A(f"s_lshl_b32 s{sA1}, s{sRB}, 2")
    A(f"s_add_u32 s{sA1}, s{sA1}, s{sT4}")
    A(f"s_lshr_b32 s{sT2}, s{sHG}, 2")
    A(f"s_lshl_b32 s{sT2}, s{sT2}, 1")
    A(f"s_add_u32 s{sA1}, s{sA1}, s{sT2}")
    A(f"s_lshl_b32 s{sA1}, s{sA1}, {3 if 'dense' in OPT else 5}")
    A(f"s_add_u32 s{sA1}, s{sA1}, {FL_KVA:#x}")
    A("s_waitcnt vmcnt(6)")
    kstamp()
    ksv = NST[0]
    team_add(4)
    A(f"s_cmp_lg_u32 s{sJ}, 0")
    A("s_cbranch_scc1 L_b_idle")
    A(f"s_bitcmp1_b32 s{sHG}, 1")
    A("s_cbranch_scc1 L_b_idle")
    def kv_unit(swap):
        NST[0] = ksv
        team_wait(4, 4, 1)
        kstamp()
        chain(0, 16, 64, ACC, 512, 128, swap)
        kstamp()
        A("s_waitcnt vmcnt(0)")
        kstamp()
        nonce_load()
        team_add(5)
        team_add(8)
        team_wait(8, 4, 1)
        kstamp()
        chain(16, 16, 64, ACC, 512, 128, swap)
        kstamp()
    A(f"s_cmp_ge_u32 s{sHG}, 4")
    A("s_cbranch_scc1 L_b_vunit")
    kv_unit(False)
    A("s_nop 7")
    A("s_nop 3")
    for r in range(4): A(f"v_cvt_pk_bf16_f32 v{64+r}, v{ACC+2*r}, v{ACC+2*r+1}")
    A(f"buffer_store_dwordx4 {vr(64,4)}, v{vK}, s[12:15], s{sA0} offen sc1")
    A("s_branch L_b_kvpub")
    A.label("L_b_vunit")
    A(f"v_lshrrev_b32 v{vT2}, 5, v{vL}")
    A(f"v_lshlrev_b32 v7, 8, v{vT2}")
    A(f"v_and_b32 v{vT2}, 15, v{vL}")
    A(f"v_lshl_add_u32 v7, v{vT2}, 4, v7")
    A(f"v_bfe_u32 v{vT2}, v{vL}, 4, 1")
    A(f"v_lshl_add_u32 v7, v{vT2}, 30, v7")
    A(f"v_cmp_gt_u32 s[38:39], 8, v{vL}")
    A(f"v_mov_b32 v{vT2}, {OOB:#x}")
    for r in range(4): A(f"v_mov_b32 v{100+r}, {ONES:#x}")
    A(f"v_cndmask_b32_e64 v8, v{vT2}, v{vK}, s[38:39]")
    A(f"buffer_store_dwordx4 {vr(100,4)}, v8, s[12:15], s{sA0} offen offset:2048 sc1")
    kv_unit(True)
    A("s_nop 7")
    A("s_nop 3")
    for s in range(2):
        for r in range(4): A(f"v_cvt_pk_bf16_f32 v{64+4*s+r}, v{ACC+8*s+2*r}, v{ACC+8*s+2*r+1}")
        A("s_nop 1")
        A(f"v_permlane32_swap_b32 v{64+4*s}, v{66+4*s}")
        A(f"v_permlane32_swap_b32 v{65+4*s}, v{67+4*s}")
        A(f"buffer_store_dwordx4 {vr(64+4*s,4)}, v7, s[12:15], s{sA0} offen offset:{1024+s*512} sc1")
    A.label("L_b_kvpub")
    nonce_wait()
    kstamp()
    flag_store(sA1)
    A("s_branch L_b_pdone")
    A.label("L_b_idle")
    if KVP:
        NST[0] = ksv
        for _ in range(6): kstamp()
    A(f"s_cmp_eq_u32 s{sJ}, 3")
    A("s_cbranch_scc1 L_b_idle1")
    A("s_waitcnt vmcnt(0)")
    A.label("L_b_idle1")
    A("s_waitcnt vmcnt(1)")
    nonce_load()
    team_add(5)
    team_add(8)
    nonce_wait()
    A(f"v_mov_b32 v{vT}, {L_CNT + 64}")
    A(f"ds_write_b32 v{vT}, v{vN}")
    A.label("L_b_pdone")
    stamp()
    if KVP: STOFF[0] = True
    srd(8, P_WQKV, 512 * 3072)
    srd(40, P_GATE, 1024)
    A(f"s_mov_b32 m0, {L_GATE}")
    A(f"s_lshl_b32 s{sHEAD}, s{sHG}, 2")
    A(f"buffer_load_dwordx4 v{vK}, s[40:43], 0 offen lds")
    A(f"s_add_u32 s{sHEAD}, s{sHEAD}, s{sJ}")
    vD1, vX0, vW1, vW2, vG = 7, 9, 13, 8, 15
    w128_dma_addr(vD1, 3072)
    A(f"s_lshl_b32 s{sA0}, s{sJ}, 10")
    A(f"s_lshl_b32 s{sT2}, s{sHG}, 7")
    A(f"s_add_u32 s{sA0}, s{sA0}, s{sT2}")
    A(f"s_lshl_b32 s{sA1}, s{sJ}, 14")
    A(f"s_add_u32 s{sA1}, s{sA1}, {L_WQ}")
    sP3W = 37
    A(f"s_add_u32 s{sP3W}, s{sA0}, {512*3072}")
    if ROT:
        A(f"s_and_b32 s{sT3}, s{sRB}, 3")
        A(f"s_cmp_eq_u32 s{sJ}, 3")
        A(f"s_cselect_b32 s{sT3}, 0, s{sT3}")
        A(f"s_lshl_b32 s{sT2}, s{sT3}, 14")
        A(f"s_mul_i32 s{sT3}, s{sT3}, {128*3072}")
        A(f"s_add_u32 s{sA0}, s{sA0}, s{sT3}")
    else:
        A(f"s_mov_b32 s{sT2}, 0")
    x_frag_addr(vX0, sT2)
    w128_tr_addr(vW1, 8, sA1)
    A(f"v_xor_b32 v{vW2}, 64, v{vW1}")
    AC, FR = 16, 80
    for r in range(0, 64, 2): A(f"v_pk_mov_b32 v[{AC+r}:{AC+r+1}], 0, 0")
    A(f"s_mov_b32 s{sCnt}, 4")
    A(f"s_cmp_eq_u32 s{sJ}, 3")
    A("s_cbranch_scc1 L_b_gwave")
    if "p3early" in OPT: team_wait(6, 4, 1)
    else: team_wait(7, 4, 2)
    stamp()
    if "nob" in OPT: A("s_branch L_b_skip")
    if "pf" in OPT:
        A(f"s_lshr_b32 s{sT}, s2, 3")
        A(f"s_and_b32 s{sT3}, s2, 1")
        A(f"s_lshl_b32 s{sT3}, s{sT3}, 9")
        A(f"s_mul_i32 s{sT2}, s{sT}, {16*3072}")
        A(f"s_add_u32 s{sT2}, s{sT2}, s{sT3}")
        A(f"s_lshl_b32 s{sT4}, s{sJ}, 10")
        A(f"s_add_u32 s{sT2}, s{sT2}, s{sT4}")
        A(f"v_lshrrev_b32 v{vT}, 2, v{vL}")
        A(f"v_and_b32 v{vT2}, 3, v{vL}")
        A(f"v_lshlrev_b32 v{vT2}, 7, v{vT2}")
        A(f"v_lshl_add_u32 v{vT3}, v{vT}, 10, v{vT2}")
        A(f"v_mul_u32_u24 v{vT}, 3072, v{vT}")
        A(f"v_add_u32 v{vT}, v{vT}, v{vT2}")
        A(f"buffer_load_dword v254, v{vT}, s[8:11], s{sT2} offen sc1")
        A(f"s_cmp_eq_u32 s{sJ}, 2")
        A("s_cbranch_scc1 L_b_nopf")
        A(f"s_cmp_eq_u32 s{sJ}, 0")
        A(f"s_cselect_b32 s40, s{P_BWO}, s{P_AWO}")
        A(f"s_cselect_b32 s41, s{P_BWO+1}, s{P_AWO+1}")
        A("s_and_b32 s41, s41, 0xffff")
        A(f"s_mov_b32 s42, {512*1024:#x}")
        A(f"s_lshl_b32 s{sT2}, s{sT}, 14")
        A(f"s_add_u32 s{sT2}, s{sT2}, s{sT3}")
        A(f"buffer_load_dword v254, v{vT3}, s[40:43], s{sT2} offen sc1")
        A.label("L_b_nopf")
    def p3_dma(slot):
        A(f"s_add_u32 m0, s{sA1}, {slot*2048}")
        A(f"s_add_u32 s{sT2}, s{sA0}, {8*3072}")
        A(f"buffer_load_dwordx4 v{vD1}, s[8:11], s{sA0} offen lds")
        A(f"s_add_u32 m0, s{sA1}, {slot*2048+1024}")
        A(f"s_add_u32 s{sA0}, s{sA0}, {16*3072}")
        A(f"buffer_load_dwordx4 v{vD1}, s[8:11], s{sT2} offen lds")
    def p3_wrap():
        A(f"s_cmp_ge_u32 s{sA0}, s{sP3W}")
        A(f"s_cselect_b32 s{sT2}, {512*3072}, 0")
        A(f"s_sub_u32 s{sA0}, s{sA0}, s{sT2}")
    def p3_rd(i):
        if "nop3rd" in OPT.get("abl", ""): return
        b = FR + 16 * (i & 1); sl = (i % 8) * 2048
        if i == 8:
            for q in range(4):
                A(f"v_add_u32 v{vX0+q}, 16384, v{vX0+q}")
                A(f"v_and_b32 v{vX0+q}, 0xffff, v{vX0+q}")
        A(f"ds_read_b64_tr_b16 v[{b}:{b+1}], v{vW1} offset:{sl}")
        A(f"ds_read_b64_tr_b16 v[{b+2}:{b+3}], v{vW1} offset:{sl+512}")
        A(f"ds_read_b128 v[{b+8}:{b+11}], v{vX0+(i&3)} offset:{((i%8)>>2)*8192}")
        A(f"ds_read_b128 v[{b+12}:{b+15}], v{vX0+(i&3)} offset:{((i%8)>>2)*8192+4096}")
        A(f"ds_read_b64_tr_b16 v[{b+4}:{b+5}], v{vW2} offset:{sl}")
        A(f"ds_read_b64_tr_b16 v[{b+6}:{b+7}], v{vW2} offset:{sl+512}")
    LA = int(OPT.get("p3d", 8))
    for s in range(LA): p3_dma(s)
    if OPT.get("il") != "2":
        A(f"s_waitcnt vmcnt({2*LA-2})")
        p3_rd(0)
    def p3_loop_il(name, swap):
        A.label(name)
        for i in range(8):
            b = FR + 16 * (i & 1)
            mark = len(A.lines); p3_rd(i + 1); rd = A.lines[mark:]; del A.lines[mark:]
            pre = [l for l in rd if "ds_read" not in l]; rd = [l for l in rd if "ds_read" in l]
            mf = []
            for ct in range(2):
                for ri in range(2):
                    a = AC + 16 * (2 * ct + ri); wv, xv = vr(b + 4 * ct, 4), vr(b + 8 + 4 * ri, 4)
                    mf.append(f"{MF} {vr(a,16)}, {xv if swap else wv}, {wv if swap else xv}, {vr(a,16)}")
            A("s_waitcnt lgkmcnt(0)")
            A(mf[0])
            if i == (8 - LA) % 8:
                p3_wrap()
                A(f"s_cmp_eq_u32 s{sCnt}, 1")
                A(f"s_cselect_b32 s{sA0}, {OOB:#x}, s{sA0}")
            p3_dma((i + LA) % 8)
            A(mf[1])
            for l in pre: A(l)
            A(f"s_waitcnt vmcnt({2*LA-2})")
            for l in rd[:3]: A(l)
            if PACE: A(f"s_nop {PACE-1}")
            A(mf[2])
            for l in rd[3:]: A(l)
            if PACE: A(f"s_nop {PACE-1}")
            A(mf[3])
        A(f"s_sub_u32 s{sCnt}, s{sCnt}, 1")
        A(f"s_cmp_lg_u32 s{sCnt}, 0")
        A(f"s_cbranch_scc1 {name}")
    def p3_loop_jit(name, swap):
        A.label(name)
        b = FR
        def mf(ct, ri):
            a = AC + 16 * (2 * ct + ri); wv, xv = vr(b + 4 * ct, 4), vr(b + 8 + 4 * ri, 4)
            A(f"{MF} {vr(a,16)}, {xv if swap else wv}, {wv if swap else xv}, {vr(a,16)}")
        for i in range(8):
            sl = i * 2048; xo = (i >> 2) * 8192
            A(f"s_waitcnt vmcnt({2*LA-2})")
            A(f"ds_read_b64_tr_b16 v[{b}:{b+1}], v{vW1} offset:{sl}")
            A(f"ds_read_b64_tr_b16 v[{b+2}:{b+3}], v{vW1} offset:{sl+512}")
            A(f"ds_read_b128 v[{b+8}:{b+11}], v{vX0+(i&3)} offset:{xo}")
            A("s_waitcnt lgkmcnt(0)")
            mf(0, 0)
            A(f"ds_read_b128 v[{b+12}:{b+15}], v{vX0+(i&3)} offset:{xo+4096}")
            A("s_waitcnt lgkmcnt(0)")
            mf(0, 1)
            A(f"ds_read_b64_tr_b16 v[{b+4}:{b+5}], v{vW2} offset:{sl}")
            A(f"ds_read_b64_tr_b16 v[{b+6}:{b+7}], v{vW2} offset:{sl+512}")
            A("s_waitcnt lgkmcnt(0)")
            mf(1, 1)
            if i == (8 - LA) % 8:
                p3_wrap()
                A(f"s_cmp_eq_u32 s{sCnt}, 1")
                A(f"s_cselect_b32 s{sA0}, {OOB:#x}, s{sA0}")
            p3_dma((i + LA) % 8)
            mf(1, 0)
        for q in range(4):
            A(f"v_add_u32 v{vX0+q}, 16384, v{vX0+q}")
            A(f"v_and_b32 v{vX0+q}, 0xffff, v{vX0+q}")
        A(f"s_sub_u32 s{sCnt}, s{sCnt}, 1")
        A(f"s_cmp_lg_u32 s{sCnt}, 0")
        A(f"s_cbranch_scc1 {name}")
    def p3_loop(name, swap):
        if OPT.get("il") == "2": return p3_loop_jit(name, swap)
        if OPT.get("il") == "1": return p3_loop_il(name, swap)
        A.label(name)
        for i in range(8):
            A(f"s_waitcnt vmcnt({2*LA-4})")
            p3_rd(i + 1)
            if i == (8 - LA) % 8:
                p3_wrap()
                A(f"s_cmp_eq_u32 s{sCnt}, 1")
                A(f"s_cselect_b32 s{sA0}, {OOB:#x}, s{sA0}")
            A("s_waitcnt lgkmcnt(6)")
            b = FR + 16 * (i & 1)
            n = 0
            for ct in range(2):
                for ri in range(2):
                    a = AC + 16 * (2 * ct + ri); wv, xv = vr(b + 4 * ct, 4), vr(b + 8 + 4 * ri, 4)
                    if "nop3mf" not in OPT.get("abl", ""): A(f"{MF} {vr(a,16)}, {xv if swap else wv}, {wv if swap else xv}, {vr(a,16)}")
                    if n == 0: p3_dma((i + LA) % 8)
                    elif PACE: A(f"s_nop {PACE-1}")
                    n += 1
        A(f"s_sub_u32 s{sCnt}, s{sCnt}, 1")
        A(f"s_cmp_lg_u32 s{sCnt}, 0")
        A(f"s_cbranch_scc1 {name}")
    PACE = int(OPT.get("pace", 0))
    A(f"s_cmp_eq_u32 s{sJ}, 2")
    A("s_cbranch_scc1 L_p3v")
    p3_loop("L_p3qk", False)
    svst = NST[0]
    stamp()
    A(f"s_lshl_b32 s{sKV}, s{sHG}, 8")
    A(f"s_add_u32 s{sKV}, s{sKV}, s{sRT0}")
    A(f"s_mul_i32 s{sKV}, s{sKV}, {TB}")
    A(f"s_add_u32 s{sKV}, s{sKV}, {WS_KVB:#x}")
    A(f"s_mov_b32 s{sT2}, {f2u(CSCALE):#x}")
    A(f"v_add_u32 v{vT3}, {L_QX}, v{vK}")
    A("s_waitcnt lgkmcnt(0)")
    A(f"s_cmp_eq_u32 s{sJ}, 1")
    A("s_cbranch_scc1 L_p3k")
    team_wait(7, 4, 2)
    for ct in range(2):
        for ri in range(2):
            for hh in range(2):
                a = AC + 16 * (2 * ct + ri) + 8 * hh; p = FR + 4 * ((2 * ri + hh) & 3)
                for r in range(8): A(f"v_mul_f32 v{a+r}, s{sT2}, v{a+r}")
                for r in range(4): A(f"v_cvt_pk_bf16_f32 v{p+r}, v{a+2*r}, v{a+2*r+1}")
                A(f"ds_write_b128 v{vT3}, {vr(p,4)} offset:{(4*ri + 2*ct + hh)*1024}")
        if ct == 0: A("s_waitcnt lgkmcnt(0)")
    A("s_waitcnt vmcnt(0) lgkmcnt(0)")
    A("s_branch L_p3done")
    A.label("L_p3k")
    for ct in range(2):
        for hh in range(2):
            for ri in range(2):
                a = AC + 16 * (2 * ct + ri) + 8 * hh; p = FR + 4 * (4 * ct + 2 * hh + ri)
                for r in range(4): A(f"v_cvt_pk_bf16_f32 v{p+r}, v{a+2*r}, v{a+2*r+1}")
                A(f"buffer_store_dwordx4 {vr(p,4)}, v{vK}, s[12:15], s{sKV} offen offset:{ri*TB} sc1")
            A(f"s_add_u32 s{sKV}, s{sKV}, {64*TB}")
    A("s_branch L_p3pub")
    A.label("L_p3v")
    p3_loop("L_p3vl", True)
    NST[0] = svst
    stamp()
    A(f"s_lshl_b32 s{sKV}, s{sHG}, 8")
    A(f"s_add_u32 s{sKV}, s{sKV}, s{sRT0}")
    A(f"s_mul_i32 s{sKV}, s{sKV}, {TB}")
    A(f"s_add_u32 s{sKV}, s{sKV}, {WS_KVB:#x}")
    A(f"s_mov_b32 s{sT3}, {64*TB}")
    A(f"v_lshrrev_b32 v{vT}, 4, v{vL}")
    A(f"v_mul_lo_u32 v{vT}, v{vT}, s{sT3}")
    A(f"v_bfe_u32 v{vT2}, v{vL}, 3, 1")
    A(f"v_mul_u32_u24 v{vT2}, {TB}, v{vT2}")
    A(f"v_add_u32 v{vT}, v{vT}, v{vT2}")
    A(f"v_and_b32 v{vT2}, 7, v{vL}")
    A(f"v_lshl_add_u32 v{vT3}, v{vT2}, 4, v{vT}")
    for r in range(4): A(f"v_mov_b32 v{120+r}, {ONES:#x}")
    A(f"v_bfe_u32 v{vT}, v{vL}, 4, 1")
    A(f"v_mul_lo_u32 v{vT}, v{vT}, s{sT3}")
    A(f"v_lshrrev_b32 v{vT2}, 5, v{vL}")
    A(f"v_lshl_add_u32 v{vT}, v{vT2}, 8, v{vT}")
    A(f"v_and_b32 v{vT2}, 15, v{vL}")
    A(f"v_lshl_add_u32 v{vT}, v{vT2}, 4, v{vT}")
    A("s_waitcnt lgkmcnt(0)")
    A(f"buffer_store_dwordx4 {vr(120,4)}, v{vT3}, s[12:15], s{sKV} offen offset:2048 sc1")
    for ct in range(2):
        for ri in range(2):
            for s in range(2):
                a = AC + 16 * (2 * ct + ri) + 8 * s; p = FR + 4 * (4 * ct + 2 * ri + s)
                for r in range(4): A(f"v_cvt_pk_bf16_f32 v{p+r}, v{a+2*r}, v{a+2*r+1}")
                A("s_nop 1")
                A(f"v_permlane32_swap_b32 v{p}, v{p+2}")
                A(f"v_permlane32_swap_b32 v{p+1}, v{p+3}")
                A(f"buffer_store_dwordx4 {vr(p,4)}, v{vT}, s[12:15], s{sKV} offen offset:{1024+ri*TB+s*512} sc1")
        if ct == 0: A(f"s_add_u32 s{sKV}, s{sKV}, {128*TB}")
    A.label("L_p3pub")
    A("s_waitcnt vmcnt(0)")
    team_add(0, "L_p3done", 2)
    A(f"s_lshl_b32 s{sT3}, s{sHG}, 5")
    A(f"s_add_u32 s{sT3}, s{sT3}, s{sRB}")
    A(f"s_lshl_b32 s{sT3}, s{sT3}, 5")
    A(f"s_add_u32 s{sT3}, s{sT3}, {FL_KVB:#x}")
    flag_store(sT3)
    A("s_branch L_p3done")
    A.label("L_b_gwave")
    NST[0] = svst - 1
    A(f"v_bfe_u32 v{vT3}, v{vL}, 1, 4")
    A(f"v_min_u32 v{vT3}, {G1-1}, v{vT3}")
    A(f"v_add_u32 v{vT3}, s{sRB}, v{vT3}")
    A(f"v_and_b32 v{vT3}, 31, v{vT3}")
    A(f"v_and_b32 v{vT}, 32, v{vL}")
    A(f"v_add_u32 v{vT3}, v{vT3}, v{vT}")
    A(f"v_and_b32 v{vT}, 1, v{vT3}")
    A(f"v_lshrrev_b32 v{vT3}, 1, v{vT3}")
    A(f"v_lshl_add_u32 v{vT3}, v{vT3}, 2, v{vT}")
    A(f"v_and_b32 v{vT}, 1, v{vL}")
    A(f"v_lshl_add_u32 v{vT3}, v{vT}, 1, v{vT3}")
    A(f"v_lshlrev_b32 v{vT3}, 5, v{vT3}")
    if OPT.get("pstart", "5") == "5": team_wait(5, 8, 2)
    else: team_wait(6, 4, 1)
    A(f"s_mov_b32 s{sT3}, {FL_KVA:#x}")
    if KVP:
        NST[0] = 5
        kstamp()
    poll_flags(vT3, sT3, slp=int(OPT.get("pslp", 1)))
    if KVP:
        kstamp()
        A("s_waitcnt lgkmcnt(0)")
        A(f"s_sub_u32 s{70+2*NST[0]}, {SPIN}, s{sSP}")
        A(f"s_add_u32 s{70+2*NST[0]}, s{70+2*NST[0]}, s72")
        NST[0] = svst
    A("s_waitcnt lgkmcnt(0)")
    team_add(6)
    A(f"s_sleep {OPT.get('asl', 16)}")
    A(f"v_lshlrev_b32 v{vT}, 5, v{vL}")
    poll_flags(vT, sT3, n2=2048, slp=4)
    team_add(9)
    if "nob" in OPT: A("s_branch L_b_skip")
    stamp()
    A(f"v_lshrrev_b32 v{vW1}, 5, v{vL}")
    A(f"v_lshlrev_b32 v{vW1}, 4, v{vW1}")
    A(f"v_add_u32 v{vW1}, {L_GATE}, v{vW1}")
    A(f"s_mov_b32 s{sCnt}, 8")
    A.label("L_gloop")
    for i in range(4):
        A(f"ds_read_b128 {vr(FR,4)}, v{vW1} offset:{i*32}")
        A(f"ds_read_b128 {vr(FR+4,4)}, v{vX0+i}")
        A("s_waitcnt lgkmcnt(0)")
        A(f"{MF} {vr(AC,16)}, {vr(FR,4)}, {vr(FR+4,4)}, {vr(AC,16)}")
        A(f"ds_read_b128 {vr(FR+8,4)}, v{vX0+i} offset:4096")
        A(f"v_add_u32 v{vX0+i}, 8192, v{vX0+i}")
        A("s_waitcnt lgkmcnt(0)")
        A(f"{MF} {vr(AC+16,16)}, {vr(FR,4)}, {vr(FR+8,4)}, {vr(AC+16,16)}")
    A(f"v_add_u32 v{vW1}, 128, v{vW1}")
    A(f"s_sub_u32 s{sCnt}, s{sCnt}, 1")
    A(f"s_cmp_lg_u32 s{sCnt}, 0")
    A("s_cbranch_scc1 L_gloop")
    stamp()
    A("s_mov_b32 s38, 0")
    A("s_mov_b32 s39, -1")
    A("s_nop 5")
    A(f"v_cndmask_b32_e64 v{vG}, v{AC}, v{AC+16}, s[38:39]")
    A(f"v_mul_f32 v{vG}, {f2u(-math.log2(math.e)):#x}, v{vG}")
    A(f"v_exp_f32 v{vG}, v{vG}")
    A(f"v_lshlrev_b32 v{vT}, 2, v{vL}")
    A(f"v_add_f32 v{vG}, 1.0, v{vG}")
    A(f"v_rcp_f32 v{vG}, v{vG}")
    A(f"v_add_u32 v{vT}, {L_G}, v{vT}")
    A(f"ds_write_b32 v{vT}, v{vG}")
    A("s_waitcnt lgkmcnt(0)")
    A.label("L_p3done")
    team_add(1)
    QB = 96; OB = 104; KV = 136
    A(f"s_lshl_b32 s{sKV}, s{sHEAD}, 6")
    A(f"s_add_u32 s{sKV}, s{sKV}, s{sRT0}")
    A(f"s_mul_i32 s{sKV}, s{sKV}, {TB}")
    A(f"s_add_u32 s{sKV}, s{sKV}, {WS_KVB:#x}")
    sWL, sWG, sWN = 37, 54, 55
    srd(8, P_BWO, 512 * 1024)
    srd(20, P_AWO, 512 * 1024)
    vWd2 = 11
    w128_dma_addr(vWd2, 1024)
    A(f"s_lshl_b32 s{sWL}, s{sJ}, 14")
    A(f"s_lshl_b32 s{sWG}, s{sJ}, 17")
    A(f"s_lshl_b32 s{sT}, s{sHG}, 7")
    A(f"s_add_u32 s{sWG}, s{sWG}, s{sT}")
    A(f"s_mov_b32 s{sWN}, 0")
    sWI, sWT = 56, 57
    if ROT:
        A(f"s_and_b32 s{sWI}, s{sRB}, 7")
        A(f"s_lshl_b32 s{sWI}, s{sWI}, 1")
    else:
        A(f"s_mov_b32 s{sWI}, 0")
    def w_loop(name, srd_, lds):
        A(f"s_mov_b32 s{sWN}, 16")
        A.label(name)
        A(f"s_lshl_b32 s{sWT}, s{sWI}, 10")
        A(f"s_add_u32 s{sWT}, s{sWT}, s{sWL}")
        A(f"s_add_u32 m0, s{sWT}, {lds}")
        A(f"s_lshl_b32 s{sWT}, s{sWI}, 13")
        A(f"s_add_u32 s{sWT}, s{sWT}, s{sWG}")
        A(f"buffer_load_dwordx4 v{vWd2}, s[{srd_}:{srd_+3}], s{sWT} offen lds")
        A(f"s_add_u32 s{sWI}, s{sWI}, 1")
        A(f"s_and_b32 s{sWI}, s{sWI}, 15")
        A(f"s_sub_u32 s{sWN}, s{sWN}, 1")
        A(f"s_waitcnt vmcnt({OPT.get('wd', 5)})")
        A(f"s_cmp_lg_u32 s{sWN}, 0")
        A(f"s_cbranch_scc1 {name}")
    A(f"s_lshl_b32 s{sT2}, s{sJ}, 10")
    A(f"s_add_u32 s{sT2}, s{sT2}, {L_QX}")
    A(f"v_add_u32 v7, s{sT2}, v{vK}")
    A(f"s_and_b32 s{sT2}, s{sJ}, 1")
    A(f"s_lshl_b32 s{sT2}, s{sT2}, 7")
    A(f"s_add_u32 s{sT2}, s{sT2}, {L_G}")
    A(f"v_and_b32 v9, 31, v{vL}")
    A(f"v_lshl_add_u32 v9, v9, 2, s{sT2}")
    stamp()
    team_wait(1)
    w_loop("L_wB", 8, L_X)
    A(f"s_cmp_lg_u32 s{sJ}, 3")
    A("s_cbranch_scc1 L_b_nokvb")
    A(f"v_min_u32 v{vT3}, 4, v{vL}")
    A(f"v_sub_u32 v{vT3}, s{sRB}, v{vT3}")
    A(f"v_max_i32 v{vT3}, 0, v{vT3}")
    A(f"v_lshlrev_b32 v{vT3}, 5, v{vT3}")
    A(f"s_lshl_b32 s{sT3}, s{sHG}, 10")
    A(f"s_add_u32 s{sT3}, s{sT3}, {FL_KVB:#x}")
    poll_flags(vT3, sT3, slp=2)
    team_add(10)
    A.label("L_b_nokvb")
    team_wait(10, 1)
    stamp()
    A(f"ds_read_b128 {vr(QB,4)}, v7")
    A(f"ds_read_b128 {vr(QB+4,4)}, v7 offset:4096")
    A(f"ds_read_b32 v{vG}, v9")
    A(f"s_add_u32 s{sA0}, s{sKV}, {TB}")
    A(f"s_add_u32 s{sA1}, s{sRT0}, 1")
    PRE = int(OPT.get("bpre", 4))
    def bkv(u):
        b = KV + 12 * u; o = []
        if u >= 2:
            o.append(f"s_cmp_ge_u32 s{sA1}, {u}")
            o.append(f"s_cselect_b32 s{sT}, s{sA0}, {OOB:#x}")
        sa = sT if u >= 2 else sA0
        o.append(f"buffer_load_dwordx4 {vr(b,4)}, v{vK}, s[12:15], s{sa} offen sc1")
        o.append(f"buffer_load_dwordx4 {vr(b+4,4)}, v{vV}, s[12:15], s{sa} offen sc1")
        o.append(f"buffer_load_dwordx4 {vr(b+8,4)}, v{vV1}, s[12:15], s{sa} offen sc1")
        if u < 9: o.append(f"s_sub_u32 s{sA0}, s{sA0}, {TB}")
        return "\n".join(o)
    order = []
    for u in range(PRE):
        A(bkv(u)); order += [("k", u), ("v", u), ("v2", u)]
    vBig = 7
    A(f"v_mov_b32 v{vIDX}, 0xdddddddd")
    A(f"v_mov_b32 v{vBig}, {f2u(-1e38):#x}")
    mask_tuple(NEG, f"v{vBig}", "0")
    for i in range(2):
        for r in range(0, 10, 2): A(f"v_pk_mov_b32 v[{OB+16*i+r}:{OB+16*i+r+1}], 0, 0")
    A(f"s_waitcnt vmcnt({3*PRE-4}) lgkmcnt(0)")
    A(f"{MF} {vr(S0,16)}, {vr(KV,4)}, {vr(QB+4,4)}, {vr(NEG,16)}")
    A(f"{MF} {vr(S1,16)}, {vr(KV+12,4)}, {vr(QB,4)}, {vr(NEG,16)}")
    A("s_nop 7")
    A("s_nop 3")
    lane_max_all(range(S0, S0 + 32), vT, vT2)
    A(f"v_sub_f32 v{NEG}, 0, v{vT}")
    A(f"v_sub_f32 v{NEG+1}, 0, v{vT}")
    for r in range(32): A(f"v_sub_f32 v{S0+r}, v{S0+r}, v{vT}")
    for r in range(2, 16, 2): A(f"v_pk_mov_b32 v[{NEG+r}:{NEG+r+1}], v[{NEG}:{NEG+1}], v[{NEG}:{NEG+1}] op_sel:[0,1]")
    items = [(1, 0), (0, 1), (1, 1)]
    for u in range(2, 9): items += [(0, u), (1, u)]
    items += [(0, 9)]
    CF = KV
    waited = 3
    def need(tag):
        nonlocal waited
        k_ = order.index(tag)
        if k_ > waited:
            waited = k_
            return f"s_waitcnt vmcnt({len(order)-1-k_})"
        return None
    WPI = int(OPT.get("wpi", 1))
    wsteps = 0; nextu = PRE
    for n, (q, u) in enumerate(items):
        Sc, Sn = (S0, S1) if n % 2 == 0 else (S1, S0)
        ex = {}
        qk = None
        late = []
        if n % 2 == 1 and nextu < 10:
            ex["X4"] = bkv(nextu); late = [("k", nextu), ("v", nextu), ("v2", nextu)]; nextu += 1
        if n >= 1 and n + 1 < len(items):
            q2, u2 = items[n + 1]
            far = (q2, u2) in ((1, 8), (0, 9))
            ex["X3"] = need(("k", u2))
            qk = f"{MF} {vr(Sn,16)}, {vr(KV+12*u2,4)}, {vr(QB+4*q2,4)}, {vr(CF if far else NEG,16)}"
        ex["X5"] = need(("v2", u))
        order += late
        pv1 = None
        if n >= 1:
            qp, up = items[n - 1]
            pv1 = pv(OB + 16 * qp, KV + 12 * up + 8, Sn + 8)
        exit_here = (q == 1 and u in (1, 3, 5, 7))
        if exit_here: ex["X4"] = f"s_cmp_eq_u32 s{sA1}, {u}"
        if "nobat" in OPT.get("abl", ""):
            for x in sorted(ex):
                if ex[x]: A(ex[x])
            A("s_sleep 3")
        else:
            tile_code(Sc, qk, pv1, pv(OB + 16 * q, KV + 12 * u + 4, Sc), ex)
        if exit_here: A(f"s_cbranch_scc1 L_b_exit{u}")
        if n == 6: mask_tuple(CF, f"v{NEG}", f"v{vBig}")
    A("s_nop 1")
    A(pv(OB, KV + 12 * 9 + 8, S1 + 8))
    A.label("L_b_fin")
    stamp()
    A(f"s_lshl_b32 s{sA2}, s{sRT0}, 6")
    A(f"s_add_u32 s{sA2}, s{sA2}, s{sHEAD}")
    A(f"s_lshl_b32 s{sA2}, s{sA2}, 10")
    A(f"s_add_u32 s{sA2}, s{sA2}, {WS_O + 32*1024:#x}")
    A(f"s_min_u32 s{sCnt}, s{sA1}, 9")
    A("s_nop 7")
    for i in range(2):
        if not OPT.get("abl"): range_check(OB + 16 * i, f"L_b_slow{i}")
        A.label(f"L_b_ok{i}")
        normalize_store(OB + 16 * i, P + 4 * i, sA2)
        if i == 0:
            A(f"s_add_u32 s{sA2}, s{sA2}, 65536")
            A(f"s_add_u32 s{sKV}, s{sKV}, {TB}")
            A(f"s_add_u32 s{sCnt}, s{sRT0}, 2")
            A(f"s_min_u32 s{sCnt}, s{sCnt}, 9")
    A("s_waitcnt vmcnt(0)")
    team_add(2, "L_b_ob_nl")
    A(f"s_lshl_b32 s{sT3}, s{sRB}, 8")
    A(f"s_lshl_b32 s{sT4}, s{sHG}, 5")
    A(f"s_add_u32 s{sT3}, s{sT3}, s{sT4}")
    A(f"s_add_u32 s{sT3}, s{sT3}, {FL_OB:#x}")
    flag_store(sT3)
    A.label("L_b_ob_nl")
    A(f"s_and_b32 s{sT4}, s{sJ}, 1")
    A(f"s_lshr_b32 s{sT3}, s{sJ}, 1")
    vWp = 13
    w128_tr_addr(vWp, 4, None, sT3)
    A(f"v_and_b32 v{vT3}, 7, v{vL}")
    A(f"v_lshlrev_b32 v{vT3}, 5, v{vT3}")
    A(f"s_lshl_b32 s{sT3}, s{sRB}, 8")
    A(f"s_add_u32 s{sT3}, s{sT3}, {FL_OB:#x}")
    w_loop("L_wA", 20, L_WQ)
    A("s_waitcnt vmcnt(0)")
    team_add(3)
    poll_flags(vT3, sT3, slp=2)
    stamp()
    OF = 128; WF = 64; ACB = 16; ACA = 32; OR = 80
    A(f"s_add_u32 s{sA0}, s{sRT0}, s{sT4}")
    A(f"s_lshl_b32 s{sA0}, s{sA0}, 16")
    A(f"s_add_u32 s{sA0}, s{sA0}, {WS_O + 32*1024:#x}")
    if "nop4b" in OPT.get("abl", ""): A("s_branch L_b_skip")
    OD = int(OPT.get("od", 8))
    def oload(s):
        if s and s % 4 == 0: A(f"s_add_u32 s{sA0}, s{sA0}, 4096")
        A(f"buffer_load_dwordx4 {vr(OR+4*(s%8),4)}, v{vK}, s[12:15], s{sA0} offen offset:{(s%4)*1024} sc1")
    for s in range(OD): oload(s)
    vWq = 12
    A(f"v_add_u32 v{vWq}, {L_WQ}, v{vWp}")
    team_wait(3)
    for s in range(32):
        vm = min(31, s + OD - 1) - s
        A(f"ds_read_b64_tr_b16 v[{WF}:{WF+1}], v{vWp} offset:{s*2048}")
        A(f"ds_read_b64_tr_b16 v[{WF+2}:{WF+3}], v{vWp} offset:{s*2048+1024}")
        A(f"ds_read_b64_tr_b16 v[{OF+4*s}:{OF+4*s+1}], v{vWq} offset:{s*2048}")
        A(f"ds_read_b64_tr_b16 v[{OF+4*s+2}:{OF+4*s+3}], v{vWq} offset:{s*2048+1024}")
        A(f"s_waitcnt vmcnt({vm}) lgkmcnt(2)")
        c = "0" if s == 0 else vr(ACB, 16)
        A(f"{MF} {vr(ACB,16)}, {vr(WF,4)}, {vr(OR+4*(s%8),4)}, {c}")
        if s + OD < 32: oload(s + OD)
    A(f"v_sub_f32 v{vT3}, 1.0, v{vG}")
    A("s_nop 7")
    A("s_nop 2")
    for r in range(16): A(f"v_mul_f32 v{ACB+r}, v{ACB+r}, v{vT3}")
    A.label("L_b_skip")
    A(f"s_and_b32 s{sT4}, s{sJ}, 1")
    srd(4, P_OUT, 2048 * 1024)
    vO = 8; vOa = 9
    A(f"v_and_b32 v{vT}, 31, v{vL}")
    A(f"v_lshlrev_b32 v{vT}, 10, v{vT}")
    A(f"v_lshrrev_b32 v{vT2}, 5, v{vL}")
    A(f"v_lshl_add_u32 v{vO}, v{vT2}, 4, v{vT}")
    A(f"s_add_u32 s{sKV}, s{sRT0}, s{sT4}")
    A(f"s_lshl_b32 s{sKV}, s{sKV}, 15")
    A(f"s_lshl_b32 s{sT}, s{sHG}, 7")
    A(f"s_add_u32 s{sKV}, s{sKV}, s{sT}")
    A(f"s_lshr_b32 s{sT}, s{sJ}, 1")
    A(f"s_lshl_b32 s{sT}, s{sT}, 6")
    A(f"s_add_u32 s{sKV}, s{sKV}, s{sT}")
    A(f"s_lshl_b32 s{sT}, s{sT4}, 15")
    A(f"v_add_u32 v{vOa}, s{sT}, v{vK}")
    A(f"s_lshl_b32 s{sA2}, s{sRB}, 8")
    A(f"s_lshl_b32 s{sT}, s{sHG}, 5")
    A(f"s_add_u32 s{sA2}, s{sA2}, s{sT}")
    A(f"s_add_u32 s{sA2}, s{sA2}, {FL_OA:#x}")
    A("s_waitcnt lgkmcnt(0)")
    stamp()
    A("s_barrier")
    A("s_barrier")
    A(f"s_cmp_lg_u32 s{sJ}, 0")
    A("s_cbranch_scc1 L_b_noflag")
    flag_store(sA2)
    A.label("L_b_noflag")
    tail_dma()
    for m in range(4):
        A(f"s_waitcnt vmcnt({2*(3-m)})")
        A("s_barrier")
        for i in range(8): A(f"ds_read_b128 {vr(WF+4*i,4)}, v{vOa} offset:{(8*m+i)*1024}")
        for i in range(8):
            s = 8 * m + i
            A(f"s_waitcnt lgkmcnt({7-i})")
            c = "0" if s == 0 else vr(ACA, 16)
            A(f"{MF} {vr(ACA,16)}, {vr(OF+4*s,4)}, {vr(WF+4*i,4)}, {c}")
    A("s_nop 7")
    A("s_nop 3")
    for r in range(16): A(f"v_fmac_f32 v{ACB+r}, v{ACA+r}, v{vG}")
    for r in range(8): A(f"v_cvt_pk_bf16_f32 v{WF+r}, v{ACB+2*r}, v{ACB+2*r+1}")
    A("s_nop 1")
    for g in range(2):
        A(f"v_permlane32_swap_b32 v{WF+4*g}, v{WF+4*g+2}")
        A(f"v_permlane32_swap_b32 v{WF+4*g+1}, v{WF+4*g+3}")
    for g in range(2): A(f"buffer_store_dwordx4 {vr(WF+4*g,4)}, v{vO}, s[4:7], s{sKV} offen offset:{g*32}")
    if PROF: A("s_waitcnt vmcnt(0)")
    stamp_flush()
    A.label("L_exit")
    A("s_endpgm")
    for u in (1, 3, 5, 7):
        A.label(f"L_b_exit{u}")
        A("s_nop 0")
        A(pv(OB + 16, KV + 12 * u + 8, S0 + 8))
        A("s_branch L_b_fin")
    for i in range(2):
        slow_path(f"L_b_slow{i}", f"L_b_ok{i}", QB + 4 * i, OB + 16 * i, sKV, sCnt, -TB, True, KV, KV + 4, KV + 16)
    return k

def main():
    hdr = open("cdna_kernels/" + NAME + ".s.ref").read().split("\n")
    head = [l for l in hdr if l.startswith(";") and "@launch" not in l]
    out = "\n".join(head) + "\n"
    out += "; @launch grid=(256,1,1) block=(512,1,1) lds=163840\n"
    out += '.amdgcn_target "amdgcn-amd-amdhsa--gfx950"\n.text\n'
    k = gen()
    body = A.text()
    if "bfirst" in OPT:
        i = body.index("; @@A_BEGIN\n"); j = body.index("; @@A_END\n")
        body = body[:i] + body[j + len("; @@A_END\n"):] + body[i + len("; @@A_BEGIN\n"):j]
    body += "L_code_end:\n    s_endpgm\n"
    errs = check_hazards(body)
    for e in errs: print("HAZARD", e, file=sys.stderr)
    out += body
    out += f""".section .rodata,"a"
.p2align 6
.amdhsa_kernel {k}
  .amdhsa_next_free_vgpr 256
  .amdhsa_next_free_sgpr 102
  .amdhsa_accum_offset 256
  .amdhsa_group_segment_fixed_size 0
  .amdhsa_kernarg_size 96
  .amdhsa_user_sgpr_count 2
  .amdhsa_user_sgpr_kernarg_segment_ptr 1
  .amdhsa_system_sgpr_workgroup_id_x 1
.end_amdhsa_kernel
"""
    paths = [a for a in sys.argv[1:] if a.endswith(".s")]
    path = paths[0] if paths else "f11.s"
    open(path, "w").write(out)
    print("wrote", path, len(out), "bytes;", len(errs), "hazard warnings")
main()
```

```python
import sys, math, struct, re
from asmlib import Asm, vr, sr, check_hazards

NAME = "gated_mix__grouped_kv_mqa__sliding_block__prompt"
def f2u(x): return struct.unpack("<I", struct.pack("<f", x))[0]
CSCALE = 0.25 * math.log2(math.e)
OPT = dict(a[2:].split("=") if "=" in a else (a[2:], "1") for a in sys.argv[1:] if a.startswith("--"))
for _k, _v in (("bfirst", "1"), ("cpf", "1"), ("pace", "0"), ("p3d", "4"), ("bpre", "3"), ("od", "6"), ("il", "2"), ("tp", "one"), ("j4", "1"), ("pstart", "6"), ("touchfl", "1"), ("k3", "1")): OPT.setdefault(_k, _v)
PROF = "prof" in OPT

ROT = "norot" not in OPT
TB = 2176
WS_KVA = 0
WS_FL = 0x40000
FL_KVA, FL_KVB, FL_OB, FL_OA = WS_FL, WS_FL + 0x1000, WS_FL + 0x4000, WS_FL + 0x6000
WS_KVB = 0x100000
WS_O = 0x600000
WS_PROF = 15 << 20
WS_SIZE = 16 << 20
OOB = 0x40000000
ONES = 0x3F803F80
L_X, L_WQ, L_WKV, L_QX, L_GATE, L_CNT, L_COMB = 0, 65536, 131072, 147456, 155648, 156672, 131072
L_G = L_CNT + 256
SPIN = 50000
MF = "v_mfma_f32_32x32x16_bf16"
SMF = "v_smfmac_f32_32x32x32_bf16"
vIDX = 10
A = Asm()

sW, sHG, sRB, sNON = 16, 17, 18, 19
sT, sT2, sT3, sT4 = 24, 25, 26, 27
sJ, sKV, sCnt, sHEAD, sRT0, sA0, sA1, sA2 = 28, 29, 30, 31, 32, 33, 34, 35
sSP = 36
P_X, P_WQ, P_WK, P_WV, P_AWO, P_WQKV, P_BWO, P_GATE, P_OUT, P_DBG, P_WS = 44, 46, 48, 50, 52, 56, 58, 60, 62, 64, 66
vL, vK, vV, vT, vT2, vT3 = 1, 2, 3, 4, 5, 6
vV1 = 0

def srd(d, ptr, size):
    A(f"s_mov_b32 s{d}, s{ptr}")
    A(f"s_and_b32 s{d+1}, s{ptr+1}, 0xffff")
    A(f"s_mov_b32 s{d+2}, {size:#x}")
    A(f"s_mov_b32 s{d+3}, 0x00020000")

NST = [0]
KVP = OPT.get("prof") == "kv"
STOFF = [False]
def kstamp():
    if KVP: stamp(force=True)
def stamp(real=False, force=False):
    if not PROF: return
    if STOFF[0] and not force and not real: return
    i = NST[0]; NST[0] += 1
    assert 70 + 2 * i + 1 <= 101, "too many stamps"
    A(f"{'s_memrealtime' if real or OPT.get('prof') == 'rt' else 's_memtime'} s[{70+2*i}:{71+2*i}]")
def stamp_flush():
    if not PROF: return
    stamp(force=True); stamp(real=True)
    A("s_waitcnt lgkmcnt(0)")
    A("s_lshl_b32 s68, s2, 4")
    A(f"s_add_u32 s68, s68, s{sW}")
    A("s_lshl_b32 s68, s68, 6")
    A(f"s_add_u32 s68, s68, {WS_PROF:#x}")
    A("v_mov_b32 v251, 0")
    for i in range(NST[0]):
        A(f"v_mov_b32 v250, s{70+2*i}")
        A(f"buffer_store_dword v250, v251, s[12:15], s68 offen offset:{4*i}")
    A("s_waitcnt vmcnt(0)")

def poll_flags(va, soff, n2=None, slp=2, vd=None, x4=False):
    vd = vd if vd is not None else vT2
    l = A.uid("poll"); d = A.uid("polld")
    A(f"s_mov_b32 s{sSP}, {SPIN}")
    A.label(l)
    if x4: A(f"buffer_load_dwordx4 {vr(vd,4)}, v{va}, s[12:15], s{soff} offen sc1")
    else: A(f"buffer_load_dword v{vd}, v{va}, s[12:15], s{soff} offen sc1")
    if n2 is not None: A(f"buffer_load_dword v{vd+1}, v{va}, s[12:15], s{soff} offen offset:{n2} sc1")
    A("s_waitcnt vmcnt(0)")
    A(f"v_cmp_ne_u32 vcc, s{sNON}, v{vd}")
    if n2 is not None or x4:
        A(f"v_cmp_ne_u32 s[38:39], s{sNON}, v{vd+(2 if x4 else 1)}")
        A("s_nop 1")
        A("s_or_b64 vcc, vcc, s[38:39]")
    else:
        A("s_nop 1")
    A(f"s_cbranch_vccz {d}")
    A("s_mov_b64 exec, vcc")
    A(f"s_sub_u32 s{sSP}, s{sSP}, 1")
    A(f"s_cbranch_scc1 {d}")
    A(f"s_sleep {slp}")
    A(f"s_branch {l}")
    A.label(d)
    A("s_mov_b64 exec, -1")

def flag_store(soff):
    A(f"v_mov_b32 v{vT}, s{sNON}")
    A(f"v_mov_b32 v{vT2}, 0")
    A("s_mov_b64 exec, 1")
    A(f"buffer_store_dword v{vT}, v{vT2}, s[12:15], s{soff} offen sc1")
    A("s_mov_b64 exec, -1")

def team_add(cnt, last_label=None, n=4):
    A(f"v_mov_b32 v{vT}, {L_CNT + 4*cnt}")
    A(f"v_mov_b32 v{vT2}, 1")
    A("s_mov_b64 exec, 1")
    if last_label:
        A(f"ds_add_rtn_u32 v{vT2}, v{vT}, v{vT2}")
        A("s_waitcnt lgkmcnt(0)")
        A("s_mov_b64 exec, -1")
        A(f"v_readfirstlane_b32 s{sT}, v{vT2}")
        A("s_nop 1")
        A(f"s_cmp_lg_u32 s{sT}, {n-1}")
        A(f"s_cbranch_scc1 {last_label}")
    else:
        A(f"ds_add_u32 v{vT}, v{vT2}")
        A("s_mov_b64 exec, -1")

def team_wait(cnt, n=4, slp=2):
    l = A.uid("tw"); d = A.uid("twd")
    A(f"v_mov_b32 v{vT}, {L_CNT + 4*cnt}")
    A(f"s_mov_b32 s{sSP}, {SPIN}")
    A.label(l)
    A(f"ds_read_b32 v{vT2}, v{vT}")
    A("s_waitcnt lgkmcnt(0)")
    A(f"v_readfirstlane_b32 s{sT}, v{vT2}")
    A("s_nop 1")
    A(f"s_cmp_ge_u32 s{sT}, {n}")
    A(f"s_cbranch_scc1 {d}")
    A(f"s_sub_u32 s{sSP}, s{sSP}, 1")
    A(f"s_cbranch_scc1 {d}")
    A(f"s_sleep {slp}")
    A(f"s_branch {l}")
    A.label(d)

def pv(O, V, S):
    return f"{SMF} {vr(O,16)}, {vr(V,4)}, {vr(S,8)}, v{vIDX}"

def tile_code(Sc, qk, pv1, pv0, extra):
    d = {}
    for i in range(16): d[f"e{i}"] = f"v_exp_f32 v{Sc+i}, v{Sc+i}"
    d["PV1"] = pv1; d["QK"] = qk; d["PV0"] = pv0
    order = OPT.get("order", "e0 e1 PV1 X1 e2 e3 e4 X3 QK X2 e5 e6 e7 e8 e9 e10 X5 PV0 X4 e11 e12 e13 e14 e15").replace("_", " ")
    for x in order.split():
        if x[0] == "X":
            if extra.get(x): A(extra[x])
        elif d[x]: A(d[x])

NEG, S0, S1, P = 16, 32, 48, 64

def lane_max_all(regs, dst, tmp):
    regs = list(regs)
    A(f"v_max3_f32 v{dst}, v{regs[0]}, v{regs[1]}, v{regs[2]}")
    A(f"v_max3_f32 v{tmp}, v{regs[3]}, v{regs[4]}, v{regs[5]}")
    rest = regs[6:]; t = [dst, tmp]; n = 0
    while rest:
        a, b = rest.pop(0), rest.pop(0)
        A(f"v_max3_f32 v{t[n&1]}, v{t[n&1]}, v{a}, v{b}"); n += 1
    A(f"v_max_f32 v{dst}, v{dst}, v{tmp}")
    A(f"v_mov_b32 v{tmp}, v{dst}")
    A("s_nop 1")
    A(f"v_permlane32_swap_b32 v{dst}, v{tmp}")
    A(f"v_max_f32 v{dst}, v{dst}, v{tmp}")

def mask_tuple(dst, v_true, v_false):
    for r in range(16):
        c0 = (r & 3) + 8 * (r >> 2)
        p = 40 + 2 * (r & 1)
        A(f"s_mov_b32 s{p}, {(1 << c0) - 1:#x}")
        A(f"s_mov_b32 s{p+1}, {(1 << (c0 + 4)) - 1:#x}")
        A(f"v_cndmask_b32_e64 v{dst+r}, {v_false}, {v_true}, s[{p}:{p+1}]")

def range_check(O, bad):
    A(f"v_max3_f32 v{vT}, |v{O}|, |v{O+1}|, |v{O+2}|")
    A(f"v_max3_f32 v{vT2}, |v{O+3}|, |v{O+4}|, |v{O+5}|")
    A(f"v_max3_f32 v{vT}, v{vT}, |v{O+6}|, |v{O+7}|")
    A(f"s_mov_b32 s{sT}, {f2u(2.0**-60):#x}")
    A(f"s_mov_b32 s{sT2}, {f2u(2.0**40):#x}")
    A(f"s_mov_b32 s{sT3}, {f2u(2.0**120):#x}")
    A(f"v_add_f32 v{vT}, v{vT}, v{vT2}")
    A(f"v_cmp_nlt_f32 vcc, s{sT}, v{O+8}")
    A(f"v_cmp_ngt_f32 s[38:39], s{sT2}, v{O+8}")
    A(f"v_cmp_ngt_f32 s[40:41], s{sT3}, v{vT}")
    A("s_nop 1")
    A("s_or_b64 vcc, vcc, s[38:39]")
    A("s_or_b64 vcc, vcc, s[40:41]")
    A(f"s_cbranch_vccnz {bad}")

def slow_path(name, ret, Qr, O, s_base, s_n, step, masks, KB, VB, MK):
    lp1, lp2 = A.uid("sp1"), A.uid("sp2")
    vM, vM2, vBig = 7, 8, 9
    A.label(name)
    A("s_waitcnt vmcnt(0) lgkmcnt(0)")
    A(f"v_mov_b32 v{vBig}, {f2u(-1e38):#x}")
    def set_mask():
        if not masks:
            return
        l0, l8, ld = A.uid("m0"), A.uid("m8"), A.uid("md")
        A(f"s_cmp_eq_u32 s{sA1}, 0")
        A(f"s_cbranch_scc1 {l0}")
        A(f"s_cmp_eq_u32 s{sA1}, 8")
        A(f"s_cbranch_scc1 {l8}")
        for r in range(16): A(f"v_mov_b32 v{MK+r}, 0")
        A(f"s_branch {ld}")
        A.label(l0); mask_tuple(MK, f"v{vBig}", "0"); A(f"s_branch {ld}")
        A.label(l8); mask_tuple(MK, "0", f"v{vBig}")
        A.label(ld)
    C = vr(MK, 16) if masks else "0"
    A(f"v_mov_b32 v{vM}, v{vBig}")
    A(f"s_mov_b32 s{sA0}, s{s_base}")
    A(f"s_mov_b32 s{sA1}, 0")
    A.label(lp1)
    A(f"buffer_load_dwordx4 {vr(KB,4)}, v{vK}, s[12:15], s{sA0} offen sc1")
    set_mask()
    A("s_waitcnt vmcnt(0)")
    A("s_nop 1")
    A(f"{MF} {vr(S0,16)}, {vr(KB,4)}, {vr(Qr,4)}, {C}")
    A(f"s_add_u32 s{sA0}, s{sA0}, {step & 0xffffffff:#x}")
    A(f"s_add_u32 s{sA1}, s{sA1}, 1")
    A("s_nop 15")
    for i in range(8): A(f"v_max3_f32 v{vM}, v{vM}, v{S0+2*i}, v{S0+2*i+1}")
    A(f"s_cmp_lt_u32 s{sA1}, s{s_n}")
    A(f"s_cbranch_scc1 {lp1}")
    A(f"v_mov_b32 v{vM2}, v{vM}")
    A("s_nop 1")
    A(f"v_permlane32_swap_b32 v{vM}, v{vM2}")
    A(f"v_max_f32 v{vM}, v{vM}, v{vM2}")
    for r in range(16): A(f"v_mov_b32 v{O+r}, 0")
    A(f"s_mov_b32 s{sA0}, s{s_base}")
    A(f"s_mov_b32 s{sA1}, 0")
    A.label(lp2)
    A(f"buffer_load_dwordx4 {vr(KB,4)}, v{vK}, s[12:15], s{sA0} offen sc1")
    A(f"buffer_load_dwordx4 {vr(VB,4)}, v{vV}, s[12:15], s{sA0} offen sc1")
    A(f"buffer_load_dwordx4 {vr(VB+4,4)}, v{vV1}, s[12:15], s{sA0} offen sc1")
    set_mask()
    A("s_waitcnt vmcnt(0)")
    A("s_nop 1")
    A(f"{MF} {vr(S0,16)}, {vr(KB,4)}, {vr(Qr,4)}, {C}")
    A(f"s_add_u32 s{sA0}, s{sA0}, {step & 0xffffffff:#x}")
    A(f"s_add_u32 s{sA1}, s{sA1}, 1")
    A("s_nop 15")
    for r in range(16): A(f"v_sub_f32 v{S0+r}, v{S0+r}, v{vM}")
    for r in range(16): A(f"v_exp_f32 v{S0+r}, v{S0+r}")
    A("s_nop 2")
    A(pv(O, VB, S0))
    A(pv(O, VB + 4, S0 + 8))
    A(f"s_cmp_lt_u32 s{sA1}, s{s_n}")
    A("s_nop 15")
    A(f"s_cbranch_scc1 {lp2}")
    A(f"s_branch {ret}")

def normalize_store(O, PK, soff):
    A(f"v_rcp_f32 v{vT}, v{O+8}")
    A("s_nop 0")
    for r in range(8): A(f"v_mul_f32 v{O+r}, v{O+r}, v{vT}")
    for r in range(4): A(f"v_cvt_pk_bf16_f32 v{PK+r}, v{O+2*r}, v{O+2*r+1}")
    A(f"buffer_store_dwordx4 {vr(PK,4)}, v{vK}, s[12:15], s{soff} offen sc1")

def tail_dma():
    A(f"v_and_b32 v{vT}, 7, v{vL}")
    A(f"v_lshlrev_b32 v{vT}, 5, v{vT}")
    A(f"s_lshl_b32 s{sT3}, s{sRB}, 8")
    A(f"s_add_u32 s{sT3}, s{sT3}, {FL_OA:#x}")
    A(f"s_and_b32 s{sT}, s{sW}, 1")
    A(f"s_and_b32 s{sT2}, s{sW}, 6")
    A(f"s_lshl_b32 s{sA0}, s{sT}, 15")
    A(f"s_lshl_b32 s{sT2}, s{sT2}, 10")
    A(f"s_add_u32 s{sA0}, s{sA0}, s{sT2}")
    A(f"s_lshl_b32 s{sA1}, s{sRB}, 1")
    A(f"s_add_u32 s{sA1}, s{sA1}, s{sT}")
    A(f"s_lshl_b32 s{sA1}, s{sA1}, 16")
    A(f"s_add_u32 s{sA1}, s{sA1}, s{sT2}")
    A(f"s_add_u32 s{sA1}, s{sA1}, {WS_O:#x}")
    if OPT.get("tp", "all") == "one":
        l = A.uid("tp")
        A(f"s_cmp_lg_u32 s{sW}, 4")
        A(f"s_cbranch_scc1 {l}")
        poll_flags(vT, sT3, slp=1)
        A.label(l)
        A("s_barrier")
    else:
        poll_flags(vT, sT3, slp=1)
    stamp()
    for m in range(4):
        A(f"s_add_u32 m0, s{sA0}, {m*8192}")
        if m: A(f"s_add_u32 s{sA1}, s{sA1}, 8192")
        else: A("s_nop 0")
        A(f"buffer_load_dwordx4 v{vK}, s[12:15], s{sA1} offen sc1 lds")
        A(f"buffer_load_dwordx4 v{vK}, s[12:15], s{sA1} offen offset:1024 sc1 lds")

def gen():
    k = NAME + "_kernel"
    A.raw(f".globl {k}\n.p2align 8\n.type {k},@function\n{k}:")
    A("s_cmp_ge_u32 s2, 256")
    A("s_cbranch_scc1 L_exit")
    stamp(real=True); stamp()
    vXd, vWd, vXa, vWa = 7, 8, 9, 13
    A(f"v_lshrrev_b32 v{vT}, 6, v0")
    A(f"v_and_b32 v{vL}, 63, v0")
    A(f"v_readfirstlane_b32 s{sW}, v{vT}")
    A(f"v_lshlrev_b32 v{vT2}, 2, v{vL}")
    A(f"s_cmp_lg_u32 s{sW}, 3")
    A("s_cbranch_scc1 L_nozero")
    A(f"v_mov_b32 v{vT}, 0")
    A(f"v_add_u32 v{vT2}, {L_CNT}, v{vT2}")
    A(f"ds_write_b32 v{vT2}, v{vT}")
    A("s_waitcnt lgkmcnt(0)")
    A.label("L_nozero")
    A("s_load_dwordx16 s[44:59], s[0:1], 0")
    A("s_load_dwordx8 s[60:67], s[0:1], 64")
    A("s_memrealtime s[22:23]")
    A(f"s_and_b32 s{sHG}, s2, 1")
    A(f"s_lshl_b32 s{sHG}, s{sHG}, 2")
    if "oldmap" in OPT:
        A(f"s_bfe_u32 s{sT}, s2, 0x20003")
        A(f"s_add_u32 s{sHG}, s{sHG}, s{sT}")
        A(f"s_bfe_u32 s{sRB}, s2, 0x20001")
        A(f"s_lshl_b32 s{sRB}, s{sRB}, 3")
        A(f"s_lshr_b32 s{sT}, s2, 5")
        A(f"s_add_u32 s{sRB}, s{sRB}, s{sT}")
    else:
        A(f"s_bfe_u32 s{sT}, s2, 0x10003")
        A(f"s_add_u32 s{sHG}, s{sHG}, s{sT}")
        A(f"s_lshr_b32 s{sT}, s2, 7")
        A(f"s_lshl_b32 s{sT}, s{sT}, 1")
        A(f"s_add_u32 s{sHG}, s{sHG}, s{sT}")
        A(f"s_bfe_u32 s{sRB}, s2, 0x20001")
        A(f"s_lshl_b32 s{sRB}, s{sRB}, 3")
        A(f"s_bfe_u32 s{sT}, s2, 0x30004")
        A(f"s_add_u32 s{sRB}, s{sRB}, s{sT}")
    A(f"v_lshlrev_b32 v{vK}, 4, v{vL}")
    A("s_barrier")
    A(f"s_lshr_b32 s{sT}, s{sW}, 2")
    A(f"s_xor_b32 s{sT}, s{sT}, s{sHG}")
    A(f"s_and_b32 s{sT}, s{sT}, 1")
    A(f"s_xor_b32 s{sT}, s{sT}, 1")
    A(f"s_lshl_b32 s{sT}, s{sT}, 2")
    A(f"s_and_b32 s{sJ}, s{sW}, 3")
    A(f"s_add_u32 s{sT}, s{sT}, s{sJ}")
    A(f"s_lshl_b32 s{sT4}, s{sT}, 10")
    A(f"s_lshl_b32 s{sT}, s{sT}, 3")
    A(f"v_lshrrev_b32 v{vT}, 3, v{vL}")
    A(f"v_add_u32 v{vT}, s{sT}, v{vT}")
    A(f"v_lshrrev_b32 v{vT2}, 1, v{vT}")
    A(f"v_xor_b32 v{vT2}, v{vT2}, v{vL}")
    A(f"v_and_b32 v{vT2}, 7, v{vT2}")
    A(f"v_lshlrev_b32 v{vT2}, 4, v{vT2}")
    A(f"v_lshl_add_u32 v{vXd}, v{vT}, 10, v{vT2}")
    A(f"s_lshl_b32 s{sA0}, s{sRB}, 16")
    if ROT:
        A(f"s_and_b32 s37, s{sHG}, 2")
        A(f"s_add_u32 s37, s37, 4")
    else:
        A("s_mov_b32 s37, 0")
    if "bfirst" in OPT:
        A(f"s_cmp_lt_u32 s{sW}, 4")
        A("s_cbranch_scc1 L_ateam")
        A.raw("; @@A_BEGIN")
        A.label("L_ateam")
    else:
        A(f"s_cmp_ge_u32 s{sW}, 4")
        A("s_cbranch_scc1 L_bteam")

    sXR, sQR = 37, 54
    def dma_x_plain(kb):
        kb = [3, 0, 1, 2, 4, 5, 6, 7][kb] if "k3" in OPT else kb
        A(f"s_add_u32 m0, s{sT4}, {L_X + kb*8192 - kb*128}")
        A("s_nop 0")
        A(f"buffer_load_dwordx4 v{vXd}, s[4:7], s{sA0} offen offset:{kb*128} lds")
    def dma_x(kb):
        A(f"s_lshl_b32 s{sT2}, s{sXR}, 13")
        A(f"s_add_u32 m0, s{sT4}, s{sT2}")
        A(f"s_lshl_b32 s{sT2}, s{sXR}, 7")
        A(f"s_add_u32 s{sT2}, s{sT2}, s{sA0}")
        A(f"buffer_load_dwordx4 v{vXd}, s[4:7], s{sT2} offen lds")
        if kb < 7:
            A(f"s_add_u32 s{sXR}, s{sXR}, 1")
            A(f"s_and_b32 s{sXR}, s{sXR}, 7")

    def x_frag_addr(dst, s_off):
        A(f"v_and_b32 v{vT}, 31, v{vL}")
        A(f"v_lshrrev_b32 v{vT2}, 5, v{vL}")
        A(f"v_bfe_u32 v{vT3}, v{vL}, 1, 3")
        A(f"v_xor_b32 v{vT2}, v{vT2}, v{vT3}")
        A(f"v_lshl_add_u32 v{vT}, v{vT}, 7, s{s_off}")
        for q in range(4):
            A(f"v_xor_b32 v{vT3}, {2*q}, v{vT2}")
            A(f"v_lshl_add_u32 v{dst+q}, v{vT3}, 4, v{vT}")

    def tr_addr(dst, hmul, rowb, cgmul, s_off):
        A(f"v_lshrrev_b32 v{vT}, 5, v{vL}")
        A(f"v_bfe_u32 v{vT2}, v{vL}, 2, 2")
        A(f"v_mad_u32_u24 v{vT}, v{vT}, {hmul}, v{vT2}")
        A(f"v_and_b32 v{vT2}, 3, v{vL}")
        A(f"v_lshlrev_b32 v{vT2}, 3, v{vT2}")
        if cgmul:
            A(f"v_bfe_u32 v{vT3}, v{vL}, 4, 1")
            A(f"v_lshl_add_u32 v{vT2}, v{vT3}, {int(math.log2(cgmul))}, v{vT2}")
        A(f"v_lshl_add_u32 v{dst}, v{vT}, {int(math.log2(rowb))}, v{vT2}")
        A(f"v_add_u32 v{dst}, s{s_off}, v{dst}")

    def w128_dma_addr(dst, stride):
        A(f"v_lshrrev_b32 v{vT}, 3, v{vL}")
        if stride == 1024: A(f"v_lshlrev_b32 v{vT}, 10, v{vT}")
        else: A(f"v_mul_u32_u24 v{vT}, {stride}, v{vT}")
        A(f"v_lshrrev_b32 v{vT2}, 2, v{vL}")
        A(f"v_and_b32 v{vT2}, 4, v{vT2}")
        A(f"v_xor_b32 v{vT2}, v{vT2}, v{vL}")
        A(f"v_and_b32 v{vT2}, 7, v{vT2}")
        A(f"v_lshl_add_u32 v{dst}, v{vT2}, 4, v{vT}")

    def w128_tr_addr(dst, hmul, s_off, s_ct=None):
        A(f"v_lshrrev_b32 v{vT}, 5, v{vL}")
        A(f"v_bfe_u32 v{vT2}, v{vL}, 2, 2")
        A(f"v_mad_u32_u24 v{vT}, v{vT}, {hmul}, v{vT2}")
        A(f"v_and_b32 v{vT2}, 3, v{vL}")
        A(f"v_lshlrev_b32 v{vT2}, 3, v{vT2}")
        A(f"v_lshl_add_u32 v{vT}, v{vT}, 7, v{vT2}")
        A(f"v_bfe_u32 v{vT2}, v{vL}, 4, 1")
        A(f"v_lshl_add_u32 v{vT}, v{vT2}, 5, v{vT}")
        A(f"v_bfe_u32 v{vT2}, v{vL}, 3, 1")
        if s_ct is not None: A(f"v_xor_b32 v{vT2}, s{s_ct}, v{vT2}")
        A(f"v_lshl_add_u32 v{vT}, v{vT2}, 6, v{vT}")
        if s_off is None: A(f"v_mov_b32 v{dst}, v{vT}")
        else: A(f"v_add_u32 v{dst}, s{s_off}, v{vT}")

    def v_lane_addr():
        A(f"v_and_b32 v{vT}, 31, v{vL}")
        A(f"v_lshrrev_b32 v{vT2}, 5, v{vL}")
        A(f"v_lshlrev_b32 v{vT2}, 8, v{vT2}")
        A(f"v_lshl_add_u32 v{vV}, v{vT}, 4, v{vT2}")
        A(f"v_add_u32 v{vV}, 1024, v{vV}")
        A(f"v_mov_b32 v{vT2}, {OOB:#x}")
        A(f"v_cmp_gt_u32 s[38:39], 16, v{vT}")
        A(f"v_and_b32 v{vT}, 27, v{vT}")
        A(f"v_mov_b32 v{vT3}, 2048")
        A(f"v_cndmask_b32_e64 v{vV}, v{vT2}, v{vV}, s[38:39]")
        A(f"v_cmp_eq_u32 s[38:39], 16, v{vT}")
        A(f"v_add_u32 v{vV1}, 512, v{vV}")
        A("s_nop 0")
        A(f"v_cndmask_b32_e64 v{vV}, v{vV}, v{vT3}, s[38:39]")
        A(f"v_cndmask_b32_e64 v{vV1}, v{vV1}, v{vT3}, s[38:39]")

    def chain(s0, n, FR, ACC, kstride, second, swap):
        def rd(s):
            b = FR + 8 * (s % 4)
            A(f"ds_read_b64_tr_b16 v[{b}:{b+1}], v{vWa} offset:{s*kstride}")
            A(f"ds_read_b64_tr_b16 v[{b+2}:{b+3}], v{vWa} offset:{s*kstride+second}")
            A(f"ds_read_b128 v[{b+4}:{b+7}], v{vXa+(s&3)} offset:{(s>>2)*8192}")
        for s in range(s0, s0 + 3): rd(s)
        for s in range(s0, s0 + n):
            if s + 3 < s0 + n: rd(s + 3)
            A(f"s_waitcnt lgkmcnt({3 * (min(s + 3, s0 + n - 1) - s)})")
            b = FR + 8 * (s % 4)
            c = "0" if s == 0 else vr(ACC, 16)
            if swap: A(f"{MF} {vr(ACC,16)}, {vr(b+4,4)}, {vr(b,4)}, {c}")
            else:    A(f"{MF} {vr(ACC,16)}, {vr(b,4)}, {vr(b+4,4)}, {c}")

    R = int(OPT.get("ring", 4))
    D = int(OPT.get("depth", R - 1))
    G1 = int(OPT.get("g1", 2 * R - 1 if R == 4 else 7))
    CHK = G1 - D
    assert 0 < CHK <= R and D < R
    SL = [72, 84] + [176 + 12 * i for i in range(R - 2)]
    Q = 96; O = 112
    KT0 = 176 + 12 * (R - 2) if R == 4 else SL[R - 2]
    w128_dma_addr(vWd, 1024)
    A(f"s_lshl_b32 s{sA1}, s{sW}, 14")
    A(f"s_lshl_b32 s{sT}, s{sHG}, 7")
    A(f"s_add_u32 s{sA1}, s{sA1}, s{sT}")
    A(f"s_lshl_b32 s{sA2}, s{sW}, 11")
    A(f"s_add_u32 s{sA2}, s{sA2}, {L_WQ}")
    A("s_waitcnt lgkmcnt(0)")
    srd(4, P_X, 2048 * 1024)
    srd(8, P_WQ, 512 * 1024)
    if "cpf" in OPT:
        A(f"s_cmp_lg_u32 s{sW}, 3")
        A("s_cbranch_scc1 L_nocpf")
        A("s_getpc_b64 s[38:39]")
        A.label("L_pc")
        A(f"s_sub_u32 s38, s38, L_pc-{k}")
        A("s_subb_u32 s39, s39, 0")
        A(f"s_lshr_b32 s{sT}, s2, 3")
        A(f"v_lshlrev_b32 v{vT}, 5, v{vL}")
        A(f"v_add_u32 v{vT}, s{sT}, v{vT}")
        A(f"v_lshlrev_b32 v{vT}, 7, v{vT}")
        A(f"v_cmp_gt_u32 vcc, L_code_end-{k}, v{vT}")
        A(f"v_mov_b32 v{vT3}, s39")
        A(f"v_add_co_u32 v{vT}, s[40:41], s38, v{vT}")
        A("s_nop 1")
        A(f"v_addc_co_u32 v{vT2}, s[40:41], 0, v{vT3}, s[40:41]")
        A("s_mov_b64 exec, vcc")
        A(f"global_load_dword v254, v[{vT}:{vT2}], off")
        A("s_mov_b64 exec, -1")
        A.label("L_nocpf")
    if ROT: A(f"s_and_b32 s{sQR}, s{sRB}, 7")
    else: A(f"s_mov_b32 s{sQR}, 0")
    if "pf0" in OPT:
        A(f"s_lshr_b32 s{sT}, s2, 3")
        A(f"s_cmp_ge_u32 s{sW}, 2")
        A("s_cbranch_scc1 L_a_pfq")
        A(f"s_bfe_u32 s{sT2}, s2, 0x20001")
        A(f"s_lshl_b32 s{sT2}, s{sT2}, 19")
        A(f"s_lshl_b32 s{sT}, s{sT}, 14")
        A(f"s_add_u32 s{sT2}, s{sT2}, s{sT}")
        A(f"s_lshl_b32 s{sT}, s{sW}, 13")
        A(f"s_add_u32 s{sT2}, s{sT2}, s{sT}")
        A(f"v_lshlrev_b32 v{vT}, 7, v{vL}")
        A(f"buffer_load_dword v254, v{vT}, s[4:7], s{sT2} offen sc1")
        A("s_branch L_a_pfd")
        A.label("L_a_pfq")
        A(f"s_cmp_eq_u32 s{sW}, 3")
        A("s_cbranch_scc1 L_a_pfd")
        A(f"s_and_b32 s{sT2}, s2, 1")
        A(f"s_lshl_b32 s{sT2}, s{sT2}, 9")
        A(f"s_lshl_b32 s{sT}, s{sT}, 14")
        A(f"s_add_u32 s{sT2}, s{sT2}, s{sT}")
        A(f"v_lshrrev_b32 v{vT}, 2, v{vL}")
        A(f"v_lshlrev_b32 v{vT}, 10, v{vT}")
        A(f"v_and_b32 v{vT2}, 3, v{vL}")
        A(f"v_lshl_add_u32 v{vT}, v{vT2}, 7, v{vT}")
        A(f"buffer_load_dword v254, v{vT}, s[8:11], s{sT2} offen sc1")
        A.label("L_a_pfd")
    sRI = 55
    def a_setup():
        srd(12, P_WS, WS_SIZE)
        A(f"s_and_b32 s{sRI}, s{sW}, 1")
        A(f"s_lshl_b32 s{sT2}, s{sRI}, 12")
        x_frag_addr(vXa, sT2)
        A(f"s_lshr_b32 s{sJ}, s{sW}, 1")
        A(f"s_mov_b32 s{sT2}, {L_WQ}")
        w128_tr_addr(vWa, 8, sT2, sJ)
        v_lane_addr()
        for q in range(4):
            for r in range(0, 10, 2): A(f"v_pk_mov_b32 v[{O+16*q+r}:{O+16*q+r+1}], 0, 0")
    if OPT.get("alate", "1") == "1": a_setup()
    for kb in range(8):
        dma_x(kb)
        A(f"s_lshl_b32 s{sT2}, s{sQR}, 13")
        A(f"s_add_u32 m0, s{sA2}, s{sT2}")
        A(f"s_lshl_b32 s{sT2}, s{sQR}, 16")
        A(f"s_add_u32 s{sT2}, s{sT2}, s{sA1}")
        A(f"buffer_load_dwordx4 v{vWd}, s[8:11], s{sT2} offen lds")
        A(f"s_add_u32 m0, m0, 1024")
        A(f"s_add_u32 s{sT2}, s{sT2}, 8192")
        A(f"buffer_load_dwordx4 v{vWd}, s[8:11], s{sT2} offen lds")
        if kb < 7:
            A(f"s_add_u32 s{sQR}, s{sQR}, 1")
            A(f"s_and_b32 s{sQR}, s{sQR}, 7")
    stamp()
    if OPT.get("alate", "1") != "1": a_setup()
    A("s_waitcnt vmcnt(0)")
    team_add(5)
    team_wait(5, 8, 1)
    stamp()
    chain(0, 32, 200, S0, 2048, 512, False)
    stamp()
    A(f"s_mov_b32 s{sT2}, {f2u(CSCALE):#x}")
    A(f"s_lshl_b32 s{sT3}, s{sRI}, 12")
    A(f"s_lshl_b32 s{sT4}, s{sJ}, 11")
    A(f"s_add_u32 s{sT4}, s{sT4}, s{sT3}")
    A(f"s_add_u32 s{sT4}, s{sT4}, {L_QX}")
    A(f"s_add_u32 s{sT3}, s{sT3}, {L_QX}")
    A(f"v_add_u32 v{vT}, s{sT4}, v{vK}")
    A(f"v_add_u32 v{vT3}, s{sT3}, v{vK}")
    sKB, sKE = 37, 54
    A(f"s_mul_i32 s{sKB}, s{sJ}, {32*TB}")
    A(f"s_add_u32 s{sKE}, s{sKB}, {32*TB}")
    A(f"s_mul_i32 s{sA0}, s{sRB}, {TB}")
    A(f"s_add_u32 s{sKV}, s{sKB}, s{sA0}")
    for r in range(0, 4, 2): A(f"v_pk_mov_b32 v[{SL[R-1]+8+r}:{SL[R-1]+9+r}], 0, 0")
    assert D < R - 1 or R == 4
    A(f"v_mov_b32 v{vIDX}, 0xdddddddd")
    A("s_nop 0")
    for r in range(16): A(f"v_mul_f32 v{S0+r}, s{sT2}, v{S0+r}")
    for r in range(8): A(f"v_cvt_pk_bf16_f32 v{S1+r}, v{S0+2*r}, v{S0+2*r+1}")
    A(f"ds_write_b128 v{vT}, {vr(S1,4)}")
    A(f"ds_write_b128 v{vT}, {vr(S1+4,4)} offset:1024")
    A("s_waitcnt lgkmcnt(0)")
    team_add(6)
    stamp()
    team_wait(6, 5, 1)
    stamp()
    for q in range(4): A(f"ds_read_b128 {vr(Q+4*q,4)}, v{vT3} offset:{q*1024}")
    A(f"v_mov_b32 v{vT3}, {L_CNT + 64}")
    A(f"ds_read_b32 v{vT3}, v{vT3}")
    def kv_load(slot, part):
        b = SL[slot]
        if part == 0: return f"buffer_load_dwordx4 {vr(b,4)}, v{vK}, s[12:15], s{sKV} offen sc1"
        if part == 1: return f"buffer_load_dwordx4 {vr(b+4,4)}, v{vV}, s[12:15], s{sKV} offen sc1"
        return f"buffer_load_dwordx4 {vr(b+8,4)}, v{vV1}, s[12:15], s{sKV} offen sc1"
    KADV = [f"s_add_u32 s{sKV}, s{sKV}, {TB}", f"s_cmp_eq_u32 s{sKV}, s{sKE}", f"s_cselect_b32 s{sKV}, s{sKB}, s{sKV}"]
    A(f"buffer_load_dwordx4 {vr(KT0,4)}, v{vK}, s[12:15], s{sA0} offen sc1")
    for t in range(D):
        for part in range(3): A(kv_load(t, part))
        for x in KADV: A(x)
    A(f"s_mov_b32 s{sCnt}, {32 // R - 1}")
    A("s_mov_b64 vcc, -1")
    A("s_waitcnt lgkmcnt(0)")
    team_add(7)
    A(f"v_readfirstlane_b32 s{sNON}, v{vT3}")
    A(f"s_waitcnt vmcnt({3*D})")
    T0 = [S0, S1, KT0 + 4, KT0 + 20] if R == 4 else [S0, S1, O + 32, O + 48]
    for q in range(4): A(f"{MF} {vr(T0[q],16)}, {vr(KT0,4)}, {vr(Q+4*q,4)}, 0")
    A("s_nop 7")
    A("s_nop 0")
    lane_max_all([T0[q] + r for q in range(4) for r in range(8)], vT, vT2)
    A(f"v_sub_f32 v{NEG}, 0, v{vT}")
    A(f"v_sub_f32 v{NEG+1}, 0, v{vT}")
    for r in range(2, 16, 2): A(f"v_pk_mov_b32 v[{NEG+r}:{NEG+r+1}], v[{NEG}:{NEG+1}], v[{NEG}:{NEG+1}] op_sel:[0,1]")
    A(f"s_waitcnt vmcnt({3*(D-1)})")
    A("s_nop 0")
    A(f"{MF} {vr(S0,16)}, {vr(SL[0],4)}, {vr(Q,4)}, {vr(NEG,16)}")
    if R == 4:
        A("s_nop 7")
        A("s_nop 3")
    else:
        for q in (2, 3):
            for r in range(0, 10, 2): A(f"v_pk_mov_b32 v[{O+16*q+r}:{O+16*q+r+1}], 0, 0")
        A("s_nop 1")
    stamp()
    if PROF: A("s_memtime s[68:69]")
    A.raw(".p2align 6")
    A.label("L_aloop")
    if PROF:
        A("s_waitcnt lgkmcnt(0)")
        A(f"s_add_u32 m0, s{sCnt}, 1")
        A("s_nop 0")
        A(f"v_writelane_b32 v255, s68, m0")
        A("s_memtime s[68:69]")
    for kb in range(R):
        for q in range(4):
            Sc, Sn = (S0, S1) if q % 2 == 0 else (S1, S0)
            cur, prv, nxt = SL[kb], SL[(kb - 1) % R], SL[(kb + 1) % R]
            Kq = cur if q < 3 else nxt
            nq = (q + 1) % 4
            Vp = cur if q > 0 else prv
            Op = O + 16 * ((q - 1) % 4); Oc = O + 16 * q
            ex = {}
            if q < 3: ex["X2"] = kv_load((kb + D) % R, q)
            if q == 0 and kb == CHK:
                ex["X1"] = "s_cbranch_vccnz L_afirst\nL_afirst_ret:"
            if q == 2: ex["X4"] = KADV[0]
            if q == 3:
                ex["X1"] = f"s_waitcnt vmcnt({3*(D-1)})"
                ex["X2"] = KADV[1]
                ex["X4"] = KADV[2]
                if kb == R - 1: ex["X4"] += f"\ns_sub_u32 s{sCnt}, s{sCnt}, 1"
            if "noload" in OPT.get("abl", ""):
                for x in ("X0", "X1", "X2", "X3", "X4"): ex.pop(x, None)
            if "nosalu" in OPT.get("abl", ""):
                for x in ("X1", "X2"): ex.pop(x, None)
            tile_code(Sc, f"{MF} {vr(Sn,16)}, {vr(Kq,4)}, {vr(Q+4*nq,4)}, {vr(NEG,16)}",
                      pv(Op, Vp + 8, Sn + 8), pv(Oc, cur + 4, Sc), ex)
    if CHK == R:
        A("s_cbranch_vccnz L_afirst")
    A("s_cbranch_scc0 L_aloop")
    A("s_nop 0")
    A(pv(O + 48, SL[R-1] + 8, S1 + 8))
    stamp()
    A(f"s_mul_i32 s{sT}, s{sW}, 4608")
    A(f"s_add_u32 s{sT}, s{sT}, {L_COMB}")
    A(f"s_xor_b32 s{sT2}, s{sW}, 2")
    A(f"s_mul_i32 s{sT2}, s{sT2}, 4608")
    A(f"s_add_u32 s{sT2}, s{sT2}, {L_COMB}")
    A(f"v_add_u32 v{vT}, s{sT}, v{vK}")
    A(f"v_lshlrev_b32 v{vT3}, 2, v{vL}")
    A(f"v_add_u32 v{vT2}, s{sT}, v{vT3}")
    A(f"v_add_u32 v7, s{sT2}, v{vK}")
    A(f"v_add_u32 v8, s{sT2}, v{vT3}")
    A(f"s_cmp_eq_u32 s{sJ}, 0")
    A("s_cbranch_scc1 L_a_kh0")
    for i in range(2):
        A(f"ds_write_b128 v{vT}, {vr(O+16*i,4)} offset:{i*2304}")
        A(f"ds_write_b128 v{vT}, {vr(O+16*i+4,4)} offset:{i*2304+1024}")
        A(f"ds_write_b32 v{vT2}, v{O+16*i+8} offset:{i*2304+2048}")
    for r in range(0, 8, 2): A(f"v_pk_mov_b32 v[{Q+r}:{Q+r+1}], v[{Q+8+r}:{Q+9+r}], v[{Q+8+r}:{Q+9+r}] op_sel:[0,1]")
    A("s_waitcnt lgkmcnt(0)")
    A("s_nop 2")
    for i in range(2):
        for r in range(0, 10, 2): A(f"v_pk_mov_b32 v[{O+16*i+r}:{O+16*i+r+1}], v[{O+32+16*i+r}:{O+33+16*i+r}], v[{O+32+16*i+r}:{O+33+16*i+r}] op_sel:[0,1]")
    A("s_branch L_a_x")
    A.label("L_a_kh0")
    A("s_nop 7")
    for i in range(2):
        A(f"ds_write_b128 v{vT}, {vr(O+32+16*i,4)} offset:{i*2304}")
        A(f"ds_write_b128 v{vT}, {vr(O+32+16*i+4,4)} offset:{i*2304+1024}")
        A(f"ds_write_b32 v{vT2}, v{O+32+16*i+8} offset:{i*2304+2048}")
    A.label("L_a_x")
    A("s_waitcnt vmcnt(0) lgkmcnt(0)")
    A("s_barrier")
    for i in range(2):
        A(f"ds_read_b128 {vr(S0+16*i,4)}, v7 offset:{i*2304}")
        A(f"ds_read_b128 {vr(S0+16*i+4,4)}, v7 offset:{i*2304+1024}")
        A(f"ds_read_b32 v{S0+16*i+8}, v8 offset:{i*2304+2048}")
    A(f"s_and_b32 s{sT4}, s{sW}, 1")
    A(f"s_lshl_b32 s{sA2}, s{sRB}, 1")
    A(f"s_add_u32 s{sA2}, s{sA2}, s{sT4}")
    A(f"s_lshl_b32 s{sA2}, s{sA2}, 6")
    A(f"s_lshl_b32 s{sT4}, s{sHG}, 2")
    A(f"s_add_u32 s{sA2}, s{sA2}, s{sT4}")
    A(f"s_lshl_b32 s{sT4}, s{sJ}, 1")
    A(f"s_add_u32 s{sA2}, s{sA2}, s{sT4}")
    A(f"s_lshl_b32 s{sA2}, s{sA2}, 10")
    A(f"s_add_u32 s{sA2}, s{sA2}, {WS_O:#x}")
    A(f"s_mov_b32 s{sKV}, 0")
    A(f"s_mov_b32 s{sCnt}, 64")
    A("s_waitcnt lgkmcnt(0)")
    for i in range(2):
        for r in range(9): A(f"v_add_f32 v{O+16*i+r}, v{O+16*i+r}, v{S0+16*i+r}")
    for i in range(2):
        range_check(O + 16 * i, f"L_a_slow{i}")
        A.label(f"L_a_ok{i}")
        normalize_store(O + 16 * i, P + 4 * i, sA2)
        if i == 0: A(f"s_add_u32 s{sA2}, s{sA2}, 1024")
    A("s_waitcnt vmcnt(0)")
    stamp()
    A("s_barrier")
    tail_dma()
    for m in range(4):
        A(f"s_waitcnt vmcnt({2*(3-m)})")
        A("s_barrier")
    if PROF:
        A("s_lshl_b32 s68, s2, 2")
        A(f"s_add_u32 s68, s68, s{sW}")
        A("s_lshl_b32 s68, s68, 8")
        A(f"s_add_u32 s68, s68, {WS_PROF + 0x80000:#x}")
        A(f"v_lshlrev_b32 v248, 2, v{vL}")
        A("buffer_store_dword v255, v248, s[12:15], s68 offen")
    stamp_flush()
    A("s_endpgm")
    A.label("L_afirst")
    team_wait(9, 1, 1)
    A("s_mov_b64 vcc, 0")
    A("s_branch L_aloop" if CHK == R else "s_branch L_afirst_ret")
    for i in range(2):
        slow_path(f"L_a_slow{i}", f"L_a_ok{i}", Q + 4 * i, O + 16 * i, sKV, sCnt, TB, False, SL[0], SL[0] + 4, None)

    NST[0] = 2
    if "bfirst" in OPT: A.raw("; @@A_END")
    A.label("L_bteam")
    A(f"s_setprio {OPT.get('bprio', 2)}")
    A(f"s_lshl_b32 s{sA2}, s{sJ}, 10")
    A("s_mov_b32 s6, 0x200000")
    A("s_mov_b32 s7, 0x00020000")
    A(f"s_bitcmp0_b32 s{sHG}, 1")
    A("s_cselect_b32 s42, 16384, 0")
    A("s_mov_b32 s43, 0x00020000")
    A(f"s_or_b32 s{sT3}, s2, s{sJ}")
    A(f"s_cmp_lt_u32 s{sHG}, 4")
    A("s_waitcnt lgkmcnt(0)")
    A(f"s_cselect_b32 s40, s{P_WK}, s{P_WV}")
    A(f"s_cselect_b32 s41, s{P_WK+1}, s{P_WV+1}")
    A(f"s_mov_b32 s4, s{P_X}")
    A(f"s_and_b32 s5, s{P_X+1}, 0xffff")
    A("s_and_b32 s41, s41, 0xffff")
    for kb in range(8):
        dma_x_plain(kb)
        if kb % 2 == 0:
            A(f"s_add_u32 m0, s{sA2}, {L_WKV + kb*2048}")
            A(f"s_add_u32 s{sT}, s{sA2}, {kb*2048}")
            A(f"buffer_load_dwordx4 v{vK}, s[40:43], s{sT} offen lds")
    A(f"s_or_b32 s{sT2}, s22, 1")
    srd(20, P_DBG, 256)
    srd(12, P_WS, WS_SIZE)
    A(f"s_cmp_lg_u32 s{sT3}, 1")
    A("s_cbranch_scc1 L_b_nononce")
    A(f"s_cmp_lg_u32 s2, 0")
    A("s_cbranch_scc1 L_b_nononce")
    A(f"v_mov_b32 v{vT}, s{sT2}")
    A(f"v_mov_b32 v{vT2}, 0")
    A("s_mov_b64 exec, 1")
    A(f"buffer_store_dword v{vT}, v{vT2}, s[20:23], 0 offen sc1")
    A("s_mov_b64 exec, -1")
    A.label("L_b_nononce")
    if "notouch" not in OPT:
        A(f"s_cmp_lg_u32 s{sJ}, 3")
        A("s_cbranch_scc1 L_b_notouch")
        A(f"v_lshlrev_b32 v{vT}, 21, v{vL}")
        if "touchfl" in OPT:
            A(f"s_lshl_b32 s{sT2}, s2, 7")
            A(f"s_add_u32 s{sT2}, s{sT2}, {WS_FL - 2048:#x}")
            A(f"v_writelane_b32 v{vT}, s{sT2}, 5")
            A("s_mov_b64 exec, 0x3f")
        else:
            A("s_mov_b64 exec, 0x1f")
        A(f"buffer_load_dword v254, v{vT}, s[12:15], 0 offen offset:2048 sc1")
        A("s_mov_b64 exec, -1")
        A.label("L_b_notouch")
    stamp()
    A(f"s_and_b32 s{sT4}, s{sHG}, 1")
    A(f"s_lshl_b32 s{sT2}, s{sT4}, 12")
    x_frag_addr(vXa, sT2)
    A(f"s_mov_b32 s{sT2}, {L_WKV}")
    tr_addr(vWa, 8, 32, 0, sT2)
    v_lane_addr()
    vN = 14
    A(f"v_mov_b32 v{vN+1}, 0")
    def nonce_load(): A(f"buffer_load_dword v{vN}, v{vN+1}, s[20:23], 0 offen sc1")
    def nonce_wait():
        l = A.uid("nw"); d = A.uid("nwd")
        A(f"s_mov_b32 s{sSP}, {SPIN}")
        A.label(l)
        A("s_waitcnt vmcnt(0)")
        A(f"v_readfirstlane_b32 s{sNON}, v{vN}")
        A("s_nop 1")
        A(f"s_cmp_lg_u32 s{sNON}, 0")
        A(f"s_cbranch_scc1 {d}")
        A(f"s_sub_u32 s{sSP}, s{sSP}, 1")
        A(f"s_cbranch_scc1 {d}")
        nonce_load()
        A(f"s_branch {l}")
        A.label(d)
    ACC = 16
    A(f"s_lshl_b32 s{sRT0}, s{sRB}, 1")
    A(f"s_add_u32 s{sA0}, s{sRT0}, s{sT4}")
    A(f"s_mul_i32 s{sA0}, s{sA0}, {TB}")
    A(f"s_lshl_b32 s{sA1}, s{sRB}, 2")
    A(f"s_add_u32 s{sA1}, s{sA1}, s{sT4}")
    A(f"s_lshr_b32 s{sT2}, s{sHG}, 2")
    A(f"s_lshl_b32 s{sT2}, s{sT2}, 1")
    A(f"s_add_u32 s{sA1}, s{sA1}, s{sT2}")
    A(f"s_lshl_b32 s{sA1}, s{sA1}, {3 if 'dense' in OPT else 5}")
    A(f"s_add_u32 s{sA1}, s{sA1}, {FL_KVA:#x}")
    A("s_waitcnt vmcnt(6)")
    kstamp()
    ksv = NST[0]
    team_add(4)
    A(f"s_cmp_lg_u32 s{sJ}, 0")
    A("s_cbranch_scc1 L_b_idle")
    A(f"s_bitcmp1_b32 s{sHG}, 1")
    A("s_cbranch_scc1 L_b_idle")
    def kv_unit(swap):
        NST[0] = ksv
        team_wait(4, 4, 1)
        kstamp()
        chain(0, 16, 64, ACC, 512, 128, swap)
        kstamp()
        A("s_waitcnt vmcnt(0)")
        kstamp()
        nonce_load()
        team_add(5)
        team_add(8)
        team_wait(8, 4, 1)
        kstamp()
        chain(16, 16, 64, ACC, 512, 128, swap)
        kstamp()
    A(f"s_cmp_ge_u32 s{sHG}, 4")
    A("s_cbranch_scc1 L_b_vunit")
    kv_unit(False)
    A("s_nop 7")
    A("s_nop 3")
    for r in range(4): A(f"v_cvt_pk_bf16_f32 v{64+r}, v{ACC+2*r}, v{ACC+2*r+1}")
    A(f"buffer_store_dwordx4 {vr(64,4)}, v{vK}, s[12:15], s{sA0} offen sc1")
    A("s_branch L_b_kvpub")
    A.label("L_b_vunit")
    A(f"v_lshrrev_b32 v{vT2}, 5, v{vL}")
    A(f"v_lshlrev_b32 v7, 8, v{vT2}")
    A(f"v_and_b32 v{vT2}, 15, v{vL}")
    A(f"v_lshl_add_u32 v7, v{vT2}, 4, v7")
    A(f"v_bfe_u32 v{vT2}, v{vL}, 4, 1")
    A(f"v_lshl_add_u32 v7, v{vT2}, 30, v7")
    A(f"v_cmp_gt_u32 s[38:39], 8, v{vL}")
    A(f"v_mov_b32 v{vT2}, {OOB:#x}")
    for r in range(4): A(f"v_mov_b32 v{100+r}, {ONES:#x}")
    A(f"v_cndmask_b32_e64 v8, v{vT2}, v{vK}, s[38:39]")
    A(f"buffer_store_dwordx4 {vr(100,4)}, v8, s[12:15], s{sA0} offen offset:2048 sc1")
    kv_unit(True)
    A("s_nop 7")
    A("s_nop 3")
    for s in range(2):
        for r in range(4): A(f"v_cvt_pk_bf16_f32 v{64+4*s+r}, v{ACC+8*s+2*r}, v{ACC+8*s+2*r+1}")
        A("s_nop 1")
        A(f"v_permlane32_swap_b32 v{64+4*s}, v{66+4*s}")
        A(f"v_permlane32_swap_b32 v{65+4*s}, v{67+4*s}")
        A(f"buffer_store_dwordx4 {vr(64+4*s,4)}, v7, s[12:15], s{sA0} offen offset:{1024+s*512} sc1")
    A.label("L_b_kvpub")
    nonce_wait()
    kstamp()
    flag_store(sA1)
    A("s_branch L_b_pdone")
    A.label("L_b_idle")
    if KVP:
        NST[0] = ksv
        for _ in range(6): kstamp()
    A(f"s_cmp_eq_u32 s{sJ}, 3")
    A("s_cbranch_scc1 L_b_idle1")
    A("s_waitcnt vmcnt(0)")
    A.label("L_b_idle1")
    A("s_waitcnt vmcnt(1)")
    nonce_load()
    team_add(5)
    team_add(8)
    nonce_wait()
    A(f"v_mov_b32 v{vT}, {L_CNT + 64}")
    A(f"ds_write_b32 v{vT}, v{vN}")
    A.label("L_b_pdone")
    stamp()
    if KVP: STOFF[0] = True
    srd(8, P_WQKV, 512 * 3072)
    srd(40, P_GATE, 1024)
    A(f"s_mov_b32 m0, {L_GATE}")
    A(f"s_lshl_b32 s{sHEAD}, s{sHG}, 2")
    A(f"buffer_load_dwordx4 v{vK}, s[40:43], 0 offen lds")
    A(f"s_add_u32 s{sHEAD}, s{sHEAD}, s{sJ}")
    vD1, vX0, vW1, vW2, vG = 7, 9, 13, 8, 15
    w128_dma_addr(vD1, 3072)
    A(f"s_lshl_b32 s{sA0}, s{sJ}, 10")
    A(f"s_lshl_b32 s{sT2}, s{sHG}, 7")
    A(f"s_add_u32 s{sA0}, s{sA0}, s{sT2}")
    A(f"s_lshl_b32 s{sA1}, s{sJ}, 14")
    A(f"s_add_u32 s{sA1}, s{sA1}, {L_WQ}")
    sP3W = 37
    A(f"s_add_u32 s{sP3W}, s{sA0}, {512*3072}")
    if ROT:
        A(f"s_and_b32 s{sT3}, s{sRB}, 3")
        A(f"s_cmp_eq_u32 s{sJ}, 3")
        A(f"s_cselect_b32 s{sT3}, 0, s{sT3}")
        A(f"s_lshl_b32 s{sT2}, s{sT3}, 14")
        A(f"s_mul_i32 s{sT3}, s{sT3}, {128*3072}")
        A(f"s_add_u32 s{sA0}, s{sA0}, s{sT3}")
    else:
        A(f"s_mov_b32 s{sT2}, 0")
    x_frag_addr(vX0, sT2)
    w128_tr_addr(vW1, 8, sA1)
    A(f"v_xor_b32 v{vW2}, 64, v{vW1}")
    AC, FR = 16, 80
    for r in range(0, 64, 2): A(f"v_pk_mov_b32 v[{AC+r}:{AC+r+1}], 0, 0")
    A(f"s_mov_b32 s{sCnt}, 4")
    A(f"s_cmp_eq_u32 s{sJ}, 3")
    A("s_cbranch_scc1 L_b_gwave")
    if "p3early" in OPT: team_wait(6, 4, 1)
    else: team_wait(7, 4, 2)
    stamp()
    if "nob" in OPT: A("s_branch L_b_skip")
    if "pf" in OPT:
        A(f"s_lshr_b32 s{sT}, s2, 3")
        A(f"s_and_b32 s{sT3}, s2, 1")
        A(f"s_lshl_b32 s{sT3}, s{sT3}, 9")
        A(f"s_mul_i32 s{sT2}, s{sT}, {16*3072}")
        A(f"s_add_u32 s{sT2}, s{sT2}, s{sT3}")
        A(f"s_lshl_b32 s{sT4}, s{sJ}, 10")
        A(f"s_add_u32 s{sT2}, s{sT2}, s{sT4}")
        A(f"v_lshrrev_b32 v{vT}, 2, v{vL}")
        A(f"v_and_b32 v{vT2}, 3, v{vL}")
        A(f"v_lshlrev_b32 v{vT2}, 7, v{vT2}")
        A(f"v_lshl_add_u32 v{vT3}, v{vT}, 10, v{vT2}")
        A(f"v_mul_u32_u24 v{vT}, 3072, v{vT}")
        A(f"v_add_u32 v{vT}, v{vT}, v{vT2}")
        A(f"buffer_load_dword v254, v{vT}, s[8:11], s{sT2} offen sc1")
        A(f"s_cmp_eq_u32 s{sJ}, 2")
        A("s_cbranch_scc1 L_b_nopf")
        A(f"s_cmp_eq_u32 s{sJ}, 0")
        A(f"s_cselect_b32 s40, s{P_BWO}, s{P_AWO}")
        A(f"s_cselect_b32 s41, s{P_BWO+1}, s{P_AWO+1}")
        A("s_and_b32 s41, s41, 0xffff")
        A(f"s_mov_b32 s42, {512*1024:#x}")
        A(f"s_lshl_b32 s{sT2}, s{sT}, 14")
        A(f"s_add_u32 s{sT2}, s{sT2}, s{sT3}")
        A(f"buffer_load_dword v254, v{vT3}, s[40:43], s{sT2} offen sc1")
        A.label("L_b_nopf")
    def p3_dma(slot):
        A(f"s_add_u32 m0, s{sA1}, {slot*2048}")
        A(f"s_add_u32 s{sT2}, s{sA0}, {8*3072}")
        A(f"buffer_load_dwordx4 v{vD1}, s[8:11], s{sA0} offen lds")
        A(f"s_add_u32 m0, s{sA1}, {slot*2048+1024}")
        A(f"s_add_u32 s{sA0}, s{sA0}, {16*3072}")
        A(f"buffer_load_dwordx4 v{vD1}, s[8:11], s{sT2} offen lds")
    def p3_wrap():
        A(f"s_cmp_ge_u32 s{sA0}, s{sP3W}")
        A(f"s_cselect_b32 s{sT2}, {512*3072}, 0")
        A(f"s_sub_u32 s{sA0}, s{sA0}, s{sT2}")
    def p3_rd(i):
        if "nop3rd" in OPT.get("abl", ""): return
        b = FR + 16 * (i & 1); sl = (i % 8) * 2048
        if i == 8:
            for q in range(4):
                A(f"v_add_u32 v{vX0+q}, 16384, v{vX0+q}")
                A(f"v_and_b32 v{vX0+q}, 0xffff, v{vX0+q}")
        A(f"ds_read_b64_tr_b16 v[{b}:{b+1}], v{vW1} offset:{sl}")
        A(f"ds_read_b64_tr_b16 v[{b+2}:{b+3}], v{vW1} offset:{sl+512}")
        A(f"ds_read_b128 v[{b+8}:{b+11}], v{vX0+(i&3)} offset:{((i%8)>>2)*8192}")
        A(f"ds_read_b128 v[{b+12}:{b+15}], v{vX0+(i&3)} offset:{((i%8)>>2)*8192+4096}")
        A(f"ds_read_b64_tr_b16 v[{b+4}:{b+5}], v{vW2} offset:{sl}")
        A(f"ds_read_b64_tr_b16 v[{b+6}:{b+7}], v{vW2} offset:{sl+512}")
    LA = int(OPT.get("p3d", 8))
    for s in range(LA): p3_dma(s)
    if OPT.get("il") != "2":
        A(f"s_waitcnt vmcnt({2*LA-2})")
        p3_rd(0)
    def p3_loop_il(name, swap):
        A.label(name)
        for i in range(8):
            b = FR + 16 * (i & 1)
            mark = len(A.lines); p3_rd(i + 1); rd = A.lines[mark:]; del A.lines[mark:]
            pre = [l for l in rd if "ds_read" not in l]; rd = [l for l in rd if "ds_read" in l]
            mf = []
            for ct in range(2):
                for ri in range(2):
                    a = AC + 16 * (2 * ct + ri); wv, xv = vr(b + 4 * ct, 4), vr(b + 8 + 4 * ri, 4)
                    mf.append(f"{MF} {vr(a,16)}, {xv if swap else wv}, {wv if swap else xv}, {vr(a,16)}")
            A("s_waitcnt lgkmcnt(0)")
            A(mf[0])
            if i == (8 - LA) % 8:
                p3_wrap()
                A(f"s_cmp_eq_u32 s{sCnt}, 1")
                A(f"s_cselect_b32 s{sA0}, {OOB:#x}, s{sA0}")
            p3_dma((i + LA) % 8)
            A(mf[1])
            for l in pre: A(l)
            A(f"s_waitcnt vmcnt({2*LA-2})")
            for l in rd[:3]: A(l)
            if PACE: A(f"s_nop {PACE-1}")
            A(mf[2])
            for l in rd[3:]: A(l)
            if PACE: A(f"s_nop {PACE-1}")
            A(mf[3])
        A(f"s_sub_u32 s{sCnt}, s{sCnt}, 1")
        A(f"s_cmp_lg_u32 s{sCnt}, 0")
        A(f"s_cbranch_scc1 {name}")
    def p3_loop_jit(name, swap):
        A.label(name)
        b = FR
        def mf(ct, ri):
            a = AC + 16 * (2 * ct + ri); wv, xv = vr(b + 4 * ct, 4), vr(b + 8 + 4 * ri, 4)
            if "nop3mf" not in OPT.get("abl", ""): A(f"{MF} {vr(a,16)}, {xv if swap else wv}, {wv if swap else xv}, {vr(a,16)}")
        for i in range(8):
            sl = i * 2048; xo = (i >> 2) * 8192
            A(f"s_waitcnt vmcnt({2*LA-2})")
            A(f"ds_read_b64_tr_b16 v[{b}:{b+1}], v{vW1} offset:{sl}")
            A(f"ds_read_b64_tr_b16 v[{b+2}:{b+3}], v{vW1} offset:{sl+512}")
            A(f"ds_read_b128 v[{b+8}:{b+11}], v{vX0+(i&3)} offset:{xo}")
            A("s_waitcnt lgkmcnt(0)")
            mf(0, 0)
            A(f"ds_read_b128 v[{b+12}:{b+15}], v{vX0+(i&3)} offset:{xo+4096}")
            A("s_waitcnt lgkmcnt(0)")
            mf(0, 1)
            A(f"ds_read_b64_tr_b16 v[{b+4}:{b+5}], v{vW2} offset:{sl}")
            A(f"ds_read_b64_tr_b16 v[{b+6}:{b+7}], v{vW2} offset:{sl+512}")
            A("s_waitcnt lgkmcnt(0)")
            mf(1, 1)
            if i == (8 - LA) % 8:
                p3_wrap()
                A(f"s_cmp_eq_u32 s{sCnt}, 1")
                A(f"s_cselect_b32 s{sA0}, {OOB:#x}, s{sA0}")
            p3_dma((i + LA) % 8)
            mf(1, 0)
        for q in range(4):
            A(f"v_add_u32 v{vX0+q}, 16384, v{vX0+q}")
            A(f"v_and_b32 v{vX0+q}, 0xffff, v{vX0+q}")
        A(f"s_sub_u32 s{sCnt}, s{sCnt}, 1")
        A(f"s_cmp_lg_u32 s{sCnt}, 0")
        A(f"s_cbranch_scc1 {name}")
    def p3_loop(name, swap):
        if OPT.get("il") == "2": return p3_loop_jit(name, swap)
        if OPT.get("il") == "1": return p3_loop_il(name, swap)
        A.label(name)
        for i in range(8):
            A(f"s_waitcnt vmcnt({2*LA-4})")
            p3_rd(i + 1)
            if i == (8 - LA) % 8:
                p3_wrap()
                A(f"s_cmp_eq_u32 s{sCnt}, 1")
                A(f"s_cselect_b32 s{sA0}, {OOB:#x}, s{sA0}")
            A("s_waitcnt lgkmcnt(6)")
            b = FR + 16 * (i & 1)
            n = 0
            for ct in range(2):
                for ri in range(2):
                    a = AC + 16 * (2 * ct + ri); wv, xv = vr(b + 4 * ct, 4), vr(b + 8 + 4 * ri, 4)
                    if "nop3mf" not in OPT.get("abl", ""): A(f"{MF} {vr(a,16)}, {xv if swap else wv}, {wv if swap else xv}, {vr(a,16)}")
                    if n == 0: p3_dma((i + LA) % 8)
                    elif PACE: A(f"s_nop {PACE-1}")
                    n += 1
        A(f"s_sub_u32 s{sCnt}, s{sCnt}, 1")
        A(f"s_cmp_lg_u32 s{sCnt}, 0")
        A(f"s_cbranch_scc1 {name}")
    PACE = int(OPT.get("pace", 0))
    A(f"s_cmp_eq_u32 s{sJ}, 2")
    A("s_cbranch_scc1 L_p3v")
    p3_loop("L_p3qk", False)
    svst = NST[0]
    stamp()
    A(f"s_lshl_b32 s{sKV}, s{sHG}, 8")
    A(f"s_add_u32 s{sKV}, s{sKV}, s{sRT0}")
    A(f"s_mul_i32 s{sKV}, s{sKV}, {TB}")
    A(f"s_add_u32 s{sKV}, s{sKV}, {WS_KVB:#x}")
    A(f"s_mov_b32 s{sT2}, {f2u(CSCALE):#x}")
    A(f"v_add_u32 v{vT3}, {L_QX}, v{vK}")
    A("s_waitcnt lgkmcnt(0)")
    A(f"s_cmp_eq_u32 s{sJ}, 1")
    A("s_cbranch_scc1 L_p3k")
    team_wait(7, 4, 2)
    for ct in range(2):
        for ri in range(2):
            for hh in range(2):
                a = AC + 16 * (2 * ct + ri) + 8 * hh; p = FR + 4 * ((2 * ri + hh) & 3)
                for r in range(8): A(f"v_mul_f32 v{a+r}, s{sT2}, v{a+r}")
                for r in range(4): A(f"v_cvt_pk_bf16_f32 v{p+r}, v{a+2*r}, v{a+2*r+1}")
                A(f"ds_write_b128 v{vT3}, {vr(p,4)} offset:{(4*ri + 2*ct + hh)*1024}")
        if ct == 0: A("s_waitcnt lgkmcnt(0)")
    A("s_waitcnt vmcnt(0) lgkmcnt(0)")
    A("s_branch L_p3done")
    A.label("L_p3k")
    for ct in range(2):
        for hh in range(2):
            for ri in range(2):
                a = AC + 16 * (2 * ct + ri) + 8 * hh; p = FR + 4 * (4 * ct + 2 * hh + ri)
                for r in range(4): A(f"v_cvt_pk_bf16_f32 v{p+r}, v{a+2*r}, v{a+2*r+1}")
                A(f"buffer_store_dwordx4 {vr(p,4)}, v{vK}, s[12:15], s{sKV} offen offset:{ri*TB} sc1")
            A(f"s_add_u32 s{sKV}, s{sKV}, {64*TB}")
    A("s_branch L_p3pub")
    A.label("L_p3v")
    p3_loop("L_p3vl", True)
    NST[0] = svst
    stamp()
    A(f"s_lshl_b32 s{sKV}, s{sHG}, 8")
    A(f"s_add_u32 s{sKV}, s{sKV}, s{sRT0}")
    A(f"s_mul_i32 s{sKV}, s{sKV}, {TB}")
    A(f"s_add_u32 s{sKV}, s{sKV}, {WS_KVB:#x}")
    A(f"s_mov_b32 s{sT3}, {64*TB}")
    A(f"v_lshrrev_b32 v{vT}, 4, v{vL}")
    A(f"v_mul_lo_u32 v{vT}, v{vT}, s{sT3}")
    A(f"v_bfe_u32 v{vT2}, v{vL}, 3, 1")
    A(f"v_mul_u32_u24 v{vT2}, {TB}, v{vT2}")
    A(f"v_add_u32 v{vT}, v{vT}, v{vT2}")
    A(f"v_and_b32 v{vT2}, 7, v{vL}")
    A(f"v_lshl_add_u32 v{vT3}, v{vT2}, 4, v{vT}")
    for r in range(4): A(f"v_mov_b32 v{120+r}, {ONES:#x}")
    A(f"v_bfe_u32 v{vT}, v{vL}, 4, 1")
    A(f"v_mul_lo_u32 v{vT}, v{vT}, s{sT3}")
    A(f"v_lshrrev_b32 v{vT2}, 5, v{vL}")
    A(f"v_lshl_add_u32 v{vT}, v{vT2}, 8, v{vT}")
    A(f"v_and_b32 v{vT2}, 15, v{vL}")
    A(f"v_lshl_add_u32 v{vT}, v{vT2}, 4, v{vT}")
    A("s_waitcnt lgkmcnt(0)")
    A(f"buffer_store_dwordx4 {vr(120,4)}, v{vT3}, s[12:15], s{sKV} offen offset:2048 sc1")
    for ct in range(2):
        for ri in range(2):
            for s in range(2):
                a = AC + 16 * (2 * ct + ri) + 8 * s; p = FR + 4 * (4 * ct + 2 * ri + s)
                for r in range(4): A(f"v_cvt_pk_bf16_f32 v{p+r}, v{a+2*r}, v{a+2*r+1}")
                A("s_nop 1")
                A(f"v_permlane32_swap_b32 v{p}, v{p+2}")
                A(f"v_permlane32_swap_b32 v{p+1}, v{p+3}")
                A(f"buffer_store_dwordx4 {vr(p,4)}, v{vT}, s[12:15], s{sKV} offen offset:{1024+ri*TB+s*512} sc1")
        if ct == 0: A(f"s_add_u32 s{sKV}, s{sKV}, {128*TB}")
    A.label("L_p3pub")
    A("s_waitcnt vmcnt(0)")
    team_add(0, "L_p3done", 2)
    A(f"s_lshl_b32 s{sT3}, s{sHG}, 5")
    A(f"s_add_u32 s{sT3}, s{sT3}, s{sRB}")
    A(f"s_lshl_b32 s{sT3}, s{sT3}, 5")
    A(f"s_add_u32 s{sT3}, s{sT3}, {FL_KVB:#x}")
    flag_store(sT3)
    A("s_branch L_p3done")
    A.label("L_b_gwave")
    NST[0] = svst - 1
    A(f"v_bfe_u32 v{vT3}, v{vL}, 1, 4")
    A(f"v_min_u32 v{vT3}, {G1-1}, v{vT3}")
    A(f"v_add_u32 v{vT3}, s{sRB}, v{vT3}")
    A(f"v_and_b32 v{vT3}, 31, v{vT3}")
    A(f"v_and_b32 v{vT}, 32, v{vL}")
    A(f"v_add_u32 v{vT3}, v{vT3}, v{vT}")
    A(f"v_and_b32 v{vT}, 1, v{vT3}")
    A(f"v_lshrrev_b32 v{vT3}, 1, v{vT3}")
    A(f"v_lshl_add_u32 v{vT3}, v{vT3}, 2, v{vT}")
    A(f"v_and_b32 v{vT}, 1, v{vL}")
    A(f"v_lshl_add_u32 v{vT3}, v{vT}, 1, v{vT3}")
    A(f"v_lshlrev_b32 v{vT3}, 5, v{vT3}")
    if OPT.get("pstart", "5") == "5": team_wait(5, 8, 2)
    else: team_wait(6, 4, 1)
    A(f"s_mov_b32 s{sT3}, {FL_KVA:#x}")
    if KVP:
        NST[0] = 5
        kstamp()
    poll_flags(vT3, sT3, slp=int(OPT.get("pslp", 1)))
    if KVP:
        kstamp()
        A("s_waitcnt lgkmcnt(0)")
        A(f"s_sub_u32 s{70+2*NST[0]}, {SPIN}, s{sSP}")
        A(f"s_add_u32 s{70+2*NST[0]}, s{70+2*NST[0]}, s72")
        NST[0] = svst
    A("s_waitcnt lgkmcnt(0)")
    team_add(6)
    A(f"s_sleep {OPT.get('asl', 16)}")
    A(f"v_lshlrev_b32 v{vT}, 5, v{vL}")
    poll_flags(vT, sT3, n2=2048, slp=4)
    team_add(9)
    if "nob" in OPT: A("s_branch L_b_skip")
    stamp()
    A(f"v_lshrrev_b32 v{vW1}, 5, v{vL}")
    A(f"v_lshlrev_b32 v{vW1}, 4, v{vW1}")
    A(f"v_add_u32 v{vW1}, {L_GATE}, v{vW1}")
    A(f"s_mov_b32 s{sCnt}, 8")
    A.label("L_gloop")
    for i in range(4):
        A(f"ds_read_b128 {vr(FR,4)}, v{vW1} offset:{i*32}")
        A(f"ds_read_b128 {vr(FR+4,4)}, v{vX0+i}")
        A("s_waitcnt lgkmcnt(0)")
        A(f"{MF} {vr(AC,16)}, {vr(FR,4)}, {vr(FR+4,4)}, {vr(AC,16)}")
        A(f"ds_read_b128 {vr(FR+8,4)}, v{vX0+i} offset:4096")
        A(f"v_add_u32 v{vX0+i}, 8192, v{vX0+i}")
        A("s_waitcnt lgkmcnt(0)")
        A(f"{MF} {vr(AC+16,16)}, {vr(FR,4)}, {vr(FR+8,4)}, {vr(AC+16,16)}")
    A(f"v_add_u32 v{vW1}, 128, v{vW1}")
    A(f"s_sub_u32 s{sCnt}, s{sCnt}, 1")
    A(f"s_cmp_lg_u32 s{sCnt}, 0")
    A("s_cbranch_scc1 L_gloop")
    stamp()
    A("s_mov_b32 s38, 0")
    A("s_mov_b32 s39, -1")
    A("s_nop 5")
    A(f"v_cndmask_b32_e64 v{vG}, v{AC}, v{AC+16}, s[38:39]")
    A(f"v_mul_f32 v{vG}, {f2u(-math.log2(math.e)):#x}, v{vG}")
    A(f"v_exp_f32 v{vG}, v{vG}")
    A(f"v_lshlrev_b32 v{vT}, 2, v{vL}")
    A(f"v_add_f32 v{vG}, 1.0, v{vG}")
    A(f"v_rcp_f32 v{vG}, v{vG}")
    A(f"v_add_u32 v{vT}, {L_G}, v{vT}")
    A(f"ds_write_b32 v{vT}, v{vG}")
    A("s_waitcnt lgkmcnt(0)")
    A.label("L_p3done")
    team_add(1)
    QB = 96; OB = 104; KV = 136
    A(f"s_lshl_b32 s{sKV}, s{sHEAD}, 6")
    A(f"s_add_u32 s{sKV}, s{sKV}, s{sRT0}")
    A(f"s_mul_i32 s{sKV}, s{sKV}, {TB}")
    A(f"s_add_u32 s{sKV}, s{sKV}, {WS_KVB:#x}")
    sWL, sWG, sWN = 37, 54, 55
    srd(8, P_BWO, 512 * 1024)
    srd(20, P_AWO, 512 * 1024)
    vWd2 = 11
    w128_dma_addr(vWd2, 1024)
    A(f"s_lshl_b32 s{sWL}, s{sJ}, 14")
    A(f"s_lshl_b32 s{sWG}, s{sJ}, 17")
    A(f"s_lshl_b32 s{sT}, s{sHG}, 7")
    A(f"s_add_u32 s{sWG}, s{sWG}, s{sT}")
    A(f"s_mov_b32 s{sWN}, 0")
    sWI, sWT = 56, 57
    if ROT:
        A(f"s_and_b32 s{sWI}, s{sRB}, 7")
        A(f"s_lshl_b32 s{sWI}, s{sWI}, 1")
    else:
        A(f"s_mov_b32 s{sWI}, 0")
    def w_loop(name, srd_, lds):
        A(f"s_mov_b32 s{sWN}, 16")
        A.label(name)
        A(f"s_lshl_b32 s{sWT}, s{sWI}, 10")
        A(f"s_add_u32 s{sWT}, s{sWT}, s{sWL}")
        A(f"s_add_u32 m0, s{sWT}, {lds}")
        A(f"s_lshl_b32 s{sWT}, s{sWI}, 13")
        A(f"s_add_u32 s{sWT}, s{sWT}, s{sWG}")
        A(f"buffer_load_dwordx4 v{vWd2}, s[{srd_}:{srd_+3}], s{sWT} offen lds")
        A(f"s_add_u32 s{sWI}, s{sWI}, 1")
        A(f"s_and_b32 s{sWI}, s{sWI}, 15")
        A(f"s_sub_u32 s{sWN}, s{sWN}, 1")
        A(f"s_waitcnt vmcnt({OPT.get('wd', 5)})")
        A(f"s_cmp_lg_u32 s{sWN}, 0")
        A(f"s_cbranch_scc1 {name}")
    A(f"s_lshl_b32 s{sT2}, s{sJ}, 10")
    A(f"s_add_u32 s{sT2}, s{sT2}, {L_QX}")
    A(f"v_add_u32 v7, s{sT2}, v{vK}")
    A(f"s_and_b32 s{sT2}, s{sJ}, 1")
    A(f"s_lshl_b32 s{sT2}, s{sT2}, 7")
    A(f"s_add_u32 s{sT2}, s{sT2}, {L_G}")
    A(f"v_and_b32 v9, 31, v{vL}")
    A(f"v_lshl_add_u32 v9, v9, 2, s{sT2}")
    stamp()
    team_wait(1)
    w_loop("L_wB", 8, L_X)
    A(f"s_cmp_lg_u32 s{sJ}, 3")
    A("s_cbranch_scc1 L_b_nokvb")
    A(f"v_min_u32 v{vT3}, 4, v{vL}")
    A(f"v_sub_u32 v{vT3}, s{sRB}, v{vT3}")
    A(f"v_max_i32 v{vT3}, 0, v{vT3}")
    A(f"v_lshlrev_b32 v{vT3}, 5, v{vT3}")
    A(f"s_lshl_b32 s{sT3}, s{sHG}, 10")
    A(f"s_add_u32 s{sT3}, s{sT3}, {FL_KVB:#x}")
    poll_flags(vT3, sT3, slp=2)
    team_add(10)
    A.label("L_b_nokvb")
    team_wait(10, 1)
    stamp()
    A(f"ds_read_b128 {vr(QB,4)}, v7")
    A(f"ds_read_b128 {vr(QB+4,4)}, v7 offset:4096")
    A(f"ds_read_b32 v{vG}, v9")
    A(f"s_add_u32 s{sA0}, s{sKV}, {TB}")
    A(f"s_add_u32 s{sA1}, s{sRT0}, 1")
    PRE = int(OPT.get("bpre", 4))
    def bkv(u):
        b = KV + 12 * u; o = []
        if u >= 2:
            o.append(f"s_cmp_ge_u32 s{sA1}, {u}")
            o.append(f"s_cselect_b32 s{sT}, s{sA0}, {OOB:#x}")
        sa = sT if u >= 2 else sA0
        o.append(f"buffer_load_dwordx4 {vr(b,4)}, v{vK}, s[12:15], s{sa} offen sc1")
        o.append(f"buffer_load_dwordx4 {vr(b+4,4)}, v{vV}, s[12:15], s{sa} offen sc1")
        o.append(f"buffer_load_dwordx4 {vr(b+8,4)}, v{vV1}, s[12:15], s{sa} offen sc1")
        if u < 9: o.append(f"s_sub_u32 s{sA0}, s{sA0}, {TB}")
        return "\n".join(o)
    order = []
    for u in range(PRE):
        A(bkv(u)); order += [("k", u), ("v", u), ("v2", u)]
    vBig = 7
    A(f"v_mov_b32 v{vIDX}, 0xdddddddd")
    A(f"v_mov_b32 v{vBig}, {f2u(-1e38):#x}")
    mask_tuple(NEG, f"v{vBig}", "0")
    for i in range(2):
        for r in range(0, 10, 2): A(f"v_pk_mov_b32 v[{OB+16*i+r}:{OB+16*i+r+1}], 0, 0")
    A(f"s_waitcnt vmcnt({3*PRE-4}) lgkmcnt(0)")
    A(f"{MF} {vr(S0,16)}, {vr(KV,4)}, {vr(QB+4,4)}, {vr(NEG,16)}")
    A(f"{MF} {vr(S1,16)}, {vr(KV+12,4)}, {vr(QB,4)}, {vr(NEG,16)}")
    A("s_nop 7")
    A("s_nop 3")
    lane_max_all(range(S0, S0 + 32), vT, vT2)
    A(f"v_sub_f32 v{NEG}, 0, v{vT}")
    A(f"v_sub_f32 v{NEG+1}, 0, v{vT}")
    for r in range(0, 32, 2): A(f"v_pk_add_f32 v[{S0+r}:{S0+r+1}], v[{S0+r}:{S0+r+1}], v[{NEG}:{NEG+1}]")
    for r in range(2, 16, 2): A(f"v_pk_mov_b32 v[{NEG+r}:{NEG+r+1}], v[{NEG}:{NEG+1}], v[{NEG}:{NEG+1}] op_sel:[0,1]")
    items = [(1, 0), (0, 1), (1, 1)]
    for u in range(2, 9): items += [(0, u), (1, u)]
    items += [(0, 9)]
    CF = KV
    waited = 3
    def need(tag):
        nonlocal waited
        k_ = order.index(tag)
        if k_ > waited:
            waited = k_
            return f"s_waitcnt vmcnt({len(order)-1-k_})"
        return None
    WPI = int(OPT.get("wpi", 1))
    wsteps = 0; nextu = PRE
    for n, (q, u) in enumerate(items):
        Sc, Sn = (S0, S1) if n % 2 == 0 else (S1, S0)
        ex = {}
        qk = None
        late = []
        if n % 2 == 1 and nextu < 10:
            ex["X4"] = bkv(nextu); late = [("k", nextu), ("v", nextu), ("v2", nextu)]; nextu += 1
        if n >= 1 and n + 1 < len(items):
            q2, u2 = items[n + 1]
            far = (q2, u2) in ((1, 8), (0, 9))
            ex["X3"] = need(("k", u2))
            qk = f"{MF} {vr(Sn,16)}, {vr(KV+12*u2,4)}, {vr(QB+4*q2,4)}, {vr(CF if far else NEG,16)}"
        ex["X5"] = need(("v2", u))
        order += late
        pv1 = None
        if n >= 1:
            qp, up = items[n - 1]
            pv1 = pv(OB + 16 * qp, KV + 12 * up + 8, Sn + 8)
        exit_here = (q == 1 and u in (1, 3, 5, 7))
        if exit_here: ex["X4"] = f"s_cmp_eq_u32 s{sA1}, {u}"
        if "nobat" in OPT.get("abl", ""):
            for x in sorted(ex):
                if ex[x]: A(ex[x])
            A("s_sleep 3")
        else:
            tile_code(Sc, qk, pv1, pv(OB + 16 * q, KV + 12 * u + 4, Sc), ex)
        if exit_here: A(f"s_cbranch_scc1 L_b_exit{u}")
        if n == 6: mask_tuple(CF, f"v{NEG}", f"v{vBig}")
    A("s_nop 1")
    A(pv(OB, KV + 12 * 9 + 8, S1 + 8))
    A.label("L_b_fin")
    stamp()
    A(f"s_lshl_b32 s{sA2}, s{sRT0}, 6")
    A(f"s_add_u32 s{sA2}, s{sA2}, s{sHEAD}")
    A(f"s_lshl_b32 s{sA2}, s{sA2}, 10")
    A(f"s_add_u32 s{sA2}, s{sA2}, {WS_O + 32*1024:#x}")
    A(f"s_min_u32 s{sCnt}, s{sA1}, 9")
    A("s_nop 7")
    for i in range(2):
        if not OPT.get("abl"): range_check(OB + 16 * i, f"L_b_slow{i}")
        A.label(f"L_b_ok{i}")
        normalize_store(OB + 16 * i, P + 4 * i, sA2)
        if i == 0:
            A(f"s_add_u32 s{sA2}, s{sA2}, 65536")
            A(f"s_add_u32 s{sKV}, s{sKV}, {TB}")
            A(f"s_add_u32 s{sCnt}, s{sRT0}, 2")
            A(f"s_min_u32 s{sCnt}, s{sCnt}, 9")
    A("s_waitcnt vmcnt(0)")
    team_add(2, "L_b_ob_nl")
    A(f"s_lshl_b32 s{sT3}, s{sRB}, 8")
    A(f"s_lshl_b32 s{sT4}, s{sHG}, 5")
    A(f"s_add_u32 s{sT3}, s{sT3}, s{sT4}")
    A(f"s_add_u32 s{sT3}, s{sT3}, {FL_OB:#x}")
    flag_store(sT3)
    A.label("L_b_ob_nl")
    A(f"s_and_b32 s{sT4}, s{sJ}, 1")
    A(f"s_lshr_b32 s{sT3}, s{sJ}, 1")
    vWp = 13
    w128_tr_addr(vWp, 4, None, sT3)
    A(f"v_and_b32 v{vT3}, 7, v{vL}")
    A(f"v_lshlrev_b32 v{vT3}, 5, v{vT3}")
    A(f"s_lshl_b32 s{sT3}, s{sRB}, 8")
    A(f"s_add_u32 s{sT3}, s{sT3}, {FL_OB:#x}")
    w_loop("L_wA", 20, L_WQ)
    A("s_waitcnt vmcnt(0)")
    team_add(3)
    poll_flags(vT3, sT3, slp=2)
    stamp()
    OF = 128; WF = 64; ACB = 16; ACA = 32; OR = 80
    A(f"s_add_u32 s{sA0}, s{sRT0}, s{sT4}")
    A(f"s_lshl_b32 s{sA0}, s{sA0}, 16")
    A(f"s_add_u32 s{sA0}, s{sA0}, {WS_O + 32*1024:#x}")
    if "nop4b" in OPT.get("abl", ""): A("s_branch L_b_skip")
    OD = int(OPT.get("od", 8))
    def oload(s):
        if s and s % 4 == 0: A(f"s_add_u32 s{sA0}, s{sA0}, 4096")
        A(f"buffer_load_dwordx4 {vr(OR+4*(s%8),4)}, v{vK}, s[12:15], s{sA0} offen offset:{(s%4)*1024} sc1")
    for s in range(OD): oload(s)
    vWq = 12
    A(f"v_add_u32 v{vWq}, {L_WQ}, v{vWp}")
    team_wait(3)
    for s in range(32):
        vm = min(31, s + OD - 1) - s
        A(f"ds_read_b64_tr_b16 v[{WF}:{WF+1}], v{vWp} offset:{s*2048}")
        A(f"ds_read_b64_tr_b16 v[{WF+2}:{WF+3}], v{vWp} offset:{s*2048+1024}")
        A(f"ds_read_b64_tr_b16 v[{OF+4*s}:{OF+4*s+1}], v{vWq} offset:{s*2048}")
        A(f"ds_read_b64_tr_b16 v[{OF+4*s+2}:{OF+4*s+3}], v{vWq} offset:{s*2048+1024}")
        A(f"s_waitcnt vmcnt({vm}) lgkmcnt(2)")
        c = "0" if s == 0 else vr(ACB, 16)
        A(f"{MF} {vr(ACB,16)}, {vr(WF,4)}, {vr(OR+4*(s%8),4)}, {c}")
        if s + OD < 32: oload(s + OD)
    A(f"v_sub_f32 v{vT3}, 1.0, v{vG}")
    A("s_nop 7")
    A("s_nop 2")
    for r in range(16): A(f"v_mul_f32 v{ACB+r}, v{ACB+r}, v{vT3}")
    A.label("L_b_skip")
    A(f"s_and_b32 s{sT4}, s{sJ}, 1")
    srd(4, P_OUT, 2048 * 1024)
    vO = 8; vOa = 9
    A(f"v_and_b32 v{vT}, 31, v{vL}")
    A(f"v_lshlrev_b32 v{vT}, 10, v{vT}")
    A(f"v_lshrrev_b32 v{vT2}, 5, v{vL}")
    A(f"v_lshl_add_u32 v{vO}, v{vT2}, 4, v{vT}")
    A(f"s_add_u32 s{sKV}, s{sRT0}, s{sT4}")
    A(f"s_lshl_b32 s{sKV}, s{sKV}, 15")
    A(f"s_lshl_b32 s{sT}, s{sHG}, 7")
    A(f"s_add_u32 s{sKV}, s{sKV}, s{sT}")
    A(f"s_lshr_b32 s{sT}, s{sJ}, 1")
    A(f"s_lshl_b32 s{sT}, s{sT}, 6")
    A(f"s_add_u32 s{sKV}, s{sKV}, s{sT}")
    A(f"s_lshl_b32 s{sT}, s{sT4}, 15")
    A(f"v_add_u32 v{vOa}, s{sT}, v{vK}")
    A(f"s_lshl_b32 s{sA2}, s{sRB}, 8")
    A(f"s_lshl_b32 s{sT}, s{sHG}, 5")
    A(f"s_add_u32 s{sA2}, s{sA2}, s{sT}")
    A(f"s_add_u32 s{sA2}, s{sA2}, {FL_OA:#x}")
    A("s_waitcnt lgkmcnt(0)")
    stamp()
    A("s_barrier")
    A("s_barrier")
    A(f"s_cmp_lg_u32 s{sJ}, 0")
    A("s_cbranch_scc1 L_b_noflag")
    flag_store(sA2)
    A.label("L_b_noflag")
    tail_dma()
    for m in range(4):
        A(f"s_waitcnt vmcnt({2*(3-m)})")
        A("s_barrier")
        for i in range(8): A(f"ds_read_b128 {vr(WF+4*i,4)}, v{vOa} offset:{(8*m+i)*1024}")
        for i in range(8):
            s = 8 * m + i
            A(f"s_waitcnt lgkmcnt({7-i})")
            c = "0" if s == 0 else vr(ACA, 16)
            A(f"{MF} {vr(ACA,16)}, {vr(OF+4*s,4)}, {vr(WF+4*i,4)}, {c}")
    A("s_nop 7")
    A("s_nop 3")
    for r in range(16): A(f"v_fmac_f32 v{ACB+r}, v{ACA+r}, v{vG}")
    for r in range(8): A(f"v_cvt_pk_bf16_f32 v{WF+r}, v{ACB+2*r}, v{ACB+2*r+1}")
    A("s_nop 1")
    for g in range(2):
        A(f"v_permlane32_swap_b32 v{WF+4*g}, v{WF+4*g+2}")
        A(f"v_permlane32_swap_b32 v{WF+4*g+1}, v{WF+4*g+3}")
    for g in range(2): A(f"buffer_store_dwordx4 {vr(WF+4*g,4)}, v{vO}, s[4:7], s{sKV} offen offset:{g*32} {OPT.get('om', '').replace('_', ' ')}")
    if PROF: A("s_waitcnt vmcnt(0)")
    stamp_flush()
    A.label("L_exit")
    A("s_endpgm")
    for u in (1, 3, 5, 7):
        A.label(f"L_b_exit{u}")
        A("s_nop 0")
        A(pv(OB + 16, KV + 12 * u + 8, S0 + 8))
        A("s_branch L_b_fin")
    for i in range(2):
        slow_path(f"L_b_slow{i}", f"L_b_ok{i}", QB + 4 * i, OB + 16 * i, sKV, sCnt, -TB, True, KV, KV + 4, KV + 16)
    return k

def main():
    hdr = open("cdna_kernels/" + NAME + ".s.ref").read().split("\n")
    head = [l for l in hdr if l.startswith(";") and "@launch" not in l]
    out = "\n".join(head) + "\n"
    out += "; @launch grid=(256,1,1) block=(512,1,1) lds=163840\n"
    out += '.amdgcn_target "amdgcn-amd-amdhsa--gfx950"\n.text\n'
    k = gen()
    body = A.text()
    if "bfirst" in OPT:
        i = body.index("; @@A_BEGIN\n"); j = body.index("; @@A_END\n")
        body = body[:i] + body[j + len("; @@A_END\n"):] + body[i + len("; @@A_BEGIN\n"):j]
    body += "L_code_end:\n    s_endpgm\n"
    errs = check_hazards(body)
    for e in errs: print("HAZARD", e, file=sys.stderr)
    out += body
    out += f""".section .rodata,"a"
.p2align 6
.amdhsa_kernel {k}
  .amdhsa_next_free_vgpr 256
  .amdhsa_next_free_sgpr 102
  .amdhsa_accum_offset 256
  .amdhsa_group_segment_fixed_size 0
  .amdhsa_kernarg_size 96
  .amdhsa_user_sgpr_count 2
  .amdhsa_user_sgpr_kernarg_segment_ptr 1
  .amdhsa_system_sgpr_workgroup_id_x 1
.end_amdhsa_kernel
"""
    paths = [a for a in sys.argv[1:] if a.endswith(".s")]
    path = paths[0] if paths else "f12.s"
    open(path, "w").write(out)
    print("wrote", path, len(out), "bytes;", len(errs), "hazard warnings")
main()
```

```python
import sys, math, struct, re
from asmlib import Asm, vr, sr, check_hazards

NAME = "gated_mix__grouped_kv_mqa__sliding_block__prompt"
def f2u(x): return struct.unpack("<I", struct.pack("<f", x))[0]
CSCALE = 0.25 * math.log2(math.e)
OPT = dict(a[2:].split("=") if "=" in a else (a[2:], "1") for a in sys.argv[1:] if a.startswith("--"))
for _k, _v in (("bfirst", "1"), ("cpf", "1"), ("pace", "0"), ("p3d", "4"), ("bpre", "3"), ("od", "6"), ("il", "2"), ("tp", "one"), ("j4", "1"), ("pstart", "6"), ("touchfl", "1"), ("k3", "1")): OPT.setdefault(_k, _v)
PROF = "prof" in OPT

ROT = "norot" not in OPT
TB = 2176
WS_KVA = 0
WS_FL = 0x40000
FL_KVA, FL_KVB, FL_OB, FL_OA = WS_FL, WS_FL + 0x1000, WS_FL + 0x4000, WS_FL + 0x6000
WS_KVB = 0x100000
WS_O = 0x600000
WS_PROF = 15 << 20
WS_SIZE = 16 << 20
OOB = 0x40000000
ONES = 0x3F803F80
L_X, L_WQ, L_WKV, L_QX, L_GATE, L_CNT, L_COMB = 0, 65536, 131072, 147456, 155648, 156672, 131072
L_G = L_CNT + 256
SPIN = 50000
MF = "v_mfma_f32_32x32x16_bf16"
SMF = "v_smfmac_f32_32x32x32_bf16"
vIDX = 10
A = Asm()

sW, sHG, sRB, sNON = 16, 17, 18, 19
sT, sT2, sT3, sT4 = 24, 25, 26, 27
sJ, sKV, sCnt, sHEAD, sRT0, sA0, sA1, sA2 = 28, 29, 30, 31, 32, 33, 34, 35
sSP = 36
P_X, P_WQ, P_WK, P_WV, P_AWO, P_WQKV, P_BWO, P_GATE, P_OUT, P_DBG, P_WS = 44, 46, 48, 50, 52, 56, 58, 60, 62, 64, 66
vL, vK, vV, vT, vT2, vT3 = 1, 2, 3, 4, 5, 6
vV1 = 0

def srd(d, ptr, size):
    A(f"s_mov_b32 s{d}, s{ptr}")
    A(f"s_and_b32 s{d+1}, s{ptr+1}, 0xffff")
    A(f"s_mov_b32 s{d+2}, {size:#x}")
    A(f"s_mov_b32 s{d+3}, 0x00020000")

NST = [0]
KVP = OPT.get("prof") == "kv"
STOFF = [False]
def kstamp():
    if KVP: stamp(force=True)
def stamp(real=False, force=False):
    if not PROF: return
    if STOFF[0] and not force and not real: return
    i = NST[0]; NST[0] += 1
    assert 70 + 2 * i + 1 <= 101, "too many stamps"
    A(f"{'s_memrealtime' if real or OPT.get('prof') == 'rt' else 's_memtime'} s[{70+2*i}:{71+2*i}]")
def stamp_flush():
    if not PROF: return
    stamp(force=True); stamp(real=True)
    A("s_waitcnt lgkmcnt(0)")
    A("s_lshl_b32 s68, s2, 4")
    A(f"s_add_u32 s68, s68, s{sW}")
    A("s_lshl_b32 s68, s68, 6")
    A(f"s_add_u32 s68, s68, {WS_PROF:#x}")
    A("v_mov_b32 v251, 0")
    for i in range(NST[0]):
        A(f"v_mov_b32 v250, s{70+2*i}")
        A(f"buffer_store_dword v250, v251, s[12:15], s68 offen offset:{4*i}")
    A("s_waitcnt vmcnt(0)")

def poll_flags(va, soff, n2=None, slp=2, vd=None, x4=False):
    vd = vd if vd is not None else vT2
    l = A.uid("poll"); d = A.uid("polld")
    A(f"s_mov_b32 s{sSP}, {SPIN}")
    A.label(l)
    if x4: A(f"buffer_load_dwordx4 {vr(vd,4)}, v{va}, s[12:15], s{soff} offen sc1")
    else: A(f"buffer_load_dword v{vd}, v{va}, s[12:15], s{soff} offen sc1")
    if n2 is not None: A(f"buffer_load_dword v{vd+1}, v{va}, s[12:15], s{soff} offen offset:{n2} sc1")
    A("s_waitcnt vmcnt(0)")
    A(f"v_cmp_ne_u32 vcc, s{sNON}, v{vd}")
    if n2 is not None or x4:
        A(f"v_cmp_ne_u32 s[38:39], s{sNON}, v{vd+(2 if x4 else 1)}")
        A("s_nop 1")
        A("s_or_b64 vcc, vcc, s[38:39]")
    else:
        A("s_nop 1")
    A(f"s_cbranch_vccz {d}")
    A("s_mov_b64 exec, vcc")
    A(f"s_sub_u32 s{sSP}, s{sSP}, 1")
    A(f"s_cbranch_scc1 {d}")
    A(f"s_sleep {slp}")
    A(f"s_branch {l}")
    A.label(d)
    A("s_mov_b64 exec, -1")

def flag_store(soff):
    A(f"v_mov_b32 v{vT}, s{sNON}")
    A(f"v_mov_b32 v{vT2}, 0")
    A("s_mov_b64 exec, 1")
    A(f"buffer_store_dword v{vT}, v{vT2}, s[12:15], s{soff} offen sc1")
    A("s_mov_b64 exec, -1")

def team_add(cnt, last_label=None, n=4):
    A(f"v_mov_b32 v{vT}, {L_CNT + 4*cnt}")
    A(f"v_mov_b32 v{vT2}, 1")
    A("s_mov_b64 exec, 1")
    if last_label:
        A(f"ds_add_rtn_u32 v{vT2}, v{vT}, v{vT2}")
        A("s_waitcnt lgkmcnt(0)")
        A("s_mov_b64 exec, -1")
        A(f"v_readfirstlane_b32 s{sT}, v{vT2}")
        A("s_nop 1")
        A(f"s_cmp_lg_u32 s{sT}, {n-1}")
        A(f"s_cbranch_scc1 {last_label}")
    else:
        A(f"ds_add_u32 v{vT}, v{vT2}")
        A("s_mov_b64 exec, -1")

def team_wait(cnt, n=4, slp=2):
    l = A.uid("tw"); d = A.uid("twd")
    A(f"v_mov_b32 v{vT}, {L_CNT + 4*cnt}")
    A(f"s_mov_b32 s{sSP}, {SPIN}")
    A.label(l)
    A(f"ds_read_b32 v{vT2}, v{vT}")
    A("s_waitcnt lgkmcnt(0)")
    A(f"v_readfirstlane_b32 s{sT}, v{vT2}")
    A("s_nop 1")
    A(f"s_cmp_ge_u32 s{sT}, {n}")
    A(f"s_cbranch_scc1 {d}")
    A(f"s_sub_u32 s{sSP}, s{sSP}, 1")
    A(f"s_cbranch_scc1 {d}")
    A(f"s_sleep {slp}")
    A(f"s_branch {l}")
    A.label(d)

def pv(O, V, S):
    return f"{SMF} {vr(O,16)}, {vr(V,4)}, {vr(S,8)}, v{vIDX}"

def tile_code(Sc, qk, pv1, pv0, extra):
    d = {}
    for i in range(16): d[f"e{i}"] = f"v_exp_f32 v{Sc+i}, v{Sc+i}"
    d["PV1"] = pv1; d["QK"] = qk; d["PV0"] = pv0
    order = OPT.get("order", "e0 e1 PV1 X1 e2 e3 e4 X3 QK X2 e5 e6 e7 e8 e9 e10 X5 PV0 X4 e11 e12 e13 e14 e15").replace("_", " ")
    for x in order.split():
        if x[0] == "X":
            if extra.get(x): A(extra[x])
        elif d[x]: A(d[x])

NEG, S0, S1, P = 16, 32, 48, 64

def lane_max_all(regs, dst, tmp):
    regs = list(regs)
    A(f"v_max3_f32 v{dst}, v{regs[0]}, v{regs[1]}, v{regs[2]}")
    A(f"v_max3_f32 v{tmp}, v{regs[3]}, v{regs[4]}, v{regs[5]}")
    rest = regs[6:]; t = [dst, tmp]; n = 0
    while rest:
        a, b = rest.pop(0), rest.pop(0)
        A(f"v_max3_f32 v{t[n&1]}, v{t[n&1]}, v{a}, v{b}"); n += 1
    A(f"v_max_f32 v{dst}, v{dst}, v{tmp}")
    A(f"v_mov_b32 v{tmp}, v{dst}")
    A("s_nop 1")
    A(f"v_permlane32_swap_b32 v{dst}, v{tmp}")
    A(f"v_max_f32 v{dst}, v{dst}, v{tmp}")

def mask_tuple(dst, v_true, v_false):
    for r in range(16):
        c0 = (r & 3) + 8 * (r >> 2)
        p = 40 + 2 * (r & 1)
        A(f"s_mov_b32 s{p}, {(1 << c0) - 1:#x}")
        A(f"s_mov_b32 s{p+1}, {(1 << (c0 + 4)) - 1:#x}")
        A(f"v_cndmask_b32_e64 v{dst+r}, {v_false}, {v_true}, s[{p}:{p+1}]")

def range_check(O, bad):
    A(f"v_max3_f32 v{vT}, |v{O}|, |v{O+1}|, |v{O+2}|")
    A(f"v_max3_f32 v{vT2}, |v{O+3}|, |v{O+4}|, |v{O+5}|")
    A(f"v_max3_f32 v{vT}, v{vT}, |v{O+6}|, |v{O+7}|")
    A(f"s_mov_b32 s{sT}, {f2u(2.0**-60):#x}")
    A(f"s_mov_b32 s{sT2}, {f2u(2.0**40):#x}")
    A(f"s_mov_b32 s{sT3}, {f2u(2.0**120):#x}")
    A(f"v_add_f32 v{vT}, v{vT}, v{vT2}")
    A(f"v_cmp_nlt_f32 vcc, s{sT}, v{O+8}")
    A(f"v_cmp_ngt_f32 s[38:39], s{sT2}, v{O+8}")
    A(f"v_cmp_ngt_f32 s[40:41], s{sT3}, v{vT}")
    A("s_nop 1")
    A("s_or_b64 vcc, vcc, s[38:39]")
    A("s_or_b64 vcc, vcc, s[40:41]")
    A(f"s_cbranch_vccnz {bad}")

def slow_path(name, ret, Qr, O, s_base, s_n, step, masks, KB, VB, MK):
    lp1, lp2 = A.uid("sp1"), A.uid("sp2")
    vM, vM2, vBig = 7, 8, 9
    A.label(name)
    A("s_waitcnt vmcnt(0) lgkmcnt(0)")
    A(f"v_mov_b32 v{vBig}, {f2u(-1e38):#x}")
    def set_mask():
        if not masks:
            return
        l0, l8, ld = A.uid("m0"), A.uid("m8"), A.uid("md")
        A(f"s_cmp_eq_u32 s{sA1}, 0")
        A(f"s_cbranch_scc1 {l0}")
        A(f"s_cmp_eq_u32 s{sA1}, 8")
        A(f"s_cbranch_scc1 {l8}")
        for r in range(16): A(f"v_mov_b32 v{MK+r}, 0")
        A(f"s_branch {ld}")
        A.label(l0); mask_tuple(MK, f"v{vBig}", "0"); A(f"s_branch {ld}")
        A.label(l8); mask_tuple(MK, "0", f"v{vBig}")
        A.label(ld)
    C = vr(MK, 16) if masks else "0"
    A(f"v_mov_b32 v{vM}, v{vBig}")
    A(f"s_mov_b32 s{sA0}, s{s_base}")
    A(f"s_mov_b32 s{sA1}, 0")
    A.label(lp1)
    A(f"buffer_load_dwordx4 {vr(KB,4)}, v{vK}, s[12:15], s{sA0} offen sc1")
    set_mask()
    A("s_waitcnt vmcnt(0)")
    A("s_nop 1")
    A(f"{MF} {vr(S0,16)}, {vr(KB,4)}, {vr(Qr,4)}, {C}")
    A(f"s_add_u32 s{sA0}, s{sA0}, {step & 0xffffffff:#x}")
    A(f"s_add_u32 s{sA1}, s{sA1}, 1")
    A("s_nop 15")
    for i in range(8): A(f"v_max3_f32 v{vM}, v{vM}, v{S0+2*i}, v{S0+2*i+1}")
    A(f"s_cmp_lt_u32 s{sA1}, s{s_n}")
    A(f"s_cbranch_scc1 {lp1}")
    A(f"v_mov_b32 v{vM2}, v{vM}")
    A("s_nop 1")
    A(f"v_permlane32_swap_b32 v{vM}, v{vM2}")
    A(f"v_max_f32 v{vM}, v{vM}, v{vM2}")
    for r in range(16): A(f"v_mov_b32 v{O+r}, 0")
    A(f"s_mov_b32 s{sA0}, s{s_base}")
    A(f"s_mov_b32 s{sA1}, 0")
    A.label(lp2)
    A(f"buffer_load_dwordx4 {vr(KB,4)}, v{vK}, s[12:15], s{sA0} offen sc1")
    A(f"buffer_load_dwordx4 {vr(VB,4)}, v{vV}, s[12:15], s{sA0} offen sc1")
    A(f"buffer_load_dwordx4 {vr(VB+4,4)}, v{vV1}, s[12:15], s{sA0} offen sc1")
    set_mask()
    A("s_waitcnt vmcnt(0)")
    A("s_nop 1")
    A(f"{MF} {vr(S0,16)}, {vr(KB,4)}, {vr(Qr,4)}, {C}")
    A(f"s_add_u32 s{sA0}, s{sA0}, {step & 0xffffffff:#x}")
    A(f"s_add_u32 s{sA1}, s{sA1}, 1")
    A("s_nop 15")
    for r in range(16): A(f"v_sub_f32 v{S0+r}, v{S0+r}, v{vM}")
    for r in range(16): A(f"v_exp_f32 v{S0+r}, v{S0+r}")
    A("s_nop 2")
    A(pv(O, VB, S0))
    A(pv(O, VB + 4, S0 + 8))
    A(f"s_cmp_lt_u32 s{sA1}, s{s_n}")
    A("s_nop 15")
    A(f"s_cbranch_scc1 {lp2}")
    A(f"s_branch {ret}")

def normalize_store(O, PK, soff):
    A(f"v_rcp_f32 v{vT}, v{O+8}")
    A("s_nop 0")
    for r in range(8): A(f"v_mul_f32 v{O+r}, v{O+r}, v{vT}")
    for r in range(4): A(f"v_cvt_pk_bf16_f32 v{PK+r}, v{O+2*r}, v{O+2*r+1}")
    A(f"buffer_store_dwordx4 {vr(PK,4)}, v{vK}, s[12:15], s{soff} offen sc1")

def tail_dma():
    A(f"v_and_b32 v{vT}, 7, v{vL}")
    A(f"v_lshlrev_b32 v{vT}, 5, v{vT}")
    A(f"s_lshl_b32 s{sT3}, s{sRB}, 8")
    A(f"s_add_u32 s{sT3}, s{sT3}, {FL_OA:#x}")
    A(f"s_and_b32 s{sT}, s{sW}, 1")
    A(f"s_and_b32 s{sT2}, s{sW}, 6")
    A(f"s_lshl_b32 s{sA0}, s{sT}, 15")
    A(f"s_lshl_b32 s{sT2}, s{sT2}, 10")
    A(f"s_add_u32 s{sA0}, s{sA0}, s{sT2}")
    A(f"s_lshl_b32 s{sA1}, s{sRB}, 1")
    A(f"s_add_u32 s{sA1}, s{sA1}, s{sT}")
    A(f"s_lshl_b32 s{sA1}, s{sA1}, 16")
    A(f"s_add_u32 s{sA1}, s{sA1}, s{sT2}")
    A(f"s_add_u32 s{sA1}, s{sA1}, {WS_O:#x}")
    if OPT.get("tp", "all") == "one":
        l = A.uid("tp")
        A(f"s_cmp_lg_u32 s{sW}, 4")
        A(f"s_cbranch_scc1 {l}")
        poll_flags(vT, sT3, slp=1)
        A.label(l)
        A("s_barrier")
    else:
        poll_flags(vT, sT3, slp=1)
    stamp()
    for m in range(4):
        A(f"s_add_u32 m0, s{sA0}, {m*8192}")
        if m: A(f"s_add_u32 s{sA1}, s{sA1}, 8192")
        else: A("s_nop 0")
        A(f"buffer_load_dwordx4 v{vK}, s[12:15], s{sA1} offen sc1 lds")
        A(f"buffer_load_dwordx4 v{vK}, s[12:15], s{sA1} offen offset:1024 sc1 lds")

def gen():
    k = NAME + "_kernel"
    A.raw(f".globl {k}\n.p2align 8\n.type {k},@function\n{k}:")
    A("s_cmp_ge_u32 s2, 256")
    A("s_cbranch_scc1 L_exit")
    stamp(real=True); stamp()
    if "hwmap0" in OPT:
        A("s_getreg_b32 s3, hwreg(HW_REG_HW_ID)")
        A("s_getreg_b32 s2, hwreg(HW_REG_XCC_ID)")
        A("s_and_b32 s2, s2, 7")
        A("s_bfe_u32 s4, s3, 0x30008")
        A("s_lshl_b32 s4, s4, 3")
        A("s_or_b32 s2, s2, s4")
        A("s_bfe_u32 s4, s3, 0x2000d")
        A("s_lshl_b32 s4, s4, 6")
        A("s_or_b32 s2, s2, s4")
    if "scr" in OPT:
        A("s_bfe_u32 s3, s2, 0x30003")
        A("s_xor_b32 s2, s2, s3")
    vXd, vWd, vXa, vWa = 7, 8, 9, 13
    A(f"v_lshrrev_b32 v{vT}, 6, v0")
    A(f"v_and_b32 v{vL}, 63, v0")
    A(f"v_readfirstlane_b32 s{sW}, v{vT}")
    A(f"v_lshlrev_b32 v{vT2}, 2, v{vL}")
    A(f"s_cmp_lg_u32 s{sW}, 3")
    A("s_cbranch_scc1 L_nozero")
    A(f"v_mov_b32 v{vT}, 0")
    A(f"v_add_u32 v{vT2}, {L_CNT}, v{vT2}")
    A(f"ds_write_b32 v{vT2}, v{vT}")
    A("s_waitcnt lgkmcnt(0)")
    A.label("L_nozero")
    A("s_load_dwordx16 s[44:59], s[0:1], 0")
    A("s_load_dwordx8 s[60:67], s[0:1], 64")
    A("s_memrealtime s[22:23]")
    A(f"s_and_b32 s{sHG}, s2, 1")
    A(f"s_lshl_b32 s{sHG}, s{sHG}, 2")
    if "oldmap" in OPT:
        A(f"s_bfe_u32 s{sT}, s2, 0x20003")
        A(f"s_add_u32 s{sHG}, s{sHG}, s{sT}")
        A(f"s_bfe_u32 s{sRB}, s2, 0x20001")
        A(f"s_lshl_b32 s{sRB}, s{sRB}, 3")
        A(f"s_lshr_b32 s{sT}, s2, 5")
        A(f"s_add_u32 s{sRB}, s{sRB}, s{sT}")
    else:
        A(f"s_bfe_u32 s{sT}, s2, 0x10003")
        A(f"s_add_u32 s{sHG}, s{sHG}, s{sT}")
        A(f"s_lshr_b32 s{sT}, s2, 7")
        A(f"s_lshl_b32 s{sT}, s{sT}, 1")
        A(f"s_add_u32 s{sHG}, s{sHG}, s{sT}")
        A(f"s_bfe_u32 s{sRB}, s2, 0x20001")
        A(f"s_lshl_b32 s{sRB}, s{sRB}, 3")
        A(f"s_bfe_u32 s{sT}, s2, 0x30004")
        A(f"s_add_u32 s{sRB}, s{sRB}, s{sT}")
    A(f"v_lshlrev_b32 v{vK}, 4, v{vL}")
    A("s_barrier")
    A(f"s_lshr_b32 s{sT}, s{sW}, 2")
    A(f"s_xor_b32 s{sT}, s{sT}, s{sHG}")
    A(f"s_and_b32 s{sT}, s{sT}, 1")
    A(f"s_xor_b32 s{sT}, s{sT}, 1")
    A(f"s_lshl_b32 s{sT}, s{sT}, 2")
    A(f"s_and_b32 s{sJ}, s{sW}, 3")
    A(f"s_add_u32 s{sT}, s{sT}, s{sJ}")
    A(f"s_lshl_b32 s{sT4}, s{sT}, 10")
    A(f"s_lshl_b32 s{sT}, s{sT}, 3")
    A(f"v_lshrrev_b32 v{vT}, 3, v{vL}")
    A(f"v_add_u32 v{vT}, s{sT}, v{vT}")
    A(f"v_lshrrev_b32 v{vT2}, 1, v{vT}")
    A(f"v_xor_b32 v{vT2}, v{vT2}, v{vL}")
    A(f"v_and_b32 v{vT2}, 7, v{vT2}")
    A(f"v_lshlrev_b32 v{vT2}, 4, v{vT2}")
    A(f"v_lshl_add_u32 v{vXd}, v{vT}, 10, v{vT2}")
    A(f"s_lshl_b32 s{sA0}, s{sRB}, 16")
    if ROT:
        A(f"s_and_b32 s37, s{sHG}, 2")
        A(f"s_add_u32 s37, s37, 4")
    else:
        A("s_mov_b32 s37, 0")
    if "bfirst" in OPT:
        A(f"s_cmp_lt_u32 s{sW}, 4")
        A("s_cbranch_scc1 L_ateam")
        A.raw("; @@A_BEGIN")
        A.label("L_ateam")
    else:
        A(f"s_cmp_ge_u32 s{sW}, 4")
        A("s_cbranch_scc1 L_bteam")

    sXR, sQR = 37, 54
    def dma_x_plain(kb):
        kb = [3, 0, 1, 2, 4, 5, 6, 7][kb] if "k3" in OPT else kb
        A(f"s_add_u32 m0, s{sT4}, {L_X + kb*8192 - kb*128}")
        A("s_nop 0")
        A(f"buffer_load_dwordx4 v{vXd}, s[4:7], s{sA0} offen offset:{kb*128} lds")
    def dma_x(kb):
        A(f"s_lshl_b32 s{sT2}, s{sXR}, 13")
        A(f"s_add_u32 m0, s{sT4}, s{sT2}")
        A(f"s_lshl_b32 s{sT2}, s{sXR}, 7")
        A(f"s_add_u32 s{sT2}, s{sT2}, s{sA0}")
        A(f"buffer_load_dwordx4 v{vXd}, s[4:7], s{sT2} offen lds")
        if kb < 7:
            A(f"s_add_u32 s{sXR}, s{sXR}, 1")
            A(f"s_and_b32 s{sXR}, s{sXR}, 7")

    def x_frag_addr(dst, s_off):
        A(f"v_and_b32 v{vT}, 31, v{vL}")
        A(f"v_lshrrev_b32 v{vT2}, 5, v{vL}")
        A(f"v_bfe_u32 v{vT3}, v{vL}, 1, 3")
        A(f"v_xor_b32 v{vT2}, v{vT2}, v{vT3}")
        A(f"v_lshl_add_u32 v{vT}, v{vT}, 7, s{s_off}")
        for q in range(4):
            A(f"v_xor_b32 v{vT3}, {2*q}, v{vT2}")
            A(f"v_lshl_add_u32 v{dst+q}, v{vT3}, 4, v{vT}")

    def tr_addr(dst, hmul, rowb, cgmul, s_off):
        A(f"v_lshrrev_b32 v{vT}, 5, v{vL}")
        A(f"v_bfe_u32 v{vT2}, v{vL}, 2, 2")
        A(f"v_mad_u32_u24 v{vT}, v{vT}, {hmul}, v{vT2}")
        A(f"v_and_b32 v{vT2}, 3, v{vL}")
        A(f"v_lshlrev_b32 v{vT2}, 3, v{vT2}")
        if cgmul:
            A(f"v_bfe_u32 v{vT3}, v{vL}, 4, 1")
            A(f"v_lshl_add_u32 v{vT2}, v{vT3}, {int(math.log2(cgmul))}, v{vT2}")
        A(f"v_lshl_add_u32 v{dst}, v{vT}, {int(math.log2(rowb))}, v{vT2}")
        A(f"v_add_u32 v{dst}, s{s_off}, v{dst}")

    def w128_dma_addr(dst, stride):
        A(f"v_lshrrev_b32 v{vT}, 3, v{vL}")
        if stride == 1024: A(f"v_lshlrev_b32 v{vT}, 10, v{vT}")
        else: A(f"v_mul_u32_u24 v{vT}, {stride}, v{vT}")
        A(f"v_lshrrev_b32 v{vT2}, 2, v{vL}")
        A(f"v_and_b32 v{vT2}, 4, v{vT2}")
        A(f"v_xor_b32 v{vT2}, v{vT2}, v{vL}")
        A(f"v_and_b32 v{vT2}, 7, v{vT2}")
        A(f"v_lshl_add_u32 v{dst}, v{vT2}, 4, v{vT}")

    def w128_tr_addr(dst, hmul, s_off, s_ct=None):
        A(f"v_lshrrev_b32 v{vT}, 5, v{vL}")
        A(f"v_bfe_u32 v{vT2}, v{vL}, 2, 2")
        A(f"v_mad_u32_u24 v{vT}, v{vT}, {hmul}, v{vT2}")
        A(f"v_and_b32 v{vT2}, 3, v{vL}")
        A(f"v_lshlrev_b32 v{vT2}, 3, v{vT2}")
        A(f"v_lshl_add_u32 v{vT}, v{vT}, 7, v{vT2}")
        A(f"v_bfe_u32 v{vT2}, v{vL}, 4, 1")
        A(f"v_lshl_add_u32 v{vT}, v{vT2}, 5, v{vT}")
        A(f"v_bfe_u32 v{vT2}, v{vL}, 3, 1")
        if s_ct is not None: A(f"v_xor_b32 v{vT2}, s{s_ct}, v{vT2}")
        A(f"v_lshl_add_u32 v{vT}, v{vT2}, 6, v{vT}")
        if s_off is None: A(f"v_mov_b32 v{dst}, v{vT}")
        else: A(f"v_add_u32 v{dst}, s{s_off}, v{vT}")

    def v_lane_addr():
        A(f"v_and_b32 v{vT}, 31, v{vL}")
        A(f"v_lshrrev_b32 v{vT2}, 5, v{vL}")
        A(f"v_lshlrev_b32 v{vT2}, 8, v{vT2}")
        A(f"v_lshl_add_u32 v{vV}, v{vT}, 4, v{vT2}")
        A(f"v_add_u32 v{vV}, 1024, v{vV}")
        A(f"v_mov_b32 v{vT2}, {OOB:#x}")
        A(f"v_cmp_gt_u32 s[38:39], 16, v{vT}")
        A(f"v_and_b32 v{vT}, 27, v{vT}")
        A(f"v_mov_b32 v{vT3}, 2048")
        A(f"v_cndmask_b32_e64 v{vV}, v{vT2}, v{vV}, s[38:39]")
        A(f"v_cmp_eq_u32 s[38:39], 16, v{vT}")
        A(f"v_add_u32 v{vV1}, 512, v{vV}")
        A("s_nop 0")
        A(f"v_cndmask_b32_e64 v{vV}, v{vV}, v{vT3}, s[38:39]")
        A(f"v_cndmask_b32_e64 v{vV1}, v{vV1}, v{vT3}, s[38:39]")

    def chain(s0, n, FR, ACC, kstride, second, swap):
        def rd(s):
            b = FR + 8 * (s % 4)
            A(f"ds_read_b64_tr_b16 v[{b}:{b+1}], v{vWa} offset:{s*kstride}")
            A(f"ds_read_b64_tr_b16 v[{b+2}:{b+3}], v{vWa} offset:{s*kstride+second}")
            A(f"ds_read_b128 v[{b+4}:{b+7}], v{vXa+(s&3)} offset:{(s>>2)*8192}")
        for s in range(s0, s0 + 3): rd(s)
        for s in range(s0, s0 + n):
            if s + 3 < s0 + n: rd(s + 3)
            A(f"s_waitcnt lgkmcnt({3 * (min(s + 3, s0 + n - 1) - s)})")
            b = FR + 8 * (s % 4)
            c = "0" if s == 0 else vr(ACC, 16)
            if swap: A(f"{MF} {vr(ACC,16)}, {vr(b+4,4)}, {vr(b,4)}, {c}")
            else:    A(f"{MF} {vr(ACC,16)}, {vr(b,4)}, {vr(b+4,4)}, {c}")

    R = int(OPT.get("ring", 4))
    D = int(OPT.get("depth", R - 1))
    G1 = int(OPT.get("g1", 2 * R - 1 if R == 4 else 7))
    CHK = G1 - D
    assert 0 < CHK <= R and D < R
    SL = [72, 84] + [176 + 12 * i for i in range(R - 2)]
    Q = 96; O = 112
    KT0 = 176 + 12 * (R - 2) if R == 4 else SL[R - 2]
    w128_dma_addr(vWd, 1024)
    A(f"s_lshl_b32 s{sA1}, s{sW}, 14")
    A(f"s_lshl_b32 s{sT}, s{sHG}, 7")
    A(f"s_add_u32 s{sA1}, s{sA1}, s{sT}")
    A(f"s_lshl_b32 s{sA2}, s{sW}, 11")
    A(f"s_add_u32 s{sA2}, s{sA2}, {L_WQ}")
    A("s_waitcnt lgkmcnt(0)")
    srd(4, P_X, 2048 * 1024)
    srd(8, P_WQ, 512 * 1024)
    if "cpf" in OPT:
        A(f"s_cmp_lg_u32 s{sW}, 3")
        A("s_cbranch_scc1 L_nocpf")
        A("s_getpc_b64 s[38:39]")
        A.label("L_pc")
        A(f"s_sub_u32 s38, s38, L_pc-{k}")
        A("s_subb_u32 s39, s39, 0")
        A(f"s_lshr_b32 s{sT}, s2, 3")
        A(f"v_lshlrev_b32 v{vT}, 5, v{vL}")
        A(f"v_add_u32 v{vT}, s{sT}, v{vT}")
        A(f"v_lshlrev_b32 v{vT}, 7, v{vT}")
        A(f"v_cmp_gt_u32 vcc, L_code_end-{k}, v{vT}")
        A(f"v_mov_b32 v{vT3}, s39")
        A(f"v_add_co_u32 v{vT}, s[40:41], s38, v{vT}")
        A("s_nop 1")
        A(f"v_addc_co_u32 v{vT2}, s[40:41], 0, v{vT3}, s[40:41]")
        A("s_mov_b64 exec, vcc")
        A(f"global_load_dword v254, v[{vT}:{vT2}], off")
        A("s_mov_b64 exec, -1")
        A.label("L_nocpf")
    if ROT: A(f"s_and_b32 s{sQR}, s{sRB}, 7")
    else: A(f"s_mov_b32 s{sQR}, 0")
    if "pf0" in OPT:
        A(f"s_lshr_b32 s{sT}, s2, 3")
        A(f"s_cmp_ge_u32 s{sW}, 2")
        A("s_cbranch_scc1 L_a_pfq")
        A(f"s_bfe_u32 s{sT2}, s2, 0x20001")
        A(f"s_lshl_b32 s{sT2}, s{sT2}, 19")
        A(f"s_lshl_b32 s{sT}, s{sT}, 14")
        A(f"s_add_u32 s{sT2}, s{sT2}, s{sT}")
        A(f"s_lshl_b32 s{sT}, s{sW}, 13")
        A(f"s_add_u32 s{sT2}, s{sT2}, s{sT}")
        A(f"v_lshlrev_b32 v{vT}, 7, v{vL}")
        A(f"buffer_load_dword v254, v{vT}, s[4:7], s{sT2} offen sc1")
        A("s_branch L_a_pfd")
        A.label("L_a_pfq")
        A(f"s_cmp_eq_u32 s{sW}, 3")
        A("s_cbranch_scc1 L_a_pfd")
        A(f"s_and_b32 s{sT2}, s2, 1")
        A(f"s_lshl_b32 s{sT2}, s{sT2}, 9")
        A(f"s_lshl_b32 s{sT}, s{sT}, 14")
        A(f"s_add_u32 s{sT2}, s{sT2}, s{sT}")
        A(f"v_lshrrev_b32 v{vT}, 2, v{vL}")
        A(f"v_lshlrev_b32 v{vT}, 10, v{vT}")
        A(f"v_and_b32 v{vT2}, 3, v{vL}")
        A(f"v_lshl_add_u32 v{vT}, v{vT2}, 7, v{vT}")
        A(f"buffer_load_dword v254, v{vT}, s[8:11], s{sT2} offen sc1")
        A.label("L_a_pfd")
    sRI = 55
    def a_setup():
        srd(12, P_WS, WS_SIZE)
        A(f"s_and_b32 s{sRI}, s{sW}, 1")
        A(f"s_lshl_b32 s{sT2}, s{sRI}, 12")
        x_frag_addr(vXa, sT2)
        A(f"s_lshr_b32 s{sJ}, s{sW}, 1")
        A(f"s_mov_b32 s{sT2}, {L_WQ}")
        w128_tr_addr(vWa, 8, sT2, sJ)
        v_lane_addr()
        for q in range(4):
            for r in range(0, 10, 2): A(f"v_pk_mov_b32 v[{O+16*q+r}:{O+16*q+r+1}], 0, 0")
    if OPT.get("alate", "1") == "1": a_setup()
    for kb in range(8):
        dma_x(kb)
        A(f"s_lshl_b32 s{sT2}, s{sQR}, 13")
        A(f"s_add_u32 m0, s{sA2}, s{sT2}")
        A(f"s_lshl_b32 s{sT2}, s{sQR}, 16")
        A(f"s_add_u32 s{sT2}, s{sT2}, s{sA1}")
        A(f"buffer_load_dwordx4 v{vWd}, s[8:11], s{sT2} offen lds")
        A(f"s_add_u32 m0, m0, 1024")
        A(f"s_add_u32 s{sT2}, s{sT2}, 8192")
        A(f"buffer_load_dwordx4 v{vWd}, s[8:11], s{sT2} offen lds")
        if kb < 7:
            A(f"s_add_u32 s{sQR}, s{sQR}, 1")
            A(f"s_and_b32 s{sQR}, s{sQR}, 7")
    stamp()
    if OPT.get("alate", "1") != "1": a_setup()
    A("s_waitcnt vmcnt(0)")
    team_add(5)
    team_wait(5, 8, 1)
    stamp()
    chain(0, 32, 200, S0, 2048, 512, False)
    stamp()
    A(f"s_mov_b32 s{sT2}, {f2u(CSCALE):#x}")
    A(f"s_lshl_b32 s{sT3}, s{sRI}, 12")
    A(f"s_lshl_b32 s{sT4}, s{sJ}, 11")
    A(f"s_add_u32 s{sT4}, s{sT4}, s{sT3}")
    A(f"s_add_u32 s{sT4}, s{sT4}, {L_QX}")
    A(f"s_add_u32 s{sT3}, s{sT3}, {L_QX}")
    A(f"v_add_u32 v{vT}, s{sT4}, v{vK}")
    A(f"v_add_u32 v{vT3}, s{sT3}, v{vK}")
    sKB, sKE = 37, 54
    A(f"s_mul_i32 s{sKB}, s{sJ}, {32*TB}")
    A(f"s_add_u32 s{sKE}, s{sKB}, {32*TB}")
    A(f"s_mul_i32 s{sA0}, s{sRB}, {TB}")
    A(f"s_add_u32 s{sKV}, s{sKB}, s{sA0}")
    for r in range(0, 4, 2): A(f"v_pk_mov_b32 v[{SL[R-1]+8+r}:{SL[R-1]+9+r}], 0, 0")
    assert D < R - 1 or R == 4
    A(f"v_mov_b32 v{vIDX}, 0xdddddddd")
    A("s_nop 0")
    for r in range(16): A(f"v_mul_f32 v{S0+r}, s{sT2}, v{S0+r}")
    for r in range(8): A(f"v_cvt_pk_bf16_f32 v{S1+r}, v{S0+2*r}, v{S0+2*r+1}")
    A(f"ds_write_b128 v{vT}, {vr(S1,4)}")
    A(f"ds_write_b128 v{vT}, {vr(S1+4,4)} offset:1024")
    A("s_waitcnt lgkmcnt(0)")
    team_add(6)
    stamp()
    team_wait(6, 5, 1)
    stamp()
    for q in range(4): A(f"ds_read_b128 {vr(Q+4*q,4)}, v{vT3} offset:{q*1024}")
    A(f"v_mov_b32 v{vT3}, {L_CNT + 64}")
    A(f"ds_read_b32 v{vT3}, v{vT3}")
    def kv_load(slot, part):
        b = SL[slot]
        if part == 0: return f"buffer_load_dwordx4 {vr(b,4)}, v{vK}, s[12:15], s{sKV} offen sc1"
        if part == 1: return f"buffer_load_dwordx4 {vr(b+4,4)}, v{vV}, s[12:15], s{sKV} offen sc1"
        return f"buffer_load_dwordx4 {vr(b+8,4)}, v{vV1}, s[12:15], s{sKV} offen sc1"
    KADV = [f"s_add_u32 s{sKV}, s{sKV}, {TB}", f"s_cmp_eq_u32 s{sKV}, s{sKE}", f"s_cselect_b32 s{sKV}, s{sKB}, s{sKV}"]
    A(f"buffer_load_dwordx4 {vr(KT0,4)}, v{vK}, s[12:15], s{sA0} offen sc1")
    for t in range(D):
        for part in range(3): A(kv_load(t, part))
        for x in KADV: A(x)
    A(f"s_mov_b32 s{sCnt}, {32 // R - 1}")
    A("s_mov_b64 vcc, -1")
    A("s_waitcnt lgkmcnt(0)")
    team_add(7)
    A(f"v_readfirstlane_b32 s{sNON}, v{vT3}")
    A(f"s_waitcnt vmcnt({3*D})")
    T0 = [S0, S1, KT0 + 4, KT0 + 20] if R == 4 else [S0, S1, O + 32, O + 48]
    for q in range(4): A(f"{MF} {vr(T0[q],16)}, {vr(KT0,4)}, {vr(Q+4*q,4)}, 0")
    A("s_nop 7")
    A("s_nop 0")
    lane_max_all([T0[q] + r for q in range(4) for r in range(8)], vT, vT2)
    A(f"v_sub_f32 v{NEG}, 0, v{vT}")
    A(f"v_sub_f32 v{NEG+1}, 0, v{vT}")
    for r in range(2, 16, 2): A(f"v_pk_mov_b32 v[{NEG+r}:{NEG+r+1}], v[{NEG}:{NEG+1}], v[{NEG}:{NEG+1}] op_sel:[0,1]")
    A(f"s_waitcnt vmcnt({3*(D-1)})")
    A("s_nop 0")
    A(f"{MF} {vr(S0,16)}, {vr(SL[0],4)}, {vr(Q,4)}, {vr(NEG,16)}")
    if R == 4:
        A("s_nop 7")
        A("s_nop 3")
    else:
        for q in (2, 3):
            for r in range(0, 10, 2): A(f"v_pk_mov_b32 v[{O+16*q+r}:{O+16*q+r+1}], 0, 0")
        A("s_nop 1")
    stamp()
    if PROF: A("s_memtime s[68:69]")
    A.raw(".p2align 6")
    A.label("L_aloop")
    if PROF:
        A("s_waitcnt lgkmcnt(0)")
        A(f"s_add_u32 m0, s{sCnt}, 1")
        A("s_nop 0")
        A(f"v_writelane_b32 v255, s68, m0")
        A("s_memtime s[68:69]")
    for kb in range(R):
        for q in range(4):
            Sc, Sn = (S0, S1) if q % 2 == 0 else (S1, S0)
            cur, prv, nxt = SL[kb], SL[(kb - 1) % R], SL[(kb + 1) % R]
            Kq = cur if q < 3 else nxt
            nq = (q + 1) % 4
            Vp = cur if q > 0 else prv
            Op = O + 16 * ((q - 1) % 4); Oc = O + 16 * q
            ex = {}
            if q < 3: ex["X2"] = kv_load((kb + D) % R, q)
            if q == 0 and kb == CHK:
                ex["X1"] = "s_cbranch_vccnz L_afirst\nL_afirst_ret:"
            if q == 2: ex["X4"] = KADV[0]
            if q == 3:
                ex["X1"] = f"s_waitcnt vmcnt({3*(D-1)})"
                ex["X2"] = KADV[1]
                ex["X4"] = KADV[2]
                if kb == R - 1: ex["X4"] += f"\ns_sub_u32 s{sCnt}, s{sCnt}, 1"
            if "noload" in OPT.get("abl", ""):
                for x in ("X0", "X1", "X2", "X3", "X4"): ex.pop(x, None)
            if "nosalu" in OPT.get("abl", ""):
                for x in ("X1", "X2"): ex.pop(x, None)
            tile_code(Sc, f"{MF} {vr(Sn,16)}, {vr(Kq,4)}, {vr(Q+4*nq,4)}, {vr(NEG,16)}",
                      pv(Op, Vp + 8, Sn + 8), pv(Oc, cur + 4, Sc), ex)
    if CHK == R:
        A("s_cbranch_vccnz L_afirst")
    A("s_cbranch_scc0 L_aloop")
    A("s_nop 0")
    A(pv(O + 48, SL[R-1] + 8, S1 + 8))
    stamp()
    A(f"s_mul_i32 s{sT}, s{sW}, 4608")
    A(f"s_add_u32 s{sT}, s{sT}, {L_COMB}")
    A(f"s_xor_b32 s{sT2}, s{sW}, 2")
    A(f"s_mul_i32 s{sT2}, s{sT2}, 4608")
    A(f"s_add_u32 s{sT2}, s{sT2}, {L_COMB}")
    A(f"v_add_u32 v{vT}, s{sT}, v{vK}")
    A(f"v_lshlrev_b32 v{vT3}, 2, v{vL}")
    A(f"v_add_u32 v{vT2}, s{sT}, v{vT3}")
    A(f"v_add_u32 v7, s{sT2}, v{vK}")
    A(f"v_add_u32 v8, s{sT2}, v{vT3}")
    A(f"s_cmp_eq_u32 s{sJ}, 0")
    A("s_cbranch_scc1 L_a_kh0")
    for i in range(2):
        A(f"ds_write_b128 v{vT}, {vr(O+16*i,4)} offset:{i*2304}")
        A(f"ds_write_b128 v{vT}, {vr(O+16*i+4,4)} offset:{i*2304+1024}")
        A(f"ds_write_b32 v{vT2}, v{O+16*i+8} offset:{i*2304+2048}")
    for r in range(0, 8, 2): A(f"v_pk_mov_b32 v[{Q+r}:{Q+r+1}], v[{Q+8+r}:{Q+9+r}], v[{Q+8+r}:{Q+9+r}] op_sel:[0,1]")
    A("s_waitcnt lgkmcnt(0)")
    A("s_nop 2")
    for i in range(2):
        for r in range(0, 10, 2): A(f"v_pk_mov_b32 v[{O+16*i+r}:{O+16*i+r+1}], v[{O+32+16*i+r}:{O+33+16*i+r}], v[{O+32+16*i+r}:{O+33+16*i+r}] op_sel:[0,1]")
    A("s_branch L_a_x")
    A.label("L_a_kh0")
    A("s_nop 7")
    for i in range(2):
        A(f"ds_write_b128 v{vT}, {vr(O+32+16*i,4)} offset:{i*2304}")
        A(f"ds_write_b128 v{vT}, {vr(O+32+16*i+4,4)} offset:{i*2304+1024}")
        A(f"ds_write_b32 v{vT2}, v{O+32+16*i+8} offset:{i*2304+2048}")
    A.label("L_a_x")
    A("s_waitcnt vmcnt(0) lgkmcnt(0)")
    A("s_barrier")
    for i in range(2):
        A(f"ds_read_b128 {vr(S0+16*i,4)}, v7 offset:{i*2304}")
        A(f"ds_read_b128 {vr(S0+16*i+4,4)}, v7 offset:{i*2304+1024}")
        A(f"ds_read_b32 v{S0+16*i+8}, v8 offset:{i*2304+2048}")
    A(f"s_and_b32 s{sT4}, s{sW}, 1")
    A(f"s_lshl_b32 s{sA2}, s{sRB}, 1")
    A(f"s_add_u32 s{sA2}, s{sA2}, s{sT4}")
    A(f"s_lshl_b32 s{sA2}, s{sA2}, 6")
    A(f"s_lshl_b32 s{sT4}, s{sHG}, 2")
    A(f"s_add_u32 s{sA2}, s{sA2}, s{sT4}")
    A(f"s_lshl_b32 s{sT4}, s{sJ}, 1")
    A(f"s_add_u32 s{sA2}, s{sA2}, s{sT4}")
    A(f"s_lshl_b32 s{sA2}, s{sA2}, 10")
    A(f"s_add_u32 s{sA2}, s{sA2}, {WS_O:#x}")
    A(f"s_mov_b32 s{sKV}, 0")
    A(f"s_mov_b32 s{sCnt}, 64")
    A("s_waitcnt lgkmcnt(0)")
    for i in range(2):
        for r in range(9): A(f"v_add_f32 v{O+16*i+r}, v{O+16*i+r}, v{S0+16*i+r}")
    for i in range(2):
        range_check(O + 16 * i, f"L_a_slow{i}")
        A.label(f"L_a_ok{i}")
        normalize_store(O + 16 * i, P + 4 * i, sA2)
        if i == 0: A(f"s_add_u32 s{sA2}, s{sA2}, 1024")
    A("s_waitcnt vmcnt(0)")
    stamp()
    A("s_barrier")
    tail_dma()
    for m in range(4):
        A(f"s_waitcnt vmcnt({2*(3-m)})")
        A("s_barrier")
    if PROF:
        A("s_lshl_b32 s68, s2, 2")
        A(f"s_add_u32 s68, s68, s{sW}")
        A("s_lshl_b32 s68, s68, 8")
        A(f"s_add_u32 s68, s68, {WS_PROF + 0x80000:#x}")
        A(f"v_lshlrev_b32 v248, 2, v{vL}")
        A("buffer_store_dword v255, v248, s[12:15], s68 offen")
    stamp_flush()
    A("s_endpgm")
    A.label("L_afirst")
    team_wait(9, 1, 1)
    A("s_mov_b64 vcc, 0")
    A("s_branch L_aloop" if CHK == R else "s_branch L_afirst_ret")
    for i in range(2):
        slow_path(f"L_a_slow{i}", f"L_a_ok{i}", Q + 4 * i, O + 16 * i, sKV, sCnt, TB, False, SL[0], SL[0] + 4, None)

    NST[0] = 2
    if "bfirst" in OPT: A.raw("; @@A_END")
    A.label("L_bteam")
    A(f"s_setprio {OPT.get('bprio', 2)}")
    A(f"s_lshl_b32 s{sA2}, s{sJ}, 10")
    A("s_mov_b32 s6, 0x200000")
    A("s_mov_b32 s7, 0x00020000")
    A(f"s_bitcmp0_b32 s{sHG}, 1")
    A("s_cselect_b32 s42, 16384, 0")
    A("s_mov_b32 s43, 0x00020000")
    A(f"s_or_b32 s{sT3}, s2, s{sJ}")
    A(f"s_cmp_lt_u32 s{sHG}, 4")
    A("s_waitcnt lgkmcnt(0)")
    A(f"s_cselect_b32 s40, s{P_WK}, s{P_WV}")
    A(f"s_cselect_b32 s41, s{P_WK+1}, s{P_WV+1}")
    A(f"s_mov_b32 s4, s{P_X}")
    A(f"s_and_b32 s5, s{P_X+1}, 0xffff")
    A("s_and_b32 s41, s41, 0xffff")
    for kb in range(8):
        dma_x_plain(kb)
        if kb % 2 == 0:
            A(f"s_add_u32 m0, s{sA2}, {L_WKV + kb*2048}")
            A(f"s_add_u32 s{sT}, s{sA2}, {kb*2048}")
            A(f"buffer_load_dwordx4 v{vK}, s[40:43], s{sT} offen lds")
    A(f"s_or_b32 s{sT2}, s22, 1")
    srd(20, P_DBG, 256)
    srd(12, P_WS, WS_SIZE)
    A(f"s_cmp_lg_u32 s{sT3}, 1")
    A("s_cbranch_scc1 L_b_nononce")
    A(f"s_cmp_lg_u32 s2, 0")
    A("s_cbranch_scc1 L_b_nononce")
    A(f"v_mov_b32 v{vT}, s{sT2}")
    A(f"v_mov_b32 v{vT2}, 0")
    A("s_mov_b64 exec, 1")
    A(f"buffer_store_dword v{vT}, v{vT2}, s[20:23], 0 offen sc1")
    A("s_mov_b64 exec, -1")
    A.label("L_b_nononce")
    if "notouch" not in OPT:
        A(f"s_cmp_lg_u32 s{sJ}, 3")
        A("s_cbranch_scc1 L_b_notouch")
        A(f"v_lshlrev_b32 v{vT}, 21, v{vL}")
        if "touchfl" in OPT:
            A(f"s_lshl_b32 s{sT2}, s2, 7")
            A(f"s_add_u32 s{sT2}, s{sT2}, {WS_FL - 2048:#x}")
            A(f"v_writelane_b32 v{vT}, s{sT2}, 5")
            A("s_mov_b64 exec, 0x3f")
        else:
            A("s_mov_b64 exec, 0x1f")
        A(f"buffer_load_dword v254, v{vT}, s[12:15], 0 offen offset:2048 sc1")
        A("s_mov_b64 exec, -1")
        A.label("L_b_notouch")
    stamp()
    A(f"s_and_b32 s{sT4}, s{sHG}, 1")
    A(f"s_lshl_b32 s{sT2}, s{sT4}, 12")
    x_frag_addr(vXa, sT2)
    A(f"s_mov_b32 s{sT2}, {L_WKV}")
    tr_addr(vWa, 8, 32, 0, sT2)
    v_lane_addr()
    vN = 14
    A(f"v_mov_b32 v{vN+1}, 0")
    def nonce_load(): A(f"buffer_load_dword v{vN}, v{vN+1}, s[20:23], 0 offen sc1")
    def nonce_wait():
        l = A.uid("nw"); d = A.uid("nwd")
        A(f"s_mov_b32 s{sSP}, {SPIN}")
        A.label(l)
        A("s_waitcnt vmcnt(0)")
        A(f"v_readfirstlane_b32 s{sNON}, v{vN}")
        A("s_nop 1")
        A(f"s_cmp_lg_u32 s{sNON}, 0")
        A(f"s_cbranch_scc1 {d}")
        A(f"s_sub_u32 s{sSP}, s{sSP}, 1")
        A(f"s_cbranch_scc1 {d}")
        nonce_load()
        A(f"s_branch {l}")
        A.label(d)
    ACC = 16
    A(f"s_lshl_b32 s{sRT0}, s{sRB}, 1")
    A(f"s_add_u32 s{sA0}, s{sRT0}, s{sT4}")
    A(f"s_mul_i32 s{sA0}, s{sA0}, {TB}")
    A(f"s_lshl_b32 s{sA1}, s{sRB}, 2")
    A(f"s_add_u32 s{sA1}, s{sA1}, s{sT4}")
    A(f"s_lshr_b32 s{sT2}, s{sHG}, 2")
    A(f"s_lshl_b32 s{sT2}, s{sT2}, 1")
    A(f"s_add_u32 s{sA1}, s{sA1}, s{sT2}")
    A(f"s_lshl_b32 s{sA1}, s{sA1}, {3 if 'dense' in OPT else 5}")
    A(f"s_add_u32 s{sA1}, s{sA1}, {FL_KVA:#x}")
    A("s_waitcnt vmcnt(6)")
    kstamp()
    ksv = NST[0]
    team_add(4)
    A(f"s_cmp_lg_u32 s{sJ}, 0")
    A("s_cbranch_scc1 L_b_idle")
    A(f"s_bitcmp1_b32 s{sHG}, 1")
    A("s_cbranch_scc1 L_b_idle")
    def kv_unit(swap):
        NST[0] = ksv
        team_wait(4, 4, 1)
        kstamp()
        chain(0, 16, 64, ACC, 512, 128, swap)
        kstamp()
        A("s_waitcnt vmcnt(0)")
        kstamp()
        nonce_load()
        team_add(5)
        team_add(8)
        team_wait(8, 4, 1)
        kstamp()
        chain(16, 16, 64, ACC, 512, 128, swap)
        kstamp()
    A(f"s_cmp_ge_u32 s{sHG}, 4")
    A("s_cbranch_scc1 L_b_vunit")
    kv_unit(False)
    A("s_nop 7")
    A("s_nop 3")
    for r in range(4): A(f"v_cvt_pk_bf16_f32 v{64+r}, v{ACC+2*r}, v{ACC+2*r+1}")
    A(f"buffer_store_dwordx4 {vr(64,4)}, v{vK}, s[12:15], s{sA0} offen sc1")
    A("s_branch L_b_kvpub")
    A.label("L_b_vunit")
    A(f"v_lshrrev_b32 v{vT2}, 5, v{vL}")
    A(f"v_lshlrev_b32 v7, 8, v{vT2}")
    A(f"v_and_b32 v{vT2}, 15, v{vL}")
    A(f"v_lshl_add_u32 v7, v{vT2}, 4, v7")
    A(f"v_bfe_u32 v{vT2}, v{vL}, 4, 1")
    A(f"v_lshl_add_u32 v7, v{vT2}, 30, v7")
    A(f"v_cmp_gt_u32 s[38:39], 8, v{vL}")
    A(f"v_mov_b32 v{vT2}, {OOB:#x}")
    for r in range(4): A(f"v_mov_b32 v{100+r}, {ONES:#x}")
    A(f"v_cndmask_b32_e64 v8, v{vT2}, v{vK}, s[38:39]")
    A(f"buffer_store_dwordx4 {vr(100,4)}, v8, s[12:15], s{sA0} offen offset:2048 sc1")
    kv_unit(True)
    A("s_nop 7")
    A("s_nop 3")
    for s in range(2):
        for r in range(4): A(f"v_cvt_pk_bf16_f32 v{64+4*s+r}, v{ACC+8*s+2*r}, v{ACC+8*s+2*r+1}")
        A("s_nop 1")
        A(f"v_permlane32_swap_b32 v{64+4*s}, v{66+4*s}")
        A(f"v_permlane32_swap_b32 v{65+4*s}, v{67+4*s}")
        A(f"buffer_store_dwordx4 {vr(64+4*s,4)}, v7, s[12:15], s{sA0} offen offset:{1024+s*512} sc1")
    A.label("L_b_kvpub")
    nonce_wait()
    kstamp()
    flag_store(sA1)
    A("s_branch L_b_pdone")
    A.label("L_b_idle")
    if KVP:
        NST[0] = ksv
        for _ in range(6): kstamp()
    A(f"s_cmp_eq_u32 s{sJ}, 3")
    A("s_cbranch_scc1 L_b_idle1")
    A("s_waitcnt vmcnt(0)")
    A.label("L_b_idle1")
    A("s_waitcnt vmcnt(1)")
    nonce_load()
    team_add(5)
    team_add(8)
    nonce_wait()
    A(f"v_mov_b32 v{vT}, {L_CNT + 64}")
    A(f"ds_write_b32 v{vT}, v{vN}")
    A.label("L_b_pdone")
    stamp()
    if KVP: STOFF[0] = True
    srd(8, P_WQKV, 512 * 3072)
    srd(40, P_GATE, 1024)
    A(f"s_mov_b32 m0, {L_GATE}")
    A(f"s_lshl_b32 s{sHEAD}, s{sHG}, 2")
    A(f"buffer_load_dwordx4 v{vK}, s[40:43], 0 offen lds")
    A(f"s_add_u32 s{sHEAD}, s{sHEAD}, s{sJ}")
    vD1, vX0, vW1, vW2, vG = 7, 9, 13, 8, 15
    w128_dma_addr(vD1, 3072)
    A(f"s_lshl_b32 s{sA0}, s{sJ}, 10")
    A(f"s_lshl_b32 s{sT2}, s{sHG}, 7")
    A(f"s_add_u32 s{sA0}, s{sA0}, s{sT2}")
    A(f"s_lshl_b32 s{sA1}, s{sJ}, 14")
    A(f"s_add_u32 s{sA1}, s{sA1}, {L_WQ}")
    sP3W = 37
    A(f"s_add_u32 s{sP3W}, s{sA0}, {512*3072}")
    if ROT:
        A(f"s_and_b32 s{sT3}, s{sRB}, 3")
        A(f"s_cmp_eq_u32 s{sJ}, 3")
        A(f"s_cselect_b32 s{sT3}, 0, s{sT3}")
        A(f"s_lshl_b32 s{sT2}, s{sT3}, 14")
        A(f"s_mul_i32 s{sT3}, s{sT3}, {128*3072}")
        A(f"s_add_u32 s{sA0}, s{sA0}, s{sT3}")
    else:
        A(f"s_mov_b32 s{sT2}, 0")
    x_frag_addr(vX0, sT2)
    w128_tr_addr(vW1, 8, sA1)
    A(f"v_xor_b32 v{vW2}, 64, v{vW1}")
    AC, FR = 16, 80
    for r in range(0, 64, 2): A(f"v_pk_mov_b32 v[{AC+r}:{AC+r+1}], 0, 0")
    A(f"s_mov_b32 s{sCnt}, 4")
    A(f"s_cmp_eq_u32 s{sJ}, 3")
    A("s_cbranch_scc1 L_b_gwave")
    if "p3early" in OPT: team_wait(6, 4, 1)
    else: team_wait(7, 4, 2)
    stamp()
    if "nob" in OPT: A("s_branch L_b_skip")
    if "pf" in OPT:
        A(f"s_lshr_b32 s{sT}, s2, 3")
        A(f"s_and_b32 s{sT3}, s2, 1")
        A(f"s_lshl_b32 s{sT3}, s{sT3}, 9")
        A(f"s_mul_i32 s{sT2}, s{sT}, {16*3072}")
        A(f"s_add_u32 s{sT2}, s{sT2}, s{sT3}")
        A(f"s_lshl_b32 s{sT4}, s{sJ}, 10")
        A(f"s_add_u32 s{sT2}, s{sT2}, s{sT4}")
        A(f"v_lshrrev_b32 v{vT}, 2, v{vL}")
        A(f"v_and_b32 v{vT2}, 3, v{vL}")
        A(f"v_lshlrev_b32 v{vT2}, 7, v{vT2}")
        A(f"v_lshl_add_u32 v{vT3}, v{vT}, 10, v{vT2}")
        A(f"v_mul_u32_u24 v{vT}, 3072, v{vT}")
        A(f"v_add_u32 v{vT}, v{vT}, v{vT2}")
        A(f"buffer_load_dword v254, v{vT}, s[8:11], s{sT2} offen sc1")
        A(f"s_cmp_eq_u32 s{sJ}, 2")
        A("s_cbranch_scc1 L_b_nopf")
        A(f"s_cmp_eq_u32 s{sJ}, 0")
        A(f"s_cselect_b32 s40, s{P_BWO}, s{P_AWO}")
        A(f"s_cselect_b32 s41, s{P_BWO+1}, s{P_AWO+1}")
        A("s_and_b32 s41, s41, 0xffff")
        A(f"s_mov_b32 s42, {512*1024:#x}")
        A(f"s_lshl_b32 s{sT2}, s{sT}, 14")
        A(f"s_add_u32 s{sT2}, s{sT2}, s{sT3}")
        A(f"buffer_load_dword v254, v{vT3}, s[40:43], s{sT2} offen sc1")
        A.label("L_b_nopf")
    def p3_dma(slot):
        A(f"s_add_u32 m0, s{sA1}, {slot*2048}")
        A(f"s_add_u32 s{sT2}, s{sA0}, {8*3072}")
        A(f"buffer_load_dwordx4 v{vD1}, s[8:11], s{sA0} offen lds")
        A(f"s_add_u32 m0, s{sA1}, {slot*2048+1024}")
        A(f"s_add_u32 s{sA0}, s{sA0}, {16*3072}")
        A(f"buffer_load_dwordx4 v{vD1}, s[8:11], s{sT2} offen lds")
    def p3_wrap():
        A(f"s_cmp_ge_u32 s{sA0}, s{sP3W}")
        A(f"s_cselect_b32 s{sT2}, {512*3072}, 0")
        A(f"s_sub_u32 s{sA0}, s{sA0}, s{sT2}")
    def p3_rd(i):
        if "nop3rd" in OPT.get("abl", ""): return
        b = FR + 16 * (i & 1); sl = (i % 8) * 2048
        if i == 8:
            for q in range(4):
                A(f"v_add_u32 v{vX0+q}, 16384, v{vX0+q}")
                A(f"v_and_b32 v{vX0+q}, 0xffff, v{vX0+q}")
        A(f"ds_read_b64_tr_b16 v[{b}:{b+1}], v{vW1} offset:{sl}")
        A(f"ds_read_b64_tr_b16 v[{b+2}:{b+3}], v{vW1} offset:{sl+512}")
        A(f"ds_read_b128 v[{b+8}:{b+11}], v{vX0+(i&3)} offset:{((i%8)>>2)*8192}")
        A(f"ds_read_b128 v[{b+12}:{b+15}], v{vX0+(i&3)} offset:{((i%8)>>2)*8192+4096}")
        A(f"ds_read_b64_tr_b16 v[{b+4}:{b+5}], v{vW2} offset:{sl}")
        A(f"ds_read_b64_tr_b16 v[{b+6}:{b+7}], v{vW2} offset:{sl+512}")
    LA = int(OPT.get("p3d", 8))
    for s in range(LA): p3_dma(s)
    if OPT.get("il") != "2":
        A(f"s_waitcnt vmcnt({2*LA-2})")
        p3_rd(0)
    def p3_loop_il(name, swap):
        A.label(name)
        for i in range(8):
            b = FR + 16 * (i & 1)
            mark = len(A.lines); p3_rd(i + 1); rd = A.lines[mark:]; del A.lines[mark:]
            pre = [l for l in rd if "ds_read" not in l]; rd = [l for l in rd if "ds_read" in l]
            mf = []
            for ct in range(2):
                for ri in range(2):
                    a = AC + 16 * (2 * ct + ri); wv, xv = vr(b + 4 * ct, 4), vr(b + 8 + 4 * ri, 4)
                    mf.append(f"{MF} {vr(a,16)}, {xv if swap else wv}, {wv if swap else xv}, {vr(a,16)}")
            A("s_waitcnt lgkmcnt(0)")
            A(mf[0])
            if i == (8 - LA) % 8:
                p3_wrap()
                A(f"s_cmp_eq_u32 s{sCnt}, 1")
                A(f"s_cselect_b32 s{sA0}, {OOB:#x}, s{sA0}")
            p3_dma((i + LA) % 8)
            A(mf[1])
            for l in pre: A(l)
            A(f"s_waitcnt vmcnt({2*LA-2})")
            for l in rd[:3]: A(l)
            if PACE: A(f"s_nop {PACE-1}")
            A(mf[2])
            for l in rd[3:]: A(l)
            if PACE: A(f"s_nop {PACE-1}")
            A(mf[3])
        A(f"s_sub_u32 s{sCnt}, s{sCnt}, 1")
        A(f"s_cmp_lg_u32 s{sCnt}, 0")
        A(f"s_cbranch_scc1 {name}")
    def p3_loop_jit(name, swap):
        A.label(name)
        b = FR
        def mf(ct, ri):
            a = AC + 16 * (2 * ct + ri); wv, xv = vr(b + 4 * ct, 4), vr(b + 8 + 4 * ri, 4)
            if "nop3mf" not in OPT.get("abl", ""): A(f"{MF} {vr(a,16)}, {xv if swap else wv}, {wv if swap else xv}, {vr(a,16)}")
        for i in range(8):
            sl = i * 2048; xo = (i >> 2) * 8192
            A(f"s_waitcnt vmcnt({2*LA-2})")
            A(f"ds_read_b64_tr_b16 v[{b}:{b+1}], v{vW1} offset:{sl}")
            A(f"ds_read_b64_tr_b16 v[{b+2}:{b+3}], v{vW1} offset:{sl+512}")
            A(f"ds_read_b128 v[{b+8}:{b+11}], v{vX0+(i&3)} offset:{xo}")
            A("s_waitcnt lgkmcnt(0)")
            mf(0, 0)
            A(f"ds_read_b128 v[{b+12}:{b+15}], v{vX0+(i&3)} offset:{xo+4096}")
            A("s_waitcnt lgkmcnt(0)")
            mf(0, 1)
            A(f"ds_read_b64_tr_b16 v[{b+4}:{b+5}], v{vW2} offset:{sl}")
            A(f"ds_read_b64_tr_b16 v[{b+6}:{b+7}], v{vW2} offset:{sl+512}")
            A("s_waitcnt lgkmcnt(0)")
            mf(1, 1)
            if i == (8 - LA) % 8:
                p3_wrap()
                A(f"s_cmp_eq_u32 s{sCnt}, 1")
                A(f"s_cselect_b32 s{sA0}, {OOB:#x}, s{sA0}")
            p3_dma((i + LA) % 8)
            mf(1, 0)
        for q in range(4):
            A(f"v_add_u32 v{vX0+q}, 16384, v{vX0+q}")
            A(f"v_and_b32 v{vX0+q}, 0xffff, v{vX0+q}")
        A(f"s_sub_u32 s{sCnt}, s{sCnt}, 1")
        A(f"s_cmp_lg_u32 s{sCnt}, 0")
        A(f"s_cbranch_scc1 {name}")
    def p3_loop(name, swap):
        if OPT.get("il") == "2": return p3_loop_jit(name, swap)
        if OPT.get("il") == "1": return p3_loop_il(name, swap)
        A.label(name)
        for i in range(8):
            A(f"s_waitcnt vmcnt({2*LA-4})")
            p3_rd(i + 1)
            if i == (8 - LA) % 8:
                p3_wrap()
                A(f"s_cmp_eq_u32 s{sCnt}, 1")
                A(f"s_cselect_b32 s{sA0}, {OOB:#x}, s{sA0}")
            A("s_waitcnt lgkmcnt(6)")
            b = FR + 16 * (i & 1)
            n = 0
            for ct in range(2):
                for ri in range(2):
                    a = AC + 16 * (2 * ct + ri); wv, xv = vr(b + 4 * ct, 4), vr(b + 8 + 4 * ri, 4)
                    if "nop3mf" not in OPT.get("abl", ""): A(f"{MF} {vr(a,16)}, {xv if swap else wv}, {wv if swap else xv}, {vr(a,16)}")
                    if n == 0: p3_dma((i + LA) % 8)
                    elif PACE: A(f"s_nop {PACE-1}")
                    n += 1
        A(f"s_sub_u32 s{sCnt}, s{sCnt}, 1")
        A(f"s_cmp_lg_u32 s{sCnt}, 0")
        A(f"s_cbranch_scc1 {name}")
    PACE = int(OPT.get("pace", 0))
    A(f"s_cmp_eq_u32 s{sJ}, 2")
    A("s_cbranch_scc1 L_p3v")
    p3_loop("L_p3qk", False)
    svst = NST[0]
    stamp()
    A(f"s_lshl_b32 s{sKV}, s{sHG}, 8")
    A(f"s_add_u32 s{sKV}, s{sKV}, s{sRT0}")
    A(f"s_mul_i32 s{sKV}, s{sKV}, {TB}")
    A(f"s_add_u32 s{sKV}, s{sKV}, {WS_KVB:#x}")
    A(f"s_mov_b32 s{sT2}, {f2u(CSCALE):#x}")
    A(f"v_add_u32 v{vT3}, {L_QX}, v{vK}")
    A("s_waitcnt lgkmcnt(0)")
    A(f"s_cmp_eq_u32 s{sJ}, 1")
    A("s_cbranch_scc1 L_p3k")
    team_wait(7, 4, 2)
    for ct in range(2):
        for ri in range(2):
            for hh in range(2):
                a = AC + 16 * (2 * ct + ri) + 8 * hh; p = FR + 4 * ((2 * ri + hh) & 3)
                for r in range(8): A(f"v_mul_f32 v{a+r}, s{sT2}, v{a+r}")
                for r in range(4): A(f"v_cvt_pk_bf16_f32 v{p+r}, v{a+2*r}, v{a+2*r+1}")
                A(f"ds_write_b128 v{vT3}, {vr(p,4)} offset:{(4*ri + 2*ct + hh)*1024}")
        if ct == 0: A("s_waitcnt lgkmcnt(0)")
    A("s_waitcnt vmcnt(0) lgkmcnt(0)")
    A("s_branch L_p3done")
    A.label("L_p3k")
    for ct in range(2):
        for hh in range(2):
            for ri in range(2):
                a = AC + 16 * (2 * ct + ri) + 8 * hh; p = FR + 4 * (4 * ct + 2 * hh + ri)
                for r in range(4): A(f"v_cvt_pk_bf16_f32 v{p+r}, v{a+2*r}, v{a+2*r+1}")
                A(f"buffer_store_dwordx4 {vr(p,4)}, v{vK}, s[12:15], s{sKV} offen offset:{ri*TB} sc1")
            A(f"s_add_u32 s{sKV}, s{sKV}, {64*TB}")
    A("s_branch L_p3pub")
    A.label("L_p3v")
    p3_loop("L_p3vl", True)
    NST[0] = svst
    stamp()
    A(f"s_lshl_b32 s{sKV}, s{sHG}, 8")
    A(f"s_add_u32 s{sKV}, s{sKV}, s{sRT0}")
    A(f"s_mul_i32 s{sKV}, s{sKV}, {TB}")
    A(f"s_add_u32 s{sKV}, s{sKV}, {WS_KVB:#x}")
    A(f"s_mov_b32 s{sT3}, {64*TB}")
    A(f"v_lshrrev_b32 v{vT}, 4, v{vL}")
    A(f"v_mul_lo_u32 v{vT}, v{vT}, s{sT3}")
    A(f"v_bfe_u32 v{vT2}, v{vL}, 3, 1")
    A(f"v_mul_u32_u24 v{vT2}, {TB}, v{vT2}")
    A(f"v_add_u32 v{vT}, v{vT}, v{vT2}")
    A(f"v_and_b32 v{vT2}, 7, v{vL}")
    A(f"v_lshl_add_u32 v{vT3}, v{vT2}, 4, v{vT}")
    for r in range(4): A(f"v_mov_b32 v{120+r}, {ONES:#x}")
    A(f"v_bfe_u32 v{vT}, v{vL}, 4, 1")
    A(f"v_mul_lo_u32 v{vT}, v{vT}, s{sT3}")
    A(f"v_lshrrev_b32 v{vT2}, 5, v{vL}")
    A(f"v_lshl_add_u32 v{vT}, v{vT2}, 8, v{vT}")
    A(f"v_and_b32 v{vT2}, 15, v{vL}")
    A(f"v_lshl_add_u32 v{vT}, v{vT2}, 4, v{vT}")
    A("s_waitcnt lgkmcnt(0)")
    A(f"buffer_store_dwordx4 {vr(120,4)}, v{vT3}, s[12:15], s{sKV} offen offset:2048 sc1")
    for ct in range(2):
        for ri in range(2):
            for s in range(2):
                a = AC + 16 * (2 * ct + ri) + 8 * s; p = FR + 4 * (4 * ct + 2 * ri + s)
                for r in range(4): A(f"v_cvt_pk_bf16_f32 v{p+r}, v{a+2*r}, v{a+2*r+1}")
                A("s_nop 1")
                A(f"v_permlane32_swap_b32 v{p}, v{p+2}")
                A(f"v_permlane32_swap_b32 v{p+1}, v{p+3}")
                A(f"buffer_store_dwordx4 {vr(p,4)}, v{vT}, s[12:15], s{sKV} offen offset:{1024+ri*TB+s*512} sc1")
        if ct == 0: A(f"s_add_u32 s{sKV}, s{sKV}, {128*TB}")
    A.label("L_p3pub")
    A("s_waitcnt vmcnt(0)")
    team_add(0, "L_p3done", 2)
    A(f"s_lshl_b32 s{sT3}, s{sHG}, 5")
    A(f"s_add_u32 s{sT3}, s{sT3}, s{sRB}")
    A(f"s_lshl_b32 s{sT3}, s{sT3}, 5")
    A(f"s_add_u32 s{sT3}, s{sT3}, {FL_KVB:#x}")
    flag_store(sT3)
    A("s_branch L_p3done")
    A.label("L_b_gwave")
    NST[0] = svst - 1
    A(f"v_bfe_u32 v{vT3}, v{vL}, 1, 4")
    A(f"v_min_u32 v{vT3}, {G1-1}, v{vT3}")
    A(f"v_add_u32 v{vT3}, s{sRB}, v{vT3}")
    A(f"v_and_b32 v{vT3}, 31, v{vT3}")
    A(f"v_and_b32 v{vT}, 32, v{vL}")
    A(f"v_add_u32 v{vT3}, v{vT3}, v{vT}")
    A(f"v_and_b32 v{vT}, 1, v{vT3}")
    A(f"v_lshrrev_b32 v{vT3}, 1, v{vT3}")
    A(f"v_lshl_add_u32 v{vT3}, v{vT3}, 2, v{vT}")
    A(f"v_and_b32 v{vT}, 1, v{vL}")
    A(f"v_lshl_add_u32 v{vT3}, v{vT}, 1, v{vT3}")
    A(f"v_lshlrev_b32 v{vT3}, 5, v{vT3}")
    if OPT.get("pstart", "5") == "5": team_wait(5, 8, 2)
    else: team_wait(6, 4, 1)
    A(f"s_mov_b32 s{sT3}, {FL_KVA:#x}")
    if KVP:
        NST[0] = 5
        kstamp()
    poll_flags(vT3, sT3, slp=int(OPT.get("pslp", 1)))
    if KVP:
        kstamp()
        A("s_waitcnt lgkmcnt(0)")
        A(f"s_sub_u32 s{70+2*NST[0]}, {SPIN}, s{sSP}")
        A(f"s_add_u32 s{70+2*NST[0]}, s{70+2*NST[0]}, s72")
        NST[0] = svst
    A("s_waitcnt lgkmcnt(0)")
    team_add(6)
    A(f"s_sleep {OPT.get('asl', 16)}")
    A(f"v_lshlrev_b32 v{vT}, 5, v{vL}")
    poll_flags(vT, sT3, n2=2048, slp=4)
    team_add(9)
    if "nob" in OPT: A("s_branch L_b_skip")
    stamp()
    A(f"v_lshrrev_b32 v{vW1}, 5, v{vL}")
    A(f"v_lshlrev_b32 v{vW1}, 4, v{vW1}")
    A(f"v_add_u32 v{vW1}, {L_GATE}, v{vW1}")
    A(f"s_mov_b32 s{sCnt}, 8")
    A.label("L_gloop")
    for i in range(4):
        A(f"ds_read_b128 {vr(FR,4)}, v{vW1} offset:{i*32}")
        A(f"ds_read_b128 {vr(FR+4,4)}, v{vX0+i}")
        A("s_waitcnt lgkmcnt(0)")
        A(f"{MF} {vr(AC,16)}, {vr(FR,4)}, {vr(FR+4,4)}, {vr(AC,16)}")
        A(f"ds_read_b128 {vr(FR+8,4)}, v{vX0+i} offset:4096")
        A(f"v_add_u32 v{vX0+i}, 8192, v{vX0+i}")
        A("s_waitcnt lgkmcnt(0)")
        A(f"{MF} {vr(AC+16,16)}, {vr(FR,4)}, {vr(FR+8,4)}, {vr(AC+16,16)}")
    A(f"v_add_u32 v{vW1}, 128, v{vW1}")
    A(f"s_sub_u32 s{sCnt}, s{sCnt}, 1")
    A(f"s_cmp_lg_u32 s{sCnt}, 0")
    A("s_cbranch_scc1 L_gloop")
    stamp()
    A("s_mov_b32 s38, 0")
    A("s_mov_b32 s39, -1")
    A("s_nop 5")
    A(f"v_cndmask_b32_e64 v{vG}, v{AC}, v{AC+16}, s[38:39]")
    A(f"v_mul_f32 v{vG}, {f2u(-math.log2(math.e)):#x}, v{vG}")
    A(f"v_exp_f32 v{vG}, v{vG}")
    A(f"v_lshlrev_b32 v{vT}, 2, v{vL}")
    A(f"v_add_f32 v{vG}, 1.0, v{vG}")
    A(f"v_rcp_f32 v{vG}, v{vG}")
    A(f"v_add_u32 v{vT}, {L_G}, v{vT}")
    A(f"ds_write_b32 v{vT}, v{vG}")
    A("s_waitcnt lgkmcnt(0)")
    A.label("L_p3done")
    team_add(1)
    QB = 96; OB = 104; KV = 136
    A(f"s_lshl_b32 s{sKV}, s{sHEAD}, 6")
    A(f"s_add_u32 s{sKV}, s{sKV}, s{sRT0}")
    A(f"s_mul_i32 s{sKV}, s{sKV}, {TB}")
    A(f"s_add_u32 s{sKV}, s{sKV}, {WS_KVB:#x}")
    sWL, sWG, sWN = 37, 54, 55
    srd(8, P_BWO, 512 * 1024)
    srd(20, P_AWO, 512 * 1024)
    vWd2 = 11
    w128_dma_addr(vWd2, 1024)
    A(f"s_lshl_b32 s{sWL}, s{sJ}, 14")
    A(f"s_lshl_b32 s{sWG}, s{sJ}, 17")
    A(f"s_lshl_b32 s{sT}, s{sHG}, 7")
    A(f"s_add_u32 s{sWG}, s{sWG}, s{sT}")
    A(f"s_mov_b32 s{sWN}, 0")
    sWI, sWT = 56, 57
    if ROT:
        A(f"s_and_b32 s{sWI}, s{sRB}, 7")
        A(f"s_lshl_b32 s{sWI}, s{sWI}, 1")
    else:
        A(f"s_mov_b32 s{sWI}, 0")
    def w_loop(name, srd_, lds):
        A(f"s_mov_b32 s{sWN}, 16")
        A.label(name)
        A(f"s_lshl_b32 s{sWT}, s{sWI}, 10")
        A(f"s_add_u32 s{sWT}, s{sWT}, s{sWL}")
        A(f"s_add_u32 m0, s{sWT}, {lds}")
        A(f"s_lshl_b32 s{sWT}, s{sWI}, 13")
        A(f"s_add_u32 s{sWT}, s{sWT}, s{sWG}")
        A(f"buffer_load_dwordx4 v{vWd2}, s[{srd_}:{srd_+3}], s{sWT} offen lds")
        A(f"s_add_u32 s{sWI}, s{sWI}, 1")
        A(f"s_and_b32 s{sWI}, s{sWI}, 15")
        A(f"s_sub_u32 s{sWN}, s{sWN}, 1")
        A(f"s_waitcnt vmcnt({OPT.get('wd', 5)})")
        A(f"s_cmp_lg_u32 s{sWN}, 0")
        A(f"s_cbranch_scc1 {name}")
    A(f"s_lshl_b32 s{sT2}, s{sJ}, 10")
    A(f"s_add_u32 s{sT2}, s{sT2}, {L_QX}")
    A(f"v_add_u32 v7, s{sT2}, v{vK}")
    A(f"s_and_b32 s{sT2}, s{sJ}, 1")
    A(f"s_lshl_b32 s{sT2}, s{sT2}, 7")
    A(f"s_add_u32 s{sT2}, s{sT2}, {L_G}")
    A(f"v_and_b32 v9, 31, v{vL}")
    A(f"v_lshl_add_u32 v9, v9, 2, s{sT2}")
    stamp()
    team_wait(1)
    w_loop("L_wB", 8, L_X)
    A(f"s_cmp_lg_u32 s{sJ}, 3")
    A("s_cbranch_scc1 L_b_nokvb")
    A(f"v_min_u32 v{vT3}, 4, v{vL}")
    A(f"v_sub_u32 v{vT3}, s{sRB}, v{vT3}")
    A(f"v_max_i32 v{vT3}, 0, v{vT3}")
    A(f"v_lshlrev_b32 v{vT3}, 5, v{vT3}")
    A(f"s_lshl_b32 s{sT3}, s{sHG}, 10")
    A(f"s_add_u32 s{sT3}, s{sT3}, {FL_KVB:#x}")
    poll_flags(vT3, sT3, slp=2)
    team_add(10)
    A.label("L_b_nokvb")
    team_wait(10, 1)
    stamp()
    A(f"ds_read_b128 {vr(QB,4)}, v7")
    A(f"ds_read_b128 {vr(QB+4,4)}, v7 offset:4096")
    A(f"ds_read_b32 v{vG}, v9")
    A(f"s_add_u32 s{sA0}, s{sKV}, {TB}")
    A(f"s_add_u32 s{sA1}, s{sRT0}, 1")
    PRE = int(OPT.get("bpre", 4))
    def bkv(u):
        b = KV + 12 * u; o = []
        if u >= 2:
            o.append(f"s_cmp_ge_u32 s{sA1}, {u}")
            o.append(f"s_cselect_b32 s{sT}, s{sA0}, {OOB:#x}")
        sa = sT if u >= 2 else sA0
        o.append(f"buffer_load_dwordx4 {vr(b,4)}, v{vK}, s[12:15], s{sa} offen sc1")
        o.append(f"buffer_load_dwordx4 {vr(b+4,4)}, v{vV}, s[12:15], s{sa} offen sc1")
        o.append(f"buffer_load_dwordx4 {vr(b+8,4)}, v{vV1}, s[12:15], s{sa} offen sc1")
        if u < 9: o.append(f"s_sub_u32 s{sA0}, s{sA0}, {TB}")
        return "\n".join(o)
    order = []
    for u in range(PRE):
        A(bkv(u)); order += [("k", u), ("v", u), ("v2", u)]
    vBig = 7
    A(f"v_mov_b32 v{vIDX}, 0xdddddddd")
    A(f"v_mov_b32 v{vBig}, {f2u(-1e38):#x}")
    mask_tuple(NEG, f"v{vBig}", "0")
    for i in range(2):
        for r in range(0, 10, 2): A(f"v_pk_mov_b32 v[{OB+16*i+r}:{OB+16*i+r+1}], 0, 0")
    A(f"s_waitcnt vmcnt({3*PRE-4}) lgkmcnt(0)")
    A(f"{MF} {vr(S0,16)}, {vr(KV,4)}, {vr(QB+4,4)}, {vr(NEG,16)}")
    A(f"{MF} {vr(S1,16)}, {vr(KV+12,4)}, {vr(QB,4)}, {vr(NEG,16)}")
    A("s_nop 7")
    A("s_nop 3")
    lane_max_all(range(S0, S0 + 32), vT, vT2)
    A(f"v_sub_f32 v{NEG}, 0, v{vT}")
    A(f"v_sub_f32 v{NEG+1}, 0, v{vT}")
    for r in range(0, 32, 2): A(f"v_pk_add_f32 v[{S0+r}:{S0+r+1}], v[{S0+r}:{S0+r+1}], v[{NEG}:{NEG+1}]")
    for r in range(2, 16, 2): A(f"v_pk_mov_b32 v[{NEG+r}:{NEG+r+1}], v[{NEG}:{NEG+1}], v[{NEG}:{NEG+1}] op_sel:[0,1]")
    items = [(1, 0), (0, 1), (1, 1)]
    for u in range(2, 9): items += [(0, u), (1, u)]
    items += [(0, 9)]
    CF = KV
    waited = 3
    def need(tag):
        nonlocal waited
        k_ = order.index(tag)
        if k_ > waited:
            waited = k_
            return f"s_waitcnt vmcnt({len(order)-1-k_})"
        return None
    WPI = int(OPT.get("wpi", 1))
    wsteps = 0; nextu = PRE
    for n, (q, u) in enumerate(items):
        Sc, Sn = (S0, S1) if n % 2 == 0 else (S1, S0)
        ex = {}
        qk = None
        late = []
        if n % 2 == 1 and nextu < 10:
            ex["X4"] = bkv(nextu); late = [("k", nextu), ("v", nextu), ("v2", nextu)]; nextu += 1
        if n >= 1 and n + 1 < len(items):
            q2, u2 = items[n + 1]
            far = (q2, u2) in ((1, 8), (0, 9))
            ex["X3"] = need(("k", u2))
            qk = f"{MF} {vr(Sn,16)}, {vr(KV+12*u2,4)}, {vr(QB+4*q2,4)}, {vr(CF if far else NEG,16)}"
        ex["X5"] = need(("v2", u))
        order += late
        pv1 = None
        if n >= 1:
            qp, up = items[n - 1]
            pv1 = pv(OB + 16 * qp, KV + 12 * up + 8, Sn + 8)
        exit_here = (q == 1 and u in (1, 3, 5, 7))
        if exit_here: ex["X4"] = f"s_cmp_eq_u32 s{sA1}, {u}"
        if "nobat" in OPT.get("abl", ""):
            for x in sorted(ex):
                if ex[x]: A(ex[x])
            A("s_sleep 3")
        else:
            tile_code(Sc, qk, pv1, pv(OB + 16 * q, KV + 12 * u + 4, Sc), ex)
        if exit_here: A(f"s_cbranch_scc1 L_b_exit{u}")
        if n == 6: mask_tuple(CF, f"v{NEG}", f"v{vBig}")
    A("s_nop 1")
    A(pv(OB, KV + 12 * 9 + 8, S1 + 8))
    A.label("L_b_fin")
    stamp()
    A(f"s_lshl_b32 s{sA2}, s{sRT0}, 6")
    A(f"s_add_u32 s{sA2}, s{sA2}, s{sHEAD}")
    A(f"s_lshl_b32 s{sA2}, s{sA2}, 10")
    A(f"s_add_u32 s{sA2}, s{sA2}, {WS_O + 32*1024:#x}")
    A(f"s_min_u32 s{sCnt}, s{sA1}, 9")
    A("s_nop 7")
    for i in range(2):
        if not OPT.get("abl"): range_check(OB + 16 * i, f"L_b_slow{i}")
        A.label(f"L_b_ok{i}")
        normalize_store(OB + 16 * i, P + 4 * i, sA2)
        if i == 0:
            A(f"s_add_u32 s{sA2}, s{sA2}, 65536")
            A(f"s_add_u32 s{sKV}, s{sKV}, {TB}")
            A(f"s_add_u32 s{sCnt}, s{sRT0}, 2")
            A(f"s_min_u32 s{sCnt}, s{sCnt}, 9")
    A("s_waitcnt vmcnt(0)")
    team_add(2, "L_b_ob_nl")
    A(f"s_lshl_b32 s{sT3}, s{sRB}, 8")
    A(f"s_lshl_b32 s{sT4}, s{sHG}, 5")
    A(f"s_add_u32 s{sT3}, s{sT3}, s{sT4}")
    A(f"s_add_u32 s{sT3}, s{sT3}, {FL_OB:#x}")
    flag_store(sT3)
    A.label("L_b_ob_nl")
    A(f"s_and_b32 s{sT4}, s{sJ}, 1")
    A(f"s_lshr_b32 s{sT3}, s{sJ}, 1")
    vWp = 13
    w128_tr_addr(vWp, 4, None, sT3)
    A(f"v_and_b32 v{vT3}, 7, v{vL}")
    A(f"v_lshlrev_b32 v{vT3}, 5, v{vT3}")
    A(f"s_lshl_b32 s{sT3}, s{sRB}, 8")
    A(f"s_add_u32 s{sT3}, s{sT3}, {FL_OB:#x}")
    w_loop("L_wA", 20, L_WQ)
    A("s_waitcnt vmcnt(0)")
    team_add(3)
    poll_flags(vT3, sT3, slp=2)
    stamp()
    OF = 128; WF = 64; ACB = 16; ACA = 32; OR = 80
    A(f"s_add_u32 s{sA0}, s{sRT0}, s{sT4}")
    A(f"s_lshl_b32 s{sA0}, s{sA0}, 16")
    A(f"s_add_u32 s{sA0}, s{sA0}, {WS_O + 32*1024:#x}")
    if "nop4b" in OPT.get("abl", ""): A("s_branch L_b_skip")
    OD = int(OPT.get("od", 8))
    def oload(s):
        if s and s % 4 == 0: A(f"s_add_u32 s{sA0}, s{sA0}, 4096")
        A(f"buffer_load_dwordx4 {vr(OR+4*(s%8),4)}, v{vK}, s[12:15], s{sA0} offen offset:{(s%4)*1024} sc1")
    for s in range(OD): oload(s)
    vWq = 12
    A(f"v_add_u32 v{vWq}, {L_WQ}, v{vWp}")
    team_wait(3)
    for s in range(32):
        vm = min(31, s + OD - 1) - s
        A(f"ds_read_b64_tr_b16 v[{WF}:{WF+1}], v{vWp} offset:{s*2048}")
        A(f"ds_read_b64_tr_b16 v[{WF+2}:{WF+3}], v{vWp} offset:{s*2048+1024}")
        A(f"ds_read_b64_tr_b16 v[{OF+4*s}:{OF+4*s+1}], v{vWq} offset:{s*2048}")
        A(f"ds_read_b64_tr_b16 v[{OF+4*s+2}:{OF+4*s+3}], v{vWq} offset:{s*2048+1024}")
        A(f"s_waitcnt vmcnt({vm}) lgkmcnt(2)")
        c = "0" if s == 0 else vr(ACB, 16)
        A(f"{MF} {vr(ACB,16)}, {vr(WF,4)}, {vr(OR+4*(s%8),4)}, {c}")
        if s + OD < 32: oload(s + OD)
    A(f"v_sub_f32 v{vT3}, 1.0, v{vG}")
    A("s_nop 7")
    A("s_nop 2")
    for r in range(16): A(f"v_mul_f32 v{ACB+r}, v{ACB+r}, v{vT3}")
    A.label("L_b_skip")
    A(f"s_and_b32 s{sT4}, s{sJ}, 1")
    srd(4, P_OUT, 2048 * 1024)
    vO = 8; vOa = 9
    A(f"v_and_b32 v{vT}, 31, v{vL}")
    A(f"v_lshlrev_b32 v{vT}, 10, v{vT}")
    A(f"v_lshrrev_b32 v{vT2}, 5, v{vL}")
    A(f"v_lshl_add_u32 v{vO}, v{vT2}, 4, v{vT}")
    A(f"s_add_u32 s{sKV}, s{sRT0}, s{sT4}")
    A(f"s_lshl_b32 s{sKV}, s{sKV}, 15")
    A(f"s_lshl_b32 s{sT}, s{sHG}, 7")
    A(f"s_add_u32 s{sKV}, s{sKV}, s{sT}")
    A(f"s_lshr_b32 s{sT}, s{sJ}, 1")
    A(f"s_lshl_b32 s{sT}, s{sT}, 6")
    A(f"s_add_u32 s{sKV}, s{sKV}, s{sT}")
    A(f"s_lshl_b32 s{sT}, s{sT4}, 15")
    A(f"v_add_u32 v{vOa}, s{sT}, v{vK}")
    A(f"s_lshl_b32 s{sA2}, s{sRB}, 8")
    A(f"s_lshl_b32 s{sT}, s{sHG}, 5")
    A(f"s_add_u32 s{sA2}, s{sA2}, s{sT}")
    A(f"s_add_u32 s{sA2}, s{sA2}, {FL_OA:#x}")
    A("s_waitcnt lgkmcnt(0)")
    stamp()
    A("s_barrier")
    A("s_barrier")
    A(f"s_cmp_lg_u32 s{sJ}, 0")
    A("s_cbranch_scc1 L_b_noflag")
    flag_store(sA2)
    A.label("L_b_noflag")
    tail_dma()
    for m in range(4):
        A(f"s_waitcnt vmcnt({2*(3-m)})")
        A("s_barrier")
        for i in range(8): A(f"ds_read_b128 {vr(WF+4*i,4)}, v{vOa} offset:{(8*m+i)*1024}")
        for i in range(8):
            s = 8 * m + i
            A(f"s_waitcnt lgkmcnt({7-i})")
            c = "0" if s == 0 else vr(ACA, 16)
            A(f"{MF} {vr(ACA,16)}, {vr(OF+4*s,4)}, {vr(WF+4*i,4)}, {c}")
    A("s_nop 7")
    A("s_nop 3")
    for r in range(16): A(f"v_fmac_f32 v{ACB+r}, v{ACA+r}, v{vG}")
    for r in range(8): A(f"v_cvt_pk_bf16_f32 v{WF+r}, v{ACB+2*r}, v{ACB+2*r+1}")
    A("s_nop 1")
    for g in range(2):
        A(f"v_permlane32_swap_b32 v{WF+4*g}, v{WF+4*g+2}")
        A(f"v_permlane32_swap_b32 v{WF+4*g+1}, v{WF+4*g+3}")
    for g in range(2): A(f"buffer_store_dwordx4 {vr(WF+4*g,4)}, v{vO}, s[4:7], s{sKV} offen offset:{g*32} {OPT.get('om', '').replace('_', ' ')}")
    if PROF: A("s_waitcnt vmcnt(0)")
    stamp_flush()
    A.label("L_exit")
    A("s_endpgm")
    for u in (1, 3, 5, 7):
        A.label(f"L_b_exit{u}")
        A("s_nop 0")
        A(pv(OB + 16, KV + 12 * u + 8, S0 + 8))
        A("s_branch L_b_fin")
    for i in range(2):
        slow_path(f"L_b_slow{i}", f"L_b_ok{i}", QB + 4 * i, OB + 16 * i, sKV, sCnt, -TB, True, KV, KV + 4, KV + 16)
    return k

def main():
    hdr = open("cdna_kernels/" + NAME + ".s.ref").read().split("\n")
    head = [l for l in hdr if l.startswith(";") and "@launch" not in l]
    out = "\n".join(head) + "\n"
    out += "; @launch grid=(256,1,1) block=(512,1,1) lds=163840\n"
    out += '.amdgcn_target "amdgcn-amd-amdhsa--gfx950"\n.text\n'
    k = gen()
    body = A.text()
    if "bfirst" in OPT:
        i = body.index("; @@A_BEGIN\n"); j = body.index("; @@A_END\n")
        body = body[:i] + body[j + len("; @@A_END\n"):] + body[i + len("; @@A_BEGIN\n"):j]
    body += "L_code_end:\n    s_endpgm\n"
    errs = check_hazards(body)
    for e in errs: print("HAZARD", e, file=sys.stderr)
    out += body
    out += f""".section .rodata,"a"
.p2align 6
.amdhsa_kernel {k}
  .amdhsa_next_free_vgpr 256
  .amdhsa_next_free_sgpr 102
  .amdhsa_accum_offset 256
  .amdhsa_group_segment_fixed_size 0
  .amdhsa_kernarg_size 96
  .amdhsa_user_sgpr_count 2
  .amdhsa_user_sgpr_kernarg_segment_ptr 1
  .amdhsa_system_sgpr_workgroup_id_x 1
.end_amdhsa_kernel
"""
    paths = [a for a in sys.argv[1:] if a.endswith(".s")]
    path = paths[0] if paths else "f12.s"
    open(path, "w").write(out)
    print("wrote", path, len(out), "bytes;", len(errs), "hazard warnings")
main()
```

```python
import sys, math, struct, re
from asmlib import Asm, vr, sr, check_hazards

NAME = "gated_mix__grouped_kv_mqa__sliding_block__prompt"
def f2u(x): return struct.unpack("<I", struct.pack("<f", x))[0]
CSCALE = 0.25 * math.log2(math.e)
OPT = dict(a[2:].split("=") if "=" in a else (a[2:], "1") for a in sys.argv[1:] if a.startswith("--"))
for _k, _v in (("bfirst", "1"), ("cpf", "1"), ("pace", "0"), ("p3d", "4"), ("bpre", "3"), ("od", "6"), ("il", "2"), ("tp", "one"), ("j4", "1"), ("pstart", "6"), ("touchfl", "1"), ("k3", "1")): OPT.setdefault(_k, _v)
PROF = "prof" in OPT

ROT = "norot" not in OPT
TB = 2176
WS_KVA = 0
WS_FL = 0x40000
FL_KVA, FL_KVB, FL_OB, FL_OA = WS_FL, WS_FL + 0x1000, WS_FL + 0x4000, WS_FL + 0x6000
WS_KVB = 0x100000
WS_O = 0x600000
WS_PROF = 15 << 20
WS_SIZE = 16 << 20
OOB = 0x40000000
ONES = 0x3F803F80
L_X, L_WQ, L_WKV, L_QX, L_GATE, L_CNT, L_COMB = 0, 65536, 131072, 147456, 155648, 156672, 131072
L_G = L_CNT + 256
SPIN = 50000
MF = "v_mfma_f32_32x32x16_bf16"
SMF = "v_smfmac_f32_32x32x32_bf16"
vIDX = 10
A = Asm()

sW, sHG, sRB, sNON = 16, 17, 18, 19
sT, sT2, sT3, sT4 = 24, 25, 26, 27
sJ, sKV, sCnt, sHEAD, sRT0, sA0, sA1, sA2 = 28, 29, 30, 31, 32, 33, 34, 35
sSP = 36
P_X, P_WQ, P_WK, P_WV, P_AWO, P_WQKV, P_BWO, P_GATE, P_OUT, P_DBG, P_WS = 44, 46, 48, 50, 52, 56, 58, 60, 62, 64, 66
vL, vK, vV, vT, vT2, vT3 = 1, 2, 3, 4, 5, 6
vV1 = 0

def srd(d, ptr, size):
    A(f"s_mov_b32 s{d}, s{ptr}")
    A(f"s_and_b32 s{d+1}, s{ptr+1}, 0xffff")
    A(f"s_mov_b32 s{d+2}, {size:#x}")
    A(f"s_mov_b32 s{d+3}, 0x00020000")

NST = [0]
KVP = OPT.get("prof") == "kv"
STOFF = [False]
def kstamp():
    if KVP: stamp(force=True)
def stamp(real=False, force=False):
    if not PROF: return
    if STOFF[0] and not force and not real: return
    i = NST[0]; NST[0] += 1
    assert 70 + 2 * i + 1 <= 101, "too many stamps"
    A(f"{'s_memrealtime' if real or OPT.get('prof') == 'rt' else 's_memtime'} s[{70+2*i}:{71+2*i}]")
def stamp_flush():
    if not PROF: return
    stamp(force=True); stamp(real=True)
    A("s_waitcnt lgkmcnt(0)")
    A("s_lshl_b32 s68, s2, 4")
    A(f"s_add_u32 s68, s68, s{sW}")
    A("s_lshl_b32 s68, s68, 6")
    A(f"s_add_u32 s68, s68, {WS_PROF:#x}")
    A("v_mov_b32 v251, 0")
    for i in range(NST[0]):
        A(f"v_mov_b32 v250, s{70+2*i}")
        A(f"buffer_store_dword v250, v251, s[12:15], s68 offen offset:{4*i}")
    A("s_waitcnt vmcnt(0)")

def poll_flags(va, soff, n2=None, slp=2, vd=None, x4=False):
    vd = vd if vd is not None else vT2
    l = A.uid("poll"); d = A.uid("polld")
    A(f"s_mov_b32 s{sSP}, {SPIN}")
    A.label(l)
    if x4: A(f"buffer_load_dwordx4 {vr(vd,4)}, v{va}, s[12:15], s{soff} offen sc1")
    else: A(f"buffer_load_dword v{vd}, v{va}, s[12:15], s{soff} offen sc1")
    if n2 is not None: A(f"buffer_load_dword v{vd+1}, v{va}, s[12:15], s{soff} offen offset:{n2} sc1")
    A("s_waitcnt vmcnt(0)")
    A(f"v_cmp_ne_u32 vcc, s{sNON}, v{vd}")
    if n2 is not None or x4:
        A(f"v_cmp_ne_u32 s[38:39], s{sNON}, v{vd+(2 if x4 else 1)}")
        A("s_nop 1")
        A("s_or_b64 vcc, vcc, s[38:39]")
    else:
        A("s_nop 1")
    A(f"s_cbranch_vccz {d}")
    A("s_mov_b64 exec, vcc")
    A(f"s_sub_u32 s{sSP}, s{sSP}, 1")
    A(f"s_cbranch_scc1 {d}")
    A(f"s_sleep {slp}")
    A(f"s_branch {l}")
    A.label(d)
    A("s_mov_b64 exec, -1")

def flag_store(soff):
    A(f"v_mov_b32 v{vT}, s{sNON}")
    A(f"v_mov_b32 v{vT2}, 0")
    A("s_mov_b64 exec, 1")
    A(f"buffer_store_dword v{vT}, v{vT2}, s[12:15], s{soff} offen sc1")
    A("s_mov_b64 exec, -1")

def team_add(cnt, last_label=None, n=4):
    A(f"v_mov_b32 v{vT}, {L_CNT + 4*cnt}")
    A(f"v_mov_b32 v{vT2}, 1")
    A("s_mov_b64 exec, 1")
    if last_label:
        A(f"ds_add_rtn_u32 v{vT2}, v{vT}, v{vT2}")
        A("s_waitcnt lgkmcnt(0)")
        A("s_mov_b64 exec, -1")
        A(f"v_readfirstlane_b32 s{sT}, v{vT2}")
        A("s_nop 1")
        A(f"s_cmp_lg_u32 s{sT}, {n-1}")
        A(f"s_cbranch_scc1 {last_label}")
    else:
        A(f"ds_add_u32 v{vT}, v{vT2}")
        A("s_mov_b64 exec, -1")

def team_wait(cnt, n=4, slp=2):
    l = A.uid("tw"); d = A.uid("twd")
    A(f"v_mov_b32 v{vT}, {L_CNT + 4*cnt}")
    A(f"s_mov_b32 s{sSP}, {SPIN}")
    A.label(l)
    A(f"ds_read_b32 v{vT2}, v{vT}")
    A("s_waitcnt lgkmcnt(0)")
    A(f"v_readfirstlane_b32 s{sT}, v{vT2}")
    A("s_nop 1")
    A(f"s_cmp_ge_u32 s{sT}, {n}")
    A(f"s_cbranch_scc1 {d}")
    A(f"s_sub_u32 s{sSP}, s{sSP}, 1")
    A(f"s_cbranch_scc1 {d}")
    A(f"s_sleep {slp}")
    A(f"s_branch {l}")
    A.label(d)

def pv(O, V, S):
    return f"{SMF} {vr(O,16)}, {vr(V,4)}, {vr(S,8)}, v{vIDX}"

def tile_code(Sc, qk, pv1, pv0, extra):
    d = {}
    for i in range(16): d[f"e{i}"] = f"v_exp_f32 v{Sc+i}, v{Sc+i}"
    d["PV1"] = pv1; d["QK"] = qk; d["PV0"] = pv0
    order = OPT.get("order", "e0 e1 PV1 X1 e2 e3 e4 X3 QK X2 e5 e6 e7 e8 e9 e10 X5 PV0 X4 e11 e12 e13 e14 e15").replace("_", " ")
    for x in order.split():
        if x[0] == "X":
            if extra.get(x): A(extra[x])
        elif d[x]: A(d[x])

NEG, S0, S1, P = 16, 32, 48, 64

def lane_max_all(regs, dst, tmp):
    regs = list(regs)
    A(f"v_max3_f32 v{dst}, v{regs[0]}, v{regs[1]}, v{regs[2]}")
    A(f"v_max3_f32 v{tmp}, v{regs[3]}, v{regs[4]}, v{regs[5]}")
    rest = regs[6:]; t = [dst, tmp]; n = 0
    while rest:
        a, b = rest.pop(0), rest.pop(0)
        A(f"v_max3_f32 v{t[n&1]}, v{t[n&1]}, v{a}, v{b}"); n += 1
    A(f"v_max_f32 v{dst}, v{dst}, v{tmp}")
    A(f"v_mov_b32 v{tmp}, v{dst}")
    A("s_nop 1")
    A(f"v_permlane32_swap_b32 v{dst}, v{tmp}")
    A(f"v_max_f32 v{dst}, v{dst}, v{tmp}")

def mask_tuple(dst, v_true, v_false):
    for r in range(16):
        c0 = (r & 3) + 8 * (r >> 2)
        p = 40 + 2 * (r & 1)
        A(f"s_mov_b32 s{p}, {(1 << c0) - 1:#x}")
        A(f"s_mov_b32 s{p+1}, {(1 << (c0 + 4)) - 1:#x}")
        A(f"v_cndmask_b32_e64 v{dst+r}, {v_false}, {v_true}, s[{p}:{p+1}]")

def range_check(O, bad):
    A(f"v_max3_f32 v{vT}, |v{O}|, |v{O+1}|, |v{O+2}|")
    A(f"v_max3_f32 v{vT2}, |v{O+3}|, |v{O+4}|, |v{O+5}|")
    A(f"v_max3_f32 v{vT}, v{vT}, |v{O+6}|, |v{O+7}|")
    A(f"s_mov_b32 s{sT}, {f2u(2.0**-60):#x}")
    A(f"s_mov_b32 s{sT2}, {f2u(2.0**40):#x}")
    A(f"s_mov_b32 s{sT3}, {f2u(2.0**120):#x}")
    A(f"v_add_f32 v{vT}, v{vT}, v{vT2}")
    A(f"v_cmp_nlt_f32 vcc, s{sT}, v{O+8}")
    A(f"v_cmp_ngt_f32 s[38:39], s{sT2}, v{O+8}")
    A(f"v_cmp_ngt_f32 s[40:41], s{sT3}, v{vT}")
    A("s_nop 1")
    A("s_or_b64 vcc, vcc, s[38:39]")
    A("s_or_b64 vcc, vcc, s[40:41]")
    A(f"s_cbranch_vccnz {bad}")

def slow_path(name, ret, Qr, O, s_base, s_n, step, masks, KB, VB, MK):
    lp1, lp2 = A.uid("sp1"), A.uid("sp2")
    vM, vM2, vBig = 7, 8, 9
    A.label(name)
    A("s_waitcnt vmcnt(0) lgkmcnt(0)")
    A(f"v_mov_b32 v{vBig}, {f2u(-1e38):#x}")
    def set_mask():
        if not masks:
            return
        l0, l8, ld = A.uid("m0"), A.uid("m8"), A.uid("md")
        A(f"s_cmp_eq_u32 s{sA1}, 0")
        A(f"s_cbranch_scc1 {l0}")
        A(f"s_cmp_eq_u32 s{sA1}, 8")
        A(f"s_cbranch_scc1 {l8}")
        for r in range(16): A(f"v_mov_b32 v{MK+r}, 0")
        A(f"s_branch {ld}")
        A.label(l0); mask_tuple(MK, f"v{vBig}", "0"); A(f"s_branch {ld}")
        A.label(l8); mask_tuple(MK, "0", f"v{vBig}")
        A.label(ld)
    C = vr(MK, 16) if masks else "0"
    A(f"v_mov_b32 v{vM}, v{vBig}")
    A(f"s_mov_b32 s{sA0}, s{s_base}")
    A(f"s_mov_b32 s{sA1}, 0")
    A.label(lp1)
    A(f"buffer_load_dwordx4 {vr(KB,4)}, v{vK}, s[12:15], s{sA0} offen sc1")
    set_mask()
    A("s_waitcnt vmcnt(0)")
    A("s_nop 1")
    A(f"{MF} {vr(S0,16)}, {vr(KB,4)}, {vr(Qr,4)}, {C}")
    A(f"s_add_u32 s{sA0}, s{sA0}, {step & 0xffffffff:#x}")
    A(f"s_add_u32 s{sA1}, s{sA1}, 1")
    A("s_nop 15")
    for i in range(8): A(f"v_max3_f32 v{vM}, v{vM}, v{S0+2*i}, v{S0+2*i+1}")
    A(f"s_cmp_lt_u32 s{sA1}, s{s_n}")
    A(f"s_cbranch_scc1 {lp1}")
    A(f"v_mov_b32 v{vM2}, v{vM}")
    A("s_nop 1")
    A(f"v_permlane32_swap_b32 v{vM}, v{vM2}")
    A(f"v_max_f32 v{vM}, v{vM}, v{vM2}")
    for r in range(16): A(f"v_mov_b32 v{O+r}, 0")
    A(f"s_mov_b32 s{sA0}, s{s_base}")
    A(f"s_mov_b32 s{sA1}, 0")
    A.label(lp2)
    A(f"buffer_load_dwordx4 {vr(KB,4)}, v{vK}, s[12:15], s{sA0} offen sc1")
    A(f"buffer_load_dwordx4 {vr(VB,4)}, v{vV}, s[12:15], s{sA0} offen sc1")
    A(f"buffer_load_dwordx4 {vr(VB+4,4)}, v{vV1}, s[12:15], s{sA0} offen sc1")
    set_mask()
    A("s_waitcnt vmcnt(0)")
    A("s_nop 1")
    A(f"{MF} {vr(S0,16)}, {vr(KB,4)}, {vr(Qr,4)}, {C}")
    A(f"s_add_u32 s{sA0}, s{sA0}, {step & 0xffffffff:#x}")
    A(f"s_add_u32 s{sA1}, s{sA1}, 1")
    A("s_nop 15")
    for r in range(16): A(f"v_sub_f32 v{S0+r}, v{S0+r}, v{vM}")
    for r in range(16): A(f"v_exp_f32 v{S0+r}, v{S0+r}")
    A("s_nop 2")
    A(pv(O, VB, S0))
    A(pv(O, VB + 4, S0 + 8))
    A(f"s_cmp_lt_u32 s{sA1}, s{s_n}")
    A("s_nop 15")
    A(f"s_cbranch_scc1 {lp2}")
    A(f"s_branch {ret}")

def normalize_store(O, PK, soff):
    A(f"v_rcp_f32 v{vT}, v{O+8}")
    A("s_nop 0")
    for r in range(8): A(f"v_mul_f32 v{O+r}, v{O+r}, v{vT}")
    for r in range(4): A(f"v_cvt_pk_bf16_f32 v{PK+r}, v{O+2*r}, v{O+2*r+1}")
    A(f"buffer_store_dwordx4 {vr(PK,4)}, v{vK}, s[12:15], s{soff} offen sc1")

def tail_dma():
    A(f"v_and_b32 v{vT}, 7, v{vL}")
    A(f"v_lshlrev_b32 v{vT}, 5, v{vT}")
    A(f"s_lshl_b32 s{sT3}, s{sRB}, 8")
    A(f"s_add_u32 s{sT3}, s{sT3}, {FL_OA:#x}")
    A(f"s_and_b32 s{sT}, s{sW}, 1")
    A(f"s_and_b32 s{sT2}, s{sW}, 6")
    A(f"s_lshl_b32 s{sA0}, s{sT}, 15")
    A(f"s_lshl_b32 s{sT2}, s{sT2}, 10")
    A(f"s_add_u32 s{sA0}, s{sA0}, s{sT2}")
    A(f"s_lshl_b32 s{sA1}, s{sRB}, 1")
    A(f"s_add_u32 s{sA1}, s{sA1}, s{sT}")
    A(f"s_lshl_b32 s{sA1}, s{sA1}, 16")
    A(f"s_add_u32 s{sA1}, s{sA1}, s{sT2}")
    A(f"s_add_u32 s{sA1}, s{sA1}, {WS_O:#x}")
    if OPT.get("tp", "all") == "one":
        l = A.uid("tp")
        A(f"s_cmp_lg_u32 s{sW}, 4")
        A(f"s_cbranch_scc1 {l}")
        poll_flags(vT, sT3, slp=1)
        A.label(l)
        A("s_barrier")
    else:
        poll_flags(vT, sT3, slp=1)
    stamp()
    for m in range(4):
        A(f"s_add_u32 m0, s{sA0}, {m*8192}")
        if m: A(f"s_add_u32 s{sA1}, s{sA1}, 8192")
        else: A("s_nop 0")
        A(f"buffer_load_dwordx4 v{vK}, s[12:15], s{sA1} offen sc1 lds")
        A(f"buffer_load_dwordx4 v{vK}, s[12:15], s{sA1} offen offset:1024 sc1 lds")

def gen():
    k = NAME + "_kernel"
    A.raw(f".globl {k}\n.p2align 8\n.type {k},@function\n{k}:")
    A("s_cmp_ge_u32 s2, 256")
    A("s_cbranch_scc1 L_exit")
    stamp(real=True); stamp()
    if "hwmap0" in OPT:
        A("s_getreg_b32 s3, hwreg(HW_REG_HW_ID)")
        A("s_getreg_b32 s2, hwreg(HW_REG_XCC_ID)")
        A("s_and_b32 s2, s2, 7")
        A("s_bfe_u32 s4, s3, 0x30008")
        A("s_lshl_b32 s4, s4, 3")
        A("s_or_b32 s2, s2, s4")
        A("s_bfe_u32 s4, s3, 0x2000d")
        A("s_lshl_b32 s4, s4, 6")
        A("s_or_b32 s2, s2, s4")
    if "scr" in OPT:
        A("s_bfe_u32 s3, s2, 0x30003")
        A("s_xor_b32 s2, s2, s3")
    vXd, vWd, vXa, vWa = 7, 8, 9, 13
    A(f"v_lshrrev_b32 v{vT}, 6, v0")
    A(f"v_and_b32 v{vL}, 63, v0")
    A(f"v_readfirstlane_b32 s{sW}, v{vT}")
    A(f"v_lshlrev_b32 v{vT2}, 2, v{vL}")
    A(f"s_cmp_lg_u32 s{sW}, 3")
    A("s_cbranch_scc1 L_nozero")
    A(f"v_mov_b32 v{vT}, 0")
    A(f"v_add_u32 v{vT2}, {L_CNT}, v{vT2}")
    A(f"ds_write_b32 v{vT2}, v{vT}")
    A("s_waitcnt lgkmcnt(0)")
    A.label("L_nozero")
    A("s_load_dwordx16 s[44:59], s[0:1], 0")
    A("s_load_dwordx8 s[60:67], s[0:1], 64")
    A("s_memrealtime s[22:23]")
    A(f"s_and_b32 s{sHG}, s2, 1")
    A(f"s_lshl_b32 s{sHG}, s{sHG}, 2")
    if "oldmap" in OPT:
        A(f"s_bfe_u32 s{sT}, s2, 0x20003")
        A(f"s_add_u32 s{sHG}, s{sHG}, s{sT}")
        A(f"s_bfe_u32 s{sRB}, s2, 0x20001")
        A(f"s_lshl_b32 s{sRB}, s{sRB}, 3")
        A(f"s_lshr_b32 s{sT}, s2, 5")
        A(f"s_add_u32 s{sRB}, s{sRB}, s{sT}")
    else:
        A(f"s_bfe_u32 s{sT}, s2, 0x10003")
        A(f"s_add_u32 s{sHG}, s{sHG}, s{sT}")
        A(f"s_lshr_b32 s{sT}, s2, 7")
        A(f"s_lshl_b32 s{sT}, s{sT}, 1")
        A(f"s_add_u32 s{sHG}, s{sHG}, s{sT}")
        A(f"s_bfe_u32 s{sRB}, s2, 0x20001")
        A(f"s_lshl_b32 s{sRB}, s{sRB}, 3")
        A(f"s_bfe_u32 s{sT}, s2, 0x30004")
        A(f"s_add_u32 s{sRB}, s{sRB}, s{sT}")
    A(f"v_lshlrev_b32 v{vK}, 4, v{vL}")
    A("s_barrier")
    A(f"s_lshr_b32 s{sT}, s{sW}, 2")
    A(f"s_xor_b32 s{sT}, s{sT}, s{sHG}")
    A(f"s_and_b32 s{sT}, s{sT}, 1")
    A(f"s_xor_b32 s{sT}, s{sT}, 1")
    A(f"s_lshl_b32 s{sT}, s{sT}, 2")
    A(f"s_and_b32 s{sJ}, s{sW}, 3")
    A(f"s_add_u32 s{sT}, s{sT}, s{sJ}")
    A(f"s_lshl_b32 s{sT4}, s{sT}, 10")
    A(f"s_lshl_b32 s{sT}, s{sT}, 3")
    A(f"v_lshrrev_b32 v{vT}, 3, v{vL}")
    A(f"v_add_u32 v{vT}, s{sT}, v{vT}")
    A(f"v_lshrrev_b32 v{vT2}, 1, v{vT}")
    A(f"v_xor_b32 v{vT2}, v{vT2}, v{vL}")
    A(f"v_and_b32 v{vT2}, 7, v{vT2}")
    A(f"v_lshlrev_b32 v{vT2}, 4, v{vT2}")
    A(f"v_lshl_add_u32 v{vXd}, v{vT}, 10, v{vT2}")
    A(f"s_lshl_b32 s{sA0}, s{sRB}, 16")
    if ROT:
        A(f"s_and_b32 s37, s{sHG}, 2")
        A(f"s_add_u32 s37, s37, 4")
    else:
        A("s_mov_b32 s37, 0")
    if "bfirst" in OPT:
        A(f"s_cmp_lt_u32 s{sW}, 4")
        A("s_cbranch_scc1 L_ateam")
        A.raw("; @@A_BEGIN")
        A.label("L_ateam")
    else:
        A(f"s_cmp_ge_u32 s{sW}, 4")
        A("s_cbranch_scc1 L_bteam")

    sXR, sQR = 37, 54
    def dma_x_plain(kb):
        kb = [3, 0, 1, 2, 4, 5, 6, 7][kb] if "k3" in OPT else kb
        A(f"s_add_u32 m0, s{sT4}, {L_X + kb*8192 - kb*128}")
        A("s_nop 0")
        A(f"buffer_load_dwordx4 v{vXd}, s[4:7], s{sA0} offen offset:{kb*128} lds")
    def dma_x(kb):
        A(f"s_lshl_b32 s{sT2}, s{sXR}, 13")
        A(f"s_add_u32 m0, s{sT4}, s{sT2}")
        A(f"s_lshl_b32 s{sT2}, s{sXR}, 7")
        A(f"s_add_u32 s{sT2}, s{sT2}, s{sA0}")
        A(f"buffer_load_dwordx4 v{vXd}, s[4:7], s{sT2} offen lds")
        if kb < 7:
            A(f"s_add_u32 s{sXR}, s{sXR}, 1")
            A(f"s_and_b32 s{sXR}, s{sXR}, 7")

    def x_frag_addr(dst, s_off):
        A(f"v_and_b32 v{vT}, 31, v{vL}")
        A(f"v_lshrrev_b32 v{vT2}, 5, v{vL}")
        A(f"v_bfe_u32 v{vT3}, v{vL}, 1, 3")
        A(f"v_xor_b32 v{vT2}, v{vT2}, v{vT3}")
        A(f"v_lshl_add_u32 v{vT}, v{vT}, 7, s{s_off}")
        for q in range(4):
            A(f"v_xor_b32 v{vT3}, {2*q}, v{vT2}")
            A(f"v_lshl_add_u32 v{dst+q}, v{vT3}, 4, v{vT}")

    def tr_addr(dst, hmul, rowb, cgmul, s_off):
        A(f"v_lshrrev_b32 v{vT}, 5, v{vL}")
        A(f"v_bfe_u32 v{vT2}, v{vL}, 2, 2")
        A(f"v_mad_u32_u24 v{vT}, v{vT}, {hmul}, v{vT2}")
        A(f"v_and_b32 v{vT2}, 3, v{vL}")
        A(f"v_lshlrev_b32 v{vT2}, 3, v{vT2}")
        if cgmul:
            A(f"v_bfe_u32 v{vT3}, v{vL}, 4, 1")
            A(f"v_lshl_add_u32 v{vT2}, v{vT3}, {int(math.log2(cgmul))}, v{vT2}")
        A(f"v_lshl_add_u32 v{dst}, v{vT}, {int(math.log2(rowb))}, v{vT2}")
        A(f"v_add_u32 v{dst}, s{s_off}, v{dst}")

    def w128_dma_addr(dst, stride):
        A(f"v_lshrrev_b32 v{vT}, 3, v{vL}")
        if stride == 1024: A(f"v_lshlrev_b32 v{vT}, 10, v{vT}")
        else: A(f"v_mul_u32_u24 v{vT}, {stride}, v{vT}")
        A(f"v_lshrrev_b32 v{vT2}, 2, v{vL}")
        A(f"v_and_b32 v{vT2}, 4, v{vT2}")
        A(f"v_xor_b32 v{vT2}, v{vT2}, v{vL}")
        A(f"v_and_b32 v{vT2}, 7, v{vT2}")
        A(f"v_lshl_add_u32 v{dst}, v{vT2}, 4, v{vT}")

    def w128_tr_addr(dst, hmul, s_off, s_ct=None):
        A(f"v_lshrrev_b32 v{vT}, 5, v{vL}")
        A(f"v_bfe_u32 v{vT2}, v{vL}, 2, 2")
        A(f"v_mad_u32_u24 v{vT}, v{vT}, {hmul}, v{vT2}")
        A(f"v_and_b32 v{vT2}, 3, v{vL}")
        A(f"v_lshlrev_b32 v{vT2}, 3, v{vT2}")
        A(f"v_lshl_add_u32 v{vT}, v{vT}, 7, v{vT2}")
        A(f"v_bfe_u32 v{vT2}, v{vL}, 4, 1")
        A(f"v_lshl_add_u32 v{vT}, v{vT2}, 5, v{vT}")
        A(f"v_bfe_u32 v{vT2}, v{vL}, 3, 1")
        if s_ct is not None: A(f"v_xor_b32 v{vT2}, s{s_ct}, v{vT2}")
        A(f"v_lshl_add_u32 v{vT}, v{vT2}, 6, v{vT}")
        if s_off is None: A(f"v_mov_b32 v{dst}, v{vT}")
        else: A(f"v_add_u32 v{dst}, s{s_off}, v{vT}")

    def v_lane_addr():
        A(f"v_and_b32 v{vT}, 31, v{vL}")
        A(f"v_lshrrev_b32 v{vT2}, 5, v{vL}")
        A(f"v_lshlrev_b32 v{vT2}, 8, v{vT2}")
        A(f"v_lshl_add_u32 v{vV}, v{vT}, 4, v{vT2}")
        A(f"v_add_u32 v{vV}, 1024, v{vV}")
        A(f"v_mov_b32 v{vT2}, {OOB:#x}")
        A(f"v_cmp_gt_u32 s[38:39], 16, v{vT}")
        A(f"v_and_b32 v{vT}, 27, v{vT}")
        A(f"v_mov_b32 v{vT3}, 2048")
        A(f"v_cndmask_b32_e64 v{vV}, v{vT2}, v{vV}, s[38:39]")
        A(f"v_cmp_eq_u32 s[38:39], 16, v{vT}")
        A(f"v_add_u32 v{vV1}, 512, v{vV}")
        A("s_nop 0")
        A(f"v_cndmask_b32_e64 v{vV}, v{vV}, v{vT3}, s[38:39]")
        A(f"v_cndmask_b32_e64 v{vV1}, v{vV1}, v{vT3}, s[38:39]")

    def chain(s0, n, FR, ACC, kstride, second, swap):
        def rd(s):
            b = FR + 8 * (s % 4)
            A(f"ds_read_b64_tr_b16 v[{b}:{b+1}], v{vWa} offset:{s*kstride}")
            A(f"ds_read_b64_tr_b16 v[{b+2}:{b+3}], v{vWa} offset:{s*kstride+second}")
            A(f"ds_read_b128 v[{b+4}:{b+7}], v{vXa+(s&3)} offset:{(s>>2)*8192}")
        for s in range(s0, s0 + 3): rd(s)
        for s in range(s0, s0 + n):
            if s + 3 < s0 + n: rd(s + 3)
            A(f"s_waitcnt lgkmcnt({3 * (min(s + 3, s0 + n - 1) - s)})")
            b = FR + 8 * (s % 4)
            c = "0" if s == 0 else vr(ACC, 16)
            if swap: A(f"{MF} {vr(ACC,16)}, {vr(b+4,4)}, {vr(b,4)}, {c}")
            else:    A(f"{MF} {vr(ACC,16)}, {vr(b,4)}, {vr(b+4,4)}, {c}")

    R = int(OPT.get("ring", 4))
    D = int(OPT.get("depth", R - 1))
    G1 = int(OPT.get("g1", 2 * R - 1 if R == 4 else 7))
    CHK = G1 - D
    assert 0 < CHK <= R and D < R
    SL = [72, 84] + [176 + 12 * i for i in range(R - 2)]
    Q = 96; O = 112
    KT0 = 176 + 12 * (R - 2) if R == 4 else SL[R - 2]
    w128_dma_addr(vWd, 1024)
    A(f"s_lshl_b32 s{sA1}, s{sW}, 14")
    A(f"s_lshl_b32 s{sT}, s{sHG}, 7")
    A(f"s_add_u32 s{sA1}, s{sA1}, s{sT}")
    A(f"s_lshl_b32 s{sA2}, s{sW}, 11")
    A(f"s_add_u32 s{sA2}, s{sA2}, {L_WQ}")
    A("s_waitcnt lgkmcnt(0)")
    srd(4, P_X, 2048 * 1024)
    srd(8, P_WQ, 512 * 1024)
    if "cpf" in OPT:
        A(f"s_cmp_lg_u32 s{sW}, 3")
        A("s_cbranch_scc1 L_nocpf")
        A("s_getpc_b64 s[38:39]")
        A.label("L_pc")
        A(f"s_sub_u32 s38, s38, L_pc-{k}")
        A("s_subb_u32 s39, s39, 0")
        A(f"s_lshr_b32 s{sT}, s2, 3")
        A(f"v_lshlrev_b32 v{vT}, 5, v{vL}")
        A(f"v_add_u32 v{vT}, s{sT}, v{vT}")
        A(f"v_lshlrev_b32 v{vT}, 7, v{vT}")
        A(f"v_cmp_gt_u32 vcc, L_code_end-{k}, v{vT}")
        A(f"v_mov_b32 v{vT3}, s39")
        A(f"v_add_co_u32 v{vT}, s[40:41], s38, v{vT}")
        A("s_nop 1")
        A(f"v_addc_co_u32 v{vT2}, s[40:41], 0, v{vT3}, s[40:41]")
        A("s_mov_b64 exec, vcc")
        A(f"global_load_dword v254, v[{vT}:{vT2}], off")
        A("s_mov_b64 exec, -1")
        A.label("L_nocpf")
    if ROT: A(f"s_and_b32 s{sQR}, s{sRB}, 7")
    else: A(f"s_mov_b32 s{sQR}, 0")
    if "pf0" in OPT:
        A(f"s_lshr_b32 s{sT}, s2, 3")
        A(f"s_cmp_ge_u32 s{sW}, 2")
        A("s_cbranch_scc1 L_a_pfq")
        A(f"s_bfe_u32 s{sT2}, s2, 0x20001")
        A(f"s_lshl_b32 s{sT2}, s{sT2}, 19")
        A(f"s_lshl_b32 s{sT}, s{sT}, 14")
        A(f"s_add_u32 s{sT2}, s{sT2}, s{sT}")
        A(f"s_lshl_b32 s{sT}, s{sW}, 13")
        A(f"s_add_u32 s{sT2}, s{sT2}, s{sT}")
        A(f"v_lshlrev_b32 v{vT}, 7, v{vL}")
        A(f"buffer_load_dword v254, v{vT}, s[4:7], s{sT2} offen sc1")
        A("s_branch L_a_pfd")
        A.label("L_a_pfq")
        A(f"s_cmp_eq_u32 s{sW}, 3")
        A("s_cbranch_scc1 L_a_pfd")
        A(f"s_and_b32 s{sT2}, s2, 1")
        A(f"s_lshl_b32 s{sT2}, s{sT2}, 9")
        A(f"s_lshl_b32 s{sT}, s{sT}, 14")
        A(f"s_add_u32 s{sT2}, s{sT2}, s{sT}")
        A(f"v_lshrrev_b32 v{vT}, 2, v{vL}")
        A(f"v_lshlrev_b32 v{vT}, 10, v{vT}")
        A(f"v_and_b32 v{vT2}, 3, v{vL}")
        A(f"v_lshl_add_u32 v{vT}, v{vT2}, 7, v{vT}")
        A(f"buffer_load_dword v254, v{vT}, s[8:11], s{sT2} offen sc1")
        A.label("L_a_pfd")
    sRI = 55
    def a_setup():
        srd(12, P_WS, WS_SIZE)
        A(f"s_and_b32 s{sRI}, s{sW}, 1")
        A(f"s_lshl_b32 s{sT2}, s{sRI}, 12")
        x_frag_addr(vXa, sT2)
        A(f"s_lshr_b32 s{sJ}, s{sW}, 1")
        A(f"s_mov_b32 s{sT2}, {L_WQ}")
        w128_tr_addr(vWa, 8, sT2, sJ)
        v_lane_addr()
        for q in range(4):
            for r in range(0, 10, 2): A(f"v_pk_mov_b32 v[{O+16*q+r}:{O+16*q+r+1}], 0, 0")
    if OPT.get("alate", "1") == "1": a_setup()
    for kb in range(8):
        dma_x(kb)
        A(f"s_lshl_b32 s{sT2}, s{sQR}, 13")
        A(f"s_add_u32 m0, s{sA2}, s{sT2}")
        A(f"s_lshl_b32 s{sT2}, s{sQR}, 16")
        A(f"s_add_u32 s{sT2}, s{sT2}, s{sA1}")
        A(f"buffer_load_dwordx4 v{vWd}, s[8:11], s{sT2} offen lds")
        A(f"s_add_u32 m0, m0, 1024")
        A(f"s_add_u32 s{sT2}, s{sT2}, 8192")
        A(f"buffer_load_dwordx4 v{vWd}, s[8:11], s{sT2} offen lds")
        if kb < 7:
            A(f"s_add_u32 s{sQR}, s{sQR}, 1")
            A(f"s_and_b32 s{sQR}, s{sQR}, 7")
    stamp()
    if OPT.get("alate", "1") != "1": a_setup()
    A("s_waitcnt vmcnt(0)")
    team_add(5)
    team_wait(5, 8, 1)
    stamp()
    chain(0, 32, 200, S0, 2048, 512, False)
    stamp()
    A(f"s_mov_b32 s{sT2}, {f2u(CSCALE):#x}")
    A(f"s_lshl_b32 s{sT3}, s{sRI}, 12")
    A(f"s_lshl_b32 s{sT4}, s{sJ}, 11")
    A(f"s_add_u32 s{sT4}, s{sT4}, s{sT3}")
    A(f"s_add_u32 s{sT4}, s{sT4}, {L_QX}")
    A(f"s_add_u32 s{sT3}, s{sT3}, {L_QX}")
    A(f"v_add_u32 v{vT}, s{sT4}, v{vK}")
    A(f"v_add_u32 v{vT3}, s{sT3}, v{vK}")
    sKB, sKE = 37, 54
    A(f"s_mul_i32 s{sKB}, s{sJ}, {32*TB}")
    A(f"s_add_u32 s{sKE}, s{sKB}, {32*TB}")
    A(f"s_mul_i32 s{sA0}, s{sRB}, {TB}")
    A(f"s_add_u32 s{sKV}, s{sKB}, s{sA0}")
    for r in range(0, 4, 2): A(f"v_pk_mov_b32 v[{SL[R-1]+8+r}:{SL[R-1]+9+r}], 0, 0")
    assert D < R - 1 or R == 4
    A(f"v_mov_b32 v{vIDX}, 0xdddddddd")
    A("s_nop 0")
    for r in range(16): A(f"v_mul_f32 v{S0+r}, s{sT2}, v{S0+r}")
    for r in range(8): A(f"v_cvt_pk_bf16_f32 v{S1+r}, v{S0+2*r}, v{S0+2*r+1}")
    A(f"ds_write_b128 v{vT}, {vr(S1,4)}")
    A(f"ds_write_b128 v{vT}, {vr(S1+4,4)} offset:1024")
    A("s_waitcnt lgkmcnt(0)")
    team_add(6)
    stamp()
    team_wait(6, 5, 1)
    stamp()
    for q in range(4): A(f"ds_read_b128 {vr(Q+4*q,4)}, v{vT3} offset:{q*1024}")
    A(f"v_mov_b32 v{vT3}, {L_CNT + 64}")
    A(f"ds_read_b32 v{vT3}, v{vT3}")
    def kv_load(slot, part):
        b = SL[slot]
        if part == 0: return f"buffer_load_dwordx4 {vr(b,4)}, v{vK}, s[12:15], s{sKV} offen sc1"
        if part == 1: return f"buffer_load_dwordx4 {vr(b+4,4)}, v{vV}, s[12:15], s{sKV} offen sc1"
        return f"buffer_load_dwordx4 {vr(b+8,4)}, v{vV1}, s[12:15], s{sKV} offen sc1"
    KADV = [f"s_add_u32 s{sKV}, s{sKV}, {TB}", f"s_cmp_eq_u32 s{sKV}, s{sKE}", f"s_cselect_b32 s{sKV}, s{sKB}, s{sKV}"]
    A(f"buffer_load_dwordx4 {vr(KT0,4)}, v{vK}, s[12:15], s{sA0} offen sc1")
    for t in range(D):
        for part in range(3): A(kv_load(t, part))
        for x in KADV: A(x)
    A(f"s_mov_b32 s{sCnt}, {32 // R - 1}")
    A("s_mov_b64 vcc, -1")
    A("s_waitcnt lgkmcnt(0)")
    team_add(7)
    A(f"v_readfirstlane_b32 s{sNON}, v{vT3}")
    A(f"s_waitcnt vmcnt({3*D})")
    T0 = [S0, S1, KT0 + 4, KT0 + 20] if R == 4 else [S0, S1, O + 32, O + 48]
    for q in range(4): A(f"{MF} {vr(T0[q],16)}, {vr(KT0,4)}, {vr(Q+4*q,4)}, 0")
    A("s_nop 7")
    A("s_nop 0")
    lane_max_all([T0[q] + r for q in range(4) for r in range(8)], vT, vT2)
    A(f"v_sub_f32 v{NEG}, 0, v{vT}")
    A(f"v_sub_f32 v{NEG+1}, 0, v{vT}")
    for r in range(2, 16, 2): A(f"v_pk_mov_b32 v[{NEG+r}:{NEG+r+1}], v[{NEG}:{NEG+1}], v[{NEG}:{NEG+1}] op_sel:[0,1]")
    A(f"s_waitcnt vmcnt({3*(D-1)})")
    A("s_nop 0")
    A(f"{MF} {vr(S0,16)}, {vr(SL[0],4)}, {vr(Q,4)}, {vr(NEG,16)}")
    if R == 4:
        A("s_nop 7")
        A("s_nop 3")
    else:
        for q in (2, 3):
            for r in range(0, 10, 2): A(f"v_pk_mov_b32 v[{O+16*q+r}:{O+16*q+r+1}], 0, 0")
        A("s_nop 1")
    stamp()
    if PROF: A("s_memtime s[68:69]")
    A.raw(".p2align 6")
    A.label("L_aloop")
    if PROF:
        A("s_waitcnt lgkmcnt(0)")
        A(f"s_add_u32 m0, s{sCnt}, 1")
        A("s_nop 0")
        A(f"v_writelane_b32 v255, s68, m0")
        A("s_memtime s[68:69]")
    for kb in range(R):
        for q in range(4):
            Sc, Sn = (S0, S1) if q % 2 == 0 else (S1, S0)
            cur, prv, nxt = SL[kb], SL[(kb - 1) % R], SL[(kb + 1) % R]
            Kq = cur if q < 3 else nxt
            nq = (q + 1) % 4
            Vp = cur if q > 0 else prv
            Op = O + 16 * ((q - 1) % 4); Oc = O + 16 * q
            ex = {}
            if q < 3: ex["X2"] = kv_load((kb + D) % R, q)
            if q == 0 and kb == CHK:
                ex["X1"] = "s_cbranch_vccnz L_afirst\nL_afirst_ret:"
            if q == 2: ex["X4"] = KADV[0]
            if q == 3:
                ex["X1"] = f"s_waitcnt vmcnt({3*(D-1)})"
                ex["X2"] = KADV[1]
                ex["X4"] = KADV[2]
                if kb == R - 1: ex["X4"] += f"\ns_sub_u32 s{sCnt}, s{sCnt}, 1"
            if "noload" in OPT.get("abl", ""):
                for x in ("X0", "X1", "X2", "X3", "X4"): ex.pop(x, None)
            if "nosalu" in OPT.get("abl", ""):
                for x in ("X1", "X2"): ex.pop(x, None)
            tile_code(Sc, f"{MF} {vr(Sn,16)}, {vr(Kq,4)}, {vr(Q+4*nq,4)}, {vr(NEG,16)}",
                      pv(Op, Vp + 8, Sn + 8), pv(Oc, cur + 4, Sc), ex)
    if CHK == R:
        A("s_cbranch_vccnz L_afirst")
    A("s_cbranch_scc0 L_aloop")
    A("s_nop 0")
    A(pv(O + 48, SL[R-1] + 8, S1 + 8))
    stamp()
    A(f"s_mul_i32 s{sT}, s{sW}, 4608")
    A(f"s_add_u32 s{sT}, s{sT}, {L_COMB}")
    A(f"s_xor_b32 s{sT2}, s{sW}, 2")
    A(f"s_mul_i32 s{sT2}, s{sT2}, 4608")
    A(f"s_add_u32 s{sT2}, s{sT2}, {L_COMB}")
    A(f"v_add_u32 v{vT}, s{sT}, v{vK}")
    A(f"v_lshlrev_b32 v{vT3}, 2, v{vL}")
    A(f"v_add_u32 v{vT2}, s{sT}, v{vT3}")
    A(f"v_add_u32 v7, s{sT2}, v{vK}")
    A(f"v_add_u32 v8, s{sT2}, v{vT3}")
    A(f"s_cmp_eq_u32 s{sJ}, 0")
    A("s_cbranch_scc1 L_a_kh0")
    for i in range(2):
        A(f"ds_write_b128 v{vT}, {vr(O+16*i,4)} offset:{i*2304}")
        A(f"ds_write_b128 v{vT}, {vr(O+16*i+4,4)} offset:{i*2304+1024}")
        A(f"ds_write_b32 v{vT2}, v{O+16*i+8} offset:{i*2304+2048}")
    for r in range(0, 8, 2): A(f"v_pk_mov_b32 v[{Q+r}:{Q+r+1}], v[{Q+8+r}:{Q+9+r}], v[{Q+8+r}:{Q+9+r}] op_sel:[0,1]")
    A("s_waitcnt lgkmcnt(0)")
    A("s_nop 2")
    for i in range(2):
        for r in range(0, 10, 2): A(f"v_pk_mov_b32 v[{O+16*i+r}:{O+16*i+r+1}], v[{O+32+16*i+r}:{O+33+16*i+r}], v[{O+32+16*i+r}:{O+33+16*i+r}] op_sel:[0,1]")
    A("s_branch L_a_x")
    A.label("L_a_kh0")
    A("s_nop 7")
    for i in range(2):
        A(f"ds_write_b128 v{vT}, {vr(O+32+16*i,4)} offset:{i*2304}")
        A(f"ds_write_b128 v{vT}, {vr(O+32+16*i+4,4)} offset:{i*2304+1024}")
        A(f"ds_write_b32 v{vT2}, v{O+32+16*i+8} offset:{i*2304+2048}")
    A.label("L_a_x")
    A("s_waitcnt vmcnt(0) lgkmcnt(0)")
    A("s_barrier")
    for i in range(2):
        A(f"ds_read_b128 {vr(S0+16*i,4)}, v7 offset:{i*2304}")
        A(f"ds_read_b128 {vr(S0+16*i+4,4)}, v7 offset:{i*2304+1024}")
        A(f"ds_read_b32 v{S0+16*i+8}, v8 offset:{i*2304+2048}")
    A(f"s_and_b32 s{sT4}, s{sW}, 1")
    A(f"s_lshl_b32 s{sA2}, s{sRB}, 1")
    A(f"s_add_u32 s{sA2}, s{sA2}, s{sT4}")
    A(f"s_lshl_b32 s{sA2}, s{sA2}, 6")
    A(f"s_lshl_b32 s{sT4}, s{sHG}, 2")
    A(f"s_add_u32 s{sA2}, s{sA2}, s{sT4}")
    A(f"s_lshl_b32 s{sT4}, s{sJ}, 1")
    A(f"s_add_u32 s{sA2}, s{sA2}, s{sT4}")
    A(f"s_lshl_b32 s{sA2}, s{sA2}, 10")
    A(f"s_add_u32 s{sA2}, s{sA2}, {WS_O:#x}")
    A(f"s_mov_b32 s{sKV}, 0")
    A(f"s_mov_b32 s{sCnt}, 64")
    A("s_waitcnt lgkmcnt(0)")
    for i in range(2):
        for r in range(9): A(f"v_add_f32 v{O+16*i+r}, v{O+16*i+r}, v{S0+16*i+r}")
    for i in range(2):
        range_check(O + 16 * i, f"L_a_slow{i}")
        A.label(f"L_a_ok{i}")
        normalize_store(O + 16 * i, P + 4 * i, sA2)
        if i == 0: A(f"s_add_u32 s{sA2}, s{sA2}, 1024")
    A("s_waitcnt vmcnt(0)")
    stamp()
    A("s_barrier")
    tail_dma()
    for m in range(4):
        A(f"s_waitcnt vmcnt({2*(3-m)})")
        A("s_barrier")
    if PROF:
        A("s_lshl_b32 s68, s2, 2")
        A(f"s_add_u32 s68, s68, s{sW}")
        A("s_lshl_b32 s68, s68, 8")
        A(f"s_add_u32 s68, s68, {WS_PROF + 0x80000:#x}")
        A(f"v_lshlrev_b32 v248, 2, v{vL}")
        A("buffer_store_dword v255, v248, s[12:15], s68 offen")
    stamp_flush()
    A("s_endpgm")
    A.label("L_afirst")
    team_wait(9, 1, 1)
    A("s_mov_b64 vcc, 0")
    A("s_branch L_aloop" if CHK == R else "s_branch L_afirst_ret")
    for i in range(2):
        slow_path(f"L_a_slow{i}", f"L_a_ok{i}", Q + 4 * i, O + 16 * i, sKV, sCnt, TB, False, SL[0], SL[0] + 4, None)

    NST[0] = 2
    if "bfirst" in OPT: A.raw("; @@A_END")
    A.label("L_bteam")
    A(f"s_setprio {OPT.get('bprio', 2)}")
    A(f"s_lshl_b32 s{sA2}, s{sJ}, 10")
    A("s_mov_b32 s6, 0x200000")
    A("s_mov_b32 s7, 0x00020000")
    A(f"s_bitcmp0_b32 s{sHG}, 1")
    A("s_cselect_b32 s42, 16384, 0")
    A("s_mov_b32 s43, 0x00020000")
    A(f"s_or_b32 s{sT3}, s2, s{sJ}")
    A(f"s_cmp_lt_u32 s{sHG}, 4")
    A("s_waitcnt lgkmcnt(0)")
    A(f"s_cselect_b32 s40, s{P_WK}, s{P_WV}")
    A(f"s_cselect_b32 s41, s{P_WK+1}, s{P_WV+1}")
    A(f"s_mov_b32 s4, s{P_X}")
    A(f"s_and_b32 s5, s{P_X+1}, 0xffff")
    A("s_and_b32 s41, s41, 0xffff")
    for kb in range(8):
        dma_x_plain(kb)
        if kb % 2 == 0:
            A(f"s_add_u32 m0, s{sA2}, {L_WKV + kb*2048}")
            A(f"s_add_u32 s{sT}, s{sA2}, {kb*2048}")
            A(f"buffer_load_dwordx4 v{vK}, s[40:43], s{sT} offen lds")
    A(f"s_or_b32 s{sT2}, s22, 1")
    srd(20, P_DBG, 256)
    srd(12, P_WS, WS_SIZE)
    A(f"s_cmp_lg_u32 s{sT3}, 1")
    A("s_cbranch_scc1 L_b_nononce")
    A(f"s_cmp_lg_u32 s2, 0")
    A("s_cbranch_scc1 L_b_nononce")
    A(f"v_mov_b32 v{vT}, s{sT2}")
    A(f"v_mov_b32 v{vT2}, 0")
    A("s_mov_b64 exec, 1")
    A(f"buffer_store_dword v{vT}, v{vT2}, s[20:23], 0 offen sc1")
    A("s_mov_b64 exec, -1")
    A.label("L_b_nononce")
    if "notouch" not in OPT:
        A(f"s_cmp_lg_u32 s{sJ}, 3")
        A("s_cbranch_scc1 L_b_notouch")
        A(f"v_lshlrev_b32 v{vT}, 21, v{vL}")
        if "touchfl" in OPT:
            A(f"s_lshl_b32 s{sT2}, s2, 7")
            A(f"s_add_u32 s{sT2}, s{sT2}, {WS_FL - 2048:#x}")
            A(f"v_writelane_b32 v{vT}, s{sT2}, 5")
            A("s_mov_b64 exec, 0x3f")
        else:
            A("s_mov_b64 exec, 0x1f")
        A(f"buffer_load_dword v254, v{vT}, s[12:15], 0 offen offset:2048 sc1")
        A("s_mov_b64 exec, -1")
        A.label("L_b_notouch")
    stamp()
    A(f"s_and_b32 s{sT4}, s{sHG}, 1")
    A(f"s_lshl_b32 s{sT2}, s{sT4}, 12")
    x_frag_addr(vXa, sT2)
    A(f"s_mov_b32 s{sT2}, {L_WKV}")
    tr_addr(vWa, 8, 32, 0, sT2)
    v_lane_addr()
    vN = 14
    A(f"v_mov_b32 v{vN+1}, 0")
    def nonce_load(): A(f"buffer_load_dword v{vN}, v{vN+1}, s[20:23], 0 offen sc1")
    def nonce_wait():
        l = A.uid("nw"); d = A.uid("nwd")
        A(f"s_mov_b32 s{sSP}, {SPIN}")
        A.label(l)
        A("s_waitcnt vmcnt(0)")
        A(f"v_readfirstlane_b32 s{sNON}, v{vN}")
        A("s_nop 1")
        A(f"s_cmp_lg_u32 s{sNON}, 0")
        A(f"s_cbranch_scc1 {d}")
        A(f"s_sub_u32 s{sSP}, s{sSP}, 1")
        A(f"s_cbranch_scc1 {d}")
        nonce_load()
        A(f"s_branch {l}")
        A.label(d)
    ACC = 16
    A(f"s_lshl_b32 s{sRT0}, s{sRB}, 1")
    A(f"s_add_u32 s{sA0}, s{sRT0}, s{sT4}")
    A(f"s_mul_i32 s{sA0}, s{sA0}, {TB}")
    A(f"s_lshl_b32 s{sA1}, s{sRB}, 2")
    A(f"s_add_u32 s{sA1}, s{sA1}, s{sT4}")
    A(f"s_lshr_b32 s{sT2}, s{sHG}, 2")
    A(f"s_lshl_b32 s{sT2}, s{sT2}, 1")
    A(f"s_add_u32 s{sA1}, s{sA1}, s{sT2}")
    A(f"s_lshl_b32 s{sA1}, s{sA1}, {3 if 'dense' in OPT else 5}")
    A(f"s_add_u32 s{sA1}, s{sA1}, {FL_KVA:#x}")
    A("s_waitcnt vmcnt(6)")
    kstamp()
    ksv = NST[0]
    team_add(4)
    A(f"s_cmp_lg_u32 s{sJ}, 0")
    A("s_cbranch_scc1 L_b_idle")
    A(f"s_bitcmp1_b32 s{sHG}, 1")
    A("s_cbranch_scc1 L_b_idle")
    def kv_unit(swap):
        NST[0] = ksv
        team_wait(4, 4, 1)
        kstamp()
        chain(0, 16, 64, ACC, 512, 128, swap)
        kstamp()
        A("s_waitcnt vmcnt(0)")
        kstamp()
        nonce_load()
        team_add(5)
        team_add(8)
        team_wait(8, 4, 1)
        kstamp()
        chain(16, 16, 64, ACC, 512, 128, swap)
        kstamp()
    A(f"s_cmp_ge_u32 s{sHG}, 4")
    A("s_cbranch_scc1 L_b_vunit")
    kv_unit(False)
    A("s_nop 7")
    A("s_nop 3")
    for r in range(4): A(f"v_cvt_pk_bf16_f32 v{64+r}, v{ACC+2*r}, v{ACC+2*r+1}")
    A(f"buffer_store_dwordx4 {vr(64,4)}, v{vK}, s[12:15], s{sA0} offen sc1")
    A("s_branch L_b_kvpub")
    A.label("L_b_vunit")
    A(f"v_lshrrev_b32 v{vT2}, 5, v{vL}")
    A(f"v_lshlrev_b32 v7, 8, v{vT2}")
    A(f"v_and_b32 v{vT2}, 15, v{vL}")
    A(f"v_lshl_add_u32 v7, v{vT2}, 4, v7")
    A(f"v_bfe_u32 v{vT2}, v{vL}, 4, 1")
    A(f"v_lshl_add_u32 v7, v{vT2}, 30, v7")
    A(f"v_cmp_gt_u32 s[38:39], 8, v{vL}")
    A(f"v_mov_b32 v{vT2}, {OOB:#x}")
    for r in range(4): A(f"v_mov_b32 v{100+r}, {ONES:#x}")
    A(f"v_cndmask_b32_e64 v8, v{vT2}, v{vK}, s[38:39]")
    A(f"buffer_store_dwordx4 {vr(100,4)}, v8, s[12:15], s{sA0} offen offset:2048 sc1")
    kv_unit(True)
    A("s_nop 7")
    A("s_nop 3")
    for s in range(2):
        for r in range(4): A(f"v_cvt_pk_bf16_f32 v{64+4*s+r}, v{ACC+8*s+2*r}, v{ACC+8*s+2*r+1}")
        A("s_nop 1")
        A(f"v_permlane32_swap_b32 v{64+4*s}, v{66+4*s}")
        A(f"v_permlane32_swap_b32 v{65+4*s}, v{67+4*s}")
        A(f"buffer_store_dwordx4 {vr(64+4*s,4)}, v7, s[12:15], s{sA0} offen offset:{1024+s*512} sc1")
    A.label("L_b_kvpub")
    nonce_wait()
    kstamp()
    flag_store(sA1)
    A("s_branch L_b_pdone")
    A.label("L_b_idle")
    if KVP:
        NST[0] = ksv
        for _ in range(6): kstamp()
    A(f"s_cmp_eq_u32 s{sJ}, 3")
    A("s_cbranch_scc1 L_b_idle1")
    A("s_waitcnt vmcnt(0)")
    A.label("L_b_idle1")
    A("s_waitcnt vmcnt(1)")
    nonce_load()
    team_add(5)
    team_add(8)
    nonce_wait()
    A(f"v_mov_b32 v{vT}, {L_CNT + 64}")
    A(f"ds_write_b32 v{vT}, v{vN}")
    A.label("L_b_pdone")
    stamp()
    if KVP: STOFF[0] = True
    srd(8, P_WQKV, 512 * 3072)
    srd(40, P_GATE, 1024)
    A(f"s_mov_b32 m0, {L_GATE}")
    A(f"s_lshl_b32 s{sHEAD}, s{sHG}, 2")
    A(f"buffer_load_dwordx4 v{vK}, s[40:43], 0 offen lds")
    A(f"s_add_u32 s{sHEAD}, s{sHEAD}, s{sJ}")
    vD1, vX0, vW1, vW2, vG = 7, 9, 13, 8, 15
    w128_dma_addr(vD1, 3072)
    A(f"s_lshl_b32 s{sA0}, s{sJ}, 10")
    A(f"s_lshl_b32 s{sT2}, s{sHG}, 7")
    A(f"s_add_u32 s{sA0}, s{sA0}, s{sT2}")
    A(f"s_lshl_b32 s{sA1}, s{sJ}, 14")
    A(f"s_add_u32 s{sA1}, s{sA1}, {L_WQ}")
    sP3W = 37
    A(f"s_add_u32 s{sP3W}, s{sA0}, {512*3072}")
    if ROT:
        A(f"s_and_b32 s{sT3}, s{sRB}, 3")
        A(f"s_cmp_eq_u32 s{sJ}, 3")
        A(f"s_cselect_b32 s{sT3}, 0, s{sT3}")
        A(f"s_lshl_b32 s{sT2}, s{sT3}, 14")
        A(f"s_mul_i32 s{sT3}, s{sT3}, {128*3072}")
        A(f"s_add_u32 s{sA0}, s{sA0}, s{sT3}")
    else:
        A(f"s_mov_b32 s{sT2}, 0")
    x_frag_addr(vX0, sT2)
    w128_tr_addr(vW1, 8, sA1)
    A(f"v_xor_b32 v{vW2}, 64, v{vW1}")
    AC, FR = 16, 80
    for r in range(0, 64, 2): A(f"v_pk_mov_b32 v[{AC+r}:{AC+r+1}], 0, 0")
    A(f"s_mov_b32 s{sCnt}, 4")
    A(f"s_cmp_eq_u32 s{sJ}, 3")
    A("s_cbranch_scc1 L_b_gwave")
    if "p3early" in OPT: team_wait(6, 4, 1)
    else: team_wait(7, 4, 2)
    stamp()
    if "nob" in OPT: A("s_branch L_b_skip")
    if "pf" in OPT:
        A(f"s_lshr_b32 s{sT}, s2, 3")
        A(f"s_and_b32 s{sT3}, s2, 1")
        A(f"s_lshl_b32 s{sT3}, s{sT3}, 9")
        A(f"s_mul_i32 s{sT2}, s{sT}, {16*3072}")
        A(f"s_add_u32 s{sT2}, s{sT2}, s{sT3}")
        A(f"s_lshl_b32 s{sT4}, s{sJ}, 10")
        A(f"s_add_u32 s{sT2}, s{sT2}, s{sT4}")
        A(f"v_lshrrev_b32 v{vT}, 2, v{vL}")
        A(f"v_and_b32 v{vT2}, 3, v{vL}")
        A(f"v_lshlrev_b32 v{vT2}, 7, v{vT2}")
        A(f"v_lshl_add_u32 v{vT3}, v{vT}, 10, v{vT2}")
        A(f"v_mul_u32_u24 v{vT}, 3072, v{vT}")
        A(f"v_add_u32 v{vT}, v{vT}, v{vT2}")
        A(f"buffer_load_dword v254, v{vT}, s[8:11], s{sT2} offen sc1")
        A(f"s_cmp_eq_u32 s{sJ}, 2")
        A("s_cbranch_scc1 L_b_nopf")
        A(f"s_cmp_eq_u32 s{sJ}, 0")
        A(f"s_cselect_b32 s40, s{P_BWO}, s{P_AWO}")
        A(f"s_cselect_b32 s41, s{P_BWO+1}, s{P_AWO+1}")
        A("s_and_b32 s41, s41, 0xffff")
        A(f"s_mov_b32 s42, {512*1024:#x}")
        A(f"s_lshl_b32 s{sT2}, s{sT}, 14")
        A(f"s_add_u32 s{sT2}, s{sT2}, s{sT3}")
        A(f"buffer_load_dword v254, v{vT3}, s[40:43], s{sT2} offen sc1")
        A.label("L_b_nopf")
    def p3_dma(slot):
        A(f"s_add_u32 m0, s{sA1}, {slot*2048}")
        A(f"s_add_u32 s{sT2}, s{sA0}, {8*3072}")
        A(f"buffer_load_dwordx4 v{vD1}, s[8:11], s{sA0} offen lds")
        A(f"s_add_u32 m0, s{sA1}, {slot*2048+1024}")
        A(f"s_add_u32 s{sA0}, s{sA0}, {16*3072}")
        A(f"buffer_load_dwordx4 v{vD1}, s[8:11], s{sT2} offen lds")
    def p3_wrap():
        A(f"s_cmp_ge_u32 s{sA0}, s{sP3W}")
        A(f"s_cselect_b32 s{sT2}, {512*3072}, 0")
        A(f"s_sub_u32 s{sA0}, s{sA0}, s{sT2}")
    def p3_rd(i):
        if "nop3rd" in OPT.get("abl", ""): return
        b = FR + 16 * (i & 1); sl = (i % 8) * 2048
        if i == 8:
            for q in range(4):
                A(f"v_add_u32 v{vX0+q}, 16384, v{vX0+q}")
                A(f"v_and_b32 v{vX0+q}, 0xffff, v{vX0+q}")
        A(f"ds_read_b64_tr_b16 v[{b}:{b+1}], v{vW1} offset:{sl}")
        A(f"ds_read_b64_tr_b16 v[{b+2}:{b+3}], v{vW1} offset:{sl+512}")
        A(f"ds_read_b128 v[{b+8}:{b+11}], v{vX0+(i&3)} offset:{((i%8)>>2)*8192}")
        A(f"ds_read_b128 v[{b+12}:{b+15}], v{vX0+(i&3)} offset:{((i%8)>>2)*8192+4096}")
        A(f"ds_read_b64_tr_b16 v[{b+4}:{b+5}], v{vW2} offset:{sl}")
        A(f"ds_read_b64_tr_b16 v[{b+6}:{b+7}], v{vW2} offset:{sl+512}")
    LA = int(OPT.get("p3d", 8))
    for s in range(LA): p3_dma(s)
    if OPT.get("il") != "2":
        A(f"s_waitcnt vmcnt({2*LA-2})")
        p3_rd(0)
    def p3_loop_il(name, swap):
        A.label(name)
        for i in range(8):
            b = FR + 16 * (i & 1)
            mark = len(A.lines); p3_rd(i + 1); rd = A.lines[mark:]; del A.lines[mark:]
            pre = [l for l in rd if "ds_read" not in l]; rd = [l for l in rd if "ds_read" in l]
            mf = []
            for ct in range(2):
                for ri in range(2):
                    a = AC + 16 * (2 * ct + ri); wv, xv = vr(b + 4 * ct, 4), vr(b + 8 + 4 * ri, 4)
                    mf.append(f"{MF} {vr(a,16)}, {xv if swap else wv}, {wv if swap else xv}, {vr(a,16)}")
            A("s_waitcnt lgkmcnt(0)")
            A(mf[0])
            if i == (8 - LA) % 8:
                p3_wrap()
                A(f"s_cmp_eq_u32 s{sCnt}, 1")
                A(f"s_cselect_b32 s{sA0}, {OOB:#x}, s{sA0}")
            p3_dma((i + LA) % 8)
            A(mf[1])
            for l in pre: A(l)
            A(f"s_waitcnt vmcnt({2*LA-2})")
            for l in rd[:3]: A(l)
            if PACE: A(f"s_nop {PACE-1}")
            A(mf[2])
            for l in rd[3:]: A(l)
            if PACE: A(f"s_nop {PACE-1}")
            A(mf[3])
        A(f"s_sub_u32 s{sCnt}, s{sCnt}, 1")
        A(f"s_cmp_lg_u32 s{sCnt}, 0")
        A(f"s_cbranch_scc1 {name}")
    def p3_loop_jit(name, swap):
        A.label(name)
        b = FR
        def mf(ct, ri):
            a = AC + 16 * (2 * ct + ri); wv, xv = vr(b + 4 * ct, 4), vr(b + 8 + 4 * ri, 4)
            if "nop3mf" not in OPT.get("abl", ""): A(f"{MF} {vr(a,16)}, {xv if swap else wv}, {wv if swap else xv}, {vr(a,16)}")
        for i in range(8):
            sl = i * 2048; xo = (i >> 2) * 8192
            A(f"s_waitcnt vmcnt({2*LA-2})")
            A(f"ds_read_b64_tr_b16 v[{b}:{b+1}], v{vW1} offset:{sl}")
            A(f"ds_read_b64_tr_b16 v[{b+2}:{b+3}], v{vW1} offset:{sl+512}")
            A(f"ds_read_b128 v[{b+8}:{b+11}], v{vX0+(i&3)} offset:{xo}")
            A("s_waitcnt lgkmcnt(0)")
            mf(0, 0)
            A(f"ds_read_b128 v[{b+12}:{b+15}], v{vX0+(i&3)} offset:{xo+4096}")
            A("s_waitcnt lgkmcnt(0)")
            mf(0, 1)
            A(f"ds_read_b64_tr_b16 v[{b+4}:{b+5}], v{vW2} offset:{sl}")
            A(f"ds_read_b64_tr_b16 v[{b+6}:{b+7}], v{vW2} offset:{sl+512}")
            A("s_waitcnt lgkmcnt(0)")
            mf(1, 1)
            if i == (8 - LA) % 8:
                p3_wrap()
                A(f"s_cmp_eq_u32 s{sCnt}, 1")
                A(f"s_cselect_b32 s{sA0}, {OOB:#x}, s{sA0}")
            p3_dma((i + LA) % 8)
            mf(1, 0)
        for q in range(4):
            A(f"v_add_u32 v{vX0+q}, 16384, v{vX0+q}")
            A(f"v_and_b32 v{vX0+q}, 0xffff, v{vX0+q}")
        A(f"s_sub_u32 s{sCnt}, s{sCnt}, 1")
        A(f"s_cmp_lg_u32 s{sCnt}, 0")
        A(f"s_cbranch_scc1 {name}")
    def p3_loop(name, swap):
        if OPT.get("il") == "2": return p3_loop_jit(name, swap)
        if OPT.get("il") == "1": return p3_loop_il(name, swap)
        A.label(name)
        for i in range(8):
            A(f"s_waitcnt vmcnt({2*LA-4})")
            p3_rd(i + 1)
            if i == (8 - LA) % 8:
                p3_wrap()
                A(f"s_cmp_eq_u32 s{sCnt}, 1")
                A(f"s_cselect_b32 s{sA0}, {OOB:#x}, s{sA0}")
            A("s_waitcnt lgkmcnt(6)")
            b = FR + 16 * (i & 1)
            n = 0
            for ct in range(2):
                for ri in range(2):
                    a = AC + 16 * (2 * ct + ri); wv, xv = vr(b + 4 * ct, 4), vr(b + 8 + 4 * ri, 4)
                    if "nop3mf" not in OPT.get("abl", ""): A(f"{MF} {vr(a,16)}, {xv if swap else wv}, {wv if swap else xv}, {vr(a,16)}")
                    if n == 0: p3_dma((i + LA) % 8)
                    elif PACE: A(f"s_nop {PACE-1}")
                    n += 1
        A(f"s_sub_u32 s{sCnt}, s{sCnt}, 1")
        A(f"s_cmp_lg_u32 s{sCnt}, 0")
        A(f"s_cbranch_scc1 {name}")
    PACE = int(OPT.get("pace", 0))
    A(f"s_cmp_eq_u32 s{sJ}, 2")
    A("s_cbranch_scc1 L_p3v")
    p3_loop("L_p3qk", False)
    svst = NST[0]
    stamp()
    A(f"s_lshl_b32 s{sKV}, s{sHG}, 8")
    A(f"s_add_u32 s{sKV}, s{sKV}, s{sRT0}")
    A(f"s_mul_i32 s{sKV}, s{sKV}, {TB}")
    A(f"s_add_u32 s{sKV}, s{sKV}, {WS_KVB:#x}")
    A(f"s_mov_b32 s{sT2}, {f2u(CSCALE):#x}")
    A(f"v_add_u32 v{vT3}, {L_QX}, v{vK}")
    A("s_waitcnt lgkmcnt(0)")
    A(f"s_cmp_eq_u32 s{sJ}, 1")
    A("s_cbranch_scc1 L_p3k")
    team_wait(7, 4, 2)
    for ct in range(2):
        for ri in range(2):
            for hh in range(2):
                a = AC + 16 * (2 * ct + ri) + 8 * hh; p = FR + 4 * ((2 * ri + hh) & 3)
                for r in range(8): A(f"v_mul_f32 v{a+r}, s{sT2}, v{a+r}")
                for r in range(4): A(f"v_cvt_pk_bf16_f32 v{p+r}, v{a+2*r}, v{a+2*r+1}")
                A(f"ds_write_b128 v{vT3}, {vr(p,4)} offset:{(4*ri + 2*ct + hh)*1024}")
        if ct == 0: A("s_waitcnt lgkmcnt(0)")
    A("s_waitcnt vmcnt(0) lgkmcnt(0)")
    A("s_branch L_p3done")
    A.label("L_p3k")
    for ct in range(2):
        for hh in range(2):
            for ri in range(2):
                a = AC + 16 * (2 * ct + ri) + 8 * hh; p = FR + 4 * (4 * ct + 2 * hh + ri)
                for r in range(4): A(f"v_cvt_pk_bf16_f32 v{p+r}, v{a+2*r}, v{a+2*r+1}")
                A(f"buffer_store_dwordx4 {vr(p,4)}, v{vK}, s[12:15], s{sKV} offen offset:{ri*TB} sc1")
            A(f"s_add_u32 s{sKV}, s{sKV}, {64*TB}")
    A("s_branch L_p3pub")
    A.label("L_p3v")
    p3_loop("L_p3vl", True)
    NST[0] = svst
    stamp()
    A(f"s_lshl_b32 s{sKV}, s{sHG}, 8")
    A(f"s_add_u32 s{sKV}, s{sKV}, s{sRT0}")
    A(f"s_mul_i32 s{sKV}, s{sKV}, {TB}")
    A(f"s_add_u32 s{sKV}, s{sKV}, {WS_KVB:#x}")
    A(f"s_mov_b32 s{sT3}, {64*TB}")
    A(f"v_lshrrev_b32 v{vT}, 4, v{vL}")
    A(f"v_mul_lo_u32 v{vT}, v{vT}, s{sT3}")
    A(f"v_bfe_u32 v{vT2}, v{vL}, 3, 1")
    A(f"v_mul_u32_u24 v{vT2}, {TB}, v{vT2}")
    A(f"v_add_u32 v{vT}, v{vT}, v{vT2}")
    A(f"v_and_b32 v{vT2}, 7, v{vL}")
    A(f"v_lshl_add_u32 v{vT3}, v{vT2}, 4, v{vT}")
    for r in range(4): A(f"v_mov_b32 v{120+r}, {ONES:#x}")
    A(f"v_bfe_u32 v{vT}, v{vL}, 4, 1")
    A(f"v_mul_lo_u32 v{vT}, v{vT}, s{sT3}")
    A(f"v_lshrrev_b32 v{vT2}, 5, v{vL}")
    A(f"v_lshl_add_u32 v{vT}, v{vT2}, 8, v{vT}")
    A(f"v_and_b32 v{vT2}, 15, v{vL}")
    A(f"v_lshl_add_u32 v{vT}, v{vT2}, 4, v{vT}")
    A("s_waitcnt lgkmcnt(0)")
    A(f"buffer_store_dwordx4 {vr(120,4)}, v{vT3}, s[12:15], s{sKV} offen offset:2048 sc1")
    for ct in range(2):
        for ri in range(2):
            for s in range(2):
                a = AC + 16 * (2 * ct + ri) + 8 * s; p = FR + 4 * (4 * ct + 2 * ri + s)
                for r in range(4): A(f"v_cvt_pk_bf16_f32 v{p+r}, v{a+2*r}, v{a+2*r+1}")
                A("s_nop 1")
                A(f"v_permlane32_swap_b32 v{p}, v{p+2}")
                A(f"v_permlane32_swap_b32 v{p+1}, v{p+3}")
                A(f"buffer_store_dwordx4 {vr(p,4)}, v{vT}, s[12:15], s{sKV} offen offset:{1024+ri*TB+s*512} sc1")
        if ct == 0: A(f"s_add_u32 s{sKV}, s{sKV}, {128*TB}")
    A.label("L_p3pub")
    A("s_waitcnt vmcnt(0)")
    team_add(0, "L_p3done", 2)
    A(f"s_lshl_b32 s{sT3}, s{sHG}, 5")
    A(f"s_add_u32 s{sT3}, s{sT3}, s{sRB}")
    A(f"s_lshl_b32 s{sT3}, s{sT3}, 5")
    A(f"s_add_u32 s{sT3}, s{sT3}, {FL_KVB:#x}")
    flag_store(sT3)
    A("s_branch L_p3done")
    A.label("L_b_gwave")
    NST[0] = svst - 1
    if "touchw" in OPT:
        A(f"v_lshlrev_b32 v{vT}, 16, v{vL}")
        A(f"buffer_load_dword v254, v{vT}, s[8:11], 0 offen sc1")
        srd(40, P_BWO, 512 * 1024)
        A(f"buffer_load_dword v254, v{vT}, s[40:43], 0 offen sc1")
        srd(40, P_AWO, 512 * 1024)
        A(f"buffer_load_dword v254, v{vT}, s[40:43], 0 offen sc1")
    A(f"v_bfe_u32 v{vT3}, v{vL}, 1, 4")
    A(f"v_min_u32 v{vT3}, {G1-1}, v{vT3}")
    A(f"v_add_u32 v{vT3}, s{sRB}, v{vT3}")
    A(f"v_and_b32 v{vT3}, 31, v{vT3}")
    A(f"v_and_b32 v{vT}, 32, v{vL}")
    A(f"v_add_u32 v{vT3}, v{vT3}, v{vT}")
    A(f"v_and_b32 v{vT}, 1, v{vT3}")
    A(f"v_lshrrev_b32 v{vT3}, 1, v{vT3}")
    A(f"v_lshl_add_u32 v{vT3}, v{vT3}, 2, v{vT}")
    A(f"v_and_b32 v{vT}, 1, v{vL}")
    A(f"v_lshl_add_u32 v{vT3}, v{vT}, 1, v{vT3}")
    A(f"v_lshlrev_b32 v{vT3}, 5, v{vT3}")
    if OPT.get("pstart", "5") == "5": team_wait(5, 8, 2)
    else: team_wait(6, 4, 1)
    A(f"s_mov_b32 s{sT3}, {FL_KVA:#x}")
    if KVP:
        NST[0] = 5
        kstamp()
    poll_flags(vT3, sT3, slp=int(OPT.get("pslp", 1)))
    if KVP:
        kstamp()
        A("s_waitcnt lgkmcnt(0)")
        A(f"s_sub_u32 s{70+2*NST[0]}, {SPIN}, s{sSP}")
        A(f"s_add_u32 s{70+2*NST[0]}, s{70+2*NST[0]}, s72")
        NST[0] = svst
    A("s_waitcnt lgkmcnt(0)")
    team_add(6)
    A(f"s_sleep {OPT.get('asl', 16)}")
    A(f"v_lshlrev_b32 v{vT}, 5, v{vL}")
    poll_flags(vT, sT3, n2=2048, slp=4)
    team_add(9)
    if "nob" in OPT: A("s_branch L_b_skip")
    stamp()
    A(f"v_lshrrev_b32 v{vW1}, 5, v{vL}")
    A(f"v_lshlrev_b32 v{vW1}, 4, v{vW1}")
    A(f"v_add_u32 v{vW1}, {L_GATE}, v{vW1}")
    A(f"s_mov_b32 s{sCnt}, 8")
    A.label("L_gloop")
    for i in range(4):
        A(f"ds_read_b128 {vr(FR,4)}, v{vW1} offset:{i*32}")
        A(f"ds_read_b128 {vr(FR+4,4)}, v{vX0+i}")
        A("s_waitcnt lgkmcnt(0)")
        A(f"{MF} {vr(AC,16)}, {vr(FR,4)}, {vr(FR+4,4)}, {vr(AC,16)}")
        A(f"ds_read_b128 {vr(FR+8,4)}, v{vX0+i} offset:4096")
        A(f"v_add_u32 v{vX0+i}, 8192, v{vX0+i}")
        A("s_waitcnt lgkmcnt(0)")
        A(f"{MF} {vr(AC+16,16)}, {vr(FR,4)}, {vr(FR+8,4)}, {vr(AC+16,16)}")
    A(f"v_add_u32 v{vW1}, 128, v{vW1}")
    A(f"s_sub_u32 s{sCnt}, s{sCnt}, 1")
    A(f"s_cmp_lg_u32 s{sCnt}, 0")
    A("s_cbranch_scc1 L_gloop")
    stamp()
    A("s_mov_b32 s38, 0")
    A("s_mov_b32 s39, -1")
    A("s_nop 5")
    A(f"v_cndmask_b32_e64 v{vG}, v{AC}, v{AC+16}, s[38:39]")
    A(f"v_mul_f32 v{vG}, {f2u(-math.log2(math.e)):#x}, v{vG}")
    A(f"v_exp_f32 v{vG}, v{vG}")
    A(f"v_lshlrev_b32 v{vT}, 2, v{vL}")
    A(f"v_add_f32 v{vG}, 1.0, v{vG}")
    A(f"v_rcp_f32 v{vG}, v{vG}")
    A(f"v_add_u32 v{vT}, {L_G}, v{vT}")
    A(f"ds_write_b32 v{vT}, v{vG}")
    A("s_waitcnt lgkmcnt(0)")
    A.label("L_p3done")
    team_add(1)
    QB = 96; OB = 104; KV = 136
    A(f"s_lshl_b32 s{sKV}, s{sHEAD}, 6")
    A(f"s_add_u32 s{sKV}, s{sKV}, s{sRT0}")
    A(f"s_mul_i32 s{sKV}, s{sKV}, {TB}")
    A(f"s_add_u32 s{sKV}, s{sKV}, {WS_KVB:#x}")
    sWL, sWG, sWN = 37, 54, 55
    srd(8, P_BWO, 512 * 1024)
    srd(20, P_AWO, 512 * 1024)
    vWd2 = 11
    w128_dma_addr(vWd2, 1024)
    A(f"s_lshl_b32 s{sWL}, s{sJ}, 14")
    A(f"s_lshl_b32 s{sWG}, s{sJ}, 17")
    A(f"s_lshl_b32 s{sT}, s{sHG}, 7")
    A(f"s_add_u32 s{sWG}, s{sWG}, s{sT}")
    A(f"s_mov_b32 s{sWN}, 0")
    sWI, sWT = 56, 57
    if ROT:
        A(f"s_and_b32 s{sWI}, s{sRB}, 7")
        A(f"s_lshl_b32 s{sWI}, s{sWI}, 1")
    else:
        A(f"s_mov_b32 s{sWI}, 0")
    def w_loop(name, srd_, lds):
        A(f"s_mov_b32 s{sWN}, 16")
        A.label(name)
        A(f"s_lshl_b32 s{sWT}, s{sWI}, 10")
        A(f"s_add_u32 s{sWT}, s{sWT}, s{sWL}")
        A(f"s_add_u32 m0, s{sWT}, {lds}")
        A(f"s_lshl_b32 s{sWT}, s{sWI}, 13")
        A(f"s_add_u32 s{sWT}, s{sWT}, s{sWG}")
        A(f"buffer_load_dwordx4 v{vWd2}, s[{srd_}:{srd_+3}], s{sWT} offen lds")
        A(f"s_add_u32 s{sWI}, s{sWI}, 1")
        A(f"s_and_b32 s{sWI}, s{sWI}, 15")
        A(f"s_sub_u32 s{sWN}, s{sWN}, 1")
        A(f"s_waitcnt vmcnt({OPT.get('wd', 5)})")
        A(f"s_cmp_lg_u32 s{sWN}, 0")
        A(f"s_cbranch_scc1 {name}")
    A(f"s_lshl_b32 s{sT2}, s{sJ}, 10")
    A(f"s_add_u32 s{sT2}, s{sT2}, {L_QX}")
    A(f"v_add_u32 v7, s{sT2}, v{vK}")
    A(f"s_and_b32 s{sT2}, s{sJ}, 1")
    A(f"s_lshl_b32 s{sT2}, s{sT2}, 7")
    A(f"s_add_u32 s{sT2}, s{sT2}, {L_G}")
    A(f"v_and_b32 v9, 31, v{vL}")
    A(f"v_lshl_add_u32 v9, v9, 2, s{sT2}")
    stamp()
    team_wait(1)
    w_loop("L_wB", 8, L_X)
    A(f"s_cmp_lg_u32 s{sJ}, 3")
    A("s_cbranch_scc1 L_b_nokvb")
    A(f"v_min_u32 v{vT3}, 4, v{vL}")
    A(f"v_sub_u32 v{vT3}, s{sRB}, v{vT3}")
    A(f"v_max_i32 v{vT3}, 0, v{vT3}")
    A(f"v_lshlrev_b32 v{vT3}, 5, v{vT3}")
    A(f"s_lshl_b32 s{sT3}, s{sHG}, 10")
    A(f"s_add_u32 s{sT3}, s{sT3}, {FL_KVB:#x}")
    poll_flags(vT3, sT3, slp=2)
    team_add(10)
    A.label("L_b_nokvb")
    team_wait(10, 1)
    stamp()
    A(f"ds_read_b128 {vr(QB,4)}, v7")
    A(f"ds_read_b128 {vr(QB+4,4)}, v7 offset:4096")
    A(f"ds_read_b32 v{vG}, v9")
    A(f"s_add_u32 s{sA0}, s{sKV}, {TB}")
    A(f"s_add_u32 s{sA1}, s{sRT0}, 1")
    PRE = int(OPT.get("bpre", 4))
    def bkv(u):
        b = KV + 12 * u; o = []
        if u >= 2:
            o.append(f"s_cmp_ge_u32 s{sA1}, {u}")
            o.append(f"s_cselect_b32 s{sT}, s{sA0}, {OOB:#x}")
        sa = sT if u >= 2 else sA0
        o.append(f"buffer_load_dwordx4 {vr(b,4)}, v{vK}, s[12:15], s{sa} offen sc1")
        o.append(f"buffer_load_dwordx4 {vr(b+4,4)}, v{vV}, s[12:15], s{sa} offen sc1")
        o.append(f"buffer_load_dwordx4 {vr(b+8,4)}, v{vV1}, s[12:15], s{sa} offen sc1")
        if u < 9: o.append(f"s_sub_u32 s{sA0}, s{sA0}, {TB}")
        return "\n".join(o)
    order = []
    for u in range(PRE):
        A(bkv(u)); order += [("k", u), ("v", u), ("v2", u)]
    vBig = 7
    A(f"v_mov_b32 v{vIDX}, 0xdddddddd")
    A(f"v_mov_b32 v{vBig}, {f2u(-1e38):#x}")
    mask_tuple(NEG, f"v{vBig}", "0")
    for i in range(2):
        for r in range(0, 10, 2): A(f"v_pk_mov_b32 v[{OB+16*i+r}:{OB+16*i+r+1}], 0, 0")
    A(f"s_waitcnt vmcnt({3*PRE-4}) lgkmcnt(0)")
    A(f"{MF} {vr(S0,16)}, {vr(KV,4)}, {vr(QB+4,4)}, {vr(NEG,16)}")
    A(f"{MF} {vr(S1,16)}, {vr(KV+12,4)}, {vr(QB,4)}, {vr(NEG,16)}")
    A("s_nop 7")
    A("s_nop 3")
    lane_max_all(range(S0, S0 + 32), vT, vT2)
    A(f"v_sub_f32 v{NEG}, 0, v{vT}")
    A(f"v_sub_f32 v{NEG+1}, 0, v{vT}")
    for r in range(0, 32, 2): A(f"v_pk_add_f32 v[{S0+r}:{S0+r+1}], v[{S0+r}:{S0+r+1}], v[{NEG}:{NEG+1}]")
    for r in range(2, 16, 2): A(f"v_pk_mov_b32 v[{NEG+r}:{NEG+r+1}], v[{NEG}:{NEG+1}], v[{NEG}:{NEG+1}] op_sel:[0,1]")
    items = [(1, 0), (0, 1), (1, 1)]
    for u in range(2, 9): items += [(0, u), (1, u)]
    items += [(0, 9)]
    CF = KV
    waited = 3
    def need(tag):
        nonlocal waited
        k_ = order.index(tag)
        if k_ > waited:
            waited = k_
            return f"s_waitcnt vmcnt({len(order)-1-k_})"
        return None
    WPI = int(OPT.get("wpi", 1))
    wsteps = 0; nextu = PRE
    for n, (q, u) in enumerate(items):
        Sc, Sn = (S0, S1) if n % 2 == 0 else (S1, S0)
        ex = {}
        qk = None
        late = []
        if n % 2 == 1 and nextu < 10:
            ex["X4"] = bkv(nextu); late = [("k", nextu), ("v", nextu), ("v2", nextu)]; nextu += 1
        if n >= 1 and n + 1 < len(items):
            q2, u2 = items[n + 1]
            far = (q2, u2) in ((1, 8), (0, 9))
            ex["X3"] = need(("k", u2))
            qk = f"{MF} {vr(Sn,16)}, {vr(KV+12*u2,4)}, {vr(QB+4*q2,4)}, {vr(CF if far else NEG,16)}"
        ex["X5"] = need(("v2", u))
        order += late
        pv1 = None
        if n >= 1:
            qp, up = items[n - 1]
            pv1 = pv(OB + 16 * qp, KV + 12 * up + 8, Sn + 8)
        exit_here = (q == 1 and u in (1, 3, 5, 7))
        if exit_here: ex["X4"] = f"s_cmp_eq_u32 s{sA1}, {u}"
        if "nobat" in OPT.get("abl", ""):
            for x in sorted(ex):
                if ex[x]: A(ex[x])
            A("s_sleep 3")
        else:
            tile_code(Sc, qk, pv1, pv(OB + 16 * q, KV + 12 * u + 4, Sc), ex)
        if exit_here: A(f"s_cbranch_scc1 L_b_exit{u}")
        if n == 6: mask_tuple(CF, f"v{NEG}", f"v{vBig}")
    A("s_nop 1")
    A(pv(OB, KV + 12 * 9 + 8, S1 + 8))
    A.label("L_b_fin")
    stamp()
    A(f"s_lshl_b32 s{sA2}, s{sRT0}, 6")
    A(f"s_add_u32 s{sA2}, s{sA2}, s{sHEAD}")
    A(f"s_lshl_b32 s{sA2}, s{sA2}, 10")
    A(f"s_add_u32 s{sA2}, s{sA2}, {WS_O + 32*1024:#x}")
    A(f"s_min_u32 s{sCnt}, s{sA1}, 9")
    A("s_nop 7")
    for i in range(2):
        if not OPT.get("abl"): range_check(OB + 16 * i, f"L_b_slow{i}")
        A.label(f"L_b_ok{i}")
        normalize_store(OB + 16 * i, P + 4 * i, sA2)
        if i == 0:
            A(f"s_add_u32 s{sA2}, s{sA2}, 65536")
            A(f"s_add_u32 s{sKV}, s{sKV}, {TB}")
            A(f"s_add_u32 s{sCnt}, s{sRT0}, 2")
            A(f"s_min_u32 s{sCnt}, s{sCnt}, 9")
    A("s_waitcnt vmcnt(0)")
    team_add(2, "L_b_ob_nl")
    A(f"s_lshl_b32 s{sT3}, s{sRB}, 8")
    A(f"s_lshl_b32 s{sT4}, s{sHG}, 5")
    A(f"s_add_u32 s{sT3}, s{sT3}, s{sT4}")
    A(f"s_add_u32 s{sT3}, s{sT3}, {FL_OB:#x}")
    flag_store(sT3)
    A.label("L_b_ob_nl")
    A(f"s_and_b32 s{sT4}, s{sJ}, 1")
    A(f"s_lshr_b32 s{sT3}, s{sJ}, 1")
    vWp = 13
    w128_tr_addr(vWp, 4, None, sT3)
    A(f"v_and_b32 v{vT3}, 7, v{vL}")
    A(f"v_lshlrev_b32 v{vT3}, 5, v{vT3}")
    A(f"s_lshl_b32 s{sT3}, s{sRB}, 8")
    A(f"s_add_u32 s{sT3}, s{sT3}, {FL_OB:#x}")
    w_loop("L_wA", 20, L_WQ)
    A("s_waitcnt vmcnt(0)")
    team_add(3)
    poll_flags(vT3, sT3, slp=2)
    stamp()
    OF = 128; WF = 64; ACB = 16; ACA = 32; OR = 80
    A(f"s_add_u32 s{sA0}, s{sRT0}, s{sT4}")
    A(f"s_lshl_b32 s{sA0}, s{sA0}, 16")
    A(f"s_add_u32 s{sA0}, s{sA0}, {WS_O + 32*1024:#x}")
    if "nop4b" in OPT.get("abl", ""): A("s_branch L_b_skip")
    OD = int(OPT.get("od", 8))
    def oload(s):
        if s and s % 4 == 0: A(f"s_add_u32 s{sA0}, s{sA0}, 4096")
        A(f"buffer_load_dwordx4 {vr(OR+4*(s%8),4)}, v{vK}, s[12:15], s{sA0} offen offset:{(s%4)*1024} sc1")
    for s in range(OD): oload(s)
    vWq = 12
    A(f"v_add_u32 v{vWq}, {L_WQ}, v{vWp}")
    team_wait(3)
    for s in range(32):
        vm = min(31, s + OD - 1) - s
        A(f"ds_read_b64_tr_b16 v[{WF}:{WF+1}], v{vWp} offset:{s*2048}")
        A(f"ds_read_b64_tr_b16 v[{WF+2}:{WF+3}], v{vWp} offset:{s*2048+1024}")
        A(f"ds_read_b64_tr_b16 v[{OF+4*s}:{OF+4*s+1}], v{vWq} offset:{s*2048}")
        A(f"ds_read_b64_tr_b16 v[{OF+4*s+2}:{OF+4*s+3}], v{vWq} offset:{s*2048+1024}")
        A(f"s_waitcnt vmcnt({vm}) lgkmcnt(2)")
        c = "0" if s == 0 else vr(ACB, 16)
        A(f"{MF} {vr(ACB,16)}, {vr(WF,4)}, {vr(OR+4*(s%8),4)}, {c}")
        if s + OD < 32: oload(s + OD)
    A(f"v_sub_f32 v{vT3}, 1.0, v{vG}")
    A("s_nop 7")
    A("s_nop 2")
    for r in range(16): A(f"v_mul_f32 v{ACB+r}, v{ACB+r}, v{vT3}")
    A.label("L_b_skip")
    A(f"s_and_b32 s{sT4}, s{sJ}, 1")
    srd(4, P_OUT, 2048 * 1024)
    vO = 8; vOa = 9
    A(f"v_and_b32 v{vT}, 31, v{vL}")
    A(f"v_lshlrev_b32 v{vT}, 10, v{vT}")
    A(f"v_lshrrev_b32 v{vT2}, 5, v{vL}")
    A(f"v_lshl_add_u32 v{vO}, v{vT2}, 4, v{vT}")
    A(f"s_add_u32 s{sKV}, s{sRT0}, s{sT4}")
    A(f"s_lshl_b32 s{sKV}, s{sKV}, 15")
    A(f"s_lshl_b32 s{sT}, s{sHG}, 7")
    A(f"s_add_u32 s{sKV}, s{sKV}, s{sT}")
    A(f"s_lshr_b32 s{sT}, s{sJ}, 1")
    A(f"s_lshl_b32 s{sT}, s{sT}, 6")
    A(f"s_add_u32 s{sKV}, s{sKV}, s{sT}")
    A(f"s_lshl_b32 s{sT}, s{sT4}, 15")
    A(f"v_add_u32 v{vOa}, s{sT}, v{vK}")
    if "touchout" in OPT:
        A(f"buffer_load_dword v{WF}, v{vO}, s[4:7], s{sKV} offen")
        A("s_waitcnt vmcnt(0)")
    A(f"s_lshl_b32 s{sA2}, s{sRB}, 8")
    A(f"s_lshl_b32 s{sT}, s{sHG}, 5")
    A(f"s_add_u32 s{sA2}, s{sA2}, s{sT}")
    A(f"s_add_u32 s{sA2}, s{sA2}, {FL_OA:#x}")
    A("s_waitcnt lgkmcnt(0)")
    stamp()
    A("s_barrier")
    A("s_barrier")
    A(f"s_cmp_lg_u32 s{sJ}, 0")
    A("s_cbranch_scc1 L_b_noflag")
    flag_store(sA2)
    A.label("L_b_noflag")
    tail_dma()
    for m in range(4):
        A(f"s_waitcnt vmcnt({2*(3-m)})")
        A("s_barrier")
        for i in range(8): A(f"ds_read_b128 {vr(WF+4*i,4)}, v{vOa} offset:{(8*m+i)*1024}")
        for i in range(8):
            s = 8 * m + i
            A(f"s_waitcnt lgkmcnt({7-i})")
            c = "0" if s == 0 else vr(ACA, 16)
            A(f"{MF} {vr(ACA,16)}, {vr(OF+4*s,4)}, {vr(WF+4*i,4)}, {c}")
    A("s_nop 7")
    A("s_nop 3")
    for r in range(16): A(f"v_fmac_f32 v{ACB+r}, v{ACA+r}, v{vG}")
    for r in range(8): A(f"v_cvt_pk_bf16_f32 v{WF+r}, v{ACB+2*r}, v{ACB+2*r+1}")
    A("s_nop 1")
    for g in range(2):
        A(f"v_permlane32_swap_b32 v{WF+4*g}, v{WF+4*g+2}")
        A(f"v_permlane32_swap_b32 v{WF+4*g+1}, v{WF+4*g+3}")
    for g in range(2): A(f"buffer_store_dwordx4 {vr(WF+4*g,4)}, v{vO}, s[4:7], s{sKV} offen offset:{g*32} {OPT.get('om', '').replace('_', ' ')}")
    if PROF: A("s_waitcnt vmcnt(0)")
    stamp_flush()
    A.label("L_exit")
    A("s_endpgm")
    for u in (1, 3, 5, 7):
        A.label(f"L_b_exit{u}")
        A("s_nop 0")
        A(pv(OB + 16, KV + 12 * u + 8, S0 + 8))
        A("s_branch L_b_fin")
    for i in range(2):
        slow_path(f"L_b_slow{i}", f"L_b_ok{i}", QB + 4 * i, OB + 16 * i, sKV, sCnt, -TB, True, KV, KV + 4, KV + 16)
    return k

def main():
    hdr = open("cdna_kernels/" + NAME + ".s.ref").read().split("\n")
    head = [l for l in hdr if l.startswith(";") and "@launch" not in l]
    out = "\n".join(head) + "\n"
    out += "; @launch grid=(256,1,1) block=(512,1,1) lds=163840\n"
    out += '.amdgcn_target "amdgcn-amd-amdhsa--gfx950"\n.text\n'
    k = gen()
    body = A.text()
    if "bfirst" in OPT:
        i = body.index("; @@A_BEGIN\n"); j = body.index("; @@A_END\n")
        body = body[:i] + body[j + len("; @@A_END\n"):] + body[i + len("; @@A_BEGIN\n"):j]
    body += "L_code_end:\n    s_endpgm\n"
    errs = check_hazards(body)
    for e in errs: print("HAZARD", e, file=sys.stderr)
    out += body
    out += f""".section .rodata,"a"
.p2align 6
.amdhsa_kernel {k}
  .amdhsa_next_free_vgpr 256
  .amdhsa_next_free_sgpr 102
  .amdhsa_accum_offset 256
  .amdhsa_group_segment_fixed_size 0
  .amdhsa_kernarg_size 96
  .amdhsa_user_sgpr_count 2
  .amdhsa_user_sgpr_kernarg_segment_ptr 1
  .amdhsa_system_sgpr_workgroup_id_x 1
.end_amdhsa_kernel
"""
    paths = [a for a in sys.argv[1:] if a.endswith(".s")]
    path = paths[0] if paths else "f12.s"
    open(path, "w").write(out)
    print("wrote", path, len(out), "bytes;", len(errs), "hazard warnings")
main()
```

```python
import sys, math, struct, re
from asmlib import Asm, vr, sr, check_hazards

NAME = "gated_mix__grouped_kv_mqa__sliding_block__prompt"
def f2u(x): return struct.unpack("<I", struct.pack("<f", x))[0]
CSCALE = 0.25 * math.log2(math.e)
OPT = dict(a[2:].split("=") if "=" in a else (a[2:], "1") for a in sys.argv[1:] if a.startswith("--"))
for _k, _v in (("bfirst", "1"), ("cpf", "1"), ("pace", "0"), ("p3d", "4"), ("bpre", "3"), ("od", "6"), ("il", "2"), ("tp", "one"), ("touchw", "1"), ("nrep", "8"), ("j4", "1"), ("pstart", "6"), ("touchfl", "1"), ("k3", "1")): OPT.setdefault(_k, _v)
PROF = "prof" in OPT

ROT = "norot" not in OPT
TB = 2176
WS_KVA = 0
WS_FL = 0x40000
NREP = int(OPT.get('nrep', 1))
FL_KVA, FL_KVB, FL_OB, FL_OA = (WS_FL + 0x10000 if NREP > 1 else WS_FL), WS_FL + 0x1000, WS_FL + 0x4000, (WS_FL + 0x20000 if 'oarep' in OPT else WS_FL + 0x6000)
WS_KVB = 0x100000
WS_O = 0x600000
WS_PROF = 15 << 20
WS_SIZE = 16 << 20
OOB = 0x40000000
ONES = 0x3F803F80
L_X, L_WQ, L_WKV, L_QX, L_GATE, L_CNT, L_COMB = 0, 65536, 131072, 147456, 155648, 156672, 131072
L_G = L_CNT + 256
SPIN = 50000
MS = [int(x) for x in OPT.get('ms', '8,8,8,8').split(',')]
MF = "v_mfma_f32_32x32x16_bf16"
SMF = "v_smfmac_f32_32x32x32_bf16"
vIDX = 10
A = Asm()

sW, sHG, sRB, sNON = 16, 17, 18, 19
sT, sT2, sT3, sT4 = 24, 25, 26, 27
sJ, sKV, sCnt, sHEAD, sRT0, sA0, sA1, sA2 = 28, 29, 30, 31, 32, 33, 34, 35
sSP = 36
P_X, P_WQ, P_WK, P_WV, P_AWO, P_WQKV, P_BWO, P_GATE, P_OUT, P_DBG, P_WS = 44, 46, 48, 50, 52, 56, 58, 60, 62, 64, 66
vL, vK, vV, vT, vT2, vT3 = 1, 2, 3, 4, 5, 6
vV1 = 0

def srd(d, ptr, size):
    A(f"s_mov_b32 s{d}, s{ptr}")
    A(f"s_and_b32 s{d+1}, s{ptr+1}, 0xffff")
    A(f"s_mov_b32 s{d+2}, {size:#x}")
    A(f"s_mov_b32 s{d+3}, 0x00020000")

NST = [0]
KVP = OPT.get("prof") in ("kv", "kvrt")
STOFF = [False]
def kstamp():
    if KVP: stamp(force=True)
def stamp(real=False, force=False):
    if not PROF: return
    if STOFF[0] and not force and not real: return
    i = NST[0]; NST[0] += 1
    assert 70 + 2 * i + 1 <= 101, "too many stamps"
    A(f"{'s_memrealtime' if real or OPT.get('prof') in ('rt', 'kvrt') else 's_memtime'} s[{70+2*i}:{71+2*i}]")
def stamp_flush():
    if not PROF: return
    stamp(force=True); stamp(real=True)
    A("s_waitcnt lgkmcnt(0)")
    A("s_lshl_b32 s68, s2, 4")
    A(f"s_add_u32 s68, s68, s{sW}")
    A("s_lshl_b32 s68, s68, 6")
    A(f"s_add_u32 s68, s68, {WS_PROF:#x}")
    A("v_mov_b32 v251, 0")
    for i in range(NST[0]):
        A(f"v_mov_b32 v250, s{70+2*i}")
        A(f"buffer_store_dword v250, v251, s[12:15], s68 offen offset:{4*i}")
    A("s_waitcnt vmcnt(0)")

def poll_flags(va, soff, n2=None, slp=2, vd=None, x4=False):
    vd = vd if vd is not None else vT2
    l = A.uid("poll"); d = A.uid("polld")
    A(f"s_mov_b32 s{sSP}, {SPIN}")
    A.label(l)
    if x4: A(f"buffer_load_dwordx4 {vr(vd,4)}, v{va}, s[12:15], s{soff} offen sc1")
    else: A(f"buffer_load_dword v{vd}, v{va}, s[12:15], s{soff} offen sc1")
    if n2 is not None: A(f"buffer_load_dword v{vd+1}, v{va}, s[12:15], s{soff} offen offset:{n2} sc1")
    A("s_waitcnt vmcnt(0)")
    A(f"v_cmp_ne_u32 vcc, s{sNON}, v{vd}")
    if n2 is not None or x4:
        A(f"v_cmp_ne_u32 s[38:39], s{sNON}, v{vd+(2 if x4 else 1)}")
        A("s_nop 1")
        A("s_or_b64 vcc, vcc, s[38:39]")
    else:
        A("s_nop 1")
    A(f"s_cbranch_vccz {d}")
    A("s_mov_b64 exec, vcc")
    A(f"s_sub_u32 s{sSP}, s{sSP}, 1")
    A(f"s_cbranch_scc1 {d}")
    A(f"s_sleep {slp}")
    A(f"s_branch {l}")
    A.label(d)
    A("s_mov_b64 exec, -1")

def flag_store(soff, nrep=1, sh=12):
    A(f"v_mov_b32 v{vT}, s{sNON}")
    if nrep > 1: A(f"v_lshlrev_b32 v{vT2}, {sh}, v{vL}")
    else: A(f"v_mov_b32 v{vT2}, 0")
    A(f"s_mov_b64 exec, {(1 << nrep) - 1}")
    A(f"buffer_store_dword v{vT}, v{vT2}, s[12:15], s{soff} offen sc1")
    A("s_mov_b64 exec, -1")

def team_add(cnt, last_label=None, n=4):
    A(f"v_mov_b32 v{vT}, {L_CNT + 4*cnt}")
    A(f"v_mov_b32 v{vT2}, 1")
    A("s_mov_b64 exec, 1")
    if last_label:
        A(f"ds_add_rtn_u32 v{vT2}, v{vT}, v{vT2}")
        A("s_waitcnt lgkmcnt(0)")
        A("s_mov_b64 exec, -1")
        A(f"v_readfirstlane_b32 s{sT}, v{vT2}")
        A("s_nop 1")
        A(f"s_cmp_lg_u32 s{sT}, {n-1}")
        A(f"s_cbranch_scc1 {last_label}")
    else:
        A(f"ds_add_u32 v{vT}, v{vT2}")
        A("s_mov_b64 exec, -1")

def team_wait(cnt, n=4, slp=2):
    l = A.uid("tw"); d = A.uid("twd")
    A(f"v_mov_b32 v{vT}, {L_CNT + 4*cnt}")
    A(f"s_mov_b32 s{sSP}, {SPIN}")
    A.label(l)
    A(f"ds_read_b32 v{vT2}, v{vT}")
    A("s_waitcnt lgkmcnt(0)")
    A(f"v_readfirstlane_b32 s{sT}, v{vT2}")
    A("s_nop 1")
    A(f"s_cmp_ge_u32 s{sT}, {n}")
    A(f"s_cbranch_scc1 {d}")
    A(f"s_sub_u32 s{sSP}, s{sSP}, 1")
    A(f"s_cbranch_scc1 {d}")
    A(f"s_sleep {slp}")
    A(f"s_branch {l}")
    A.label(d)

def pv(O, V, S):
    return f"{SMF} {vr(O,16)}, {vr(V,4)}, {vr(S,8)}, v{vIDX}"

def tile_code(Sc, qk, pv1, pv0, extra):
    d = {}
    for i in range(16): d[f"e{i}"] = f"v_exp_f32 v{Sc+i}, v{Sc+i}"
    d["PV1"] = pv1; d["QK"] = qk; d["PV0"] = pv0
    order = OPT.get("order", "e0 e1 PV1 X1 e2 e3 e4 X3 QK X2 e5 e6 e7 e8 e9 e10 X5 PV0 X4 e11 e12 e13 e14 e15").replace("_", " ")
    for x in order.split():
        if x[0] == "X":
            if extra.get(x): A(extra[x])
        elif d[x]: A(d[x])

NEG, S0, S1, P = 16, 32, 48, 64

def lane_max_all(regs, dst, tmp):
    regs = list(regs)
    A(f"v_max3_f32 v{dst}, v{regs[0]}, v{regs[1]}, v{regs[2]}")
    A(f"v_max3_f32 v{tmp}, v{regs[3]}, v{regs[4]}, v{regs[5]}")
    rest = regs[6:]; t = [dst, tmp]; n = 0
    while rest:
        a, b = rest.pop(0), rest.pop(0)
        A(f"v_max3_f32 v{t[n&1]}, v{t[n&1]}, v{a}, v{b}"); n += 1
    A(f"v_max_f32 v{dst}, v{dst}, v{tmp}")
    A(f"v_mov_b32 v{tmp}, v{dst}")
    A("s_nop 1")
    A(f"v_permlane32_swap_b32 v{dst}, v{tmp}")
    A(f"v_max_f32 v{dst}, v{dst}, v{tmp}")

def mask_tuple(dst, v_true, v_false):
    for r in range(16):
        c0 = (r & 3) + 8 * (r >> 2)
        p = 40 + 2 * (r & 1)
        A(f"s_mov_b32 s{p}, {(1 << c0) - 1:#x}")
        A(f"s_mov_b32 s{p+1}, {(1 << (c0 + 4)) - 1:#x}")
        A(f"v_cndmask_b32_e64 v{dst+r}, {v_false}, {v_true}, s[{p}:{p+1}]")

def range_check(O, bad):
    A(f"v_max3_f32 v{vT}, |v{O}|, |v{O+1}|, |v{O+2}|")
    A(f"v_max3_f32 v{vT2}, |v{O+3}|, |v{O+4}|, |v{O+5}|")
    A(f"v_max3_f32 v{vT}, v{vT}, |v{O+6}|, |v{O+7}|")
    A(f"s_mov_b32 s{sT}, {f2u(2.0**-60):#x}")
    A(f"s_mov_b32 s{sT2}, {f2u(2.0**40):#x}")
    A(f"s_mov_b32 s{sT3}, {f2u(2.0**120):#x}")
    A(f"v_add_f32 v{vT}, v{vT}, v{vT2}")
    A(f"v_cmp_nlt_f32 vcc, s{sT}, v{O+8}")
    A(f"v_cmp_ngt_f32 s[38:39], s{sT2}, v{O+8}")
    A(f"v_cmp_ngt_f32 s[40:41], s{sT3}, v{vT}")
    A("s_nop 1")
    A("s_or_b64 vcc, vcc, s[38:39]")
    A("s_or_b64 vcc, vcc, s[40:41]")
    A(f"s_cbranch_vccnz {bad}")

def slow_path(name, ret, Qr, O, s_base, s_n, step, masks, KB, VB, MK):
    lp1, lp2 = A.uid("sp1"), A.uid("sp2")
    vM, vM2, vBig = 7, 8, 9
    A.label(name)
    A("s_waitcnt vmcnt(0) lgkmcnt(0)")
    A(f"v_mov_b32 v{vBig}, {f2u(-1e38):#x}")
    def set_mask():
        if not masks:
            return
        l0, l8, ld = A.uid("m0"), A.uid("m8"), A.uid("md")
        A(f"s_cmp_eq_u32 s{sA1}, 0")
        A(f"s_cbranch_scc1 {l0}")
        A(f"s_cmp_eq_u32 s{sA1}, 8")
        A(f"s_cbranch_scc1 {l8}")
        for r in range(16): A(f"v_mov_b32 v{MK+r}, 0")
        A(f"s_branch {ld}")
        A.label(l0); mask_tuple(MK, f"v{vBig}", "0"); A(f"s_branch {ld}")
        A.label(l8); mask_tuple(MK, "0", f"v{vBig}")
        A.label(ld)
    C = vr(MK, 16) if masks else "0"
    A(f"v_mov_b32 v{vM}, v{vBig}")
    A(f"s_mov_b32 s{sA0}, s{s_base}")
    A(f"s_mov_b32 s{sA1}, 0")
    A.label(lp1)
    A(f"buffer_load_dwordx4 {vr(KB,4)}, v{vK}, s[12:15], s{sA0} offen sc1")
    set_mask()
    A("s_waitcnt vmcnt(0)")
    A("s_nop 1")
    A(f"{MF} {vr(S0,16)}, {vr(KB,4)}, {vr(Qr,4)}, {C}")
    A(f"s_add_u32 s{sA0}, s{sA0}, {step & 0xffffffff:#x}")
    A(f"s_add_u32 s{sA1}, s{sA1}, 1")
    A("s_nop 15")
    for i in range(8): A(f"v_max3_f32 v{vM}, v{vM}, v{S0+2*i}, v{S0+2*i+1}")
    A(f"s_cmp_lt_u32 s{sA1}, s{s_n}")
    A(f"s_cbranch_scc1 {lp1}")
    A(f"v_mov_b32 v{vM2}, v{vM}")
    A("s_nop 1")
    A(f"v_permlane32_swap_b32 v{vM}, v{vM2}")
    A(f"v_max_f32 v{vM}, v{vM}, v{vM2}")
    for r in range(16): A(f"v_mov_b32 v{O+r}, 0")
    A(f"s_mov_b32 s{sA0}, s{s_base}")
    A(f"s_mov_b32 s{sA1}, 0")
    A.label(lp2)
    A(f"buffer_load_dwordx4 {vr(KB,4)}, v{vK}, s[12:15], s{sA0} offen sc1")
    A(f"buffer_load_dwordx4 {vr(VB,4)}, v{vV}, s[12:15], s{sA0} offen sc1")
    A(f"buffer_load_dwordx4 {vr(VB+4,4)}, v{vV1}, s[12:15], s{sA0} offen sc1")
    set_mask()
    A("s_waitcnt vmcnt(0)")
    A("s_nop 1")
    A(f"{MF} {vr(S0,16)}, {vr(KB,4)}, {vr(Qr,4)}, {C}")
    A(f"s_add_u32 s{sA0}, s{sA0}, {step & 0xffffffff:#x}")
    A(f"s_add_u32 s{sA1}, s{sA1}, 1")
    A("s_nop 15")
    for r in range(16): A(f"v_sub_f32 v{S0+r}, v{S0+r}, v{vM}")
    for r in range(16): A(f"v_exp_f32 v{S0+r}, v{S0+r}")
    A("s_nop 2")
    A(pv(O, VB, S0))
    A(pv(O, VB + 4, S0 + 8))
    A(f"s_cmp_lt_u32 s{sA1}, s{s_n}")
    A("s_nop 15")
    A(f"s_cbranch_scc1 {lp2}")
    A(f"s_branch {ret}")

def normalize_store(O, PK, soff):
    A(f"v_rcp_f32 v{vT}, v{O+8}")
    A("s_nop 0")
    for r in range(8): A(f"v_mul_f32 v{O+r}, v{O+r}, v{vT}")
    for r in range(4): A(f"v_cvt_pk_bf16_f32 v{PK+r}, v{O+2*r}, v{O+2*r+1}")
    A(f"buffer_store_dwordx4 {vr(PK,4)}, v{vK}, s[12:15], s{soff} offen sc1")

def tail_dma():
    A(f"v_and_b32 v{vT}, 7, v{vL}")
    A(f"v_lshlrev_b32 v{vT}, 5, v{vT}")
    if "oarep" in OPT:
        OS = int(OPT["oarep"])
        A(f"v_and_b32 v{vT}, 7, v{vL}")
        A(f"v_lshlrev_b32 v{vT}, {OS}, v{vT}")
        A(f"s_lshl_b32 s{sT3}, s{sRB}, 3")
        A(f"s_add_u32 s{sT3}, s{sT3}, s{sHG}")
        A(f"s_lshl_b32 s{sT3}, s{sT3}, {OS+3}")
    else:
        A(f"s_lshl_b32 s{sT3}, s{sRB}, 8")
    A(f"s_add_u32 s{sT3}, s{sT3}, {FL_OA:#x}")
    A(f"s_and_b32 s{sT}, s{sW}, 1")
    A(f"s_lshr_b32 s{sT2}, s{sW}, 1")
    A(f"s_lshl_b32 s{sA0}, s{sT}, 15")
    A(f"s_lshl_b32 s{sA1}, s{sRB}, 1")
    A(f"s_add_u32 s{sA1}, s{sA1}, s{sT}")
    A(f"s_lshl_b32 s{sA1}, s{sA1}, 16")
    A(f"s_add_u32 s{sA1}, s{sA1}, {WS_O:#x}")
    for m in range(len(MS)):
        A(f"s_mul_i32 s{40+m}, s{sT2}, {MS[m] // 4 * 1024}")
        A(f"s_add_u32 s{40+m}, s{40+m}, {sum(MS[:m]) * 1024}")
    if OPT.get("tp", "all") == "one":
        l = A.uid("tp")
        A(f"s_cmp_lg_u32 s{sW}, 4")
        A(f"s_cbranch_scc1 {l}")
        poll_flags(vT, sT3, slp=1)
        A.label(l)
        A("s_barrier")
    else:
        poll_flags(vT, sT3, slp=1)
    stamp()
    for m in range(len(MS)):
        A(f"s_add_u32 m0, s{sA0}, s{40+m}")
        A(f"s_add_u32 s{sT}, s{sA1}, s{40+m}")
        for i in range(MS[m] // 4): A(f"buffer_load_dwordx4 v{vK}, s[12:15], s{sT} offen offset:{i*1024} sc1 lds")

def gen():
    k = NAME + "_kernel"
    A.raw(f".globl {k}\n.p2align 8\n.type {k},@function\n{k}:")
    A("s_cmp_ge_u32 s2, 256")
    A("s_cbranch_scc1 L_exit")
    stamp(real=True); stamp()
    if "hwmap0" in OPT:
        A("s_getreg_b32 s3, hwreg(HW_REG_HW_ID)")
        A("s_getreg_b32 s2, hwreg(HW_REG_XCC_ID)")
        A("s_and_b32 s2, s2, 7")
        A("s_bfe_u32 s4, s3, 0x30008")
        A("s_lshl_b32 s4, s4, 3")
        A("s_or_b32 s2, s2, s4")
        A("s_bfe_u32 s4, s3, 0x2000d")
        A("s_lshl_b32 s4, s4, 6")
        A("s_or_b32 s2, s2, s4")
    if "scr" in OPT:
        A("s_bfe_u32 s3, s2, 0x30003")
        A("s_xor_b32 s2, s2, s3")
    vXd, vWd, vXa, vWa = 7, 8, 9, 13
    A(f"v_lshrrev_b32 v{vT}, 6, v0")
    A(f"v_and_b32 v{vL}, 63, v0")
    A(f"v_readfirstlane_b32 s{sW}, v{vT}")
    A(f"v_lshlrev_b32 v{vT2}, 2, v{vL}")
    A(f"s_cmp_lg_u32 s{sW}, 3")
    A("s_cbranch_scc1 L_nozero")
    A(f"v_mov_b32 v{vT}, 0")
    A(f"v_add_u32 v{vT2}, {L_CNT}, v{vT2}")
    A(f"ds_write_b32 v{vT2}, v{vT}")
    A("s_waitcnt lgkmcnt(0)")
    A.label("L_nozero")
    A("s_load_dwordx16 s[44:59], s[0:1], 0")
    A("s_load_dwordx8 s[60:67], s[0:1], 64")
    A("s_memrealtime s[22:23]")
    A(f"s_and_b32 s{sHG}, s2, 1")
    A(f"s_lshl_b32 s{sHG}, s{sHG}, 2")
    if "oldmap" in OPT:
        A(f"s_bfe_u32 s{sT}, s2, 0x20003")
        A(f"s_add_u32 s{sHG}, s{sHG}, s{sT}")
        A(f"s_bfe_u32 s{sRB}, s2, 0x20001")
        A(f"s_lshl_b32 s{sRB}, s{sRB}, 3")
        A(f"s_lshr_b32 s{sT}, s2, 5")
        A(f"s_add_u32 s{sRB}, s{sRB}, s{sT}")
    else:
        A(f"s_bfe_u32 s{sT}, s2, 0x10003")
        A(f"s_add_u32 s{sHG}, s{sHG}, s{sT}")
        A(f"s_lshr_b32 s{sT}, s2, 7")
        A(f"s_lshl_b32 s{sT}, s{sT}, 1")
        A(f"s_add_u32 s{sHG}, s{sHG}, s{sT}")
        A(f"s_bfe_u32 s{sRB}, s2, 0x20001")
        A(f"s_lshl_b32 s{sRB}, s{sRB}, 3")
        A(f"s_bfe_u32 s{sT}, s2, 0x30004")
        A(f"s_add_u32 s{sRB}, s{sRB}, s{sT}")
    A(f"v_lshlrev_b32 v{vK}, 4, v{vL}")
    A("s_barrier")
    A(f"s_lshr_b32 s{sT}, s{sW}, 2")
    A(f"s_xor_b32 s{sT}, s{sT}, s{sHG}")
    A(f"s_and_b32 s{sT}, s{sT}, 1")
    A(f"s_xor_b32 s{sT}, s{sT}, 1")
    A(f"s_lshl_b32 s{sT}, s{sT}, 2")
    A(f"s_and_b32 s{sJ}, s{sW}, 3")
    A(f"s_add_u32 s{sT}, s{sT}, s{sJ}")
    A(f"s_lshl_b32 s{sT4}, s{sT}, 10")
    A(f"s_lshl_b32 s{sT}, s{sT}, 3")
    A(f"v_lshrrev_b32 v{vT}, 3, v{vL}")
    A(f"v_add_u32 v{vT}, s{sT}, v{vT}")
    A(f"v_lshrrev_b32 v{vT2}, 1, v{vT}")
    A(f"v_xor_b32 v{vT2}, v{vT2}, v{vL}")
    A(f"v_and_b32 v{vT2}, 7, v{vT2}")
    A(f"v_lshlrev_b32 v{vT2}, 4, v{vT2}")
    A(f"v_lshl_add_u32 v{vXd}, v{vT}, 10, v{vT2}")
    A(f"s_lshl_b32 s{sA0}, s{sRB}, 16")
    if ROT:
        A(f"s_and_b32 s37, s{sHG}, 2")
        A(f"s_add_u32 s37, s37, 4")
    else:
        A("s_mov_b32 s37, 0")
    if "bfirst" in OPT:
        A(f"s_cmp_lt_u32 s{sW}, 4")
        A("s_cbranch_scc1 L_ateam")
        A.raw("; @@A_BEGIN")
        A.label("L_ateam")
    else:
        A(f"s_cmp_ge_u32 s{sW}, 4")
        A("s_cbranch_scc1 L_bteam")

    sXR, sQR = 37, 54
    def dma_x_plain(kb):
        kb = [3, 0, 1, 2, 4, 5, 6, 7][kb] if "k3" in OPT else kb
        A(f"s_add_u32 m0, s{sT4}, {L_X + kb*8192 - kb*128}")
        A("s_nop 0")
        A(f"buffer_load_dwordx4 v{vXd}, s[4:7], s{sA0} offen offset:{kb*128} lds")
    def dma_x(kb):
        A(f"s_lshl_b32 s{sT2}, s{sXR}, 13")
        A(f"s_add_u32 m0, s{sT4}, s{sT2}")
        A(f"s_lshl_b32 s{sT2}, s{sXR}, 7")
        A(f"s_add_u32 s{sT2}, s{sT2}, s{sA0}")
        A(f"buffer_load_dwordx4 v{vXd}, s[4:7], s{sT2} offen lds")
        if kb < 7:
            A(f"s_add_u32 s{sXR}, s{sXR}, 1")
            A(f"s_and_b32 s{sXR}, s{sXR}, 7")

    def x_frag_addr(dst, s_off):
        A(f"v_and_b32 v{vT}, 31, v{vL}")
        A(f"v_lshrrev_b32 v{vT2}, 5, v{vL}")
        A(f"v_bfe_u32 v{vT3}, v{vL}, 1, 3")
        A(f"v_xor_b32 v{vT2}, v{vT2}, v{vT3}")
        A(f"v_lshl_add_u32 v{vT}, v{vT}, 7, s{s_off}")
        for q in range(4):
            A(f"v_xor_b32 v{vT3}, {2*q}, v{vT2}")
            A(f"v_lshl_add_u32 v{dst+q}, v{vT3}, 4, v{vT}")

    def tr_addr(dst, hmul, rowb, cgmul, s_off):
        A(f"v_lshrrev_b32 v{vT}, 5, v{vL}")
        A(f"v_bfe_u32 v{vT2}, v{vL}, 2, 2")
        A(f"v_mad_u32_u24 v{vT}, v{vT}, {hmul}, v{vT2}")
        A(f"v_and_b32 v{vT2}, 3, v{vL}")
        A(f"v_lshlrev_b32 v{vT2}, 3, v{vT2}")
        if cgmul:
            A(f"v_bfe_u32 v{vT3}, v{vL}, 4, 1")
            A(f"v_lshl_add_u32 v{vT2}, v{vT3}, {int(math.log2(cgmul))}, v{vT2}")
        A(f"v_lshl_add_u32 v{dst}, v{vT}, {int(math.log2(rowb))}, v{vT2}")
        A(f"v_add_u32 v{dst}, s{s_off}, v{dst}")

    def w128_dma_addr(dst, stride):
        A(f"v_lshrrev_b32 v{vT}, 3, v{vL}")
        if stride == 1024: A(f"v_lshlrev_b32 v{vT}, 10, v{vT}")
        else: A(f"v_mul_u32_u24 v{vT}, {stride}, v{vT}")
        A(f"v_lshrrev_b32 v{vT2}, 2, v{vL}")
        A(f"v_and_b32 v{vT2}, 4, v{vT2}")
        A(f"v_xor_b32 v{vT2}, v{vT2}, v{vL}")
        A(f"v_and_b32 v{vT2}, 7, v{vT2}")
        A(f"v_lshl_add_u32 v{dst}, v{vT2}, 4, v{vT}")

    def w128_tr_addr(dst, hmul, s_off, s_ct=None):
        A(f"v_lshrrev_b32 v{vT}, 5, v{vL}")
        A(f"v_bfe_u32 v{vT2}, v{vL}, 2, 2")
        A(f"v_mad_u32_u24 v{vT}, v{vT}, {hmul}, v{vT2}")
        A(f"v_and_b32 v{vT2}, 3, v{vL}")
        A(f"v_lshlrev_b32 v{vT2}, 3, v{vT2}")
        A(f"v_lshl_add_u32 v{vT}, v{vT}, 7, v{vT2}")
        A(f"v_bfe_u32 v{vT2}, v{vL}, 4, 1")
        A(f"v_lshl_add_u32 v{vT}, v{vT2}, 5, v{vT}")
        A(f"v_bfe_u32 v{vT2}, v{vL}, 3, 1")
        if s_ct is not None: A(f"v_xor_b32 v{vT2}, s{s_ct}, v{vT2}")
        A(f"v_lshl_add_u32 v{vT}, v{vT2}, 6, v{vT}")
        if s_off is None: A(f"v_mov_b32 v{dst}, v{vT}")
        else: A(f"v_add_u32 v{dst}, s{s_off}, v{vT}")

    def v_lane_addr():
        A(f"v_and_b32 v{vT}, 31, v{vL}")
        A(f"v_lshrrev_b32 v{vT2}, 5, v{vL}")
        A(f"v_lshlrev_b32 v{vT2}, 8, v{vT2}")
        A(f"v_lshl_add_u32 v{vV}, v{vT}, 4, v{vT2}")
        A(f"v_add_u32 v{vV}, 1024, v{vV}")
        A(f"v_mov_b32 v{vT2}, {OOB:#x}")
        A(f"v_cmp_gt_u32 s[38:39], 16, v{vT}")
        A(f"v_and_b32 v{vT}, 27, v{vT}")
        A(f"v_mov_b32 v{vT3}, 2048")
        A(f"v_cndmask_b32_e64 v{vV}, v{vT2}, v{vV}, s[38:39]")
        A(f"v_cmp_eq_u32 s[38:39], 16, v{vT}")
        A(f"v_add_u32 v{vV1}, 512, v{vV}")
        A("s_nop 0")
        A(f"v_cndmask_b32_e64 v{vV}, v{vV}, v{vT3}, s[38:39]")
        A(f"v_cndmask_b32_e64 v{vV1}, v{vV1}, v{vT3}, s[38:39]")

    def chain(s0, n, FR, ACC, kstride, second, swap):
        def rd(s):
            b = FR + 8 * (s % 4)
            A(f"ds_read_b64_tr_b16 v[{b}:{b+1}], v{vWa} offset:{s*kstride}")
            A(f"ds_read_b64_tr_b16 v[{b+2}:{b+3}], v{vWa} offset:{s*kstride+second}")
            A(f"ds_read_b128 v[{b+4}:{b+7}], v{vXa+(s&3)} offset:{(s>>2)*8192}")
        for s in range(s0, s0 + 3): rd(s)
        for s in range(s0, s0 + n):
            if s + 3 < s0 + n: rd(s + 3)
            A(f"s_waitcnt lgkmcnt({3 * (min(s + 3, s0 + n - 1) - s)})")
            b = FR + 8 * (s % 4)
            c = "0" if s == 0 else vr(ACC, 16)
            if swap: A(f"{MF} {vr(ACC,16)}, {vr(b+4,4)}, {vr(b,4)}, {c}")
            else:    A(f"{MF} {vr(ACC,16)}, {vr(b,4)}, {vr(b+4,4)}, {c}")

    R = int(OPT.get("ring", 4))
    D = int(OPT.get("depth", R - 1))
    G1 = int(OPT.get("g1", 2 * R - 1 if R == 4 else 7))
    CHK = G1 - D
    assert 0 < CHK <= R and D < R
    SL = [72, 84] + [176 + 12 * i for i in range(R - 2)]
    Q = 96; O = 112
    KT0 = 176 + 12 * (R - 2) if R == 4 else SL[R - 2]
    w128_dma_addr(vWd, 1024)
    A(f"s_lshl_b32 s{sA1}, s{sW}, 14")
    A(f"s_lshl_b32 s{sT}, s{sHG}, 7")
    A(f"s_add_u32 s{sA1}, s{sA1}, s{sT}")
    A(f"s_lshl_b32 s{sA2}, s{sW}, 11")
    A(f"s_add_u32 s{sA2}, s{sA2}, {L_WQ}")
    A("s_waitcnt lgkmcnt(0)")
    srd(4, P_X, 2048 * 1024)
    srd(8, P_WQ, 512 * 1024)
    if "cpf" in OPT:
        A(f"s_cmp_lg_u32 s{sW}, 3")
        A("s_cbranch_scc1 L_nocpf")
        A("s_getpc_b64 s[38:39]")
        A.label("L_pc")
        A(f"s_sub_u32 s38, s38, L_pc-{k}")
        A("s_subb_u32 s39, s39, 0")
        A(f"s_lshr_b32 s{sT}, s2, 3")
        A(f"v_lshlrev_b32 v{vT}, 5, v{vL}")
        A(f"v_add_u32 v{vT}, s{sT}, v{vT}")
        A(f"v_lshlrev_b32 v{vT}, 7, v{vT}")
        A(f"v_cmp_gt_u32 vcc, L_code_end-{k}, v{vT}")
        A(f"v_mov_b32 v{vT3}, s39")
        A(f"v_add_co_u32 v{vT}, s[40:41], s38, v{vT}")
        A("s_nop 1")
        A(f"v_addc_co_u32 v{vT2}, s[40:41], 0, v{vT3}, s[40:41]")
        A("s_mov_b64 exec, vcc")
        A(f"global_load_dword v254, v[{vT}:{vT2}], off")
        A("s_mov_b64 exec, -1")
        A.label("L_nocpf")
    if ROT: A(f"s_and_b32 s{sQR}, s{sRB}, 7")
    else: A(f"s_mov_b32 s{sQR}, 0")
    if "pf0" in OPT:
        A(f"s_lshr_b32 s{sT}, s2, 3")
        A(f"s_cmp_ge_u32 s{sW}, 2")
        A("s_cbranch_scc1 L_a_pfq")
        A(f"s_bfe_u32 s{sT2}, s2, 0x20001")
        A(f"s_lshl_b32 s{sT2}, s{sT2}, 19")
        A(f"s_lshl_b32 s{sT}, s{sT}, 14")
        A(f"s_add_u32 s{sT2}, s{sT2}, s{sT}")
        A(f"s_lshl_b32 s{sT}, s{sW}, 13")
        A(f"s_add_u32 s{sT2}, s{sT2}, s{sT}")
        A(f"v_lshlrev_b32 v{vT}, 7, v{vL}")
        A(f"buffer_load_dword v254, v{vT}, s[4:7], s{sT2} offen sc1")
        A("s_branch L_a_pfd")
        A.label("L_a_pfq")
        A(f"s_cmp_eq_u32 s{sW}, 3")
        A("s_cbranch_scc1 L_a_pfd")
        A(f"s_and_b32 s{sT2}, s2, 1")
        A(f"s_lshl_b32 s{sT2}, s{sT2}, 9")
        A(f"s_lshl_b32 s{sT}, s{sT}, 14")
        A(f"s_add_u32 s{sT2}, s{sT2}, s{sT}")
        A(f"v_lshrrev_b32 v{vT}, 2, v{vL}")
        A(f"v_lshlrev_b32 v{vT}, 10, v{vT}")
        A(f"v_and_b32 v{vT2}, 3, v{vL}")
        A(f"v_lshl_add_u32 v{vT}, v{vT2}, 7, v{vT}")
        A(f"buffer_load_dword v254, v{vT}, s[8:11], s{sT2} offen sc1")
        A.label("L_a_pfd")
    sRI = 55
    def a_setup():
        srd(12, P_WS, WS_SIZE)
        A(f"s_and_b32 s{sRI}, s{sW}, 1")
        A(f"s_lshl_b32 s{sT2}, s{sRI}, 12")
        x_frag_addr(vXa, sT2)
        A(f"s_lshr_b32 s{sJ}, s{sW}, 1")
        A(f"s_mov_b32 s{sT2}, {L_WQ}")
        w128_tr_addr(vWa, 8, sT2, sJ)
        v_lane_addr()
        for q in range(4):
            for r in range(0, 10, 2): A(f"v_pk_mov_b32 v[{O+16*q+r}:{O+16*q+r+1}], 0, 0")
    if OPT.get("alate", "1") == "1": a_setup()
    if OPT.get("ahold"):
        A(f"s_bitcmp1_b32 s{sHG}, 1")
        A("s_cbranch_scc1 L_a_go")
        team_wait(int(OPT["ahold"]), 4, 1)
        A.label("L_a_go")
    for kb in range(8):
        dma_x(kb)
        A(f"s_lshl_b32 s{sT2}, s{sQR}, 13")
        A(f"s_add_u32 m0, s{sA2}, s{sT2}")
        A(f"s_lshl_b32 s{sT2}, s{sQR}, 16")
        A(f"s_add_u32 s{sT2}, s{sT2}, s{sA1}")
        A(f"buffer_load_dwordx4 v{vWd}, s[8:11], s{sT2} offen lds")
        A(f"s_add_u32 m0, m0, 1024")
        A(f"s_add_u32 s{sT2}, s{sT2}, 8192")
        A(f"buffer_load_dwordx4 v{vWd}, s[8:11], s{sT2} offen lds")
        if kb < 7:
            A(f"s_add_u32 s{sQR}, s{sQR}, 1")
            A(f"s_and_b32 s{sQR}, s{sQR}, 7")
    stamp()
    if OPT.get("alate", "1") != "1": a_setup()
    A("s_waitcnt vmcnt(0)")
    team_add(5)
    team_wait(5, 8, 1)
    stamp()
    chain(0, 32, 200, S0, 2048, 512, False)
    stamp()
    A(f"s_mov_b32 s{sT2}, {f2u(CSCALE):#x}")
    A(f"s_lshl_b32 s{sT3}, s{sRI}, 12")
    A(f"s_lshl_b32 s{sT4}, s{sJ}, 11")
    A(f"s_add_u32 s{sT4}, s{sT4}, s{sT3}")
    A(f"s_add_u32 s{sT4}, s{sT4}, {L_QX}")
    A(f"s_add_u32 s{sT3}, s{sT3}, {L_QX}")
    A(f"v_add_u32 v{vT}, s{sT4}, v{vK}")
    A(f"v_add_u32 v{vT3}, s{sT3}, v{vK}")
    sKB, sKE = 37, 54
    A(f"s_mul_i32 s{sKB}, s{sJ}, {32*TB}")
    A(f"s_add_u32 s{sKE}, s{sKB}, {32*TB}")
    A(f"s_mul_i32 s{sA0}, s{sRB}, {TB}")
    A(f"s_add_u32 s{sKV}, s{sKB}, s{sA0}")
    for r in range(0, 4, 2): A(f"v_pk_mov_b32 v[{SL[R-1]+8+r}:{SL[R-1]+9+r}], 0, 0")
    assert D < R - 1 or R == 4
    A(f"v_mov_b32 v{vIDX}, 0xdddddddd")
    A("s_nop 0")
    for r in range(16): A(f"v_mul_f32 v{S0+r}, s{sT2}, v{S0+r}")
    for r in range(8): A(f"v_cvt_pk_bf16_f32 v{S1+r}, v{S0+2*r}, v{S0+2*r+1}")
    A(f"ds_write_b128 v{vT}, {vr(S1,4)}")
    A(f"ds_write_b128 v{vT}, {vr(S1+4,4)} offset:1024")
    A("s_waitcnt lgkmcnt(0)")
    team_add(6)
    stamp()
    team_wait(11, 1, 1)
    stamp()
    def kv_load(slot, part):
        b = SL[slot]
        m = "" if "plain" in OPT else "sc1"
        if part == 0: return f"buffer_load_dwordx4 {vr(b,4)}, v{vK}, s[12:15], s{sKV} offen {m}"
        if part == 1: return f"buffer_load_dwordx4 {vr(b+4,4)}, v{vV}, s[12:15], s{sKV} offen {m}"
        return f"buffer_load_dwordx4 {vr(b+8,4)}, v{vV1}, s[12:15], s{sKV} offen {m}"
    KADV = [f"s_add_u32 s{sKV}, s{sKV}, {TB}", f"s_cmp_eq_u32 s{sKV}, s{sKE}", f"s_cselect_b32 s{sKV}, s{sKB}, s{sKV}"]
    A(f"buffer_load_dwordx4 {vr(KT0,4)}, v{vK}, s[12:15], s{sA0} offen sc1")
    for t in range(D):
        for part in range(3): A(kv_load(t, part))
        for x in KADV: A(x)
    team_wait(6, 4, 1)
    A(f"s_lshl_b32 s{sT2}, s{sJ}, 11")
    A(f"v_add_u32 v8, s{sT2}, v{vT3}")
    A(f"v_xor_b32 v7, 2048, v8")
    for q in range(4): A(f"ds_read_b128 {vr(Q+4*q,4)}, v{7 + q//2} offset:{(q&1)*1024}")
    A(f"s_mul_i32 s{sT2}, s{sW}, 4608")
    A(f"s_add_u32 s{sT2}, s{sT2}, {L_COMB}")
    A(f"s_xor_b32 s{sT3}, s{sW}, 2")
    A(f"s_mul_i32 s{sT3}, s{sT3}, 4608")
    A(f"s_add_u32 s{sT3}, s{sT3}, {L_COMB}")
    A(f"v_lshlrev_b32 v14, 2, v{vL}")
    A(f"v_add_u32 v11, s{sT2}, v{vK}")
    A(f"v_add_u32 v12, s{sT2}, v14")
    A(f"v_add_u32 v13, s{sT3}, v{vK}")
    A(f"v_add_u32 v14, s{sT3}, v14")
    A(f"s_lshl_b32 s{sA2}, s{sRB}, 1")
    A(f"s_add_u32 s{sA2}, s{sA2}, s{sRI}")
    A(f"s_lshl_b32 s{sA2}, s{sA2}, 6")
    A(f"s_lshl_b32 s{sT4}, s{sHG}, 2")
    A(f"s_add_u32 s{sA2}, s{sA2}, s{sT4}")
    A(f"s_lshl_b32 s{sT4}, s{sJ}, 1")
    A(f"s_add_u32 s{sA2}, s{sA2}, s{sT4}")
    A(f"s_lshl_b32 s{sA2}, s{sA2}, 10")
    A(f"s_add_u32 s{sA2}, s{sA2}, {WS_O:#x}")
    A(f"v_mov_b32 v{vT3}, {L_CNT + 64}")
    A(f"ds_read_b32 v{vT3}, v{vT3}")
    A(f"s_mov_b32 s{sCnt}, {32 // R - 1}")
    A("s_mov_b64 vcc, -1")
    A("s_waitcnt lgkmcnt(0)")
    team_add(7)
    A(f"v_readfirstlane_b32 s{sNON}, v{vT3}")
    A(f"s_waitcnt vmcnt({3*D})")
    T0 = [S0, S1, KT0 + 4, KT0 + 20] if R == 4 else [S0, S1, O + 32, O + 48]
    for q in range(4): A(f"{MF} {vr(T0[q],16)}, {vr(KT0,4)}, {vr(Q+4*q,4)}, 0")
    A("s_nop 7")
    A("s_nop 0")
    lane_max_all([T0[q] + r for q in range(4) for r in range(4)], vT, vT2)
    A(f"v_sub_f32 v{NEG}, 0, v{vT}")
    A(f"v_sub_f32 v{NEG+1}, 0, v{vT}")
    for r in range(2, 16, 2): A(f"v_pk_mov_b32 v[{NEG+r}:{NEG+r+1}], v[{NEG}:{NEG+1}], v[{NEG}:{NEG+1}] op_sel:[0,1]")
    A(f"s_waitcnt vmcnt({3*(D-1)})")
    A("s_nop 0")
    A(f"{MF} {vr(S0,16)}, {vr(SL[0],4)}, {vr(Q,4)}, {vr(NEG,16)}")
    if R == 4:
        A("s_nop 7")
        A("s_nop 3")
    else:
        for q in (2, 3):
            for r in range(0, 10, 2): A(f"v_pk_mov_b32 v[{O+16*q+r}:{O+16*q+r+1}], 0, 0")
        A("s_nop 1")
    stamp()
    if PROF: A("s_memtime s[68:69]")
    A.raw(".p2align 6")
    A.label("L_aloop")
    if PROF:
        A("s_waitcnt lgkmcnt(0)")
        A(f"s_add_u32 m0, s{sCnt}, 1")
        A("s_nop 0")
        A(f"v_writelane_b32 v255, s68, m0")
        A("s_memtime s[68:69]")
    for kb in range(R):
        for q in range(4):
            Sc, Sn = (S0, S1) if q % 2 == 0 else (S1, S0)
            cur, prv, nxt = SL[kb], SL[(kb - 1) % R], SL[(kb + 1) % R]
            Kq = cur if q < 3 else nxt
            nq = (q + 1) % 4
            Vp = cur if q > 0 else prv
            Op = O + 16 * ((q - 1) % 4); Oc = O + 16 * q
            ex = {}
            if q < 3: ex["X2"] = kv_load((kb + D) % R, q)
            if q == 0 and kb == CHK:
                ex["X1"] = "s_cbranch_vccnz L_afirst\nL_afirst_ret:"
            if q == 2: ex["X4"] = KADV[0]
            if q == 3:
                ex["X1"] = f"s_waitcnt vmcnt({3*(D-1)})"
                ex["X2"] = KADV[1]
                ex["X4"] = KADV[2]
                if kb == R - 1: ex["X4"] += f"\ns_sub_u32 s{sCnt}, s{sCnt}, 1"
            if "noload" in OPT.get("abl", ""):
                for x in ("X0", "X1", "X2", "X3", "X4"): ex.pop(x, None)
            if "nosalu" in OPT.get("abl", ""):
                for x in ("X1", "X2"): ex.pop(x, None)
            tile_code(Sc, f"{MF} {vr(Sn,16)}, {vr(Kq,4)}, {vr(Q+4*nq,4)}, {'0' if 'c0' in OPT.get('abl', '') else vr(NEG,16)}",
                      pv(Op, Vp + 8, Sn + 8), pv(Oc, cur + 4, Sc), ex)
    if CHK == R:
        A("s_cbranch_vccnz L_afirst")
    A("s_cbranch_scc0 L_aloop")
    A("s_nop 0")
    A(pv(O + 48, SL[R-1] + 8, S1 + 8))
    for i in range(2):
        A(f"ds_write_b128 v11, {vr(O+16*i,4)} offset:{i*2304}")
        A(f"ds_write_b128 v11, {vr(O+16*i+4,4)} offset:{i*2304+1024}")
        A(f"ds_write_b32 v12, v{O+16*i+8} offset:{i*2304+2048}")
    stamp()
    A(f"s_mov_b32 s{sKV}, 0")
    A(f"s_mov_b32 s{sCnt}, 64")
    A("s_waitcnt lgkmcnt(0)")
    A("s_barrier")
    for i in range(2):
        A(f"ds_read_b32 v{S0+16*i+8}, v14 offset:{i*2304+2048}")
        A(f"ds_read_b128 {vr(S0+16*i,4)}, v13 offset:{i*2304}")
        A(f"ds_read_b128 {vr(S0+16*i+4,4)}, v13 offset:{i*2304+1024}")
    OK_ = O + 32
    def fin(i):
        o = OK_ + 16 * i; t = O + 16 * i
        A(f"v_rcp_f32 v{t+8}, v{o+8}")
        A("s_nop 0")
        for r in range(8): A(f"v_mul_f32 v{t+r}, v{o+r}, v{t+8}")
        for r in range(4): A(f"v_cvt_pk_bf16_f32 v{P+4*i+r}, v{t+2*r}, v{t+2*r+1}")
        A(f"buffer_store_dwordx4 {vr(P+4*i,4)}, v{vK}, s[12:15], s{sA2} offen offset:{i*1024} sc1")
    for i in range(2):
        o = OK_ + 16 * i
        A(f"s_waitcnt lgkmcnt({3*(1-i)})")
        A(f"v_add_f32 v{o+8}, v{o+8}, v{S0+16*i+8}")
        for r in range(0, 8, 2): A(f"v_pk_add_f32 v[{o+r}:{o+r+1}], v[{o+r}:{o+r+1}], v[{S0+16*i+r}:{S0+16*i+r+1}]")
        fin(i)
    for i in range(2):
        range_check(OK_ + 16 * i, f"L_a_slow{i}")
        A.label(f"L_a_ok{i}")
    A("s_waitcnt vmcnt(0)")
    stamp()
    A("s_barrier")
    tail_dma()
    for m in range(len(MS)):
        A(f"s_waitcnt vmcnt({sum(MS[m+1:]) // 4})")
        A("s_barrier")
    if PROF:
        A("s_lshl_b32 s68, s2, 2")
        A(f"s_add_u32 s68, s68, s{sW}")
        A("s_lshl_b32 s68, s68, 8")
        A(f"s_add_u32 s68, s68, {WS_PROF + 0x80000:#x}")
        A(f"v_lshlrev_b32 v248, 2, v{vL}")
        A("buffer_store_dword v255, v248, s[12:15], s68 offen")
    stamp_flush()
    A("s_endpgm")
    A.label("L_afirst")
    team_wait(9, 1, 1)
    A("s_mov_b64 vcc, 0")
    A("s_branch L_aloop" if CHK == R else "s_branch L_afirst_ret")
    for i in range(2):
        slow_path(f"L_a_slow{i}", f"L_a_re{i}", Q + 8 + 4 * i, OK_ + 16 * i, sKV, sCnt, TB, False, SL[0], SL[0] + 4, None)
        A.label(f"L_a_re{i}")
        fin(i)
        A(f"s_branch L_a_ok{i}")

    NST[0] = 2
    if "bfirst" in OPT: A.raw("; @@A_END")
    A.label("L_bteam")
    A(f"s_setprio {OPT.get('bprio', 2)}")
    A(f"s_lshl_b32 s{sA2}, s{sJ}, 10")
    A("s_mov_b32 s6, 0x200000")
    A("s_mov_b32 s7, 0x00020000")
    A(f"s_bitcmp0_b32 s{sHG}, 1")
    A("s_cselect_b32 s42, 16384, 0")
    A("s_mov_b32 s43, 0x00020000")
    A(f"s_or_b32 s{sT3}, s2, s{sJ}")
    A(f"s_cmp_lt_u32 s{sHG}, 4")
    A("s_waitcnt lgkmcnt(0)")
    A(f"s_cselect_b32 s40, s{P_WK}, s{P_WV}")
    A(f"s_cselect_b32 s41, s{P_WK+1}, s{P_WV+1}")
    A(f"s_mov_b32 s4, s{P_X}")
    A(f"s_and_b32 s5, s{P_X+1}, 0xffff")
    A("s_and_b32 s41, s41, 0xffff")
    if "k0st" in OPT: kstamp()
    if "tfirst" in OPT:
        A(f"s_bitcmp0_b32 s{sHG}, 1")
        A("s_cbranch_scc1 L_b_notf")
        A(f"s_cmp_lt_u32 s{sJ}, 2")
        A(f"s_cselect_b32 s8, s{P_WK}, s{P_WS}")
        A(f"s_cselect_b32 s9, s{P_WK+1}, s{P_WS+1}")
        A(f"s_cmp_eq_u32 s{sJ}, 1")
        A(f"s_cselect_b32 s8, s{P_WV}, s8")
        A(f"s_cselect_b32 s9, s{P_WV+1}, s9")
        A(f"s_cmp_eq_u32 s{sJ}, 2")
        A(f"s_cselect_b32 s8, s{P_DBG}, s8")
        A(f"s_cselect_b32 s9, s{P_DBG+1}, s9")
        A("s_and_b32 s9, s9, 0xffff")
        A("s_mov_b32 s10, 256")
        A("s_mov_b32 s11, 0x00020000")
        A(f"v_mov_b32 v{vT}, 128")
        A("s_mov_b64 exec, 1")
        A(f"buffer_load_dword v254, v{vT}, s[8:11], 0 offen sc1")
        A("s_mov_b64 exec, -1")
        A.label("L_b_notf")
    for kb in range(8):
        dma_x_plain(kb)
        if "k0st" in OPT and kb in (0, 1): kstamp()
        if kb % 2 == 0:
            A(f"s_add_u32 m0, s{sA2}, {L_WKV + kb*2048}")
            A(f"s_add_u32 s{sT}, s{sA2}, {kb*2048}")
            A(f"buffer_load_dwordx4 v{vK}, s[40:43], s{sT} offen lds")
    A(f"s_or_b32 s{sT2}, s22, 1")
    srd(20, P_DBG, 256)
    srd(12, P_WS, WS_SIZE)
    A(f"s_cmp_lg_u32 s{sT3}, 1")
    A("s_cbranch_scc1 L_b_nononce")
    A(f"s_cmp_lg_u32 s2, 0")
    A("s_cbranch_scc1 L_b_nononce")
    A(f"v_mov_b32 v{vT}, s{sT2}")
    A(f"v_mov_b32 v{vT2}, 0")
    A("s_mov_b64 exec, 1")
    A(f"buffer_store_dword v{vT}, v{vT2}, s[20:23], 0 offen sc1")
    A("s_mov_b64 exec, -1")
    A.label("L_b_nononce")
    if "notouch" not in OPT:
        A(f"s_cmp_lg_u32 s{sJ}, 3")
        A("s_cbranch_scc1 L_b_notouch")
        A(f"v_lshlrev_b32 v{vT}, 21, v{vL}")
        if "touchfl" in OPT:
            A(f"s_lshl_b32 s{sT2}, s2, 7")
            A(f"s_add_u32 s{sT2}, s{sT2}, {WS_FL - 2048:#x}")
            A(f"v_writelane_b32 v{vT}, s{sT2}, 5")
            if NREP > 1:
                A(f"s_add_u32 s{sT2}, s{sT2}, 0x10000")
                A(f"v_writelane_b32 v{vT}, s{sT2}, 6")
            A(f"s_mov_b64 exec, {0x7f if NREP > 1 else 0x3f}")
        else:
            A("s_mov_b64 exec, 0x1f")
        A(f"buffer_load_dword v254, v{vT}, s[12:15], 0 offen offset:2048 sc1")
        A("s_mov_b64 exec, -1")
        A.label("L_b_notouch")
    stamp()
    A(f"s_and_b32 s{sT4}, s{sHG}, 1")
    A(f"s_lshl_b32 s{sT2}, s{sT4}, 12")
    x_frag_addr(vXa, sT2)
    A(f"s_mov_b32 s{sT2}, {L_WKV}")
    tr_addr(vWa, 8, 32, 0, sT2)
    v_lane_addr()
    vN = 14
    A(f"v_mov_b32 v{vN+1}, 0")
    def nonce_load(): A(f"buffer_load_dword v{vN}, v{vN+1}, s[20:23], 0 offen sc1")
    def nonce_wait():
        l = A.uid("nw"); d = A.uid("nwd")
        A(f"s_mov_b32 s{sSP}, {SPIN}")
        A.label(l)
        A("s_waitcnt vmcnt(0)")
        A(f"v_readfirstlane_b32 s{sNON}, v{vN}")
        A("s_nop 1")
        A(f"s_cmp_lg_u32 s{sNON}, 0")
        A(f"s_cbranch_scc1 {d}")
        A(f"s_sub_u32 s{sSP}, s{sSP}, 1")
        A(f"s_cbranch_scc1 {d}")
        nonce_load()
        A(f"s_branch {l}")
        A.label(d)
    ACC = 16
    A(f"s_lshl_b32 s{sRT0}, s{sRB}, 1")
    A(f"s_add_u32 s{sA0}, s{sRT0}, s{sT4}")
    A(f"s_mul_i32 s{sA0}, s{sA0}, {TB}")
    A(f"s_lshl_b32 s{sA1}, s{sRB}, 2")
    A(f"s_add_u32 s{sA1}, s{sA1}, s{sT4}")
    A(f"s_lshr_b32 s{sT2}, s{sHG}, 2")
    A(f"s_lshl_b32 s{sT2}, s{sT2}, 1")
    A(f"s_add_u32 s{sA1}, s{sA1}, s{sT2}")
    A(f"s_lshl_b32 s{sA1}, s{sA1}, {3 if 'dense' in OPT else 5}")
    A(f"s_add_u32 s{sA1}, s{sA1}, {FL_KVA:#x}")
    A("s_waitcnt vmcnt(6)")
    kstamp()
    ksv = NST[0]
    team_add(4)
    A(f"s_cmp_lg_u32 s{sJ}, 0")
    A("s_cbranch_scc1 L_b_idle")
    A(f"s_bitcmp1_b32 s{sHG}, 1")
    A("s_cbranch_scc1 L_b_idle")
    def kv_unit(swap):
        NST[0] = ksv
        team_wait(4, 4, 1)
        kstamp()
        chain(0, 16, 64, ACC, 512, 128, swap)
        kstamp()
        A("s_waitcnt vmcnt(0)")
        kstamp()
        nonce_load()
        team_add(5)
        team_add(8)
        team_wait(8, 4, 1)
        kstamp()
        chain(16, 16, 64, ACC, 512, 128, swap)
        kstamp()
    A(f"s_cmp_ge_u32 s{sHG}, 4")
    A("s_cbranch_scc1 L_b_vunit")
    kv_unit(False)
    A("s_nop 7")
    A("s_nop 3")
    for r in range(4): A(f"v_cvt_pk_bf16_f32 v{64+r}, v{ACC+2*r}, v{ACC+2*r+1}")
    A(f"buffer_store_dwordx4 {vr(64,4)}, v{vK}, s[12:15], s{sA0} offen sc1")
    A("s_branch L_b_kvpub")
    A.label("L_b_vunit")
    A(f"v_lshrrev_b32 v{vT2}, 5, v{vL}")
    A(f"v_lshlrev_b32 v7, 8, v{vT2}")
    A(f"v_and_b32 v{vT2}, 15, v{vL}")
    A(f"v_lshl_add_u32 v7, v{vT2}, 4, v7")
    A(f"v_bfe_u32 v{vT2}, v{vL}, 4, 1")
    A(f"v_lshl_add_u32 v7, v{vT2}, 30, v7")
    A(f"v_cmp_gt_u32 s[38:39], 8, v{vL}")
    A(f"v_mov_b32 v{vT2}, {OOB:#x}")
    for r in range(4): A(f"v_mov_b32 v{100+r}, {ONES:#x}")
    A(f"v_cndmask_b32_e64 v8, v{vT2}, v{vK}, s[38:39]")
    A(f"buffer_store_dwordx4 {vr(100,4)}, v8, s[12:15], s{sA0} offen offset:2048 sc1")
    kv_unit(True)
    A("s_nop 7")
    A("s_nop 3")
    for s in range(2):
        for r in range(4): A(f"v_cvt_pk_bf16_f32 v{64+4*s+r}, v{ACC+8*s+2*r}, v{ACC+8*s+2*r+1}")
        A("s_nop 1")
        A(f"v_permlane32_swap_b32 v{64+4*s}, v{66+4*s}")
        A(f"v_permlane32_swap_b32 v{65+4*s}, v{67+4*s}")
        A(f"buffer_store_dwordx4 {vr(64+4*s,4)}, v7, s[12:15], s{sA0} offen offset:{1024+s*512} sc1")
    A.label("L_b_kvpub")
    nonce_wait()
    kstamp()
    flag_store(sA1, NREP)
    A("s_branch L_b_pdone")
    A.label("L_b_idle")
    if KVP:
        NST[0] = ksv
        for _ in range(6): kstamp()
    A(f"s_cmp_eq_u32 s{sJ}, 3")
    A("s_cbranch_scc1 L_b_idle1")
    A("s_waitcnt vmcnt(0)")
    A.label("L_b_idle1")
    A("s_waitcnt vmcnt(1)")
    nonce_load()
    team_add(5)
    team_add(8)
    nonce_wait()
    A(f"v_mov_b32 v{vT}, {L_CNT + 64}")
    A(f"ds_write_b32 v{vT}, v{vN}")
    A.label("L_b_pdone")
    stamp()
    if KVP: STOFF[0] = True
    srd(8, P_WQKV, 512 * 3072)
    srd(40, P_GATE, 1024)
    A(f"s_mov_b32 m0, {L_GATE}")
    A(f"s_lshl_b32 s{sHEAD}, s{sHG}, 2")
    A(f"buffer_load_dwordx4 v{vK}, s[40:43], 0 offen lds")
    A(f"s_add_u32 s{sHEAD}, s{sHEAD}, s{sJ}")
    vD1, vX0, vW1, vW2, vG = 7, 9, 13, 8, 15
    w128_dma_addr(vD1, 3072)
    A(f"s_lshl_b32 s{sA0}, s{sJ}, 10")
    A(f"s_lshl_b32 s{sT2}, s{sHG}, 7")
    A(f"s_add_u32 s{sA0}, s{sA0}, s{sT2}")
    A(f"s_lshl_b32 s{sA1}, s{sJ}, 14")
    A(f"s_add_u32 s{sA1}, s{sA1}, {L_WQ}")
    sP3W = 37
    A(f"s_add_u32 s{sP3W}, s{sA0}, {512*3072}")
    if ROT:
        A(f"s_and_b32 s{sT3}, s{sRB}, 3")
        A(f"s_cmp_eq_u32 s{sJ}, 3")
        A(f"s_cselect_b32 s{sT3}, 0, s{sT3}")
        A(f"s_lshl_b32 s{sT2}, s{sT3}, 14")
        A(f"s_mul_i32 s{sT3}, s{sT3}, {128*3072}")
        A(f"s_add_u32 s{sA0}, s{sA0}, s{sT3}")
    else:
        A(f"s_mov_b32 s{sT2}, 0")
    x_frag_addr(vX0, sT2)
    w128_tr_addr(vW1, 8, sA1)
    A(f"v_xor_b32 v{vW2}, 64, v{vW1}")
    AC, FR = 16, 80
    for r in range(0, 64, 2): A(f"v_pk_mov_b32 v[{AC+r}:{AC+r+1}], 0, 0")
    A(f"s_mov_b32 s{sCnt}, 4")
    A(f"s_cmp_eq_u32 s{sJ}, 3")
    A("s_cbranch_scc1 L_b_gwave")
    if "p3early" in OPT: team_wait(6, 4, 1)
    else: team_wait(7, 4, 2)
    stamp()
    if "nob" in OPT: A("s_branch L_b_skip")
    if "pf" in OPT:
        A(f"s_lshr_b32 s{sT}, s2, 3")
        A(f"s_and_b32 s{sT3}, s2, 1")
        A(f"s_lshl_b32 s{sT3}, s{sT3}, 9")
        A(f"s_mul_i32 s{sT2}, s{sT}, {16*3072}")
        A(f"s_add_u32 s{sT2}, s{sT2}, s{sT3}")
        A(f"s_lshl_b32 s{sT4}, s{sJ}, 10")
        A(f"s_add_u32 s{sT2}, s{sT2}, s{sT4}")
        A(f"v_lshrrev_b32 v{vT}, 2, v{vL}")
        A(f"v_and_b32 v{vT2}, 3, v{vL}")
        A(f"v_lshlrev_b32 v{vT2}, 7, v{vT2}")
        A(f"v_lshl_add_u32 v{vT3}, v{vT}, 10, v{vT2}")
        A(f"v_mul_u32_u24 v{vT}, 3072, v{vT}")
        A(f"v_add_u32 v{vT}, v{vT}, v{vT2}")
        A(f"buffer_load_dword v254, v{vT}, s[8:11], s{sT2} offen sc1")
        A(f"s_cmp_eq_u32 s{sJ}, 2")
        A("s_cbranch_scc1 L_b_nopf")
        A(f"s_cmp_eq_u32 s{sJ}, 0")
        A(f"s_cselect_b32 s40, s{P_BWO}, s{P_AWO}")
        A(f"s_cselect_b32 s41, s{P_BWO+1}, s{P_AWO+1}")
        A("s_and_b32 s41, s41, 0xffff")
        A(f"s_mov_b32 s42, {512*1024:#x}")
        A(f"s_lshl_b32 s{sT2}, s{sT}, 14")
        A(f"s_add_u32 s{sT2}, s{sT2}, s{sT3}")
        A(f"buffer_load_dword v254, v{vT3}, s[40:43], s{sT2} offen sc1")
        A.label("L_b_nopf")
    def p3_dma(slot):
        A(f"s_add_u32 m0, s{sA1}, {slot*2048}")
        A(f"s_add_u32 s{sT2}, s{sA0}, {8*3072}")
        A(f"buffer_load_dwordx4 v{vD1}, s[8:11], s{sA0} offen lds")
        A(f"s_add_u32 m0, s{sA1}, {slot*2048+1024}")
        A(f"s_add_u32 s{sA0}, s{sA0}, {16*3072}")
        A(f"buffer_load_dwordx4 v{vD1}, s[8:11], s{sT2} offen lds")
    def p3_wrap():
        A(f"s_cmp_ge_u32 s{sA0}, s{sP3W}")
        A(f"s_cselect_b32 s{sT2}, {512*3072}, 0")
        A(f"s_sub_u32 s{sA0}, s{sA0}, s{sT2}")
    def p3_rd(i):
        if "nop3rd" in OPT.get("abl", ""): return
        b = FR + 16 * (i & 1); sl = (i % 8) * 2048
        if i == 8:
            for q in range(4):
                A(f"v_add_u32 v{vX0+q}, 16384, v{vX0+q}")
                A(f"v_and_b32 v{vX0+q}, 0xffff, v{vX0+q}")
        A(f"ds_read_b64_tr_b16 v[{b}:{b+1}], v{vW1} offset:{sl}")
        A(f"ds_read_b64_tr_b16 v[{b+2}:{b+3}], v{vW1} offset:{sl+512}")
        A(f"ds_read_b128 v[{b+8}:{b+11}], v{vX0+(i&3)} offset:{((i%8)>>2)*8192}")
        A(f"ds_read_b128 v[{b+12}:{b+15}], v{vX0+(i&3)} offset:{((i%8)>>2)*8192+4096}")
        A(f"ds_read_b64_tr_b16 v[{b+4}:{b+5}], v{vW2} offset:{sl}")
        A(f"ds_read_b64_tr_b16 v[{b+6}:{b+7}], v{vW2} offset:{sl+512}")
    LA = int(OPT.get("p3d", 8))
    for s in range(LA): p3_dma(s)
    if OPT.get("il") != "2":
        A(f"s_waitcnt vmcnt({2*LA-2})")
        p3_rd(0)
    def p3_loop_il(name, swap):
        A.label(name)
        for i in range(8):
            b = FR + 16 * (i & 1)
            mark = len(A.lines); p3_rd(i + 1); rd = A.lines[mark:]; del A.lines[mark:]
            pre = [l for l in rd if "ds_read" not in l]; rd = [l for l in rd if "ds_read" in l]
            mf = []
            for ct in range(2):
                for ri in range(2):
                    a = AC + 16 * (2 * ct + ri); wv, xv = vr(b + 4 * ct, 4), vr(b + 8 + 4 * ri, 4)
                    mf.append(f"{MF} {vr(a,16)}, {xv if swap else wv}, {wv if swap else xv}, {vr(a,16)}")
            A("s_waitcnt lgkmcnt(0)")
            A(mf[0])
            if i == (8 - LA) % 8:
                p3_wrap()
                A(f"s_cmp_eq_u32 s{sCnt}, 1")
                A(f"s_cselect_b32 s{sA0}, {OOB:#x}, s{sA0}")
            p3_dma((i + LA) % 8)
            A(mf[1])
            for l in pre: A(l)
            A(f"s_waitcnt vmcnt({2*LA-2})")
            for l in rd[:3]: A(l)
            if PACE: A(f"s_nop {PACE-1}")
            A(mf[2])
            for l in rd[3:]: A(l)
            if PACE: A(f"s_nop {PACE-1}")
            A(mf[3])
        A(f"s_sub_u32 s{sCnt}, s{sCnt}, 1")
        A(f"s_cmp_lg_u32 s{sCnt}, 0")
        A(f"s_cbranch_scc1 {name}")
    def p3_loop_jit(name, swap):
        A.label(name)
        b = FR
        def mf(ct, ri):
            a = AC + 16 * (2 * ct + ri); wv, xv = vr(b + 4 * ct, 4), vr(b + 8 + 4 * ri, 4)
            if "nop3mf" not in OPT.get("abl", ""): A(f"{MF} {vr(a,16)}, {xv if swap else wv}, {wv if swap else xv}, {vr(a,16)}")
        for i in range(8):
            sl = i * 2048; xo = (i >> 2) * 8192
            A(f"s_waitcnt vmcnt({2*LA-2})")
            A(f"ds_read_b64_tr_b16 v[{b}:{b+1}], v{vW1} offset:{sl}")
            A(f"ds_read_b64_tr_b16 v[{b+2}:{b+3}], v{vW1} offset:{sl+512}")
            A(f"ds_read_b128 v[{b+8}:{b+11}], v{vX0+(i&3)} offset:{xo}")
            A("s_waitcnt lgkmcnt(0)")
            mf(0, 0)
            A(f"ds_read_b128 v[{b+12}:{b+15}], v{vX0+(i&3)} offset:{xo+4096}")
            A("s_waitcnt lgkmcnt(0)")
            mf(0, 1)
            A(f"ds_read_b64_tr_b16 v[{b+4}:{b+5}], v{vW2} offset:{sl}")
            A(f"ds_read_b64_tr_b16 v[{b+6}:{b+7}], v{vW2} offset:{sl+512}")
            A("s_waitcnt lgkmcnt(0)")
            mf(1, 1)
            if i == (8 - LA) % 8:
                p3_wrap()
                A(f"s_cmp_eq_u32 s{sCnt}, 1")
                A(f"s_cselect_b32 s{sA0}, {OOB:#x}, s{sA0}")
            p3_dma((i + LA) % 8)
            mf(1, 0)
        for q in range(4):
            A(f"v_add_u32 v{vX0+q}, 16384, v{vX0+q}")
            A(f"v_and_b32 v{vX0+q}, 0xffff, v{vX0+q}")
        A(f"s_sub_u32 s{sCnt}, s{sCnt}, 1")
        A(f"s_cmp_lg_u32 s{sCnt}, 0")
        A(f"s_cbranch_scc1 {name}")
    def p3_loop(name, swap):
        if OPT.get("il") == "2": return p3_loop_jit(name, swap)
        if OPT.get("il") == "1": return p3_loop_il(name, swap)
        A.label(name)
        for i in range(8):
            A(f"s_waitcnt vmcnt({2*LA-4})")
            p3_rd(i + 1)
            if i == (8 - LA) % 8:
                p3_wrap()
                A(f"s_cmp_eq_u32 s{sCnt}, 1")
                A(f"s_cselect_b32 s{sA0}, {OOB:#x}, s{sA0}")
            A("s_waitcnt lgkmcnt(6)")
            b = FR + 16 * (i & 1)
            n = 0
            for ct in range(2):
                for ri in range(2):
                    a = AC + 16 * (2 * ct + ri); wv, xv = vr(b + 4 * ct, 4), vr(b + 8 + 4 * ri, 4)
                    if "nop3mf" not in OPT.get("abl", ""): A(f"{MF} {vr(a,16)}, {xv if swap else wv}, {wv if swap else xv}, {vr(a,16)}")
                    if n == 0: p3_dma((i + LA) % 8)
                    elif PACE: A(f"s_nop {PACE-1}")
                    n += 1
        A(f"s_sub_u32 s{sCnt}, s{sCnt}, 1")
        A(f"s_cmp_lg_u32 s{sCnt}, 0")
        A(f"s_cbranch_scc1 {name}")
    PACE = int(OPT.get("pace", 0))
    A(f"s_cmp_eq_u32 s{sJ}, 2")
    A("s_cbranch_scc1 L_p3v")
    p3_loop("L_p3qk", False)
    svst = NST[0]
    stamp()
    A(f"s_lshl_b32 s{sKV}, s{sHG}, 8")
    A(f"s_add_u32 s{sKV}, s{sKV}, s{sRT0}")
    A(f"s_mul_i32 s{sKV}, s{sKV}, {TB}")
    A(f"s_add_u32 s{sKV}, s{sKV}, {WS_KVB:#x}")
    A(f"s_mov_b32 s{sT2}, {f2u(CSCALE):#x}")
    A(f"v_add_u32 v{vT3}, {L_QX}, v{vK}")
    A("s_waitcnt lgkmcnt(0)")
    A(f"s_cmp_eq_u32 s{sJ}, 1")
    A("s_cbranch_scc1 L_p3k")
    team_wait(7, 4, 2)
    for ct in range(2):
        for ri in range(2):
            for hh in range(2):
                a = AC + 16 * (2 * ct + ri) + 8 * hh; p = FR + 4 * ((2 * ri + hh) & 3)
                for r in range(8): A(f"v_mul_f32 v{a+r}, s{sT2}, v{a+r}")
                for r in range(4): A(f"v_cvt_pk_bf16_f32 v{p+r}, v{a+2*r}, v{a+2*r+1}")
                A(f"ds_write_b128 v{vT3}, {vr(p,4)} offset:{(4*ri + 2*ct + hh)*1024}")
        if ct == 0: A("s_waitcnt lgkmcnt(0)")
    A("s_waitcnt vmcnt(0) lgkmcnt(0)")
    A("s_branch L_p3done")
    A.label("L_p3k")
    for ct in range(2):
        for hh in range(2):
            for ri in range(2):
                a = AC + 16 * (2 * ct + ri) + 8 * hh; p = FR + 4 * (4 * ct + 2 * hh + ri)
                for r in range(4): A(f"v_cvt_pk_bf16_f32 v{p+r}, v{a+2*r}, v{a+2*r+1}")
                A(f"buffer_store_dwordx4 {vr(p,4)}, v{vK}, s[12:15], s{sKV} offen offset:{ri*TB} sc1")
            A(f"s_add_u32 s{sKV}, s{sKV}, {64*TB}")
    A("s_branch L_p3pub")
    A.label("L_p3v")
    p3_loop("L_p3vl", True)
    NST[0] = svst
    stamp()
    A(f"s_lshl_b32 s{sKV}, s{sHG}, 8")
    A(f"s_add_u32 s{sKV}, s{sKV}, s{sRT0}")
    A(f"s_mul_i32 s{sKV}, s{sKV}, {TB}")
    A(f"s_add_u32 s{sKV}, s{sKV}, {WS_KVB:#x}")
    A(f"s_mov_b32 s{sT3}, {64*TB}")
    A(f"v_lshrrev_b32 v{vT}, 4, v{vL}")
    A(f"v_mul_lo_u32 v{vT}, v{vT}, s{sT3}")
    A(f"v_bfe_u32 v{vT2}, v{vL}, 3, 1")
    A(f"v_mul_u32_u24 v{vT2}, {TB}, v{vT2}")
    A(f"v_add_u32 v{vT}, v{vT}, v{vT2}")
    A(f"v_and_b32 v{vT2}, 7, v{vL}")
    A(f"v_lshl_add_u32 v{vT3}, v{vT2}, 4, v{vT}")
    for r in range(4): A(f"v_mov_b32 v{120+r}, {ONES:#x}")
    A(f"v_bfe_u32 v{vT}, v{vL}, 4, 1")
    A(f"v_mul_lo_u32 v{vT}, v{vT}, s{sT3}")
    A(f"v_lshrrev_b32 v{vT2}, 5, v{vL}")
    A(f"v_lshl_add_u32 v{vT}, v{vT2}, 8, v{vT}")
    A(f"v_and_b32 v{vT2}, 15, v{vL}")
    A(f"v_lshl_add_u32 v{vT}, v{vT2}, 4, v{vT}")
    A("s_waitcnt lgkmcnt(0)")
    A(f"buffer_store_dwordx4 {vr(120,4)}, v{vT3}, s[12:15], s{sKV} offen offset:2048 sc1")
    for ct in range(2):
        for ri in range(2):
            for s in range(2):
                a = AC + 16 * (2 * ct + ri) + 8 * s; p = FR + 4 * (4 * ct + 2 * ri + s)
                for r in range(4): A(f"v_cvt_pk_bf16_f32 v{p+r}, v{a+2*r}, v{a+2*r+1}")
                A("s_nop 1")
                A(f"v_permlane32_swap_b32 v{p}, v{p+2}")
                A(f"v_permlane32_swap_b32 v{p+1}, v{p+3}")
                A(f"buffer_store_dwordx4 {vr(p,4)}, v{vT}, s[12:15], s{sKV} offen offset:{1024+ri*TB+s*512} sc1")
        if ct == 0: A(f"s_add_u32 s{sKV}, s{sKV}, {128*TB}")
    A.label("L_p3pub")
    A("s_waitcnt vmcnt(0)")
    team_add(0, "L_p3done", 2)
    A(f"s_lshl_b32 s{sT3}, s{sHG}, 5")
    A(f"s_add_u32 s{sT3}, s{sT3}, s{sRB}")
    A(f"s_lshl_b32 s{sT3}, s{sT3}, 5")
    A(f"s_add_u32 s{sT3}, s{sT3}, {FL_KVB:#x}")
    flag_store(sT3)
    A("s_branch L_p3done")
    A.label("L_b_gwave")
    NST[0] = svst - 1
    if "touchw" in OPT:
        A(f"v_lshlrev_b32 v{vT}, 16, v{vL}")
        A(f"buffer_load_dword v254, v{vT}, s[8:11], 0 offen sc1")
        srd(40, P_BWO, 512 * 1024)
        A(f"buffer_load_dword v254, v{vT}, s[40:43], 0 offen sc1")
        srd(40, P_AWO, 512 * 1024)
        A(f"buffer_load_dword v254, v{vT}, s[40:43], 0 offen sc1")
    A(f"v_bfe_u32 v{vT3}, v{vL}, 1, 4")
    A(f"v_min_u32 v{vT3}, {G1-1}, v{vT3}")
    A(f"v_add_u32 v{vT3}, s{sRB}, v{vT3}")
    A(f"v_and_b32 v{vT3}, 31, v{vT3}")
    A(f"v_and_b32 v{vT}, 32, v{vL}")
    A(f"v_add_u32 v{vT3}, v{vT3}, v{vT}")
    A(f"v_and_b32 v{vT}, 1, v{vT3}")
    A(f"v_lshrrev_b32 v{vT3}, 1, v{vT3}")
    A(f"v_lshl_add_u32 v{vT3}, v{vT3}, 2, v{vT}")
    A(f"v_and_b32 v{vT}, 1, v{vL}")
    A(f"v_lshl_add_u32 v{vT3}, v{vT}, 1, v{vT3}")
    A(f"v_lshlrev_b32 v{vT3}, 5, v{vT3}")
    if OPT.get("pstart", "5") == "5": team_wait(5, 8, 2)
    elif OPT.get("pstart") == "6": team_wait(6, 4, 1)
    if NREP > 1:
        A(f"s_and_b32 s{sT3}, s{sHG}, {NREP-1}")
        A(f"s_lshl_b32 s{sT3}, s{sT3}, 12")
        A(f"s_add_u32 s{sT3}, s{sT3}, {FL_KVA:#x}")
    else:
        A(f"s_mov_b32 s{sT3}, {FL_KVA:#x}")
    if KVP:
        NST[0] = 5
        kstamp()
    poll_flags(vT3, sT3, slp=int(OPT.get("pslp", 1)))
    if KVP:
        kstamp()
        A("s_waitcnt lgkmcnt(0)")
        A(f"s_sub_u32 s{70+2*NST[0]}, {SPIN}, s{sSP}")
        A(f"s_add_u32 s{70+2*NST[0]}, s{70+2*NST[0]}, s72")
        NST[0] = svst
    A("s_waitcnt lgkmcnt(0)")
    team_add(11)
    A(f"s_sleep {OPT.get('asl', 16)}")
    A(f"v_lshlrev_b32 v{vT}, 5, v{vL}")
    poll_flags(vT, sT3, n2=2048, slp=4)
    team_add(9)
    if "nob" in OPT: A("s_branch L_b_skip")
    stamp()
    A(f"v_lshrrev_b32 v{vW1}, 5, v{vL}")
    A(f"v_lshlrev_b32 v{vW1}, 4, v{vW1}")
    A(f"v_add_u32 v{vW1}, {L_GATE}, v{vW1}")
    A(f"s_mov_b32 s{sCnt}, 8")
    A.label("L_gloop")
    for i in range(4):
        A(f"ds_read_b128 {vr(FR,4)}, v{vW1} offset:{i*32}")
        A(f"ds_read_b128 {vr(FR+4,4)}, v{vX0+i}")
        A("s_waitcnt lgkmcnt(0)")
        A(f"{MF} {vr(AC,16)}, {vr(FR,4)}, {vr(FR+4,4)}, {vr(AC,16)}")
        A(f"ds_read_b128 {vr(FR+8,4)}, v{vX0+i} offset:4096")
        A(f"v_add_u32 v{vX0+i}, 8192, v{vX0+i}")
        A("s_waitcnt lgkmcnt(0)")
        A(f"{MF} {vr(AC+16,16)}, {vr(FR,4)}, {vr(FR+8,4)}, {vr(AC+16,16)}")
    A(f"v_add_u32 v{vW1}, 128, v{vW1}")
    A(f"s_sub_u32 s{sCnt}, s{sCnt}, 1")
    A(f"s_cmp_lg_u32 s{sCnt}, 0")
    A("s_cbranch_scc1 L_gloop")
    stamp()
    A("s_mov_b32 s38, 0")
    A("s_mov_b32 s39, -1")
    A("s_nop 5")
    A(f"v_cndmask_b32_e64 v{vG}, v{AC}, v{AC+16}, s[38:39]")
    A(f"v_mul_f32 v{vG}, {f2u(-math.log2(math.e)):#x}, v{vG}")
    A(f"v_exp_f32 v{vG}, v{vG}")
    A(f"v_lshlrev_b32 v{vT}, 2, v{vL}")
    A(f"v_add_f32 v{vG}, 1.0, v{vG}")
    A(f"v_rcp_f32 v{vG}, v{vG}")
    A(f"v_add_u32 v{vT}, {L_G}, v{vT}")
    A(f"ds_write_b32 v{vT}, v{vG}")
    A("s_waitcnt lgkmcnt(0)")
    A.label("L_p3done")
    team_add(1)
    QB = 96; OB = 104; KV = 136
    A(f"s_lshl_b32 s{sKV}, s{sHEAD}, 6")
    A(f"s_add_u32 s{sKV}, s{sKV}, s{sRT0}")
    A(f"s_mul_i32 s{sKV}, s{sKV}, {TB}")
    A(f"s_add_u32 s{sKV}, s{sKV}, {WS_KVB:#x}")
    sWL, sWG, sWN = 37, 54, 55
    srd(8, P_BWO, 512 * 1024)
    srd(20, P_AWO, 512 * 1024)
    vWd2 = 11
    w128_dma_addr(vWd2, 1024)
    A(f"s_lshl_b32 s{sWL}, s{sJ}, 14")
    A(f"s_lshl_b32 s{sWG}, s{sJ}, 17")
    A(f"s_lshl_b32 s{sT}, s{sHG}, 7")
    A(f"s_add_u32 s{sWG}, s{sWG}, s{sT}")
    A(f"s_mov_b32 s{sWN}, 0")
    sWI, sWT = 56, 57
    if ROT:
        A(f"s_and_b32 s{sWI}, s{sRB}, 7")
        A(f"s_lshl_b32 s{sWI}, s{sWI}, 1")
    else:
        A(f"s_mov_b32 s{sWI}, 0")
    def w_loop(name, srd_, lds):
        A(f"s_mov_b32 s{sWN}, 16")
        A.label(name)
        A(f"s_lshl_b32 s{sWT}, s{sWI}, 10")
        A(f"s_add_u32 s{sWT}, s{sWT}, s{sWL}")
        A(f"s_add_u32 m0, s{sWT}, {lds}")
        A(f"s_lshl_b32 s{sWT}, s{sWI}, 13")
        A(f"s_add_u32 s{sWT}, s{sWT}, s{sWG}")
        A(f"buffer_load_dwordx4 v{vWd2}, s[{srd_}:{srd_+3}], s{sWT} offen lds")
        A(f"s_add_u32 s{sWI}, s{sWI}, 1")
        A(f"s_and_b32 s{sWI}, s{sWI}, 15")
        A(f"s_sub_u32 s{sWN}, s{sWN}, 1")
        A(f"s_waitcnt vmcnt({OPT.get('wd', 5)})")
        A(f"s_cmp_lg_u32 s{sWN}, 0")
        A(f"s_cbranch_scc1 {name}")
    A(f"s_lshl_b32 s{sT2}, s{sJ}, 10")
    A(f"s_add_u32 s{sT2}, s{sT2}, {L_QX}")
    A(f"v_add_u32 v7, s{sT2}, v{vK}")
    A(f"s_and_b32 s{sT2}, s{sJ}, 1")
    A(f"s_lshl_b32 s{sT2}, s{sT2}, 7")
    A(f"s_add_u32 s{sT2}, s{sT2}, {L_G}")
    A(f"v_and_b32 v9, 31, v{vL}")
    A(f"v_lshl_add_u32 v9, v9, 2, s{sT2}")
    stamp()
    team_wait(1)
    w_loop("L_wB", 8, L_X)
    A(f"s_cmp_lg_u32 s{sJ}, 3")
    A("s_cbranch_scc1 L_b_nokvb")
    A(f"v_min_u32 v{vT3}, 4, v{vL}")
    A(f"v_sub_u32 v{vT3}, s{sRB}, v{vT3}")
    A(f"v_max_i32 v{vT3}, 0, v{vT3}")
    A(f"v_lshlrev_b32 v{vT3}, 5, v{vT3}")
    A(f"s_lshl_b32 s{sT3}, s{sHG}, 10")
    A(f"s_add_u32 s{sT3}, s{sT3}, {FL_KVB:#x}")
    poll_flags(vT3, sT3, slp=2)
    team_add(10)
    A.label("L_b_nokvb")
    team_wait(10, 1)
    stamp()
    A(f"ds_read_b128 {vr(QB,4)}, v7")
    A(f"ds_read_b128 {vr(QB+4,4)}, v7 offset:4096")
    A(f"ds_read_b32 v{vG}, v9")
    A(f"s_add_u32 s{sA0}, s{sKV}, {TB}")
    A(f"s_add_u32 s{sA1}, s{sRT0}, 1")
    PRE = int(OPT.get("bpre", 4))
    def bkv(u):
        b = KV + 12 * u; o = []
        if u >= 2:
            o.append(f"s_cmp_ge_u32 s{sA1}, {u}")
            o.append(f"s_cselect_b32 s{sT}, s{sA0}, {OOB:#x}")
        sa = sT if u >= 2 else sA0
        o.append(f"buffer_load_dwordx4 {vr(b,4)}, v{vK}, s[12:15], s{sa} offen sc1")
        o.append(f"buffer_load_dwordx4 {vr(b+4,4)}, v{vV}, s[12:15], s{sa} offen sc1")
        o.append(f"buffer_load_dwordx4 {vr(b+8,4)}, v{vV1}, s[12:15], s{sa} offen sc1")
        if u < 9: o.append(f"s_sub_u32 s{sA0}, s{sA0}, {TB}")
        return "\n".join(o)
    order = []
    for u in range(PRE):
        A(bkv(u)); order += [("k", u), ("v", u), ("v2", u)]
    vBig = 7
    A(f"v_mov_b32 v{vIDX}, 0xdddddddd")
    A(f"v_mov_b32 v{vBig}, {f2u(-1e38):#x}")
    mask_tuple(NEG, f"v{vBig}", "0")
    for i in range(2):
        for r in range(0, 10, 2): A(f"v_pk_mov_b32 v[{OB+16*i+r}:{OB+16*i+r+1}], 0, 0")
    A(f"s_waitcnt vmcnt({3*PRE-4}) lgkmcnt(0)")
    A(f"{MF} {vr(S0,16)}, {vr(KV,4)}, {vr(QB+4,4)}, {vr(NEG,16)}")
    A(f"{MF} {vr(S1,16)}, {vr(KV+12,4)}, {vr(QB,4)}, {vr(NEG,16)}")
    A("s_nop 7")
    A("s_nop 3")
    lane_max_all(range(S0, S0 + 32), vT, vT2)
    A(f"v_sub_f32 v{NEG}, 0, v{vT}")
    A(f"v_sub_f32 v{NEG+1}, 0, v{vT}")
    for r in range(0, 32, 2): A(f"v_pk_add_f32 v[{S0+r}:{S0+r+1}], v[{S0+r}:{S0+r+1}], v[{NEG}:{NEG+1}]")
    for r in range(2, 16, 2): A(f"v_pk_mov_b32 v[{NEG+r}:{NEG+r+1}], v[{NEG}:{NEG+1}], v[{NEG}:{NEG+1}] op_sel:[0,1]")
    items = [(1, 0), (0, 1), (1, 1)]
    for u in range(2, 9): items += [(0, u), (1, u)]
    items += [(0, 9)]
    CF = KV
    waited = 3
    def need(tag):
        nonlocal waited
        k_ = order.index(tag)
        if k_ > waited:
            waited = k_
            return f"s_waitcnt vmcnt({len(order)-1-k_})"
        return None
    WPI = int(OPT.get("wpi", 1))
    wsteps = 0; nextu = PRE
    for n, (q, u) in enumerate(items):
        Sc, Sn = (S0, S1) if n % 2 == 0 else (S1, S0)
        ex = {}
        qk = None
        late = []
        if n % 2 == 1 and nextu < 10:
            ex["X4"] = bkv(nextu); late = [("k", nextu), ("v", nextu), ("v2", nextu)]; nextu += 1
        if n >= 1 and n + 1 < len(items):
            q2, u2 = items[n + 1]
            far = (q2, u2) in ((1, 8), (0, 9))
            ex["X3"] = need(("k", u2))
            qk = f"{MF} {vr(Sn,16)}, {vr(KV+12*u2,4)}, {vr(QB+4*q2,4)}, {vr(CF if far else NEG,16)}"
        ex["X5"] = need(("v2", u))
        order += late
        pv1 = None
        if n >= 1:
            qp, up = items[n - 1]
            pv1 = pv(OB + 16 * qp, KV + 12 * up + 8, Sn + 8)
        exit_here = (q == 1 and u in (1, 3, 5, 7))
        if exit_here: ex["X4"] = f"s_cmp_eq_u32 s{sA1}, {u}"
        if "nobat" in OPT.get("abl", ""):
            for x in sorted(ex):
                if ex[x]: A(ex[x])
            A("s_sleep 3")
        else:
            tile_code(Sc, qk, pv1, pv(OB + 16 * q, KV + 12 * u + 4, Sc), ex)
        if exit_here: A(f"s_cbranch_scc1 L_b_exit{u}")
        if n == 6: mask_tuple(CF, f"v{NEG}", f"v{vBig}")
    A("s_nop 1")
    A(pv(OB, KV + 12 * 9 + 8, S1 + 8))
    A.label("L_b_fin")
    stamp()
    A(f"s_lshl_b32 s{sA2}, s{sRT0}, 6")
    A(f"s_add_u32 s{sA2}, s{sA2}, s{sHEAD}")
    A(f"s_lshl_b32 s{sA2}, s{sA2}, 10")
    A(f"s_add_u32 s{sA2}, s{sA2}, {WS_O + 32*1024:#x}")
    A(f"s_min_u32 s{sCnt}, s{sA1}, 9")
    A("s_nop 7")
    for i in range(2):
        if not OPT.get("abl"): range_check(OB + 16 * i, f"L_b_slow{i}")
        A.label(f"L_b_ok{i}")
        normalize_store(OB + 16 * i, P + 4 * i, sA2)
        if i == 0:
            A(f"s_add_u32 s{sA2}, s{sA2}, 65536")
            A(f"s_add_u32 s{sKV}, s{sKV}, {TB}")
            A(f"s_add_u32 s{sCnt}, s{sRT0}, 2")
            A(f"s_min_u32 s{sCnt}, s{sCnt}, 9")
    A("s_waitcnt vmcnt(0)")
    team_add(2, "L_b_ob_nl")
    A(f"s_lshl_b32 s{sT3}, s{sRB}, 8")
    A(f"s_lshl_b32 s{sT4}, s{sHG}, 5")
    A(f"s_add_u32 s{sT3}, s{sT3}, s{sT4}")
    A(f"s_add_u32 s{sT3}, s{sT3}, {FL_OB:#x}")
    flag_store(sT3)
    A.label("L_b_ob_nl")
    A(f"s_and_b32 s{sT4}, s{sJ}, 1")
    A(f"s_lshr_b32 s{sT3}, s{sJ}, 1")
    vWp = 13
    w128_tr_addr(vWp, 4, None, sT3)
    A(f"v_and_b32 v{vT3}, 7, v{vL}")
    A(f"v_lshlrev_b32 v{vT3}, 5, v{vT3}")
    A(f"s_lshl_b32 s{sT3}, s{sRB}, 8")
    A(f"s_add_u32 s{sT3}, s{sT3}, {FL_OB:#x}")
    w_loop("L_wA", 20, L_WQ)
    A("s_waitcnt vmcnt(0)")
    team_add(3)
    poll_flags(vT3, sT3, slp=2)
    stamp()
    OF = 128; WF = 64; ACB = 16; ACA = 32; OR = 80
    A(f"s_add_u32 s{sA0}, s{sRT0}, s{sT4}")
    A(f"s_lshl_b32 s{sA0}, s{sA0}, 16")
    A(f"s_add_u32 s{sA0}, s{sA0}, {WS_O + 32*1024:#x}")
    if "nop4b" in OPT.get("abl", ""): A("s_branch L_b_skip")
    OD = int(OPT.get("od", 8))
    def oload(s):
        if s and s % 4 == 0: A(f"s_add_u32 s{sA0}, s{sA0}, 4096")
        A(f"buffer_load_dwordx4 {vr(OR+4*(s%8),4)}, v{vK}, s[12:15], s{sA0} offen offset:{(s%4)*1024} sc1")
    for s in range(OD): oload(s)
    vWq = 12
    A(f"v_add_u32 v{vWq}, {L_WQ}, v{vWp}")
    team_wait(3)
    for s in range(32):
        vm = min(31, s + OD - 1) - s
        A(f"ds_read_b64_tr_b16 v[{WF}:{WF+1}], v{vWp} offset:{s*2048}")
        A(f"ds_read_b64_tr_b16 v[{WF+2}:{WF+3}], v{vWp} offset:{s*2048+1024}")
        A(f"ds_read_b64_tr_b16 v[{OF+4*s}:{OF+4*s+1}], v{vWq} offset:{s*2048}")
        A(f"ds_read_b64_tr_b16 v[{OF+4*s+2}:{OF+4*s+3}], v{vWq} offset:{s*2048+1024}")
        A(f"s_waitcnt vmcnt({vm}) lgkmcnt(2)")
        c = "0" if s == 0 else vr(ACB, 16)
        A(f"{MF} {vr(ACB,16)}, {vr(WF,4)}, {vr(OR+4*(s%8),4)}, {c}")
        if s + OD < 32: oload(s + OD)
    A(f"v_sub_f32 v{vT3}, 1.0, v{vG}")
    A("s_nop 7")
    A("s_nop 2")
    for r in range(16): A(f"v_mul_f32 v{ACB+r}, v{ACB+r}, v{vT3}")
    A.label("L_b_skip")
    A(f"s_and_b32 s{sT4}, s{sJ}, 1")
    srd(4, P_OUT, 2048 * 1024)
    vO = 8; vOa = 9
    A(f"v_and_b32 v{vT}, 31, v{vL}")
    A(f"v_lshlrev_b32 v{vT}, 10, v{vT}")
    A(f"v_lshrrev_b32 v{vT2}, 5, v{vL}")
    A(f"v_lshl_add_u32 v{vO}, v{vT2}, 4, v{vT}")
    A(f"s_add_u32 s{sKV}, s{sRT0}, s{sT4}")
    A(f"s_lshl_b32 s{sKV}, s{sKV}, 15")
    A(f"s_lshl_b32 s{sT}, s{sHG}, 7")
    A(f"s_add_u32 s{sKV}, s{sKV}, s{sT}")
    A(f"s_lshr_b32 s{sT}, s{sJ}, 1")
    A(f"s_lshl_b32 s{sT}, s{sT}, 6")
    A(f"s_add_u32 s{sKV}, s{sKV}, s{sT}")
    A(f"s_lshl_b32 s{sT}, s{sT4}, 15")
    A(f"v_add_u32 v{vOa}, s{sT}, v{vK}")
    if "touchout" in OPT:
        A(f"buffer_load_dword v{WF}, v{vO}, s[4:7], s{sKV} offen")
        A("s_waitcnt vmcnt(0)")
    OS = int(OPT.get("oarep", 5))
    A(f"s_lshl_b32 s{sA2}, s{sRB}, {OS+6 if 'oarep' in OPT else 8}")
    A(f"s_lshl_b32 s{sT}, s{sHG}, {OS}")
    A(f"s_add_u32 s{sA2}, s{sA2}, s{sT}")
    A(f"s_add_u32 s{sA2}, s{sA2}, {FL_OA:#x}")
    if "oarep" in OPT:
        A(f"s_lshl_b32 s{sT}, s{sRB}, 3")
        A(f"s_add_u32 s{sT}, s{sT}, s{sHG}")
        A(f"s_lshl_b32 s{sT}, s{sT}, {OS+3}")
        A(f"s_add_u32 s{sT}, s{sT}, {FL_OA:#x}")
        A(f"v_and_b32 v{vT}, 7, v{vL}")
        A(f"v_lshlrev_b32 v{vT}, {OS}, v{vT}")
        A(f"buffer_load_dword v{vT2}, v{vT}, s[12:15], s{sT} offen sc1")
        A("s_waitcnt vmcnt(0)")
    A("s_waitcnt lgkmcnt(0)")
    stamp()
    A("s_barrier")
    A("s_barrier")
    A(f"s_cmp_lg_u32 s{sJ}, 0")
    A("s_cbranch_scc1 L_b_noflag")
    flag_store(sA2, 8 if 'oarep' in OPT else 1, OS + 3)
    A.label("L_b_noflag")
    tail_dma()
    for m in range(len(MS)):
        A(f"s_waitcnt vmcnt({sum(MS[m+1:]) // 4})")
        A("s_barrier")
        n = MS[m]
        for i in range(n): A(f"ds_read_b128 {vr(WF+4*i,4)}, v{vOa} offset:{(sum(MS[:m])+i)*1024}")
        for i in range(n):
            s = sum(MS[:m]) + i
            A(f"s_waitcnt lgkmcnt({n-1-i})")
            c = "0" if s == 0 else vr(ACA, 16)
            A(f"{MF} {vr(ACA,16)}, {vr(OF+4*s,4)}, {vr(WF+4*i,4)}, {c}")
    A("s_nop 7")
    A("s_nop 3")
    for r in range(16): A(f"v_fmac_f32 v{ACB+r}, v{ACA+r}, v{vG}")
    for r in range(8): A(f"v_cvt_pk_bf16_f32 v{WF+r}, v{ACB+2*r}, v{ACB+2*r+1}")
    A("s_nop 1")
    for g in range(2):
        A(f"v_permlane32_swap_b32 v{WF+4*g}, v{WF+4*g+2}")
        A(f"v_permlane32_swap_b32 v{WF+4*g+1}, v{WF+4*g+3}")
    for g in range(2): A(f"buffer_store_dwordx4 {vr(WF+4*g,4)}, v{vO}, s[4:7], s{sKV} offen offset:{g*32} {OPT.get('om', '').replace('_', ' ')}")
    if PROF: A("s_waitcnt vmcnt(0)")
    stamp_flush()
    A.label("L_exit")
    A("s_endpgm")
    for u in (1, 3, 5, 7):
        A.label(f"L_b_exit{u}")
        A("s_nop 0")
        A(pv(OB + 16, KV + 12 * u + 8, S0 + 8))
        A("s_branch L_b_fin")
    for i in range(2):
        slow_path(f"L_b_slow{i}", f"L_b_ok{i}", QB + 4 * i, OB + 16 * i, sKV, sCnt, -TB, True, KV, KV + 4, KV + 16)
    return k

def main():
    hdr = open("cdna_kernels/" + NAME + ".s.ref").read().split("\n")
    head = [l for l in hdr if l.startswith(";") and "@launch" not in l]
    out = "\n".join(head) + "\n"
    out += "; @launch grid=(256,1,1) block=(512,1,1) lds=163840\n"
    out += '.amdgcn_target "amdgcn-amd-amdhsa--gfx950"\n.text\n'
    k = gen()
    body = A.text()
    if "bfirst" in OPT:
        i = body.index("; @@A_BEGIN\n"); j = body.index("; @@A_END\n")
        body = body[:i] + body[j + len("; @@A_END\n"):] + body[i + len("; @@A_BEGIN\n"):j]
    body += "L_code_end:\n    s_endpgm\n"
    errs = check_hazards(body)
    for e in errs: print("HAZARD", e, file=sys.stderr)
    out += body
    out += f""".section .rodata,"a"
.p2align 6
.amdhsa_kernel {k}
  .amdhsa_next_free_vgpr 256
  .amdhsa_next_free_sgpr 102
  .amdhsa_accum_offset 256
  .amdhsa_group_segment_fixed_size 0
  .amdhsa_kernarg_size 96
  .amdhsa_user_sgpr_count 2
  .amdhsa_user_sgpr_kernarg_segment_ptr 1
  .amdhsa_system_sgpr_workgroup_id_x 1
.end_amdhsa_kernel
"""
    paths = [a for a in sys.argv[1:] if a.endswith(".s")]
    path = paths[0] if paths else "f19.s"
    open(path, "w").write(out)
    print("wrote", path, len(out), "bytes;", len(errs), "hazard warnings")
main()
```

```python
import sys, math, struct, re
from asmlib import Asm, vr, sr, check_hazards

NAME = "gated_mix__grouped_kv_mqa__sliding_block__prompt"
def f2u(x): return struct.unpack("<I", struct.pack("<f", x))[0]
CSCALE = 0.25 * math.log2(math.e)
OPT = dict(a[2:].split("=") if "=" in a else (a[2:], "1") for a in sys.argv[1:] if a.startswith("--"))
for _k, _v in (("bfirst", "1"), ("cpf", "1"), ("pace", "0"), ("p3d", "4"), ("bpre", "3"), ("od", "6"), ("il", "2"), ("tp", "one"), ("touchw", "1"), ("nrep", "8"), ("nb1", "8"), ("lowp", "1"), ("j4", "1"), ("pstart", "6"), ("touchfl", "1"), ("k3", "1")): OPT.setdefault(_k, _v)
PROF = "prof" in OPT

ROT = "norot" not in OPT
TB = 2176
WS_KVA = 0
WS_FL = 0x40000
NREP = int(OPT.get('nrep', 1))
FL_KVA, FL_KVB, FL_OB, FL_OA = (WS_FL + 0x10000 if NREP > 1 else WS_FL), WS_FL + 0x1000, WS_FL + 0x4000, (WS_FL + 0x20000 if 'oarep' in OPT else WS_FL + 0x6000)
WS_KVB = 0x100000
WS_O = 0x600000
WS_PROF = 15 << 20
WS_SIZE = 16 << 20
OOB = 0x40000000
ONES = 0x3F803F80
L_X, L_WQ, L_WKV, L_QX, L_GATE, L_CNT, L_COMB = 0, 65536, 131072, 147456, 155648, 156672, 131072
L_G = L_CNT + 256
SPIN = 50000
MS = [int(x) for x in OPT.get('ms', '8,8,8,8').split(',')]
MF = "v_mfma_f32_32x32x16_bf16"
SMF = "v_smfmac_f32_32x32x32_bf16"
vIDX = 10
A = Asm()

sW, sHG, sRB, sNON = 16, 17, 18, 19
sT, sT2, sT3, sT4 = 24, 25, 26, 27
sJ, sKV, sCnt, sHEAD, sRT0, sA0, sA1, sA2 = 28, 29, 30, 31, 32, 33, 34, 35
sSP = 36
P_X, P_WQ, P_WK, P_WV, P_AWO, P_WQKV, P_BWO, P_GATE, P_OUT, P_DBG, P_WS = 44, 46, 48, 50, 52, 56, 58, 60, 62, 64, 66
vL, vK, vV, vT, vT2, vT3 = 1, 2, 3, 4, 5, 6
vV1 = 0

def srd(d, ptr, size):
    A(f"s_mov_b32 s{d}, s{ptr}")
    A(f"s_and_b32 s{d+1}, s{ptr+1}, 0xffff")
    A(f"s_mov_b32 s{d+2}, {size:#x}")
    A(f"s_mov_b32 s{d+3}, 0x00020000")

NST = [0]
KVP = OPT.get("prof") in ("kv", "kvrt")
STOFF = [False]
def kstamp():
    if KVP: stamp(force=True)
def stamp(real=False, force=False):
    if not PROF: return
    if STOFF[0] and not force and not real: return
    i = NST[0]; NST[0] += 1
    assert 70 + 2 * i + 1 <= 101, "too many stamps"
    A(f"{'s_memrealtime' if real or OPT.get('prof') in ('rt', 'kvrt') else 's_memtime'} s[{70+2*i}:{71+2*i}]")
def stamp_flush():
    if not PROF: return
    stamp(force=True); stamp(real=True)
    A("s_waitcnt lgkmcnt(0)")
    A("s_lshl_b32 s68, s2, 4")
    A(f"s_add_u32 s68, s68, s{sW}")
    A("s_lshl_b32 s68, s68, 6")
    A(f"s_add_u32 s68, s68, {WS_PROF:#x}")
    A("v_mov_b32 v251, 0")
    for i in range(NST[0]):
        A(f"v_mov_b32 v250, s{70+2*i}")
        A(f"buffer_store_dword v250, v251, s[12:15], s68 offen offset:{4*i}")
    A("s_waitcnt vmcnt(0)")

def poll_flags(va, soff, n2=None, slp=2, vd=None, x4=False):
    vd = vd if vd is not None else vT2
    l = A.uid("poll"); d = A.uid("polld")
    A(f"s_mov_b32 s{sSP}, {SPIN}")
    A.label(l)
    if x4: A(f"buffer_load_dwordx4 {vr(vd,4)}, v{va}, s[12:15], s{soff} offen sc1")
    else: A(f"buffer_load_dword v{vd}, v{va}, s[12:15], s{soff} offen sc1")
    if n2 is not None: A(f"buffer_load_dword v{vd+1}, v{va}, s[12:15], s{soff} offen offset:{n2} sc1")
    A("s_waitcnt vmcnt(0)")
    A(f"v_cmp_ne_u32 vcc, s{sNON}, v{vd}")
    if n2 is not None or x4:
        A(f"v_cmp_ne_u32 s[38:39], s{sNON}, v{vd+(2 if x4 else 1)}")
        A("s_nop 1")
        A("s_or_b64 vcc, vcc, s[38:39]")
    else:
        A("s_nop 1")
    A(f"s_cbranch_vccz {d}")
    A("s_mov_b64 exec, vcc")
    A(f"s_sub_u32 s{sSP}, s{sSP}, 1")
    A(f"s_cbranch_scc1 {d}")
    A(f"s_sleep {slp}")
    A(f"s_branch {l}")
    A.label(d)
    A("s_mov_b64 exec, -1")

def flag_store(soff, nrep=1, sh=12):
    A(f"v_mov_b32 v{vT}, s{sNON}")
    if nrep > 1: A(f"v_lshlrev_b32 v{vT2}, {sh}, v{vL}")
    else: A(f"v_mov_b32 v{vT2}, 0")
    A(f"s_mov_b64 exec, {(1 << nrep) - 1}")
    A(f"buffer_store_dword v{vT}, v{vT2}, s[12:15], s{soff} offen sc1")
    A("s_mov_b64 exec, -1")

def team_add(cnt, last_label=None, n=4):
    A(f"v_mov_b32 v{vT}, {L_CNT + 4*cnt}")
    A(f"v_mov_b32 v{vT2}, 1")
    A("s_mov_b64 exec, 1")
    if last_label:
        A(f"ds_add_rtn_u32 v{vT2}, v{vT}, v{vT2}")
        A("s_waitcnt lgkmcnt(0)")
        A("s_mov_b64 exec, -1")
        A(f"v_readfirstlane_b32 s{sT}, v{vT2}")
        A("s_nop 1")
        A(f"s_cmp_lg_u32 s{sT}, {n-1}")
        A(f"s_cbranch_scc1 {last_label}")
    else:
        A(f"ds_add_u32 v{vT}, v{vT2}")
        A("s_mov_b64 exec, -1")

def team_wait(cnt, n=4, slp=2):
    l = A.uid("tw"); d = A.uid("twd")
    A(f"v_mov_b32 v{vT}, {L_CNT + 4*cnt}")
    A(f"s_mov_b32 s{sSP}, {SPIN}")
    A.label(l)
    A(f"ds_read_b32 v{vT2}, v{vT}")
    A("s_waitcnt lgkmcnt(0)")
    A(f"v_readfirstlane_b32 s{sT}, v{vT2}")
    A("s_nop 1")
    A(f"s_cmp_ge_u32 s{sT}, {n}")
    A(f"s_cbranch_scc1 {d}")
    A(f"s_sub_u32 s{sSP}, s{sSP}, 1")
    A(f"s_cbranch_scc1 {d}")
    A(f"s_sleep {slp}")
    A(f"s_branch {l}")
    A.label(d)

def pv(O, V, S):
    return f"{SMF} {vr(O,16)}, {vr(V,4)}, {vr(S,8)}, v{vIDX}"

def tile_code(Sc, qk, pv1, pv0, extra):
    d = {}
    for i in range(16): d[f"e{i}"] = f"v_exp_f32 v{Sc+i}, v{Sc+i}"
    d["PV1"] = pv1; d["QK"] = qk; d["PV0"] = pv0
    ABL = OPT.get("abl", "").split(",")
    if "nopv" in ABL: d["PV1"] = d["PV0"] = "s_nop 2"
    if "noqk" in ABL: d["QK"] = "s_nop 1"
    if "noexp" in ABL:
        for i in range(16): d[f"e{i}"] = "s_nop 1"
    order = OPT.get("order", "e0 e1 PV1 X1 e2 e3 e4 X3 QK X2 e5 e6 e7 e8 e9 e10 X5 PV0 X4 e11 e12 e13 e14 e15").replace("_", " ")
    for x in order.split():
        if x[0] == "X":
            if extra.get(x): A(extra[x])
        elif d[x]: A(d[x])

NEG, S0, S1, P = 16, 32, 48, 64

def lane_max_all(regs, dst, tmp):
    regs = list(regs)
    A(f"v_max3_f32 v{dst}, v{regs[0]}, v{regs[1]}, v{regs[2]}")
    A(f"v_max3_f32 v{tmp}, v{regs[3]}, v{regs[4]}, v{regs[5]}")
    rest = regs[6:]; t = [dst, tmp]; n = 0
    while rest:
        a, b = rest.pop(0), rest.pop(0)
        A(f"v_max3_f32 v{t[n&1]}, v{t[n&1]}, v{a}, v{b}"); n += 1
    A(f"v_max_f32 v{dst}, v{dst}, v{tmp}")
    A(f"v_mov_b32 v{tmp}, v{dst}")
    A("s_nop 1")
    A(f"v_permlane32_swap_b32 v{dst}, v{tmp}")
    A(f"v_max_f32 v{dst}, v{dst}, v{tmp}")

def mask_tuple(dst, v_true, v_false):
    for r in range(16):
        c0 = (r & 3) + 8 * (r >> 2)
        p = 40 + 2 * (r & 1)
        A(f"s_mov_b32 s{p}, {(1 << c0) - 1:#x}")
        A(f"s_mov_b32 s{p+1}, {(1 << (c0 + 4)) - 1:#x}")
        A(f"v_cndmask_b32_e64 v{dst+r}, {v_false}, {v_true}, s[{p}:{p+1}]")

def range_check(O, bad):
    A(f"v_max3_f32 v{vT}, |v{O}|, |v{O+1}|, |v{O+2}|")
    A(f"v_max3_f32 v{vT2}, |v{O+3}|, |v{O+4}|, |v{O+5}|")
    A(f"v_max3_f32 v{vT}, v{vT}, |v{O+6}|, |v{O+7}|")
    A(f"s_mov_b32 s{sT}, {f2u(2.0**-60):#x}")
    A(f"s_mov_b32 s{sT2}, {f2u(2.0**40):#x}")
    A(f"s_mov_b32 s{sT3}, {f2u(2.0**120):#x}")
    A(f"v_add_f32 v{vT}, v{vT}, v{vT2}")
    A(f"v_cmp_nlt_f32 vcc, s{sT}, v{O+8}")
    A(f"v_cmp_ngt_f32 s[38:39], s{sT2}, v{O+8}")
    A(f"v_cmp_ngt_f32 s[40:41], s{sT3}, v{vT}")
    A("s_nop 1")
    A("s_or_b64 vcc, vcc, s[38:39]")
    A("s_or_b64 vcc, vcc, s[40:41]")
    A(f"s_cbranch_vccnz {bad}")

def slow_path(name, ret, Qr, O, s_base, s_n, step, masks, KB, VB, MK):
    lp1, lp2 = A.uid("sp1"), A.uid("sp2")
    vM, vM2, vBig = 7, 8, 9
    A.label(name)
    A("s_waitcnt vmcnt(0) lgkmcnt(0)")
    A(f"v_mov_b32 v{vBig}, {f2u(-1e38):#x}")
    def set_mask():
        if not masks:
            return
        l0, l8, ld = A.uid("m0"), A.uid("m8"), A.uid("md")
        A(f"s_cmp_eq_u32 s{sA1}, 0")
        A(f"s_cbranch_scc1 {l0}")
        A(f"s_cmp_eq_u32 s{sA1}, 8")
        A(f"s_cbranch_scc1 {l8}")
        for r in range(16): A(f"v_mov_b32 v{MK+r}, 0")
        A(f"s_branch {ld}")
        A.label(l0); mask_tuple(MK, f"v{vBig}", "0"); A(f"s_branch {ld}")
        A.label(l8); mask_tuple(MK, "0", f"v{vBig}")
        A.label(ld)
    C = vr(MK, 16) if masks else "0"
    A(f"v_mov_b32 v{vM}, v{vBig}")
    A(f"s_mov_b32 s{sA0}, s{s_base}")
    A(f"s_mov_b32 s{sA1}, 0")
    A.label(lp1)
    A(f"buffer_load_dwordx4 {vr(KB,4)}, v{vK}, s[12:15], s{sA0} offen sc1")
    set_mask()
    A("s_waitcnt vmcnt(0)")
    A("s_nop 1")
    A(f"{MF} {vr(S0,16)}, {vr(KB,4)}, {vr(Qr,4)}, {C}")
    A(f"s_add_u32 s{sA0}, s{sA0}, {step & 0xffffffff:#x}")
    A(f"s_add_u32 s{sA1}, s{sA1}, 1")
    A("s_nop 15")
    for i in range(8): A(f"v_max3_f32 v{vM}, v{vM}, v{S0+2*i}, v{S0+2*i+1}")
    A(f"s_cmp_lt_u32 s{sA1}, s{s_n}")
    A(f"s_cbranch_scc1 {lp1}")
    A(f"v_mov_b32 v{vM2}, v{vM}")
    A("s_nop 1")
    A(f"v_permlane32_swap_b32 v{vM}, v{vM2}")
    A(f"v_max_f32 v{vM}, v{vM}, v{vM2}")
    for r in range(16): A(f"v_mov_b32 v{O+r}, 0")
    A(f"s_mov_b32 s{sA0}, s{s_base}")
    A(f"s_mov_b32 s{sA1}, 0")
    A.label(lp2)
    A(f"buffer_load_dwordx4 {vr(KB,4)}, v{vK}, s[12:15], s{sA0} offen sc1")
    A(f"buffer_load_dwordx4 {vr(VB,4)}, v{vV}, s[12:15], s{sA0} offen sc1")
    A(f"buffer_load_dwordx4 {vr(VB+4,4)}, v{vV1}, s[12:15], s{sA0} offen sc1")
    set_mask()
    A("s_waitcnt vmcnt(0)")
    A("s_nop 1")
    A(f"{MF} {vr(S0,16)}, {vr(KB,4)}, {vr(Qr,4)}, {C}")
    A(f"s_add_u32 s{sA0}, s{sA0}, {step & 0xffffffff:#x}")
    A(f"s_add_u32 s{sA1}, s{sA1}, 1")
    A("s_nop 15")
    for r in range(16): A(f"v_sub_f32 v{S0+r}, v{S0+r}, v{vM}")
    for r in range(16): A(f"v_exp_f32 v{S0+r}, v{S0+r}")
    A("s_nop 2")
    A(pv(O, VB, S0))
    A(pv(O, VB + 4, S0 + 8))
    A(f"s_cmp_lt_u32 s{sA1}, s{s_n}")
    A("s_nop 15")
    A(f"s_cbranch_scc1 {lp2}")
    A(f"s_branch {ret}")

def normalize_store(O, PK, soff):
    A(f"v_rcp_f32 v{vT}, v{O+8}")
    A("s_nop 0")
    for r in range(8): A(f"v_mul_f32 v{O+r}, v{O+r}, v{vT}")
    for r in range(4): A(f"v_cvt_pk_bf16_f32 v{PK+r}, v{O+2*r}, v{O+2*r+1}")
    A(f"buffer_store_dwordx4 {vr(PK,4)}, v{vK}, s[12:15], s{soff} offen sc1")

def tail_dma(team):
    A(f"v_and_b32 v{vT}, 7, v{vL}")
    A(f"v_lshlrev_b32 v{vT}, 5, v{vT}")
    if "oarep" in OPT:
        OS = int(OPT["oarep"])
        A(f"v_and_b32 v{vT}, 7, v{vL}")
        A(f"v_lshlrev_b32 v{vT}, {OS}, v{vT}")
        A(f"s_lshl_b32 s{sT3}, s{sRB}, 3")
        A(f"s_add_u32 s{sT3}, s{sT3}, s{sHG}")
        A(f"s_lshl_b32 s{sT3}, s{sT3}, {OS+3}")
    else:
        A(f"s_lshl_b32 s{sT3}, s{sRB}, 8")
    A(f"s_add_u32 s{sT3}, s{sT3}, {FL_OA:#x}")
    A(f"s_and_b32 s{sT}, s{sW}, 1")
    A(f"s_lshr_b32 s{sT2}, s{sW}, 1")
    A(f"s_lshl_b32 s{sA0}, s{sT}, 15")
    A(f"s_lshl_b32 s{sA1}, s{sRB}, 1")
    A(f"s_add_u32 s{sA1}, s{sA1}, s{sT}")
    A(f"s_lshl_b32 s{sA1}, s{sA1}, 16")
    A(f"s_add_u32 s{sA1}, s{sA1}, {WS_O:#x}")
    for m in range(len(MS)):
        A(f"s_mul_i32 s{40+m}, s{sT2}, {MS[m] // 4 * 1024}")
        A(f"s_add_u32 s{40+m}, s{40+m}, {sum(MS[:m]) * 1024}")
    if OPT.get("tp", "all") == "one":
        l = A.uid("tp")
        if team == "A":
            A(f"s_cmp_lg_u32 s{sW}, 0")
            A(f"s_cbranch_scc1 {l}")
            poll_flags(vT, sT3, slp=1)
        A.label(l)
        A("s_barrier")
    else:
        poll_flags(vT, sT3, slp=1)
    stamp()
    for m in range(len(MS)):
        A(f"s_add_u32 m0, s{sA0}, s{40+m}")
        A(f"s_add_u32 s{sT}, s{sA1}, s{40+m}")
        for i in range(MS[m] // 4): A(f"buffer_load_dwordx4 v{vK}, s[12:15], s{sT} offen offset:{i*1024} sc1 lds")

def gen():
    k = NAME + "_kernel"
    A.raw(f".globl {k}\n.p2align 8\n.type {k},@function\n{k}:")
    A("s_cmp_ge_u32 s2, 256")
    A("s_cbranch_scc1 L_exit")
    stamp(real=True); stamp()
    if "hwmap0" in OPT:
        A("s_getreg_b32 s3, hwreg(HW_REG_HW_ID)")
        A("s_getreg_b32 s2, hwreg(HW_REG_XCC_ID)")
        A("s_and_b32 s2, s2, 7")
        A("s_bfe_u32 s4, s3, 0x30008")
        A("s_lshl_b32 s4, s4, 3")
        A("s_or_b32 s2, s2, s4")
        A("s_bfe_u32 s4, s3, 0x2000d")
        A("s_lshl_b32 s4, s4, 6")
        A("s_or_b32 s2, s2, s4")
    if "scr" in OPT:
        A("s_bfe_u32 s3, s2, 0x30003")
        A("s_xor_b32 s2, s2, s3")
    vXd, vWd, vXa, vWa = 7, 8, 9, 13
    A(f"v_lshrrev_b32 v{vT}, 6, v0")
    A(f"v_and_b32 v{vL}, 63, v0")
    A(f"v_readfirstlane_b32 s{sW}, v{vT}")
    A(f"v_lshlrev_b32 v{vT2}, 2, v{vL}")
    A(f"s_cmp_lg_u32 s{sW}, 3")
    A("s_cbranch_scc1 L_nozero")
    A(f"v_mov_b32 v{vT}, 0")
    A(f"v_add_u32 v{vT2}, {L_CNT}, v{vT2}")
    A(f"ds_write_b32 v{vT2}, v{vT}")
    A("s_waitcnt lgkmcnt(0)")
    A.label("L_nozero")
    A("s_load_dwordx16 s[44:59], s[0:1], 0")
    A("s_load_dwordx8 s[60:67], s[0:1], 64")
    A("s_memrealtime s[22:23]")
    A(f"s_and_b32 s{sHG}, s2, 1")
    A(f"s_lshl_b32 s{sHG}, s{sHG}, 2")
    if "oldmap" in OPT:
        A(f"s_bfe_u32 s{sT}, s2, 0x20003")
        A(f"s_add_u32 s{sHG}, s{sHG}, s{sT}")
        A(f"s_bfe_u32 s{sRB}, s2, 0x20001")
        A(f"s_lshl_b32 s{sRB}, s{sRB}, 3")
        A(f"s_lshr_b32 s{sT}, s2, 5")
        A(f"s_add_u32 s{sRB}, s{sRB}, s{sT}")
    else:
        A(f"s_bfe_u32 s{sT}, s2, 0x10003")
        A(f"s_add_u32 s{sHG}, s{sHG}, s{sT}")
        A(f"s_lshr_b32 s{sT}, s2, 7")
        A(f"s_lshl_b32 s{sT}, s{sT}, 1")
        A(f"s_add_u32 s{sHG}, s{sHG}, s{sT}")
        A(f"s_bfe_u32 s{sRB}, s2, 0x20001")
        A(f"s_lshl_b32 s{sRB}, s{sRB}, 3")
        A(f"s_bfe_u32 s{sT}, s2, 0x30004")
        A(f"s_add_u32 s{sRB}, s{sRB}, s{sT}")
    A(f"v_lshlrev_b32 v{vK}, 4, v{vL}")
    A("s_barrier")
    A(f"s_lshr_b32 s{sT}, s{sW}, 2")
    A(f"s_xor_b32 s{sT}, s{sT}, s{sHG}")
    A(f"s_and_b32 s{sT}, s{sT}, 1")
    A(f"s_xor_b32 s{sT}, s{sT}, 1")
    A(f"s_lshl_b32 s{sT}, s{sT}, 2")
    A(f"s_and_b32 s{sJ}, s{sW}, 3")
    A(f"s_add_u32 s{sT}, s{sT}, s{sJ}")
    A(f"s_lshl_b32 s{sT4}, s{sT}, 10")
    A(f"s_lshl_b32 s{sT}, s{sT}, 3")
    A(f"v_lshrrev_b32 v{vT}, 3, v{vL}")
    A(f"v_add_u32 v{vT}, s{sT}, v{vT}")
    A(f"v_lshrrev_b32 v{vT2}, 1, v{vT}")
    A(f"v_xor_b32 v{vT2}, v{vT2}, v{vL}")
    A(f"v_and_b32 v{vT2}, 7, v{vT2}")
    A(f"v_lshlrev_b32 v{vT2}, 4, v{vT2}")
    A(f"v_lshl_add_u32 v{vXd}, v{vT}, 10, v{vT2}")
    A(f"s_lshl_b32 s{sA0}, s{sRB}, 16")
    if ROT:
        A(f"s_and_b32 s37, s{sHG}, 2")
        A(f"s_add_u32 s37, s37, 4")
    else:
        A("s_mov_b32 s37, 0")
    if "bfirst" in OPT:
        A(f"s_cmp_lt_u32 s{sW}, 4")
        A("s_cbranch_scc1 L_ateam")
        A.raw("; @@A_BEGIN")
        A.label("L_ateam")
    else:
        A(f"s_cmp_ge_u32 s{sW}, 4")
        A("s_cbranch_scc1 L_bteam")

    sXR, sQR = 37, 54
    def dma_x_plain(kb):
        kb = [3, 0, 1, 2, 4, 5, 6, 7][kb] if "k3" in OPT else kb
        A(f"s_add_u32 m0, s{sT4}, {L_X + kb*8192 - kb*128}")
        A("s_nop 0")
        A(f"buffer_load_dwordx4 v{vXd}, s[4:7], s{sA0} offen offset:{kb*128} lds")
    def dma_x(kb):
        A(f"s_lshl_b32 s{sT2}, s{sXR}, 13")
        A(f"s_add_u32 m0, s{sT4}, s{sT2}")
        A(f"s_lshl_b32 s{sT2}, s{sXR}, 7")
        A(f"s_add_u32 s{sT2}, s{sT2}, s{sA0}")
        A(f"buffer_load_dwordx4 v{vXd}, s[4:7], s{sT2} offen lds")
        if kb < 7:
            A(f"s_add_u32 s{sXR}, s{sXR}, 1")
            A(f"s_and_b32 s{sXR}, s{sXR}, 7")

    def x_frag_addr(dst, s_off):
        A(f"v_and_b32 v{vT}, 31, v{vL}")
        A(f"v_lshrrev_b32 v{vT2}, 5, v{vL}")
        A(f"v_bfe_u32 v{vT3}, v{vL}, 1, 3")
        A(f"v_xor_b32 v{vT2}, v{vT2}, v{vT3}")
        A(f"v_lshl_add_u32 v{vT}, v{vT}, 7, s{s_off}")
        for q in range(4):
            A(f"v_xor_b32 v{vT3}, {2*q}, v{vT2}")
            A(f"v_lshl_add_u32 v{dst+q}, v{vT3}, 4, v{vT}")

    def tr_addr(dst, hmul, rowb, cgmul, s_off):
        A(f"v_lshrrev_b32 v{vT}, 5, v{vL}")
        A(f"v_bfe_u32 v{vT2}, v{vL}, 2, 2")
        A(f"v_mad_u32_u24 v{vT}, v{vT}, {hmul}, v{vT2}")
        A(f"v_and_b32 v{vT2}, 3, v{vL}")
        A(f"v_lshlrev_b32 v{vT2}, 3, v{vT2}")
        if cgmul:
            A(f"v_bfe_u32 v{vT3}, v{vL}, 4, 1")
            A(f"v_lshl_add_u32 v{vT2}, v{vT3}, {int(math.log2(cgmul))}, v{vT2}")
        A(f"v_lshl_add_u32 v{dst}, v{vT}, {int(math.log2(rowb))}, v{vT2}")
        A(f"v_add_u32 v{dst}, s{s_off}, v{dst}")

    def w128_dma_addr(dst, stride):
        A(f"v_lshrrev_b32 v{vT}, 3, v{vL}")
        if stride == 1024: A(f"v_lshlrev_b32 v{vT}, 10, v{vT}")
        else: A(f"v_mul_u32_u24 v{vT}, {stride}, v{vT}")
        A(f"v_lshrrev_b32 v{vT2}, 2, v{vL}")
        A(f"v_and_b32 v{vT2}, 4, v{vT2}")
        A(f"v_xor_b32 v{vT2}, v{vT2}, v{vL}")
        A(f"v_and_b32 v{vT2}, 7, v{vT2}")
        A(f"v_lshl_add_u32 v{dst}, v{vT2}, 4, v{vT}")

    def w128_tr_addr(dst, hmul, s_off, s_ct=None):
        A(f"v_lshrrev_b32 v{vT}, 5, v{vL}")
        A(f"v_bfe_u32 v{vT2}, v{vL}, 2, 2")
        A(f"v_mad_u32_u24 v{vT}, v{vT}, {hmul}, v{vT2}")
        A(f"v_and_b32 v{vT2}, 3, v{vL}")
        A(f"v_lshlrev_b32 v{vT2}, 3, v{vT2}")
        A(f"v_lshl_add_u32 v{vT}, v{vT}, 7, v{vT2}")
        A(f"v_bfe_u32 v{vT2}, v{vL}, 4, 1")
        A(f"v_lshl_add_u32 v{vT}, v{vT2}, 5, v{vT}")
        A(f"v_bfe_u32 v{vT2}, v{vL}, 3, 1")
        if s_ct is not None: A(f"v_xor_b32 v{vT2}, s{s_ct}, v{vT2}")
        A(f"v_lshl_add_u32 v{vT}, v{vT2}, 6, v{vT}")
        if s_off is None: A(f"v_mov_b32 v{dst}, v{vT}")
        else: A(f"v_add_u32 v{dst}, s{s_off}, v{vT}")

    def v_lane_addr():
        A(f"v_and_b32 v{vT}, 31, v{vL}")
        A(f"v_lshrrev_b32 v{vT2}, 5, v{vL}")
        A(f"v_lshlrev_b32 v{vT2}, 8, v{vT2}")
        A(f"v_lshl_add_u32 v{vV}, v{vT}, 4, v{vT2}")
        A(f"v_add_u32 v{vV}, 1024, v{vV}")
        A(f"v_mov_b32 v{vT2}, {OOB:#x}")
        A(f"v_cmp_gt_u32 s[38:39], 16, v{vT}")
        A(f"v_and_b32 v{vT}, 27, v{vT}")
        A(f"v_mov_b32 v{vT3}, 2048")
        A(f"v_cndmask_b32_e64 v{vV}, v{vT2}, v{vV}, s[38:39]")
        A(f"v_cmp_eq_u32 s[38:39], 16, v{vT}")
        A(f"v_add_u32 v{vV1}, 512, v{vV}")
        A("s_nop 0")
        A(f"v_cndmask_b32_e64 v{vV}, v{vV}, v{vT3}, s[38:39]")
        A(f"v_cndmask_b32_e64 v{vV1}, v{vV1}, v{vT3}, s[38:39]")
        if "zerov" in OPT.get("abl", ""):
            A(f"v_mov_b32 v{vV}, {OOB:#x}")
            A(f"v_mov_b32 v{vV1}, {OOB:#x}")

    def chain(s0, n, FR, ACC, kstride, second, swap):
        def rd(s):
            b = FR + 8 * (s % 4)
            A(f"ds_read_b64_tr_b16 v[{b}:{b+1}], v{vWa} offset:{s*kstride}")
            A(f"ds_read_b64_tr_b16 v[{b+2}:{b+3}], v{vWa} offset:{s*kstride+second}")
            A(f"ds_read_b128 v[{b+4}:{b+7}], v{vXa+(s&3)} offset:{(s>>2)*8192}")
        for s in range(s0, s0 + 3): rd(s)
        for s in range(s0, s0 + n):
            if s + 3 < s0 + n: rd(s + 3)
            A(f"s_waitcnt lgkmcnt({3 * (min(s + 3, s0 + n - 1) - s)})")
            b = FR + 8 * (s % 4)
            c = "0" if s == 0 else vr(ACC, 16)
            if swap: A(f"{MF} {vr(ACC,16)}, {vr(b+4,4)}, {vr(b,4)}, {c}")
            else:    A(f"{MF} {vr(ACC,16)}, {vr(b,4)}, {vr(b+4,4)}, {c}")

    R = int(OPT.get("ring", 4))
    D = int(OPT.get("depth", R - 1))
    G1 = int(OPT.get("g1", 2 * R - 1 if R == 4 else 7))
    CHK = G1 - D
    assert 0 < CHK <= R and D < R
    SL = [72, 84] + [176 + 12 * i for i in range(R - 2)]
    Q = 96; O = 112
    KT0 = 176 + 12 * (R - 2) if R == 4 else SL[R - 2]
    w128_dma_addr(vWd, 1024)
    A(f"s_lshl_b32 s{sA1}, s{sW}, 14")
    A(f"s_lshl_b32 s{sT}, s{sHG}, 7")
    A(f"s_add_u32 s{sA1}, s{sA1}, s{sT}")
    A(f"s_lshl_b32 s{sA2}, s{sW}, 11")
    A(f"s_add_u32 s{sA2}, s{sA2}, {L_WQ}")
    A("s_waitcnt lgkmcnt(0)")
    srd(4, P_X, 2048 * 1024)
    srd(8, P_WQ, 512 * 1024)
    if "cpf" in OPT:
        A(f"s_cmp_lg_u32 s{sW}, 3")
        A("s_cbranch_scc1 L_nocpf")
        A("s_getpc_b64 s[38:39]")
        A.label("L_pc")
        A(f"s_sub_u32 s38, s38, L_pc-{k}")
        A("s_subb_u32 s39, s39, 0")
        A(f"s_lshr_b32 s{sT}, s2, 3")
        A(f"v_lshlrev_b32 v{vT}, 5, v{vL}")
        A(f"v_add_u32 v{vT}, s{sT}, v{vT}")
        A(f"v_lshlrev_b32 v{vT}, 7, v{vT}")
        A(f"v_cmp_gt_u32 vcc, L_code_end-{k}, v{vT}")
        A(f"v_mov_b32 v{vT3}, s39")
        A(f"v_add_co_u32 v{vT}, s[40:41], s38, v{vT}")
        A("s_nop 1")
        A(f"v_addc_co_u32 v{vT2}, s[40:41], 0, v{vT3}, s[40:41]")
        A("s_mov_b64 exec, vcc")
        A(f"global_load_dword v254, v[{vT}:{vT2}], off")
        A("s_mov_b64 exec, -1")
        A.label("L_nocpf")
    if ROT: A(f"s_and_b32 s{sQR}, s{sRB}, 7")
    else: A(f"s_mov_b32 s{sQR}, 0")
    if "pf0" in OPT:
        A(f"s_lshr_b32 s{sT}, s2, 3")
        A(f"s_cmp_ge_u32 s{sW}, 2")
        A("s_cbranch_scc1 L_a_pfq")
        A(f"s_bfe_u32 s{sT2}, s2, 0x20001")
        A(f"s_lshl_b32 s{sT2}, s{sT2}, 19")
        A(f"s_lshl_b32 s{sT}, s{sT}, 14")
        A(f"s_add_u32 s{sT2}, s{sT2}, s{sT}")
        A(f"s_lshl_b32 s{sT}, s{sW}, 13")
        A(f"s_add_u32 s{sT2}, s{sT2}, s{sT}")
        A(f"v_lshlrev_b32 v{vT}, 7, v{vL}")
        A(f"buffer_load_dword v254, v{vT}, s[4:7], s{sT2} offen sc1")
        A("s_branch L_a_pfd")
        A.label("L_a_pfq")
        A(f"s_cmp_eq_u32 s{sW}, 3")
        A("s_cbranch_scc1 L_a_pfd")
        A(f"s_and_b32 s{sT2}, s2, 1")
        A(f"s_lshl_b32 s{sT2}, s{sT2}, 9")
        A(f"s_lshl_b32 s{sT}, s{sT}, 14")
        A(f"s_add_u32 s{sT2}, s{sT2}, s{sT}")
        A(f"v_lshrrev_b32 v{vT}, 2, v{vL}")
        A(f"v_lshlrev_b32 v{vT}, 10, v{vT}")
        A(f"v_and_b32 v{vT2}, 3, v{vL}")
        A(f"v_lshl_add_u32 v{vT}, v{vT2}, 7, v{vT}")
        A(f"buffer_load_dword v254, v{vT}, s[8:11], s{sT2} offen sc1")
        A.label("L_a_pfd")
    sRI = 55
    def a_setup():
        srd(12, P_WS, WS_SIZE)
        A(f"s_and_b32 s{sRI}, s{sW}, 1")
        A(f"s_lshl_b32 s{sT2}, s{sRI}, 12")
        x_frag_addr(vXa, sT2)
        A(f"s_lshr_b32 s{sJ}, s{sW}, 1")
        A(f"s_mov_b32 s{sT2}, {L_WQ}")
        w128_tr_addr(vWa, 8, sT2, sJ)
        v_lane_addr()
        for q in range(4):
            for r in range(0, 10, 2): A(f"v_pk_mov_b32 v[{O+16*q+r}:{O+16*q+r+1}], 0, 0")
    if OPT.get("alate", "1") == "1": a_setup()
    if OPT.get("ahold"):
        A(f"s_bitcmp1_b32 s{sHG}, 1")
        A("s_cbranch_scc1 L_a_go")
        team_wait(int(OPT["ahold"]), 4, 1)
        A.label("L_a_go")
    for kb in range(8):
        dma_x(kb)
        A(f"s_lshl_b32 s{sT2}, s{sQR}, 13")
        A(f"s_add_u32 m0, s{sA2}, s{sT2}")
        A(f"s_lshl_b32 s{sT2}, s{sQR}, 16")
        A(f"s_add_u32 s{sT2}, s{sT2}, s{sA1}")
        A(f"buffer_load_dwordx4 v{vWd}, s[8:11], s{sT2} offen lds")
        A(f"s_add_u32 m0, m0, 1024")
        A(f"s_add_u32 s{sT2}, s{sT2}, 8192")
        A(f"buffer_load_dwordx4 v{vWd}, s[8:11], s{sT2} offen lds")
        if kb < 7:
            A(f"s_add_u32 s{sQR}, s{sQR}, 1")
            A(f"s_and_b32 s{sQR}, s{sQR}, 7")
    stamp()
    if OPT.get("alate", "1") != "1": a_setup()
    A("s_waitcnt vmcnt(0)")
    team_add(5)
    team_wait(5, 8, 1)
    stamp()
    chain(0, 32, 200, S0, 2048, 512, False)
    stamp()
    A(f"s_mov_b32 s{sT2}, {f2u(CSCALE):#x}")
    A(f"s_lshl_b32 s{sT3}, s{sRI}, 12")
    A(f"s_lshl_b32 s{sT4}, s{sJ}, 11")
    A(f"s_add_u32 s{sT4}, s{sT4}, s{sT3}")
    A(f"s_add_u32 s{sT4}, s{sT4}, {L_QX}")
    A(f"s_add_u32 s{sT3}, s{sT3}, {L_QX}")
    A(f"v_add_u32 v{vT}, s{sT4}, v{vK}")
    A(f"v_add_u32 v{vT3}, s{sT3}, v{vK}")
    sKB, sKE = 37, 54
    A(f"s_mul_i32 s{sKB}, s{sJ}, {32*TB}")
    A(f"s_add_u32 s{sKE}, s{sKB}, {32*TB}")
    A(f"s_mul_i32 s{sA0}, s{sRB}, {TB}")
    A(f"s_add_u32 s{sKV}, s{sKB}, s{sA0}")
    for r in range(0, 4, 2): A(f"v_pk_mov_b32 v[{SL[R-1]+8+r}:{SL[R-1]+9+r}], 0, 0")
    assert D < R - 1 or R == 4
    A(f"v_mov_b32 v{vIDX}, 0xdddddddd")
    A("s_nop 0")
    for r in range(16): A(f"v_mul_f32 v{S0+r}, s{sT2}, v{S0+r}")
    for r in range(8): A(f"v_cvt_pk_bf16_f32 v{S1+r}, v{S0+2*r}, v{S0+2*r+1}")
    A(f"ds_write_b128 v{vT}, {vr(S1,4)}")
    A(f"ds_write_b128 v{vT}, {vr(S1+4,4)} offset:1024")
    A("s_waitcnt lgkmcnt(0)")
    team_add(6)
    stamp()
    team_wait(11, 1, 1)
    stamp()
    def kv_load(slot, part):
        b = SL[slot]
        m = "" if "plain" in OPT else "sc1"
        if part == 0: return f"buffer_load_dwordx4 {vr(b,4)}, v{vK}, s[12:15], s{sKV} offen {m}"
        if part == 1: return f"buffer_load_dwordx4 {vr(b+4,4)}, v{vV}, s[12:15], s{sKV} offen {m}"
        return f"buffer_load_dwordx4 {vr(b+8,4)}, v{vV1}, s[12:15], s{sKV} offen {m}"
    KADV = [f"s_add_u32 s{sKV}, s{sKV}, {TB}", f"s_cmp_eq_u32 s{sKV}, s{sKE}", f"s_cselect_b32 s{sKV}, s{sKB}, s{sKV}"]
    A(f"buffer_load_dwordx4 {vr(KT0,4)}, v{vK}, s[12:15], s{sA0} offen sc1")
    for t in range(D):
        for part in range(3): A(kv_load(t, part))
        for x in KADV: A(x)
    team_wait(6, 4, 1)
    A(f"s_lshl_b32 s{sT2}, s{sJ}, 11")
    A(f"v_add_u32 v8, s{sT2}, v{vT3}")
    A(f"v_xor_b32 v7, 2048, v8")
    for q in range(4): A(f"ds_read_b128 {vr(Q+4*q,4)}, v{7 + q//2} offset:{(q&1)*1024}")
    A(f"s_mul_i32 s{sT2}, s{sW}, 4608")
    A(f"s_add_u32 s{sT2}, s{sT2}, {L_COMB}")
    A(f"s_xor_b32 s{sT3}, s{sW}, 2")
    A(f"s_mul_i32 s{sT3}, s{sT3}, 4608")
    A(f"s_add_u32 s{sT3}, s{sT3}, {L_COMB}")
    A(f"v_lshlrev_b32 v14, 2, v{vL}")
    A(f"v_add_u32 v11, s{sT2}, v{vK}")
    A(f"v_add_u32 v12, s{sT2}, v14")
    A(f"v_add_u32 v13, s{sT3}, v{vK}")
    A(f"v_add_u32 v14, s{sT3}, v14")
    A(f"s_lshl_b32 s{sA2}, s{sRB}, 1")
    A(f"s_add_u32 s{sA2}, s{sA2}, s{sRI}")
    A(f"s_lshl_b32 s{sA2}, s{sA2}, 6")
    A(f"s_lshl_b32 s{sT4}, s{sHG}, 2")
    A(f"s_add_u32 s{sA2}, s{sA2}, s{sT4}")
    A(f"s_lshl_b32 s{sT4}, s{sJ}, 1")
    A(f"s_add_u32 s{sA2}, s{sA2}, s{sT4}")
    A(f"s_lshl_b32 s{sA2}, s{sA2}, 10")
    A(f"s_add_u32 s{sA2}, s{sA2}, {WS_O:#x}")
    A(f"v_mov_b32 v{vT3}, {L_CNT + 64}")
    A(f"ds_read_b32 v{vT3}, v{vT3}")
    A(f"s_mov_b32 s{sCnt}, {32 // R - 1}")
    A("s_mov_b64 vcc, -1")
    A("s_waitcnt lgkmcnt(0)")
    team_add(7)
    A(f"v_readfirstlane_b32 s{sNON}, v{vT3}")
    A(f"s_waitcnt vmcnt({3*D})")
    T0 = [S0, S1, KT0 + 4, KT0 + 20] if R == 4 else [S0, S1, O + 32, O + 48]
    for q in range(4): A(f"{MF} {vr(T0[q],16)}, {vr(KT0,4)}, {vr(Q+4*q,4)}, 0")
    A("s_nop 7")
    A("s_nop 0")
    lane_max_all([T0[q] + r for q in range(4) for r in range(4)], vT, vT2)
    A(f"v_sub_f32 v{NEG}, 0, v{vT}")
    A(f"v_sub_f32 v{NEG+1}, 0, v{vT}")
    for r in range(2, 16, 2): A(f"v_pk_mov_b32 v[{NEG+r}:{NEG+r+1}], v[{NEG}:{NEG+1}], v[{NEG}:{NEG+1}] op_sel:[0,1]")
    A(f"s_waitcnt vmcnt({3*(D-1)})")
    A("s_nop 0")
    A(f"{MF} {vr(S0,16)}, {vr(SL[0],4)}, {vr(Q,4)}, {vr(NEG,16)}")
    if R == 4:
        A("s_nop 7")
        A("s_nop 3")
    else:
        for q in (2, 3):
            for r in range(0, 10, 2): A(f"v_pk_mov_b32 v[{O+16*q+r}:{O+16*q+r+1}], 0, 0")
        A("s_nop 1")
    stamp()
    if PROF: A("s_memtime s[68:69]")
    A.raw(".p2align 6")
    A.label("L_aloop")
    if PROF:
        A("s_waitcnt lgkmcnt(0)")
        A(f"s_add_u32 m0, s{sCnt}, 1")
        A("s_nop 0")
        A(f"v_writelane_b32 v255, s68, m0")
        A("s_memtime s[68:69]")
    for kb in range(R):
        for q in range(4):
            Sc, Sn = (S0, S1) if q % 2 == 0 else (S1, S0)
            cur, prv, nxt = SL[kb], SL[(kb - 1) % R], SL[(kb + 1) % R]
            Kq = cur if q < 3 else nxt
            nq = (q + 1) % 4
            Vp = cur if q > 0 else prv
            Op = O + 16 * ((q - 1) % 4); Oc = O + 16 * q
            ex = {}
            if q < 3: ex["X2"] = kv_load((kb + D) % R, q)
            if q == 0 and kb == CHK:
                ex["X1"] = "s_cbranch_vccnz L_afirst\nL_afirst_ret:"
            if q == 2: ex["X4"] = KADV[0]
            if q == 3:
                ex["X1"] = f"s_waitcnt vmcnt({3*(D-1)})"
                ex["X2"] = KADV[1]
                ex["X4"] = KADV[2]
                if kb == R - 1: ex["X4"] += f"\ns_sub_u32 s{sCnt}, s{sCnt}, 1"
            if "noload" in OPT.get("abl", ""):
                for x in ("X0", "X1", "X2", "X3", "X4"): ex.pop(x, None)
            if "nosalu" in OPT.get("abl", ""):
                for x in ("X1", "X2"): ex.pop(x, None)
            tile_code(Sc, f"{MF} {vr(Sn,16)}, {vr(Kq,4)}, {vr(Q+4*nq,4)}, {'0' if 'c0' in OPT.get('abl', '') else vr(NEG,16)}",
                      pv(Op, Vp + 8, Sn + 8), pv(Op, Vp + 4, Sn) if "pvhead" in OPT else pv(Oc, cur + 4, Sc), ex)
    if CHK == R:
        A("s_cbranch_vccnz L_afirst")
    A("s_cbranch_scc0 L_aloop")
    A("s_nop 0")
    A(pv(O + 48, SL[R-1] + 8, S1 + 8))
    for i in range(2):
        A(f"ds_write_b128 v11, {vr(O+16*i,4)} offset:{i*2304}")
        A(f"ds_write_b128 v11, {vr(O+16*i+4,4)} offset:{i*2304+1024}")
        A(f"ds_write_b32 v12, v{O+16*i+8} offset:{i*2304+2048}")
    stamp()
    A(f"s_mov_b32 s{sKV}, 0")
    A(f"s_mov_b32 s{sCnt}, 64")
    A("s_waitcnt lgkmcnt(0)")
    A("s_barrier")
    for i in range(2):
        A(f"ds_read_b32 v{S0+16*i+8}, v14 offset:{i*2304+2048}")
        A(f"ds_read_b128 {vr(S0+16*i,4)}, v13 offset:{i*2304}")
        A(f"ds_read_b128 {vr(S0+16*i+4,4)}, v13 offset:{i*2304+1024}")
    OK_ = O + 32
    def fin(i):
        o = OK_ + 16 * i; t = O + 16 * i
        A(f"v_rcp_f32 v{t+8}, v{o+8}")
        A("s_nop 0")
        for r in range(8): A(f"v_mul_f32 v{t+r}, v{o+r}, v{t+8}")
        for r in range(4): A(f"v_cvt_pk_bf16_f32 v{P+4*i+r}, v{t+2*r}, v{t+2*r+1}")
        A(f"buffer_store_dwordx4 {vr(P+4*i,4)}, v{vK}, s[12:15], s{sA2} offen offset:{i*1024} sc1")
    for i in range(2):
        o = OK_ + 16 * i
        A(f"s_waitcnt lgkmcnt({3*(1-i)})")
        A(f"v_add_f32 v{o+8}, v{o+8}, v{S0+16*i+8}")
        for r in range(0, 8, 2): A(f"v_pk_add_f32 v[{o+r}:{o+r+1}], v[{o+r}:{o+r+1}], v[{S0+16*i+r}:{S0+16*i+r+1}]")
        fin(i)
    for i in range(2):
        range_check(OK_ + 16 * i, f"L_a_slow{i}")
        A.label(f"L_a_ok{i}")
    A("s_waitcnt vmcnt(0)")
    stamp()
    A(f"s_lshl_b32 s{sA2}, s{sRB}, 8")
    A(f"s_lshl_b32 s{sT}, s{sHG}, 5")
    A(f"s_add_u32 s{sA2}, s{sA2}, s{sT}")
    A(f"s_add_u32 s{sA2}, s{sA2}, {FL_OA:#x}")
    A("s_barrier")
    A(f"s_cmp_lg_u32 s{sW}, 0")
    A("s_cbranch_scc1 L_a_noflag")
    flag_store(sA2)
    A.label("L_a_noflag")
    tail_dma("A")
    for m in range(len(MS)):
        A(f"s_waitcnt vmcnt({sum(MS[m+1:]) // 4})")
        A("s_barrier")
    if PROF:
        A("s_lshl_b32 s68, s2, 2")
        A(f"s_add_u32 s68, s68, s{sW}")
        A("s_lshl_b32 s68, s68, 8")
        A(f"s_add_u32 s68, s68, {WS_PROF + 0x80000:#x}")
        A(f"v_lshlrev_b32 v248, 2, v{vL}")
        A("buffer_store_dword v255, v248, s[12:15], s68 offen")
    stamp_flush()
    A("s_endpgm")
    A.label("L_afirst")
    team_wait(9, 1, 1)
    A("s_mov_b64 vcc, 0")
    A("s_branch L_aloop" if CHK == R else "s_branch L_afirst_ret")
    for i in range(2):
        slow_path(f"L_a_slow{i}", f"L_a_re{i}", Q + 8 + 4 * i, OK_ + 16 * i, sKV, sCnt, TB, False, SL[0], SL[0] + 4, None)
        A.label(f"L_a_re{i}")
        fin(i)
        A(f"s_branch L_a_ok{i}")

    NST[0] = 2
    if "bfirst" in OPT: A.raw("; @@A_END")
    A.label("L_bteam")
    A(f"s_setprio {OPT.get('bprio', 2)}")
    A(f"s_lshl_b32 s{sA2}, s{sJ}, 10")
    A("s_mov_b32 s6, 0x200000")
    A("s_mov_b32 s7, 0x00020000")
    A(f"s_bitcmp0_b32 s{sHG}, 1")
    A("s_cselect_b32 s42, 16384, 0")
    A("s_mov_b32 s43, 0x00020000")
    A(f"s_or_b32 s{sT3}, s2, s{sJ}")
    A(f"s_cmp_lt_u32 s{sHG}, 4")
    A("s_waitcnt lgkmcnt(0)")
    A(f"s_cselect_b32 s40, s{P_WK}, s{P_WV}")
    A(f"s_cselect_b32 s41, s{P_WK+1}, s{P_WV+1}")
    A(f"s_mov_b32 s4, s{P_X}")
    A(f"s_and_b32 s5, s{P_X+1}, 0xffff")
    A("s_and_b32 s41, s41, 0xffff")
    if "k0st" in OPT: kstamp()
    if "tfirst" in OPT:
        A(f"s_bitcmp0_b32 s{sHG}, 1")
        A("s_cbranch_scc1 L_b_notf")
        A(f"s_cmp_lt_u32 s{sJ}, 2")
        A(f"s_cselect_b32 s8, s{P_WK}, s{P_WS}")
        A(f"s_cselect_b32 s9, s{P_WK+1}, s{P_WS+1}")
        A(f"s_cmp_eq_u32 s{sJ}, 1")
        A(f"s_cselect_b32 s8, s{P_WV}, s8")
        A(f"s_cselect_b32 s9, s{P_WV+1}, s9")
        A(f"s_cmp_eq_u32 s{sJ}, 2")
        A(f"s_cselect_b32 s8, s{P_DBG}, s8")
        A(f"s_cselect_b32 s9, s{P_DBG+1}, s9")
        A("s_and_b32 s9, s9, 0xffff")
        A("s_mov_b32 s10, 256")
        A("s_mov_b32 s11, 0x00020000")
        A(f"v_mov_b32 v{vT}, 128")
        A("s_mov_b64 exec, 1")
        A(f"buffer_load_dword v254, v{vT}, s[8:11], 0 offen sc1")
        A("s_mov_b64 exec, -1")
        A.label("L_b_notf")
    for kb in range(8):
        dma_x_plain(kb)
        if "k0st" in OPT and kb in (0, 1): kstamp()
        if kb % 2 == 0:
            A(f"s_add_u32 m0, s{sA2}, {L_WKV + kb*2048}")
            A(f"s_add_u32 s{sT}, s{sA2}, {kb*2048}")
            A(f"buffer_load_dwordx4 v{vK}, s[40:43], s{sT} offen lds")
    A(f"s_or_b32 s{sT2}, s22, 1")
    A("s_mov_b32 s3, s22")
    srd(20, P_DBG, 256)
    srd(12, P_WS, WS_SIZE)
    A(f"s_cmp_lg_u32 s{sT3}, 1")
    A("s_cbranch_scc1 L_b_nononce")
    A(f"s_cmp_lg_u32 s2, 0")
    A("s_cbranch_scc1 L_b_nononce")
    A(f"v_mov_b32 v{vT}, s{sT2}")
    A(f"v_mov_b32 v{vT2}, 0")
    A("s_mov_b64 exec, 1")
    A(f"buffer_store_dword v{vT}, v{vT2}, s[20:23], 0 offen sc1")
    A("s_mov_b64 exec, -1")
    A.label("L_b_nononce")
    if "notouch" not in OPT:
        A(f"s_cmp_lg_u32 s{sJ}, 3")
        A("s_cbranch_scc1 L_b_notouch")
        A(f"v_lshlrev_b32 v{vT}, 21, v{vL}")
        if "touchfl" in OPT:
            A(f"s_lshl_b32 s{sT2}, s2, 7")
            A(f"s_add_u32 s{sT2}, s{sT2}, {WS_FL - 2048:#x}")
            A(f"v_writelane_b32 v{vT}, s{sT2}, 5")
            if NREP > 1:
                A(f"s_add_u32 s{sT2}, s{sT2}, 0x10000")
                A(f"v_writelane_b32 v{vT}, s{sT2}, 6")
            A(f"s_mov_b64 exec, {0x7f if NREP > 1 else 0x3f}")
        else:
            A("s_mov_b64 exec, 0x1f")
        A(f"buffer_load_dword v254, v{vT}, s[12:15], 0 offen offset:2048 sc1")
        A("s_mov_b64 exec, -1")
        A.label("L_b_notouch")
    stamp()
    A(f"s_and_b32 s{sT4}, s{sHG}, 1")
    A(f"s_lshl_b32 s{sT2}, s{sT4}, 12")
    x_frag_addr(vXa, sT2)
    A(f"s_mov_b32 s{sT2}, {L_WKV}")
    tr_addr(vWa, 8, 32, 0, sT2)
    v_lane_addr()
    vN = 14
    A(f"v_mov_b32 v{vN+1}, 0")
    def nonce_load(): A(f"buffer_load_dword v{vN}, v{vN+1}, s[20:23], 0 offen sc1")
    def nonce_wait():
        l = A.uid("nw"); d = A.uid("nwd")
        A(f"s_mov_b32 s{sSP}, {SPIN}")
        A.label(l)
        A("s_waitcnt vmcnt(0)")
        A(f"v_readfirstlane_b32 s{sNON}, v{vN}")
        r = A.uid("nwr")
        A("s_nop 1")
        A(f"s_cmp_eq_u32 s{sNON}, 0")
        A(f"s_cbranch_scc1 {r}")
        A(f"s_sub_u32 s{sT}, s3, s{sNON}")
        A(f"s_cmp_lt_i32 s{sT}, 1000")
        A(f"s_cbranch_scc1 {d}")
        A(f"s_cmp_lt_u32 s{sSP}, {SPIN - 64}")
        A(f"s_cbranch_scc1 {d}")
        A.label(r)
        A(f"s_sub_u32 s{sSP}, s{sSP}, 1")
        A(f"s_cbranch_scc1 {d}")
        nonce_load()
        A(f"s_branch {l}")
        A.label(d)
    ACC = 16
    A(f"s_lshl_b32 s{sRT0}, s{sRB}, 1")
    A(f"s_add_u32 s{sA0}, s{sRT0}, s{sT4}")
    A(f"s_mul_i32 s{sA0}, s{sA0}, {TB}")
    A(f"s_lshl_b32 s{sA1}, s{sRB}, 2")
    A(f"s_add_u32 s{sA1}, s{sA1}, s{sT4}")
    A(f"s_lshr_b32 s{sT2}, s{sHG}, 2")
    A(f"s_lshl_b32 s{sT2}, s{sT2}, 1")
    A(f"s_add_u32 s{sA1}, s{sA1}, s{sT2}")
    A(f"s_lshl_b32 s{sA1}, s{sA1}, {3 if 'dense' in OPT else 5}")
    A(f"s_add_u32 s{sA1}, s{sA1}, {FL_KVA:#x}")
    A("s_waitcnt vmcnt(6)")
    kstamp()
    ksv = NST[0]
    team_add(4)
    A(f"s_cmp_lg_u32 s{sJ}, 0")
    A("s_cbranch_scc1 L_b_idle")
    A(f"s_bitcmp1_b32 s{sHG}, 1")
    A("s_cbranch_scc1 L_b_idle")
    def kv_unit(swap):
        NST[0] = ksv
        team_wait(4, 4, 1)
        kstamp()
        chain(0, 16, 64, ACC, 512, 128, swap)
        kstamp()
        A("s_waitcnt vmcnt(0)")
        kstamp()
        nonce_load()
        team_add(5)
        team_add(8)
        team_wait(8, 4, 1)
        kstamp()
        chain(16, 16, 64, ACC, 512, 128, swap)
        kstamp()
    A(f"s_cmp_ge_u32 s{sHG}, 4")
    A("s_cbranch_scc1 L_b_vunit")
    kv_unit(False)
    A("s_nop 7")
    A("s_nop 3")
    for r in range(4): A(f"v_cvt_pk_bf16_f32 v{64+r}, v{ACC+2*r}, v{ACC+2*r+1}")
    A(f"buffer_store_dwordx4 {vr(64,4)}, v{vK}, s[12:15], s{sA0} offen sc1")
    A("s_branch L_b_kvpub")
    A.label("L_b_vunit")
    A(f"v_lshrrev_b32 v{vT2}, 5, v{vL}")
    A(f"v_lshlrev_b32 v7, 8, v{vT2}")
    A(f"v_and_b32 v{vT2}, 15, v{vL}")
    A(f"v_lshl_add_u32 v7, v{vT2}, 4, v7")
    A(f"v_bfe_u32 v{vT2}, v{vL}, 4, 1")
    A(f"v_lshl_add_u32 v7, v{vT2}, 30, v7")
    A(f"v_cmp_gt_u32 s[38:39], 8, v{vL}")
    A(f"v_mov_b32 v{vT2}, {OOB:#x}")
    for r in range(4): A(f"v_mov_b32 v{100+r}, {ONES:#x}")
    A(f"v_cndmask_b32_e64 v8, v{vT2}, v{vK}, s[38:39]")
    A(f"buffer_store_dwordx4 {vr(100,4)}, v8, s[12:15], s{sA0} offen offset:2048 sc1")
    kv_unit(True)
    A("s_nop 7")
    A("s_nop 3")
    for s in range(2):
        for r in range(4): A(f"v_cvt_pk_bf16_f32 v{64+4*s+r}, v{ACC+8*s+2*r}, v{ACC+8*s+2*r+1}")
        A("s_nop 1")
        A(f"v_permlane32_swap_b32 v{64+4*s}, v{66+4*s}")
        A(f"v_permlane32_swap_b32 v{65+4*s}, v{67+4*s}")
        A(f"buffer_store_dwordx4 {vr(64+4*s,4)}, v7, s[12:15], s{sA0} offen offset:{1024+s*512} sc1")
    A.label("L_b_kvpub")
    nonce_wait()
    kstamp()
    flag_store(sA1, NREP)
    A("s_branch L_b_pdone")
    A.label("L_b_idle")
    if KVP:
        NST[0] = ksv
        for _ in range(6): kstamp()
    A(f"s_cmp_eq_u32 s{sJ}, 3")
    A("s_cbranch_scc1 L_b_idle1")
    A("s_waitcnt vmcnt(0)")
    A.label("L_b_idle1")
    A("s_waitcnt vmcnt(1)")
    nonce_load()
    team_add(5)
    team_add(8)
    nonce_wait()
    A(f"v_mov_b32 v{vT}, {L_CNT + 64}")
    A(f"ds_write_b32 v{vT}, v{vN}")
    A.label("L_b_pdone")
    stamp()
    if KVP: STOFF[0] = True
    srd(8, P_WQKV, 512 * 3072)
    srd(40, P_GATE, 1024)
    A(f"s_mov_b32 m0, {L_GATE}")
    A(f"s_lshl_b32 s{sHEAD}, s{sHG}, 2")
    A(f"buffer_load_dwordx4 v{vK}, s[40:43], 0 offen lds")
    A(f"s_add_u32 s{sHEAD}, s{sHEAD}, s{sJ}")
    vD1, vX0, vW1, vW2, vG = 7, 9, 13, 8, 15
    w128_dma_addr(vD1, 3072)
    A(f"s_lshl_b32 s{sA0}, s{sJ}, 10")
    A(f"s_lshl_b32 s{sT2}, s{sHG}, 7")
    A(f"s_add_u32 s{sA0}, s{sA0}, s{sT2}")
    A(f"s_lshl_b32 s{sA1}, s{sJ}, 14")
    A(f"s_add_u32 s{sA1}, s{sA1}, {L_WQ}")
    sP3W = 37
    A(f"s_add_u32 s{sP3W}, s{sA0}, {512*3072}")
    if ROT:
        A(f"s_and_b32 s{sT3}, s{sRB}, 3")
        A(f"s_cmp_eq_u32 s{sJ}, 3")
        A(f"s_cselect_b32 s{sT3}, 0, s{sT3}")
        A(f"s_lshl_b32 s{sT2}, s{sT3}, 14")
        A(f"s_mul_i32 s{sT3}, s{sT3}, {128*3072}")
        A(f"s_add_u32 s{sA0}, s{sA0}, s{sT3}")
    else:
        A(f"s_mov_b32 s{sT2}, 0")
    x_frag_addr(vX0, sT2)
    w128_tr_addr(vW1, 8, sA1)
    A(f"v_xor_b32 v{vW2}, 64, v{vW1}")
    AC, FR = 16, 80
    for r in range(0, 64, 2): A(f"v_pk_mov_b32 v[{AC+r}:{AC+r+1}], 0, 0")
    A(f"s_mov_b32 s{sCnt}, 4")
    A(f"s_cmp_eq_u32 s{sJ}, 3")
    A("s_cbranch_scc1 L_b_gwave")
    if "p3early" in OPT: team_wait(6, 4, 1)
    else: team_wait(7, 4, 2)
    stamp()
    if "nob" in OPT: A("s_branch L_b_skip")
    if "pf" in OPT:
        A(f"s_lshr_b32 s{sT}, s2, 3")
        A(f"s_and_b32 s{sT3}, s2, 1")
        A(f"s_lshl_b32 s{sT3}, s{sT3}, 9")
        A(f"s_mul_i32 s{sT2}, s{sT}, {16*3072}")
        A(f"s_add_u32 s{sT2}, s{sT2}, s{sT3}")
        A(f"s_lshl_b32 s{sT4}, s{sJ}, 10")
        A(f"s_add_u32 s{sT2}, s{sT2}, s{sT4}")
        A(f"v_lshrrev_b32 v{vT}, 2, v{vL}")
        A(f"v_and_b32 v{vT2}, 3, v{vL}")
        A(f"v_lshlrev_b32 v{vT2}, 7, v{vT2}")
        A(f"v_lshl_add_u32 v{vT3}, v{vT}, 10, v{vT2}")
        A(f"v_mul_u32_u24 v{vT}, 3072, v{vT}")
        A(f"v_add_u32 v{vT}, v{vT}, v{vT2}")
        A(f"buffer_load_dword v254, v{vT}, s[8:11], s{sT2} offen sc1")
        A(f"s_cmp_eq_u32 s{sJ}, 2")
        A("s_cbranch_scc1 L_b_nopf")
        A(f"s_cmp_eq_u32 s{sJ}, 0")
        A(f"s_cselect_b32 s40, s{P_BWO}, s{P_AWO}")
        A(f"s_cselect_b32 s41, s{P_BWO+1}, s{P_AWO+1}")
        A("s_and_b32 s41, s41, 0xffff")
        A(f"s_mov_b32 s42, {512*1024:#x}")
        A(f"s_lshl_b32 s{sT2}, s{sT}, 14")
        A(f"s_add_u32 s{sT2}, s{sT2}, s{sT3}")
        A(f"buffer_load_dword v254, v{vT3}, s[40:43], s{sT2} offen sc1")
        A.label("L_b_nopf")
    def p3_dma(slot):
        A(f"s_add_u32 m0, s{sA1}, {slot*2048}")
        A(f"s_add_u32 s{sT2}, s{sA0}, {8*3072}")
        A(f"buffer_load_dwordx4 v{vD1}, s[8:11], s{sA0} offen lds")
        A(f"s_add_u32 m0, s{sA1}, {slot*2048+1024}")
        A(f"s_add_u32 s{sA0}, s{sA0}, {16*3072}")
        A(f"buffer_load_dwordx4 v{vD1}, s[8:11], s{sT2} offen lds")
    def p3_wrap():
        A(f"s_cmp_ge_u32 s{sA0}, s{sP3W}")
        A(f"s_cselect_b32 s{sT2}, {512*3072}, 0")
        A(f"s_sub_u32 s{sA0}, s{sA0}, s{sT2}")
    def p3_rd(i):
        if "nop3rd" in OPT.get("abl", ""): return
        b = FR + 16 * (i & 1); sl = (i % 8) * 2048
        if i == 8:
            for q in range(4):
                A(f"v_add_u32 v{vX0+q}, 16384, v{vX0+q}")
                A(f"v_and_b32 v{vX0+q}, 0xffff, v{vX0+q}")
        A(f"ds_read_b64_tr_b16 v[{b}:{b+1}], v{vW1} offset:{sl}")
        A(f"ds_read_b64_tr_b16 v[{b+2}:{b+3}], v{vW1} offset:{sl+512}")
        A(f"ds_read_b128 v[{b+8}:{b+11}], v{vX0+(i&3)} offset:{((i%8)>>2)*8192}")
        A(f"ds_read_b128 v[{b+12}:{b+15}], v{vX0+(i&3)} offset:{((i%8)>>2)*8192+4096}")
        A(f"ds_read_b64_tr_b16 v[{b+4}:{b+5}], v{vW2} offset:{sl}")
        A(f"ds_read_b64_tr_b16 v[{b+6}:{b+7}], v{vW2} offset:{sl+512}")
    LA = int(OPT.get("p3d", 8))
    for s in range(LA): p3_dma(s)
    if OPT.get("il") != "2":
        A(f"s_waitcnt vmcnt({2*LA-2})")
        p3_rd(0)
    def p3_loop_il(name, swap):
        A.label(name)
        for i in range(8):
            b = FR + 16 * (i & 1)
            mark = len(A.lines); p3_rd(i + 1); rd = A.lines[mark:]; del A.lines[mark:]
            pre = [l for l in rd if "ds_read" not in l]; rd = [l for l in rd if "ds_read" in l]
            mf = []
            for ct in range(2):
                for ri in range(2):
                    a = AC + 16 * (2 * ct + ri); wv, xv = vr(b + 4 * ct, 4), vr(b + 8 + 4 * ri, 4)
                    mf.append(f"{MF} {vr(a,16)}, {xv if swap else wv}, {wv if swap else xv}, {vr(a,16)}")
            A("s_waitcnt lgkmcnt(0)")
            A(mf[0])
            if i == (8 - LA) % 8:
                p3_wrap()
                A(f"s_cmp_eq_u32 s{sCnt}, 1")
                A(f"s_cselect_b32 s{sA0}, {OOB:#x}, s{sA0}")
            p3_dma((i + LA) % 8)
            A(mf[1])
            for l in pre: A(l)
            A(f"s_waitcnt vmcnt({2*LA-2})")
            for l in rd[:3]: A(l)
            if PACE: A(f"s_nop {PACE-1}")
            A(mf[2])
            for l in rd[3:]: A(l)
            if PACE: A(f"s_nop {PACE-1}")
            A(mf[3])
        A(f"s_sub_u32 s{sCnt}, s{sCnt}, 1")
        A(f"s_cmp_lg_u32 s{sCnt}, 0")
        A(f"s_cbranch_scc1 {name}")
    def p3_loop_jit(name, swap):
        A.label(name)
        b = FR
        def mf(ct, ri):
            a = AC + 16 * (2 * ct + ri); wv, xv = vr(b + 4 * ct, 4), vr(b + 8 + 4 * ri, 4)
            if "nop3mf" not in OPT.get("abl", ""): A(f"{MF} {vr(a,16)}, {xv if swap else wv}, {wv if swap else xv}, {vr(a,16)}")
        for i in range(8):
            sl = i * 2048; xo = (i >> 2) * 8192
            A(f"s_waitcnt vmcnt({2*LA-2})")
            A(f"ds_read_b64_tr_b16 v[{b}:{b+1}], v{vW1} offset:{sl}")
            A(f"ds_read_b64_tr_b16 v[{b+2}:{b+3}], v{vW1} offset:{sl+512}")
            A(f"ds_read_b128 v[{b+8}:{b+11}], v{vX0+(i&3)} offset:{xo}")
            A("s_waitcnt lgkmcnt(0)")
            mf(0, 0)
            A(f"ds_read_b128 v[{b+12}:{b+15}], v{vX0+(i&3)} offset:{xo+4096}")
            A("s_waitcnt lgkmcnt(0)")
            mf(0, 1)
            A(f"ds_read_b64_tr_b16 v[{b+4}:{b+5}], v{vW2} offset:{sl}")
            A(f"ds_read_b64_tr_b16 v[{b+6}:{b+7}], v{vW2} offset:{sl+512}")
            A("s_waitcnt lgkmcnt(0)")
            mf(1, 1)
            if i == (8 - LA) % 8:
                p3_wrap()
                A(f"s_cmp_eq_u32 s{sCnt}, 1")
                A(f"s_cselect_b32 s{sA0}, {OOB:#x}, s{sA0}")
            p3_dma((i + LA) % 8)
            mf(1, 0)
        for q in range(4):
            A(f"v_add_u32 v{vX0+q}, 16384, v{vX0+q}")
            A(f"v_and_b32 v{vX0+q}, 0xffff, v{vX0+q}")
        A(f"s_sub_u32 s{sCnt}, s{sCnt}, 1")
        A(f"s_cmp_lg_u32 s{sCnt}, 0")
        A(f"s_cbranch_scc1 {name}")
    def p3_loop(name, swap):
        if OPT.get("il") == "2": return p3_loop_jit(name, swap)
        if OPT.get("il") == "1": return p3_loop_il(name, swap)
        A.label(name)
        for i in range(8):
            A(f"s_waitcnt vmcnt({2*LA-4})")
            p3_rd(i + 1)
            if i == (8 - LA) % 8:
                p3_wrap()
                A(f"s_cmp_eq_u32 s{sCnt}, 1")
                A(f"s_cselect_b32 s{sA0}, {OOB:#x}, s{sA0}")
            A("s_waitcnt lgkmcnt(6)")
            b = FR + 16 * (i & 1)
            n = 0
            for ct in range(2):
                for ri in range(2):
                    a = AC + 16 * (2 * ct + ri); wv, xv = vr(b + 4 * ct, 4), vr(b + 8 + 4 * ri, 4)
                    if "nop3mf" not in OPT.get("abl", ""): A(f"{MF} {vr(a,16)}, {xv if swap else wv}, {wv if swap else xv}, {vr(a,16)}")
                    if n == 0: p3_dma((i + LA) % 8)
                    elif PACE: A(f"s_nop {PACE-1}")
                    n += 1
        A(f"s_sub_u32 s{sCnt}, s{sCnt}, 1")
        A(f"s_cmp_lg_u32 s{sCnt}, 0")
        A(f"s_cbranch_scc1 {name}")
    PACE = int(OPT.get("pace", 0))
    A(f"s_cmp_eq_u32 s{sJ}, 2")
    A("s_cbranch_scc1 L_p3v")
    p3_loop("L_p3qk", False)
    svst = NST[0]
    stamp()
    A(f"s_lshl_b32 s{sKV}, s{sHG}, 8")
    A(f"s_add_u32 s{sKV}, s{sKV}, s{sRT0}")
    A(f"s_mul_i32 s{sKV}, s{sKV}, {TB}")
    A(f"s_add_u32 s{sKV}, s{sKV}, {WS_KVB:#x}")
    A(f"s_mov_b32 s{sT2}, {f2u(CSCALE):#x}")
    A(f"v_add_u32 v{vT3}, {L_QX}, v{vK}")
    A("s_waitcnt lgkmcnt(0)")
    A(f"s_cmp_eq_u32 s{sJ}, 1")
    A("s_cbranch_scc1 L_p3k")
    team_wait(7, 4, 2)
    for ct in range(2):
        for ri in range(2):
            for hh in range(2):
                a = AC + 16 * (2 * ct + ri) + 8 * hh; p = FR + 4 * ((2 * ri + hh) & 3)
                for r in range(8): A(f"v_mul_f32 v{a+r}, s{sT2}, v{a+r}")
                for r in range(4): A(f"v_cvt_pk_bf16_f32 v{p+r}, v{a+2*r}, v{a+2*r+1}")
                A(f"ds_write_b128 v{vT3}, {vr(p,4)} offset:{(4*ri + 2*ct + hh)*1024}")
        if ct == 0: A("s_waitcnt lgkmcnt(0)")
    A("s_waitcnt vmcnt(0) lgkmcnt(0)")
    A("s_branch L_p3done")
    A.label("L_p3k")
    for ct in range(2):
        for hh in range(2):
            for ri in range(2):
                a = AC + 16 * (2 * ct + ri) + 8 * hh; p = FR + 4 * (4 * ct + 2 * hh + ri)
                for r in range(4): A(f"v_cvt_pk_bf16_f32 v{p+r}, v{a+2*r}, v{a+2*r+1}")
                A(f"buffer_store_dwordx4 {vr(p,4)}, v{vK}, s[12:15], s{sKV} offen offset:{ri*TB} sc1")
            A(f"s_add_u32 s{sKV}, s{sKV}, {64*TB}")
    A("s_branch L_p3pub")
    A.label("L_p3v")
    p3_loop("L_p3vl", True)
    NST[0] = svst
    stamp()
    A(f"s_lshl_b32 s{sKV}, s{sHG}, 8")
    A(f"s_add_u32 s{sKV}, s{sKV}, s{sRT0}")
    A(f"s_mul_i32 s{sKV}, s{sKV}, {TB}")
    A(f"s_add_u32 s{sKV}, s{sKV}, {WS_KVB:#x}")
    A(f"s_mov_b32 s{sT3}, {64*TB}")
    A(f"v_lshrrev_b32 v{vT}, 4, v{vL}")
    A(f"v_mul_lo_u32 v{vT}, v{vT}, s{sT3}")
    A(f"v_bfe_u32 v{vT2}, v{vL}, 3, 1")
    A(f"v_mul_u32_u24 v{vT2}, {TB}, v{vT2}")
    A(f"v_add_u32 v{vT}, v{vT}, v{vT2}")
    A(f"v_and_b32 v{vT2}, 7, v{vL}")
    A(f"v_lshl_add_u32 v{vT3}, v{vT2}, 4, v{vT}")
    for r in range(4): A(f"v_mov_b32 v{120+r}, {ONES:#x}")
    A(f"v_bfe_u32 v{vT}, v{vL}, 4, 1")
    A(f"v_mul_lo_u32 v{vT}, v{vT}, s{sT3}")
    A(f"v_lshrrev_b32 v{vT2}, 5, v{vL}")
    A(f"v_lshl_add_u32 v{vT}, v{vT2}, 8, v{vT}")
    A(f"v_and_b32 v{vT2}, 15, v{vL}")
    A(f"v_lshl_add_u32 v{vT}, v{vT2}, 4, v{vT}")
    A("s_waitcnt lgkmcnt(0)")
    A(f"buffer_store_dwordx4 {vr(120,4)}, v{vT3}, s[12:15], s{sKV} offen offset:2048 sc1")
    for ct in range(2):
        for ri in range(2):
            for s in range(2):
                a = AC + 16 * (2 * ct + ri) + 8 * s; p = FR + 4 * (4 * ct + 2 * ri + s)
                for r in range(4): A(f"v_cvt_pk_bf16_f32 v{p+r}, v{a+2*r}, v{a+2*r+1}")
                A("s_nop 1")
                A(f"v_permlane32_swap_b32 v{p}, v{p+2}")
                A(f"v_permlane32_swap_b32 v{p+1}, v{p+3}")
                A(f"buffer_store_dwordx4 {vr(p,4)}, v{vT}, s[12:15], s{sKV} offen offset:{1024+ri*TB+s*512} sc1")
        if ct == 0: A(f"s_add_u32 s{sKV}, s{sKV}, {128*TB}")
    A.label("L_p3pub")
    A("s_waitcnt vmcnt(0)")
    team_add(0, "L_p3done", 2)
    A(f"s_lshl_b32 s{sT3}, s{sHG}, 5")
    A(f"s_add_u32 s{sT3}, s{sT3}, s{sRB}")
    A(f"s_lshl_b32 s{sT3}, s{sT3}, 5")
    A(f"s_add_u32 s{sT3}, s{sT3}, {FL_KVB:#x}")
    flag_store(sT3)
    A("s_branch L_p3done")
    A.label("L_b_gwave")
    NST[0] = svst - 1
    if "touchw" in OPT:
        A(f"v_lshlrev_b32 v{vT}, 16, v{vL}")
        A(f"buffer_load_dword v254, v{vT}, s[8:11], 0 offen sc1")
        srd(40, P_BWO, 512 * 1024)
        A(f"buffer_load_dword v254, v{vT}, s[40:43], 0 offen sc1")
        srd(40, P_AWO, 512 * 1024)
        A(f"buffer_load_dword v254, v{vT}, s[40:43], 0 offen sc1")
    A(f"v_bfe_u32 v{vT3}, v{vL}, 1, 4")
    A(f"v_min_u32 v{vT3}, {G1-1}, v{vT3}")
    A(f"v_add_u32 v{vT3}, s{sRB}, v{vT3}")
    A(f"v_and_b32 v{vT3}, 31, v{vT3}")
    A(f"v_and_b32 v{vT}, 32, v{vL}")
    A(f"v_add_u32 v{vT3}, v{vT3}, v{vT}")
    A(f"v_and_b32 v{vT}, 1, v{vT3}")
    A(f"v_lshrrev_b32 v{vT3}, 1, v{vT3}")
    A(f"v_lshl_add_u32 v{vT3}, v{vT3}, 2, v{vT}")
    A(f"v_and_b32 v{vT}, 1, v{vL}")
    A(f"v_lshl_add_u32 v{vT3}, v{vT}, 1, v{vT3}")
    A(f"v_lshlrev_b32 v{vT3}, 5, v{vT3}")
    if OPT.get("pstart", "5") == "5": team_wait(5, 8, 2)
    elif OPT.get("pstart") == "6": team_wait(6, 4, 1)
    if NREP > 1:
        A(f"s_and_b32 s{sT3}, s{sHG}, {NREP-1}")
        A(f"s_lshl_b32 s{sT3}, s{sT3}, 12")
        A(f"s_add_u32 s{sT3}, s{sT3}, {FL_KVA:#x}")
    else:
        A(f"s_mov_b32 s{sT3}, {FL_KVA:#x}")
    if KVP:
        NST[0] = 5
        kstamp()
    poll_flags(vT3, sT3, slp=int(OPT.get("pslp", 1)))
    if KVP:
        kstamp()
        A("s_waitcnt lgkmcnt(0)")
        A(f"s_sub_u32 s{70+2*NST[0]}, {SPIN}, s{sSP}")
        A(f"s_add_u32 s{70+2*NST[0]}, s{70+2*NST[0]}, s72")
        NST[0] = svst
    A("s_waitcnt lgkmcnt(0)")
    team_add(11)
    A(f"s_sleep {OPT.get('asl', 16)}")
    A(f"v_lshlrev_b32 v{vT}, 5, v{vL}")
    poll_flags(vT, sT3, n2=2048, slp=4)
    team_add(9)
    if "nob" in OPT: A("s_branch L_b_skip")
    stamp()
    A(f"v_lshrrev_b32 v{vW1}, 5, v{vL}")
    A(f"v_lshlrev_b32 v{vW1}, 4, v{vW1}")
    A(f"v_add_u32 v{vW1}, {L_GATE}, v{vW1}")
    A(f"s_mov_b32 s{sCnt}, 8")
    A.label("L_gloop")
    for i in range(4):
        A(f"ds_read_b128 {vr(FR,4)}, v{vW1} offset:{i*32}")
        A(f"ds_read_b128 {vr(FR+4,4)}, v{vX0+i}")
        A("s_waitcnt lgkmcnt(0)")
        A(f"{MF} {vr(AC,16)}, {vr(FR,4)}, {vr(FR+4,4)}, {vr(AC,16)}")
        A(f"ds_read_b128 {vr(FR+8,4)}, v{vX0+i} offset:4096")
        A(f"v_add_u32 v{vX0+i}, 8192, v{vX0+i}")
        A("s_waitcnt lgkmcnt(0)")
        A(f"{MF} {vr(AC+16,16)}, {vr(FR,4)}, {vr(FR+8,4)}, {vr(AC+16,16)}")
    A(f"v_add_u32 v{vW1}, 128, v{vW1}")
    A(f"s_sub_u32 s{sCnt}, s{sCnt}, 1")
    A(f"s_cmp_lg_u32 s{sCnt}, 0")
    A("s_cbranch_scc1 L_gloop")
    stamp()
    A("s_mov_b32 s38, 0")
    A("s_mov_b32 s39, -1")
    A("s_nop 5")
    A(f"v_cndmask_b32_e64 v{vG}, v{AC}, v{AC+16}, s[38:39]")
    A(f"v_mul_f32 v{vG}, {f2u(-math.log2(math.e)):#x}, v{vG}")
    A(f"v_exp_f32 v{vG}, v{vG}")
    A(f"v_lshlrev_b32 v{vT}, 2, v{vL}")
    A(f"v_add_f32 v{vG}, 1.0, v{vG}")
    A(f"v_rcp_f32 v{vG}, v{vG}")
    A(f"v_add_u32 v{vT}, {L_G}, v{vT}")
    A(f"ds_write_b32 v{vT}, v{vG}")
    A("s_waitcnt lgkmcnt(0)")
    A.label("L_p3done")
    team_add(1)
    QB = 96; OB = 104; KV = 136
    A(f"s_lshl_b32 s{sKV}, s{sHEAD}, 6")
    A(f"s_add_u32 s{sKV}, s{sKV}, s{sRT0}")
    A(f"s_mul_i32 s{sKV}, s{sKV}, {TB}")
    A(f"s_add_u32 s{sKV}, s{sKV}, {WS_KVB:#x}")
    sWL, sWG, sWN = 37, 54, 55
    srd(8, P_BWO, 512 * 1024)
    srd(20, P_AWO, 512 * 1024)
    vWd2 = 11
    w128_dma_addr(vWd2, 1024)
    A(f"s_lshl_b32 s{sWL}, s{sJ}, 14")
    A(f"s_lshl_b32 s{sWG}, s{sJ}, 17")
    A(f"s_lshl_b32 s{sT}, s{sHG}, 7")
    A(f"s_add_u32 s{sWG}, s{sWG}, s{sT}")
    A(f"s_mov_b32 s{sWN}, 0")
    sWI, sWT = 56, 57
    if ROT:
        A(f"s_and_b32 s{sWI}, s{sRB}, 7")
        A(f"s_lshl_b32 s{sWI}, s{sWI}, 1")
    else:
        A(f"s_mov_b32 s{sWI}, 0")
    def w_loop(name, srd_, lds):
        A(f"s_mov_b32 s{sWN}, 16")
        A.label(name)
        A(f"s_lshl_b32 s{sWT}, s{sWI}, 10")
        A(f"s_add_u32 s{sWT}, s{sWT}, s{sWL}")
        A(f"s_add_u32 m0, s{sWT}, {lds}")
        A(f"s_lshl_b32 s{sWT}, s{sWI}, 13")
        A(f"s_add_u32 s{sWT}, s{sWT}, s{sWG}")
        A(f"buffer_load_dwordx4 v{vWd2}, s[{srd_}:{srd_+3}], s{sWT} offen lds")
        A(f"s_add_u32 s{sWI}, s{sWI}, 1")
        A(f"s_and_b32 s{sWI}, s{sWI}, 15")
        A(f"s_sub_u32 s{sWN}, s{sWN}, 1")
        A(f"s_waitcnt vmcnt({OPT.get('wd', 5)})")
        A(f"s_cmp_lg_u32 s{sWN}, 0")
        A(f"s_cbranch_scc1 {name}")
    A(f"s_lshl_b32 s{sT2}, s{sJ}, 10")
    A(f"s_add_u32 s{sT2}, s{sT2}, {L_QX}")
    A(f"v_add_u32 v7, s{sT2}, v{vK}")
    A(f"s_and_b32 s{sT2}, s{sJ}, 1")
    A(f"s_lshl_b32 s{sT2}, s{sT2}, 7")
    A(f"s_add_u32 s{sT2}, s{sT2}, {L_G}")
    A(f"v_and_b32 v9, 31, v{vL}")
    A(f"v_lshl_add_u32 v9, v9, 2, s{sT2}")
    stamp()
    team_wait(1)
    w_loop("L_wB", 8, L_X)
    A(f"s_cmp_lg_u32 s{sJ}, 3")
    A("s_cbranch_scc1 L_b_nokvb")
    A(f"v_min_u32 v{vT3}, 4, v{vL}")
    A(f"v_sub_u32 v{vT3}, s{sRB}, v{vT3}")
    A(f"v_max_i32 v{vT3}, 0, v{vT3}")
    A(f"v_lshlrev_b32 v{vT3}, 5, v{vT3}")
    A(f"s_lshl_b32 s{sT3}, s{sHG}, 10")
    A(f"s_add_u32 s{sT3}, s{sT3}, {FL_KVB:#x}")
    poll_flags(vT3, sT3, slp=2)
    team_add(10)
    A.label("L_b_nokvb")
    team_wait(10, 1)
    stamp()
    A(f"ds_read_b128 {vr(QB,4)}, v7")
    A(f"ds_read_b128 {vr(QB+4,4)}, v7 offset:4096")
    A(f"ds_read_b32 v{vG}, v9")
    A(f"s_add_u32 s{sA0}, s{sKV}, {TB}")
    A(f"s_add_u32 s{sA1}, s{sRT0}, 1")
    PRE = int(OPT.get("bpre", 4))
    def bkv(u):
        b = KV + 12 * u; o = []
        if u >= 2:
            o.append(f"s_cmp_ge_u32 s{sA1}, {u}")
            o.append(f"s_cselect_b32 s{sT}, s{sA0}, {OOB:#x}")
        sa = sT if u >= 2 else sA0
        o.append(f"buffer_load_dwordx4 {vr(b,4)}, v{vK}, s[12:15], s{sa} offen sc1")
        o.append(f"buffer_load_dwordx4 {vr(b+4,4)}, v{vV}, s[12:15], s{sa} offen sc1")
        o.append(f"buffer_load_dwordx4 {vr(b+8,4)}, v{vV1}, s[12:15], s{sa} offen sc1")
        if u < 9: o.append(f"s_sub_u32 s{sA0}, s{sA0}, {TB}")
        return "\n".join(o)
    order = []
    for u in range(PRE):
        A(bkv(u)); order += [("k", u), ("v", u), ("v2", u)]
    vBig = 7
    A(f"v_mov_b32 v{vIDX}, 0xdddddddd")
    A(f"v_mov_b32 v{vBig}, {f2u(-1e38):#x}")
    mask_tuple(NEG, f"v{vBig}", "0")
    for i in range(2):
        for r in range(0, 10, 2): A(f"v_pk_mov_b32 v[{OB+16*i+r}:{OB+16*i+r+1}], 0, 0")
    A(f"s_waitcnt vmcnt({3*PRE-4}) lgkmcnt(0)")
    A(f"{MF} {vr(S0,16)}, {vr(KV,4)}, {vr(QB+4,4)}, {vr(NEG,16)}")
    A(f"{MF} {vr(S1,16)}, {vr(KV+12,4)}, {vr(QB,4)}, {vr(NEG,16)}")
    A("s_nop 7")
    A("s_nop 3")
    lane_max_all(range(S0, S0 + 32), vT, vT2)
    A(f"v_sub_f32 v{NEG}, 0, v{vT}")
    A(f"v_sub_f32 v{NEG+1}, 0, v{vT}")
    for r in range(0, 32, 2): A(f"v_pk_add_f32 v[{S0+r}:{S0+r+1}], v[{S0+r}:{S0+r+1}], v[{NEG}:{NEG+1}]")
    for r in range(2, 16, 2): A(f"v_pk_mov_b32 v[{NEG+r}:{NEG+r+1}], v[{NEG}:{NEG+1}], v[{NEG}:{NEG+1}] op_sel:[0,1]")
    items = [(1, 0), (0, 1), (1, 1)]
    for u in range(2, 9): items += [(0, u), (1, u)]
    items += [(0, 9)]
    CF = KV
    waited = 3
    def need(tag):
        nonlocal waited
        k_ = order.index(tag)
        if k_ > waited:
            waited = k_
            return f"s_waitcnt vmcnt({len(order)-1-k_})"
        return None
    WPI = int(OPT.get("wpi", 1))
    wsteps = 0; nextu = PRE
    for n, (q, u) in enumerate(items):
        Sc, Sn = (S0, S1) if n % 2 == 0 else (S1, S0)
        ex = {}
        qk = None
        late = []
        if n % 2 == 1 and nextu < 10:
            ex["X4"] = bkv(nextu); late = [("k", nextu), ("v", nextu), ("v2", nextu)]; nextu += 1
        if n >= 1 and n + 1 < len(items):
            q2, u2 = items[n + 1]
            far = (q2, u2) in ((1, 8), (0, 9))
            ex["X3"] = need(("k", u2))
            qk = f"{MF} {vr(Sn,16)}, {vr(KV+12*u2,4)}, {vr(QB+4*q2,4)}, {vr(CF if far else NEG,16)}"
        ex["X5"] = need(("v2", u))
        order += late
        pv1 = None
        if n >= 1:
            qp, up = items[n - 1]
            pv1 = pv(OB + 16 * qp, KV + 12 * up + 8, Sn + 8)
        exit_here = (q == 1 and u in (1, 3, 5, 7))
        if exit_here: ex["X4"] = f"s_cmp_eq_u32 s{sA1}, {u}"
        if "nobat" in OPT.get("abl", ""):
            for x in sorted(ex):
                if ex[x]: A(ex[x])
            A("s_sleep 3")
        else:
            tile_code(Sc, qk, pv1, pv(OB + 16 * q, KV + 12 * u + 4, Sc), ex)
        if exit_here: A(f"s_cbranch_scc1 L_b_exit{u}")
        if n == 6: mask_tuple(CF, f"v{NEG}", f"v{vBig}")
    A("s_nop 1")
    A(pv(OB, KV + 12 * 9 + 8, S1 + 8))
    A.label("L_b_fin")
    stamp()
    A(f"s_lshl_b32 s{sA2}, s{sRT0}, 6")
    A(f"s_add_u32 s{sA2}, s{sA2}, s{sHEAD}")
    A(f"s_lshl_b32 s{sA2}, s{sA2}, 10")
    A(f"s_add_u32 s{sA2}, s{sA2}, {WS_O + 32*1024:#x}")
    A(f"s_min_u32 s{sCnt}, s{sA1}, 9")
    A("s_nop 7")
    for i in range(2):
        if not OPT.get("abl"): range_check(OB + 16 * i, f"L_b_slow{i}")
        A.label(f"L_b_ok{i}")
        normalize_store(OB + 16 * i, P + 4 * i, sA2)
        if i == 0:
            A(f"s_add_u32 s{sA2}, s{sA2}, 65536")
            A(f"s_add_u32 s{sKV}, s{sKV}, {TB}")
            A(f"s_add_u32 s{sCnt}, s{sRT0}, 2")
            A(f"s_min_u32 s{sCnt}, s{sCnt}, 9")
    A("s_waitcnt vmcnt(0)")
    team_add(2, "L_b_ob_nl")
    A(f"s_lshl_b32 s{sT3}, s{sRB}, 8")
    A(f"s_lshl_b32 s{sT4}, s{sHG}, 5")
    A(f"s_add_u32 s{sT3}, s{sT3}, s{sT4}")
    A(f"s_add_u32 s{sT3}, s{sT3}, {FL_OB:#x}")
    flag_store(sT3)
    A.label("L_b_ob_nl")
    A(f"s_and_b32 s{sT4}, s{sJ}, 1")
    A(f"s_lshr_b32 s{sT3}, s{sJ}, 1")
    vWp = 13
    w128_tr_addr(vWp, 4, None, sT3)
    A(f"v_and_b32 v{vT3}, 7, v{vL}")
    A(f"v_lshlrev_b32 v{vT3}, 5, v{vT3}")
    A(f"s_lshl_b32 s{sT3}, s{sRB}, 8")
    A(f"s_add_u32 s{sT3}, s{sT3}, {FL_OB:#x}")
    w_loop("L_wA", 20, L_WQ)
    A("s_waitcnt vmcnt(0)")
    team_add(3)
    OF = 128; WF = 64; ACB = 16; ACA = 32
    vWq = 12
    A(f"v_add_u32 v{vWq}, {L_WQ}, v{vWp}")
    team_wait(3)
    for s in range(32):
        if s % 7 == 0 and s: A("s_waitcnt lgkmcnt(0)")
        A(f"ds_read_b64_tr_b16 v[{OF+4*s}:{OF+4*s+1}], v{vWq} offset:{s*2048}")
        A(f"ds_read_b64_tr_b16 v[{OF+4*s+2}:{OF+4*s+3}], v{vWq} offset:{s*2048+1024}")
    A("s_waitcnt lgkmcnt(0)")
    team_add(12)
    poll_flags(vT3, sT3, slp=2)
    stamp()
    A(f"s_add_u32 s{sWG}, s{sRT0}, s{sT4}")
    A(f"s_lshl_b32 s{sWG}, s{sWG}, 16")
    A(f"s_lshr_b32 s{sA0}, s{sJ}, 1")
    A(f"s_lshl_b32 s{sA0}, s{sA0}, 14")
    A(f"s_add_u32 s{sWG}, s{sWG}, s{sA0}")
    A(f"s_add_u32 s{sWG}, s{sWG}, {WS_O + 32*1024:#x}")
    A(f"s_lshl_b32 s{sWL}, s{sT4}, 15")
    A(f"s_add_u32 s{sWL}, s{sWL}, s{sA0}")
    A(f"s_add_u32 s{sWL}, s{sWL}, {L_WQ}")
    team_wait(12)
    A(f"s_mov_b32 s{sWN}, 16")
    A.label("L_oB")
    A(f"s_mov_b32 m0, s{sWL}")
    A(f"s_add_u32 s{sWL}, s{sWL}, 1024")
    A(f"buffer_load_dwordx4 v{vK}, s[12:15], s{sWG} offen sc1 lds")
    A(f"s_add_u32 s{sWG}, s{sWG}, 1024")
    A(f"s_sub_u32 s{sWN}, s{sWN}, 1")
    A(f"s_waitcnt vmcnt({OPT.get('wd', 5)})")
    A(f"s_cmp_lg_u32 s{sWN}, 0")
    A("s_cbranch_scc1 L_oB")
    A.label("L_b_skip")
    A(f"s_and_b32 s{sT4}, s{sJ}, 1")
    srd(4, P_OUT, 2048 * 1024)
    vO = 8; vOa = 9
    A(f"v_and_b32 v{vT}, 31, v{vL}")
    A(f"v_lshlrev_b32 v{vT}, 10, v{vT}")
    A(f"v_lshrrev_b32 v{vT2}, 5, v{vL}")
    A(f"v_lshl_add_u32 v{vO}, v{vT2}, 4, v{vT}")
    A(f"s_add_u32 s{sKV}, s{sRT0}, s{sT4}")
    A(f"s_lshl_b32 s{sKV}, s{sKV}, 15")
    A(f"s_lshl_b32 s{sT}, s{sHG}, 7")
    A(f"s_add_u32 s{sKV}, s{sKV}, s{sT}")
    A(f"s_lshr_b32 s{sT}, s{sJ}, 1")
    A(f"s_lshl_b32 s{sT}, s{sT}, 6")
    A(f"s_add_u32 s{sKV}, s{sKV}, s{sT}")
    A(f"s_lshl_b32 s{sT}, s{sT4}, 15")
    A(f"v_add_u32 v{vOa}, s{sT}, v{vK}")
    if "touchout" in OPT:
        A(f"buffer_load_dword v{WF}, v{vO}, s[4:7], s{sKV} offen")
        A("s_waitcnt vmcnt(0)")
    OS = int(OPT.get("oarep", 5))
    A(f"s_lshl_b32 s{sA2}, s{sRB}, {OS+6 if 'oarep' in OPT else 8}")
    A(f"s_lshl_b32 s{sT}, s{sHG}, {OS}")
    A(f"s_add_u32 s{sA2}, s{sA2}, s{sT}")
    A(f"s_add_u32 s{sA2}, s{sA2}, {FL_OA:#x}")
    if "oarep" in OPT:
        A(f"s_lshl_b32 s{sT}, s{sRB}, 3")
        A(f"s_add_u32 s{sT}, s{sT}, s{sHG}")
        A(f"s_lshl_b32 s{sT}, s{sT}, {OS+3}")
        A(f"s_add_u32 s{sT}, s{sT}, {FL_OA:#x}")
        A(f"v_and_b32 v{vT}, 7, v{vL}")
        A(f"v_lshlrev_b32 v{vT}, {OS}, v{vT}")
        A(f"buffer_load_dword v{vT2}, v{vT}, s[12:15], s{sT} offen sc1")
        A("s_waitcnt vmcnt(0)")
    A(f"v_add_u32 v{vWq}, {L_WQ}, v{vOa}")
    A("s_waitcnt vmcnt(0) lgkmcnt(0)")
    stamp()
    if "lowp" in OPT: A("s_setprio 0")
    A("s_barrier")
    def rdb(s):
        b = WF + 8 * (s % 4)
        A(f"ds_read_b64_tr_b16 v[{b}:{b+1}], v{vWp} offset:{s*2048}")
        A(f"ds_read_b64_tr_b16 v[{b+2}:{b+3}], v{vWp} offset:{s*2048+1024}")
        A(f"ds_read_b128 v[{b+4}:{b+7}], v{vWq} offset:{s*1024}")
    NB1 = int(OPT.get("nb1", 32))
    for s in range(3): rdb(s)
    for s in range(32):
        if s == NB1:
            A("s_barrier")
        if s + 3 < 32: rdb(s + 3)
        A(f"s_waitcnt lgkmcnt({3 * (min(s + 3, 31) - s)})")
        b = WF + 8 * (s % 4)
        A(f"{MF} {vr(ACB,16)}, {vr(b,4)}, {vr(b+4,4)}, {'0' if s == 0 else vr(ACB,16)}")
    if NB1 == 32: A("s_barrier")
    tail_dma("B")
    A(f"v_sub_f32 v{vT3}, 1.0, v{vG}")
    for r in range(16): A(f"v_mul_f32 v{ACB+r}, v{ACB+r}, v{vT3}")
    for m in range(len(MS)):
        A(f"s_waitcnt vmcnt({sum(MS[m+1:]) // 4})")
        A("s_barrier")
        n = MS[m]
        for i in range(n): A(f"ds_read_b128 {vr(WF+4*i,4)}, v{vOa} offset:{(sum(MS[:m])+i)*1024}")
        for i in range(n):
            s = sum(MS[:m]) + i
            A(f"s_waitcnt lgkmcnt({n-1-i})")
            c = "0" if s == 0 else vr(ACA, 16)
            A(f"{MF} {vr(ACA,16)}, {vr(OF+4*s,4)}, {vr(WF+4*i,4)}, {c}")
    A("s_nop 7")
    A("s_nop 3")
    for r in range(16): A(f"v_fmac_f32 v{ACB+r}, v{ACA+r}, v{vG}")
    for r in range(8): A(f"v_cvt_pk_bf16_f32 v{WF+r}, v{ACB+2*r}, v{ACB+2*r+1}")
    A("s_nop 1")
    for g in range(2):
        A(f"v_permlane32_swap_b32 v{WF+4*g}, v{WF+4*g+2}")
        A(f"v_permlane32_swap_b32 v{WF+4*g+1}, v{WF+4*g+3}")
    for g in range(2): A(f"buffer_store_dwordx4 {vr(WF+4*g,4)}, v{vO}, s[4:7], s{sKV} offen offset:{g*32} {OPT.get('om', '').replace('_', ' ')}")
    if PROF: A("s_waitcnt vmcnt(0)")
    stamp_flush()
    A.label("L_exit")
    A("s_endpgm")
    for u in (1, 3, 5, 7):
        A.label(f"L_b_exit{u}")
        A("s_nop 0")
        A(pv(OB + 16, KV + 12 * u + 8, S0 + 8))
        A("s_branch L_b_fin")
    for i in range(2):
        slow_path(f"L_b_slow{i}", f"L_b_ok{i}", QB + 4 * i, OB + 16 * i, sKV, sCnt, -TB, True, KV, KV + 4, KV + 16)
    return k

def main():
    hdr = open("cdna_kernels/" + NAME + ".s.ref").read().split("\n")
    head = [l for l in hdr if l.startswith(";") and "@launch" not in l]
    out = "\n".join(head) + "\n"
    out += "; @launch grid=(256,1,1) block=(512,1,1) lds=163840\n"
    out += '.amdgcn_target "amdgcn-amd-amdhsa--gfx950"\n.text\n'
    k = gen()
    body = A.text()
    if "bfirst" in OPT:
        i = body.index("; @@A_BEGIN\n"); j = body.index("; @@A_END\n")
        body = body[:i] + body[j + len("; @@A_END\n"):] + body[i + len("; @@A_BEGIN\n"):j]
    body += "L_code_end:\n    s_endpgm\n"
    errs = check_hazards(body)
    for e in errs: print("HAZARD", e, file=sys.stderr)
    out += body
    out += f""".section .rodata,"a"
.p2align 6
.amdhsa_kernel {k}
  .amdhsa_next_free_vgpr 256
  .amdhsa_next_free_sgpr 102
  .amdhsa_accum_offset 256
  .amdhsa_group_segment_fixed_size 0
  .amdhsa_kernarg_size 96
  .amdhsa_user_sgpr_count 2
  .amdhsa_user_sgpr_kernarg_segment_ptr 1
  .amdhsa_system_sgpr_workgroup_id_x 1
.end_amdhsa_kernel
"""
    paths = [a for a in sys.argv[1:] if a.endswith(".s")]
    path = paths[0] if paths else "f20.s"
    open(path, "w").write(out)
    print("wrote", path, len(out), "bytes;", len(errs), "hazard warnings")
main()
```

```python
import sys, math, struct, re
from asmlib import Asm, vr, sr, check_hazards

NAME = "gated_mix__grouped_kv_mqa__sliding_block__prompt"
def f2u(x): return struct.unpack("<I", struct.pack("<f", x))[0]
CSCALE = 0.25 * math.log2(math.e)
OPT = dict(a[2:].split("=") if "=" in a else (a[2:], "1") for a in sys.argv[1:] if a.startswith("--"))
for _k, _v in (("bfirst", "1"), ("cpf", "1"), ("pace", "0"), ("p3d", "4"), ("bpre", "3"), ("od", "6"), ("il", "2"), ("tp", "one"), ("touchw", "1"), ("nrep", "8"), ("asl", "0"), ("nb1", "8"), ("lowp", "1"), ("j4", "1"), ("pstart", "6"), ("touchfl", "1"), ("k3", "1")): OPT.setdefault(_k, _v)
PROF = "prof" in OPT

ROT = "norot" not in OPT
TB = 2176
WS_KVA = 0
WS_FL = 0x40000
NREP = int(OPT.get('nrep', 1))
FL_KVA, FL_KVB, FL_OB, FL_OA = (WS_FL + 0x10000 if NREP > 1 else WS_FL), WS_FL + 0x1000, WS_FL + 0x4000, (WS_FL + 0x20000 if 'oarep' in OPT else WS_FL + 0x6000)
WS_KVB = 0x100000
WS_O = 0x600000
WS_PROF = 15 << 20
WS_SIZE = 16 << 20
OOB = 0x40000000
ONES = 0x3F803F80
L_X, L_WQ, L_WKV, L_QX, L_GATE, L_CNT, L_COMB = 0, 65536, 131072, 147456, 155648, 156672, 131072
L_G = L_CNT + 256
L_COMB3 = L_G + 256
assert L_COMB + 3 * 4608 <= L_QX and L_COMB3 + 4608 <= 163840
SPIN = 50000
MS = [int(x) for x in OPT.get('ms', '8,8,8,8').split(',')]
MF = "v_mfma_f32_32x32x16_bf16"
SMF = "v_smfmac_f32_32x32x32_bf16"
vIDX = 10
A = Asm()

sW, sHG, sRB, sNON = 16, 17, 18, 19
sT, sT2, sT3, sT4 = 24, 25, 26, 27
sJ, sKV, sCnt, sHEAD, sRT0, sA0, sA1, sA2 = 28, 29, 30, 31, 32, 33, 34, 35
sSP = 36
P_X, P_WQ, P_WK, P_WV, P_AWO, P_WQKV, P_BWO, P_GATE, P_OUT, P_DBG, P_WS = 44, 46, 48, 50, 52, 56, 58, 60, 62, 64, 66
vL, vK, vV, vT, vT2, vT3 = 1, 2, 3, 4, 5, 6
vV1 = 0

def srd(d, ptr, size):
    A(f"s_mov_b32 s{d}, s{ptr}")
    A(f"s_and_b32 s{d+1}, s{ptr+1}, 0xffff")
    A(f"s_mov_b32 s{d+2}, {size:#x}")
    A(f"s_mov_b32 s{d+3}, 0x00020000")

NST = [0]
TM = [0]; TMS = []
def timeout_branch(d):
    if "tmark" not in OPT:
        A(f"s_cbranch_scc1 {d}"); return
    TM[0] += 1
    t = f"L_tm{TM[0]}"
    A(f"s_cbranch_scc1 {t}")
    TMS.append((t, d, TM[0]))
def timeout_blocks():
    for t, d, k in TMS:
        A.label(t)
        A("s_mov_b64 exec, 1")
        A(f"v_mov_b32 v253, {0x70000 + 4*k}")
        A("v_mov_b32 v252, s2")
        A("buffer_store_dword v252, v253, s[12:15], 0 offen sc1")
        A("s_mov_b64 exec, -1")
        A(f"s_branch {d}")
KVP = OPT.get("prof") in ("kv", "kvrt")
STOFF = [False]
def kstamp():
    if KVP: stamp(force=True)
def stamp(real=False, force=False):
    if not PROF: return
    if STOFF[0] and not force and not real: return
    i = NST[0]; NST[0] += 1
    assert 70 + 2 * i + 1 <= 101, "too many stamps"
    A(f"{'s_memrealtime' if real or OPT.get('prof') in ('rt', 'kvrt') else 's_memtime'} s[{70+2*i}:{71+2*i}]")
def stamp_flush():
    if not PROF: return
    stamp(force=True); stamp(real=True)
    A("s_waitcnt lgkmcnt(0)")
    A("s_lshl_b32 s68, s2, 4")
    A(f"s_add_u32 s68, s68, s{sW}")
    A("s_lshl_b32 s68, s68, 6")
    A(f"s_add_u32 s68, s68, {WS_PROF:#x}")
    A("v_mov_b32 v251, 0")
    for i in range(NST[0]):
        A(f"v_mov_b32 v250, s{70+2*i}")
        A(f"buffer_store_dword v250, v251, s[12:15], s68 offen offset:{4*i}")
    A("s_waitcnt vmcnt(0)")

def poll_flags(va, soff, n2=None, slp=2, vd=None, x4=False):
    vd = vd if vd is not None else vT2
    l = A.uid("poll"); d = A.uid("polld")
    A(f"s_mov_b32 s{sSP}, {SPIN}")
    A.label(l)
    if x4: A(f"buffer_load_dwordx4 {vr(vd,4)}, v{va}, s[12:15], s{soff} offen sc1")
    else: A(f"buffer_load_dword v{vd}, v{va}, s[12:15], s{soff} offen sc1")
    if n2 is not None: A(f"buffer_load_dword v{vd+1}, v{va}, s[12:15], s{soff} offen offset:{n2} sc1")
    A("s_waitcnt vmcnt(0)")
    A(f"v_cmp_ne_u32 vcc, s{sNON}, v{vd}")
    if n2 is not None or x4:
        A(f"v_cmp_ne_u32 s[38:39], s{sNON}, v{vd+(2 if x4 else 1)}")
        A("s_nop 1")
        A("s_or_b64 vcc, vcc, s[38:39]")
    else:
        A("s_nop 1")
    A(f"s_cbranch_vccz {d}")
    A("s_mov_b64 exec, vcc")
    A(f"s_sub_u32 s{sSP}, s{sSP}, 1")
    timeout_branch(d)
    if slp: A(f"s_sleep {slp}")
    A(f"s_branch {l}")
    A.label(d)
    A("s_mov_b64 exec, -1")

def flag_store(soff, nrep=1, sh=12):
    A(f"v_mov_b32 v{vT}, s{sNON}")
    if nrep > 1: A(f"v_lshlrev_b32 v{vT2}, {sh}, v{vL}")
    else: A(f"v_mov_b32 v{vT2}, 0")
    A(f"s_mov_b64 exec, {(1 << nrep) - 1}")
    A(f"buffer_store_dword v{vT}, v{vT2}, s[12:15], s{soff} offen sc1")
    A("s_mov_b64 exec, -1")

def team_add(cnt, last_label=None, n=4):
    A(f"v_mov_b32 v{vT}, {L_CNT + 4*cnt}")
    A(f"v_mov_b32 v{vT2}, 1")
    A("s_mov_b64 exec, 1")
    if last_label:
        A(f"ds_add_rtn_u32 v{vT2}, v{vT}, v{vT2}")
        A("s_waitcnt lgkmcnt(0)")
        A("s_mov_b64 exec, -1")
        A(f"v_readfirstlane_b32 s{sT}, v{vT2}")
        A("s_nop 1")
        A(f"s_cmp_lg_u32 s{sT}, {n-1}")
        A(f"s_cbranch_scc1 {last_label}")
    else:
        A(f"ds_add_u32 v{vT}, v{vT2}")
        A("s_mov_b64 exec, -1")

def team_wait(cnt, n=4, slp=2):
    l = A.uid("tw"); d = A.uid("twd")
    A(f"v_mov_b32 v{vT}, {L_CNT + 4*cnt}")
    A(f"s_mov_b32 s{sSP}, {SPIN}")
    A.label(l)
    A(f"ds_read_b32 v{vT2}, v{vT}")
    A("s_waitcnt lgkmcnt(0)")
    A(f"v_readfirstlane_b32 s{sT}, v{vT2}")
    A("s_nop 1")
    A(f"s_cmp_ge_u32 s{sT}, {n}")
    A(f"s_cbranch_scc1 {d}")
    A(f"s_sub_u32 s{sSP}, s{sSP}, 1")
    timeout_branch(d)
    A(f"s_sleep {slp}")
    A(f"s_branch {l}")
    A.label(d)

def pv(O, V, S):
    return f"{SMF} {vr(O,16)}, {vr(V,4)}, {vr(S,8)}, v{vIDX}"

def tile_code(Sc, qk, pv1, pv0, extra):
    d = {}
    for i in range(16): d[f"e{i}"] = f"v_exp_f32 v{Sc+i}, v{Sc+i}"
    d["PV1"] = pv1; d["QK"] = qk; d["PV0"] = pv0
    ABL = OPT.get("abl", "").split(",")
    if "nopv" in ABL: d["PV1"] = d["PV0"] = "s_nop 2"
    if "noqk" in ABL: d["QK"] = "s_nop 1"
    if "noexp" in ABL:
        for i in range(16): d[f"e{i}"] = "s_nop 1"
    order = OPT.get("order", "e0 e1 PV1 X1 e2 e3 e4 X3 QK X2 e5 e6 e7 e8 e9 e10 X5 PV0 X4 e11 e12 e13 e14 e15").replace("_", " ")
    for x in order.split():
        if x[0] == "X":
            if extra.get(x): A(extra[x])
        elif d[x]: A(d[x])

NEG, S0, S1, P = 16, 32, 48, 64

def lane_max_all(regs, dst, tmp):
    regs = list(regs)
    A(f"v_max3_f32 v{dst}, v{regs[0]}, v{regs[1]}, v{regs[2]}")
    A(f"v_max3_f32 v{tmp}, v{regs[3]}, v{regs[4]}, v{regs[5]}")
    rest = regs[6:]; t = [dst, tmp]; n = 0
    while rest:
        a, b = rest.pop(0), rest.pop(0)
        A(f"v_max3_f32 v{t[n&1]}, v{t[n&1]}, v{a}, v{b}"); n += 1
    A(f"v_max_f32 v{dst}, v{dst}, v{tmp}")
    A(f"v_mov_b32 v{tmp}, v{dst}")
    A("s_nop 1")
    A(f"v_permlane32_swap_b32 v{dst}, v{tmp}")
    A(f"v_max_f32 v{dst}, v{dst}, v{tmp}")

def mask_tuple(dst, v_true, v_false):
    for r in range(16):
        c0 = (r & 3) + 8 * (r >> 2)
        p = 40 + 2 * (r & 1)
        A(f"s_mov_b32 s{p}, {(1 << c0) - 1:#x}")
        A(f"s_mov_b32 s{p+1}, {(1 << (c0 + 4)) - 1:#x}")
        A(f"v_cndmask_b32_e64 v{dst+r}, {v_false}, {v_true}, s[{p}:{p+1}]")

def range_check(O, bad):
    A(f"v_max3_f32 v{vT}, |v{O}|, |v{O+1}|, |v{O+2}|")
    A(f"v_max3_f32 v{vT2}, |v{O+3}|, |v{O+4}|, |v{O+5}|")
    A(f"v_max3_f32 v{vT}, v{vT}, |v{O+6}|, |v{O+7}|")
    A(f"s_mov_b32 s{sT}, {f2u(2.0**-60):#x}")
    A(f"s_mov_b32 s{sT2}, {f2u(2.0**40):#x}")
    A(f"s_mov_b32 s{sT3}, {f2u(2.0**120):#x}")
    A(f"v_add_f32 v{vT}, v{vT}, v{vT2}")
    A(f"v_cmp_nlt_f32 vcc, s{sT}, v{O+8}")
    A(f"v_cmp_ngt_f32 s[38:39], s{sT2}, v{O+8}")
    A(f"v_cmp_ngt_f32 s[40:41], s{sT3}, v{vT}")
    A("s_nop 1")
    A("s_or_b64 vcc, vcc, s[38:39]")
    A("s_or_b64 vcc, vcc, s[40:41]")
    A(f"s_cbranch_vccnz {bad}")

def slow_path(name, ret, Qr, O, s_base, s_n, step, masks, KB, VB, MK):
    lp1, lp2 = A.uid("sp1"), A.uid("sp2")
    vM, vM2, vBig = 7, 8, 9
    A.label(name)
    A("s_waitcnt vmcnt(0) lgkmcnt(0)")
    A(f"v_mov_b32 v{vBig}, {f2u(-1e38):#x}")
    def set_mask():
        if not masks:
            return
        l0, l8, ld = A.uid("m0"), A.uid("m8"), A.uid("md")
        A(f"s_cmp_eq_u32 s{sA1}, 0")
        A(f"s_cbranch_scc1 {l0}")
        A(f"s_cmp_eq_u32 s{sA1}, 8")
        A(f"s_cbranch_scc1 {l8}")
        for r in range(16): A(f"v_mov_b32 v{MK+r}, 0")
        A(f"s_branch {ld}")
        A.label(l0); mask_tuple(MK, f"v{vBig}", "0"); A(f"s_branch {ld}")
        A.label(l8); mask_tuple(MK, "0", f"v{vBig}")
        A.label(ld)
    C = vr(MK, 16) if masks else "0"
    A(f"v_mov_b32 v{vM}, v{vBig}")
    A(f"s_mov_b32 s{sA0}, s{s_base}")
    A(f"s_mov_b32 s{sA1}, 0")
    A.label(lp1)
    A(f"buffer_load_dwordx4 {vr(KB,4)}, v{vK}, s[12:15], s{sA0} offen sc1")
    set_mask()
    A("s_waitcnt vmcnt(0)")
    A("s_nop 1")
    A(f"{MF} {vr(S0,16)}, {vr(KB,4)}, {vr(Qr,4)}, {C}")
    A(f"s_add_u32 s{sA0}, s{sA0}, {step & 0xffffffff:#x}")
    A(f"s_add_u32 s{sA1}, s{sA1}, 1")
    A("s_nop 15")
    for i in range(8): A(f"v_max3_f32 v{vM}, v{vM}, v{S0+2*i}, v{S0+2*i+1}")
    A(f"s_cmp_lt_u32 s{sA1}, s{s_n}")
    A(f"s_cbranch_scc1 {lp1}")
    A(f"v_mov_b32 v{vM2}, v{vM}")
    A("s_nop 1")
    A(f"v_permlane32_swap_b32 v{vM}, v{vM2}")
    A(f"v_max_f32 v{vM}, v{vM}, v{vM2}")
    for r in range(16): A(f"v_mov_b32 v{O+r}, 0")
    A(f"s_mov_b32 s{sA0}, s{s_base}")
    A(f"s_mov_b32 s{sA1}, 0")
    A.label(lp2)
    A(f"buffer_load_dwordx4 {vr(KB,4)}, v{vK}, s[12:15], s{sA0} offen sc1")
    A(f"buffer_load_dwordx4 {vr(VB,4)}, v{vV}, s[12:15], s{sA0} offen sc1")
    A(f"buffer_load_dwordx4 {vr(VB+4,4)}, v{vV1}, s[12:15], s{sA0} offen sc1")
    set_mask()
    A("s_waitcnt vmcnt(0)")
    A("s_nop 1")
    A(f"{MF} {vr(S0,16)}, {vr(KB,4)}, {vr(Qr,4)}, {C}")
    A(f"s_add_u32 s{sA0}, s{sA0}, {step & 0xffffffff:#x}")
    A(f"s_add_u32 s{sA1}, s{sA1}, 1")
    A("s_nop 15")
    for r in range(16): A(f"v_sub_f32 v{S0+r}, v{S0+r}, v{vM}")
    for r in range(16): A(f"v_exp_f32 v{S0+r}, v{S0+r}")
    A("s_nop 2")
    A(pv(O, VB, S0))
    A(pv(O, VB + 4, S0 + 8))
    A(f"s_cmp_lt_u32 s{sA1}, s{s_n}")
    A("s_nop 15")
    A(f"s_cbranch_scc1 {lp2}")
    A(f"s_branch {ret}")

def normalize_store(O, PK, soff):
    A(f"v_rcp_f32 v{vT}, v{O+8}")
    A("s_nop 0")
    for r in range(8): A(f"v_mul_f32 v{O+r}, v{O+r}, v{vT}")
    for r in range(4): A(f"v_cvt_pk_bf16_f32 v{PK+r}, v{O+2*r}, v{O+2*r+1}")
    A(f"buffer_store_dwordx4 {vr(PK,4)}, v{vK}, s[12:15], s{soff} offen sc1")

def tail_dma(team):
    A(f"v_and_b32 v{vT}, 7, v{vL}")
    A(f"v_lshlrev_b32 v{vT}, 5, v{vT}")
    if "oarep" in OPT:
        OS = int(OPT["oarep"])
        A(f"v_and_b32 v{vT}, 7, v{vL}")
        A(f"v_lshlrev_b32 v{vT}, {OS}, v{vT}")
        A(f"s_lshl_b32 s{sT3}, s{sRB}, 3")
        A(f"s_add_u32 s{sT3}, s{sT3}, s{sHG}")
        A(f"s_lshl_b32 s{sT3}, s{sT3}, {OS+3}")
    else:
        A(f"s_lshl_b32 s{sT3}, s{sRB}, 8")
    A(f"s_add_u32 s{sT3}, s{sT3}, {FL_OA:#x}")
    A(f"s_and_b32 s{sT}, s{sW}, 1")
    A(f"s_lshr_b32 s{sT2}, s{sW}, 1")
    A(f"s_lshl_b32 s{sA0}, s{sT}, 15")
    A(f"s_lshl_b32 s{sA1}, s{sRB}, 1")
    A(f"s_add_u32 s{sA1}, s{sA1}, s{sT}")
    A(f"s_lshl_b32 s{sA1}, s{sA1}, 16")
    A(f"s_add_u32 s{sA1}, s{sA1}, {WS_O:#x}")
    for m in range(len(MS)):
        A(f"s_mul_i32 s{40+m}, s{sT2}, {MS[m] // 4 * 1024}")
        A(f"s_add_u32 s{40+m}, s{40+m}, {sum(MS[:m]) * 1024}")
    if OPT.get("tp", "all") == "one":
        l = A.uid("tp")
        if team == "A":
            A(f"s_cmp_lg_u32 s{sW}, 0")
            A(f"s_cbranch_scc1 {l}")
            poll_flags(vT, sT3, slp=int(OPT.get("tslp", 1)))
        A.label(l)
        A("s_barrier")
    else:
        poll_flags(vT, sT3, slp=1)
    stamp()
    for m in range(len(MS)):
        A(f"s_add_u32 m0, s{sA0}, s{40+m}")
        A(f"s_add_u32 s{sT}, s{sA1}, s{40+m}")
        for i in range(MS[m] // 4): A(f"buffer_load_dwordx4 v{vK}, s[12:15], s{sT} offen offset:{i*1024} sc1 lds")

def gen():
    k = NAME + "_kernel"
    A.raw(f".globl {k}\n.p2align 8\n.type {k},@function\n{k}:")
    A("s_cmp_ge_u32 s2, 256")
    A("s_cbranch_scc1 L_exit")
    stamp(real=True); stamp()
    if "hwmap0" in OPT:
        A("s_getreg_b32 s3, hwreg(HW_REG_HW_ID)")
        A("s_getreg_b32 s2, hwreg(HW_REG_XCC_ID)")
        A("s_and_b32 s2, s2, 7")
        A("s_bfe_u32 s4, s3, 0x30008")
        A("s_lshl_b32 s4, s4, 3")
        A("s_or_b32 s2, s2, s4")
        A("s_bfe_u32 s4, s3, 0x2000d")
        A("s_lshl_b32 s4, s4, 6")
        A("s_or_b32 s2, s2, s4")
    if "scr" in OPT:
        A("s_bfe_u32 s3, s2, 0x30003")
        A("s_xor_b32 s2, s2, s3")
    vXd, vWd, vXa, vWa = 7, 8, 9, 13
    A(f"v_lshrrev_b32 v{vT}, 6, v0")
    A(f"v_and_b32 v{vL}, 63, v0")
    A(f"v_readfirstlane_b32 s{sW}, v{vT}")
    A(f"v_lshlrev_b32 v{vT2}, 2, v{vL}")
    A(f"s_cmp_lg_u32 s{sW}, 3")
    A("s_cbranch_scc1 L_nozero")
    A(f"v_mov_b32 v{vT}, 0")
    A(f"v_add_u32 v{vT2}, {L_CNT}, v{vT2}")
    A(f"ds_write_b32 v{vT2}, v{vT}")
    A("s_waitcnt lgkmcnt(0)")
    A.label("L_nozero")
    A("s_load_dwordx16 s[44:59], s[0:1], 0")
    A("s_load_dwordx8 s[60:67], s[0:1], 64")
    A("s_memrealtime s[22:23]")
    A(f"s_and_b32 s{sHG}, s2, 1")
    A(f"s_lshl_b32 s{sHG}, s{sHG}, 2")
    if "map1" in OPT:
        A(f"s_bfe_u32 s{sHG}, s2, 0x10004")
        A(f"s_lshl_b32 s{sHG}, s{sHG}, 2")
        A(f"s_bfe_u32 s{sT}, s2, 0x10003")
        A(f"s_add_u32 s{sHG}, s{sHG}, s{sT}")
        A(f"s_lshr_b32 s{sT}, s2, 7")
        A(f"s_lshl_b32 s{sT}, s{sT}, 1")
        A(f"s_add_u32 s{sHG}, s{sHG}, s{sT}")
        A(f"s_and_b32 s{sRB}, s2, 7")
        A(f"s_lshl_b32 s{sRB}, s{sRB}, 2")
        A(f"s_bfe_u32 s{sT}, s2, 0x20005")
        A(f"s_add_u32 s{sRB}, s{sRB}, s{sT}")
    elif "oldmap" in OPT:
        A(f"s_bfe_u32 s{sT}, s2, 0x20003")
        A(f"s_add_u32 s{sHG}, s{sHG}, s{sT}")
        A(f"s_bfe_u32 s{sRB}, s2, 0x20001")
        A(f"s_lshl_b32 s{sRB}, s{sRB}, 3")
        A(f"s_lshr_b32 s{sT}, s2, 5")
        A(f"s_add_u32 s{sRB}, s{sRB}, s{sT}")
    else:
        A(f"s_bfe_u32 s{sT}, s2, 0x10003")
        A(f"s_add_u32 s{sHG}, s{sHG}, s{sT}")
        A(f"s_lshr_b32 s{sT}, s2, 7")
        A(f"s_lshl_b32 s{sT}, s{sT}, 1")
        A(f"s_add_u32 s{sHG}, s{sHG}, s{sT}")
        A(f"s_bfe_u32 s{sRB}, s2, 0x20001")
        A(f"s_lshl_b32 s{sRB}, s{sRB}, 3")
        A(f"s_bfe_u32 s{sT}, s2, 0x30004")
        A(f"s_add_u32 s{sRB}, s{sRB}, s{sT}")
    A(f"v_lshlrev_b32 v{vK}, 4, v{vL}")
    A("s_barrier")
    A(f"s_lshr_b32 s{sT}, s{sW}, 2")
    A(f"s_xor_b32 s{sT}, s{sT}, s{sHG}")
    A(f"s_and_b32 s{sT}, s{sT}, 1")
    A(f"s_xor_b32 s{sT}, s{sT}, 1")
    A(f"s_lshl_b32 s{sT}, s{sT}, 2")
    A(f"s_and_b32 s{sJ}, s{sW}, 3")
    A(f"s_add_u32 s{sT}, s{sT}, s{sJ}")
    A(f"s_lshl_b32 s{sT4}, s{sT}, 10")
    A(f"s_lshl_b32 s{sT}, s{sT}, 3")
    A(f"v_lshrrev_b32 v{vT}, 3, v{vL}")
    A(f"v_add_u32 v{vT}, s{sT}, v{vT}")
    A(f"v_lshrrev_b32 v{vT2}, 1, v{vT}")
    A(f"v_xor_b32 v{vT2}, v{vT2}, v{vL}")
    A(f"v_and_b32 v{vT2}, 7, v{vT2}")
    A(f"v_lshlrev_b32 v{vT2}, 4, v{vT2}")
    A(f"v_lshl_add_u32 v{vXd}, v{vT}, 10, v{vT2}")
    A(f"s_lshl_b32 s{sA0}, s{sRB}, 16")
    if ROT:
        A(f"s_and_b32 s37, s{sHG}, 2")
        A(f"s_add_u32 s37, s37, 4")
    else:
        A("s_mov_b32 s37, 0")
    if "bfirst" in OPT:
        A(f"s_cmp_lt_u32 s{sW}, 4")
        A("s_cbranch_scc1 L_ateam")
        A.raw("; @@A_BEGIN")
        A.label("L_ateam")
    else:
        A(f"s_cmp_ge_u32 s{sW}, 4")
        A("s_cbranch_scc1 L_bteam")

    sXR, sQR = 37, 54
    def dma_x_plain(kb):
        kb = [3, 0, 1, 2, 4, 5, 6, 7][kb] if "k3" in OPT else kb
        A(f"s_add_u32 m0, s{sT4}, {L_X + kb*8192 - kb*128}")
        A("s_nop 0")
        A(f"buffer_load_dwordx4 v{vXd}, s[4:7], s{sA0} offen offset:{kb*128} lds")
    def dma_x(kb):
        A(f"s_lshl_b32 s{sT2}, s{sXR}, 13")
        A(f"s_add_u32 m0, s{sT4}, s{sT2}")
        A(f"s_lshl_b32 s{sT2}, s{sXR}, 7")
        A(f"s_add_u32 s{sT2}, s{sT2}, s{sA0}")
        A(f"buffer_load_dwordx4 v{vXd}, s[4:7], s{sT2} offen lds")
        if kb < 7:
            A(f"s_add_u32 s{sXR}, s{sXR}, 1")
            A(f"s_and_b32 s{sXR}, s{sXR}, 7")

    def x_frag_addr(dst, s_off):
        A(f"v_and_b32 v{vT}, 31, v{vL}")
        A(f"v_lshrrev_b32 v{vT2}, 5, v{vL}")
        A(f"v_bfe_u32 v{vT3}, v{vL}, 1, 3")
        A(f"v_xor_b32 v{vT2}, v{vT2}, v{vT3}")
        A(f"v_lshl_add_u32 v{vT}, v{vT}, 7, s{s_off}")
        for q in range(4):
            A(f"v_xor_b32 v{vT3}, {2*q}, v{vT2}")
            A(f"v_lshl_add_u32 v{dst+q}, v{vT3}, 4, v{vT}")

    def tr_addr(dst, hmul, rowb, cgmul, s_off):
        A(f"v_lshrrev_b32 v{vT}, 5, v{vL}")
        A(f"v_bfe_u32 v{vT2}, v{vL}, 2, 2")
        A(f"v_mad_u32_u24 v{vT}, v{vT}, {hmul}, v{vT2}")
        A(f"v_and_b32 v{vT2}, 3, v{vL}")
        A(f"v_lshlrev_b32 v{vT2}, 3, v{vT2}")
        if cgmul:
            A(f"v_bfe_u32 v{vT3}, v{vL}, 4, 1")
            A(f"v_lshl_add_u32 v{vT2}, v{vT3}, {int(math.log2(cgmul))}, v{vT2}")
        A(f"v_lshl_add_u32 v{dst}, v{vT}, {int(math.log2(rowb))}, v{vT2}")
        A(f"v_add_u32 v{dst}, s{s_off}, v{dst}")

    def w128_dma_addr(dst, stride):
        A(f"v_lshrrev_b32 v{vT}, 3, v{vL}")
        if stride == 1024: A(f"v_lshlrev_b32 v{vT}, 10, v{vT}")
        else: A(f"v_mul_u32_u24 v{vT}, {stride}, v{vT}")
        A(f"v_lshrrev_b32 v{vT2}, 2, v{vL}")
        A(f"v_and_b32 v{vT2}, 4, v{vT2}")
        A(f"v_xor_b32 v{vT2}, v{vT2}, v{vL}")
        A(f"v_and_b32 v{vT2}, 7, v{vT2}")
        A(f"v_lshl_add_u32 v{dst}, v{vT2}, 4, v{vT}")

    def w128_tr_addr(dst, hmul, s_off, s_ct=None):
        A(f"v_lshrrev_b32 v{vT}, 5, v{vL}")
        A(f"v_bfe_u32 v{vT2}, v{vL}, 2, 2")
        A(f"v_mad_u32_u24 v{vT}, v{vT}, {hmul}, v{vT2}")
        A(f"v_and_b32 v{vT2}, 3, v{vL}")
        A(f"v_lshlrev_b32 v{vT2}, 3, v{vT2}")
        A(f"v_lshl_add_u32 v{vT}, v{vT}, 7, v{vT2}")
        A(f"v_bfe_u32 v{vT2}, v{vL}, 4, 1")
        A(f"v_lshl_add_u32 v{vT}, v{vT2}, 5, v{vT}")
        A(f"v_bfe_u32 v{vT2}, v{vL}, 3, 1")
        if s_ct is not None: A(f"v_xor_b32 v{vT2}, s{s_ct}, v{vT2}")
        A(f"v_lshl_add_u32 v{vT}, v{vT2}, 6, v{vT}")
        if s_off is None: A(f"v_mov_b32 v{dst}, v{vT}")
        else: A(f"v_add_u32 v{dst}, s{s_off}, v{vT}")

    def v_lane_addr():
        A(f"v_and_b32 v{vT}, 31, v{vL}")
        A(f"v_lshrrev_b32 v{vT2}, 5, v{vL}")
        A(f"v_lshlrev_b32 v{vT2}, 8, v{vT2}")
        A(f"v_lshl_add_u32 v{vV}, v{vT}, 4, v{vT2}")
        A(f"v_add_u32 v{vV}, 1024, v{vV}")
        A(f"v_mov_b32 v{vT2}, {OOB:#x}")
        A(f"v_cmp_gt_u32 s[38:39], 16, v{vT}")
        A(f"v_and_b32 v{vT}, 27, v{vT}")
        A(f"v_mov_b32 v{vT3}, 2048")
        A(f"v_cndmask_b32_e64 v{vV}, v{vT2}, v{vV}, s[38:39]")
        A(f"v_cmp_eq_u32 s[38:39], 16, v{vT}")
        A(f"v_add_u32 v{vV1}, 512, v{vV}")
        A("s_nop 0")
        A(f"v_cndmask_b32_e64 v{vV}, v{vV}, v{vT3}, s[38:39]")
        A(f"v_cndmask_b32_e64 v{vV1}, v{vV1}, v{vT3}, s[38:39]")
        if "zerov" in OPT.get("abl", ""):
            A(f"v_mov_b32 v{vV}, {OOB:#x}")
            A(f"v_mov_b32 v{vV1}, {OOB:#x}")

    def chain(s0, n, FR, ACC, kstride, second, swap):
        def rd(s):
            b = FR + 8 * (s % 4)
            A(f"ds_read_b64_tr_b16 v[{b}:{b+1}], v{vWa} offset:{s*kstride}")
            A(f"ds_read_b64_tr_b16 v[{b+2}:{b+3}], v{vWa} offset:{s*kstride+second}")
            A(f"ds_read_b128 v[{b+4}:{b+7}], v{vXa+(s&3)} offset:{(s>>2)*8192}")
        for s in range(s0, s0 + 3): rd(s)
        for s in range(s0, s0 + n):
            if s + 3 < s0 + n: rd(s + 3)
            A(f"s_waitcnt lgkmcnt({3 * (min(s + 3, s0 + n - 1) - s)})")
            b = FR + 8 * (s % 4)
            c = "0" if s == 0 else vr(ACC, 16)
            if swap: A(f"{MF} {vr(ACC,16)}, {vr(b+4,4)}, {vr(b,4)}, {c}")
            else:    A(f"{MF} {vr(ACC,16)}, {vr(b,4)}, {vr(b+4,4)}, {c}")

    R = int(OPT.get("ring", 4))
    D = int(OPT.get("depth", R - 1))
    G1 = int(OPT.get("g1", 2 * R - 1 if R == 4 else 7))
    CHK = G1 - D
    assert 0 < CHK <= R and D < R
    SL = [72, 84] + [176 + 12 * i for i in range(R - 2)]
    Q = 96; O = 112
    KT0 = 176 + 12 * (R - 2) if R == 4 else SL[R - 2]
    w128_dma_addr(vWd, 1024)
    A(f"s_lshl_b32 s{sA1}, s{sW}, 14")
    A(f"s_lshl_b32 s{sT}, s{sHG}, 7")
    A(f"s_add_u32 s{sA1}, s{sA1}, s{sT}")
    A(f"s_lshl_b32 s{sA2}, s{sW}, 11")
    A(f"s_add_u32 s{sA2}, s{sA2}, {L_WQ}")
    A("s_waitcnt lgkmcnt(0)")
    srd(4, P_X, 2048 * 1024)
    srd(8, P_WQ, 512 * 1024)
    if "cpf" in OPT:
        A(f"s_cmp_lg_u32 s{sW}, 3")
        A("s_cbranch_scc1 L_nocpf")
        A("s_getpc_b64 s[38:39]")
        A.label("L_pc")
        A(f"s_sub_u32 s38, s38, L_pc-{k}")
        A("s_subb_u32 s39, s39, 0")
        A(f"s_lshr_b32 s{sT}, s2, 3")
        A(f"v_lshlrev_b32 v{vT}, 5, v{vL}")
        A(f"v_add_u32 v{vT}, s{sT}, v{vT}")
        A(f"v_lshlrev_b32 v{vT}, 7, v{vT}")
        A(f"v_cmp_gt_u32 vcc, L_code_end-{k}, v{vT}")
        A(f"v_mov_b32 v{vT3}, s39")
        A(f"v_add_co_u32 v{vT}, s[40:41], s38, v{vT}")
        A("s_nop 1")
        A(f"v_addc_co_u32 v{vT2}, s[40:41], 0, v{vT3}, s[40:41]")
        A("s_mov_b64 exec, vcc")
        A(f"global_load_dword v254, v[{vT}:{vT2}], off")
        A("s_mov_b64 exec, -1")
        A.label("L_nocpf")
    if ROT and "map1" in OPT:
        A(f"s_and_b32 s{sQR}, s{sRB}, 3")
        A(f"s_lshl_b32 s{sQR}, s{sQR}, 1")
        A(f"s_bfe_u32 s{sT}, s{sRB}, 0x10002")
        A(f"s_add_u32 s{sQR}, s{sQR}, s{sT}")
    elif ROT: A(f"s_and_b32 s{sQR}, s{sRB}, 7")
    else: A(f"s_mov_b32 s{sQR}, 0")
    if "pf0" in OPT:
        A(f"s_lshr_b32 s{sT}, s2, 3")
        A(f"s_cmp_ge_u32 s{sW}, 2")
        A("s_cbranch_scc1 L_a_pfq")
        A(f"s_bfe_u32 s{sT2}, s2, 0x20001")
        A(f"s_lshl_b32 s{sT2}, s{sT2}, 19")
        A(f"s_lshl_b32 s{sT}, s{sT}, 14")
        A(f"s_add_u32 s{sT2}, s{sT2}, s{sT}")
        A(f"s_lshl_b32 s{sT}, s{sW}, 13")
        A(f"s_add_u32 s{sT2}, s{sT2}, s{sT}")
        A(f"v_lshlrev_b32 v{vT}, 7, v{vL}")
        A(f"buffer_load_dword v254, v{vT}, s[4:7], s{sT2} offen sc1")
        A("s_branch L_a_pfd")
        A.label("L_a_pfq")
        A(f"s_cmp_eq_u32 s{sW}, 3")
        A("s_cbranch_scc1 L_a_pfd")
        A(f"s_and_b32 s{sT2}, s2, 1")
        A(f"s_lshl_b32 s{sT2}, s{sT2}, 9")
        A(f"s_lshl_b32 s{sT}, s{sT}, 14")
        A(f"s_add_u32 s{sT2}, s{sT2}, s{sT}")
        A(f"v_lshrrev_b32 v{vT}, 2, v{vL}")
        A(f"v_lshlrev_b32 v{vT}, 10, v{vT}")
        A(f"v_and_b32 v{vT2}, 3, v{vL}")
        A(f"v_lshl_add_u32 v{vT}, v{vT2}, 7, v{vT}")
        A(f"buffer_load_dword v254, v{vT}, s[8:11], s{sT2} offen sc1")
        A.label("L_a_pfd")
    sRI = 55
    def a_setup():
        srd(12, P_WS, WS_SIZE)
        A(f"s_and_b32 s{sRI}, s{sW}, 1")
        A(f"s_lshl_b32 s{sT2}, s{sRI}, 12")
        x_frag_addr(vXa, sT2)
        A(f"s_lshr_b32 s{sJ}, s{sW}, 1")
        A(f"s_mov_b32 s{sT2}, {L_WQ}")
        w128_tr_addr(vWa, 8, sT2, sJ)
        v_lane_addr()
        for q in range(4):
            for r in range(0, 10, 2): A(f"v_pk_mov_b32 v[{O+16*q+r}:{O+16*q+r+1}], 0, 0")
    if OPT.get("alate", "1") == "1": a_setup()
    if OPT.get("ahold"):
        A(f"s_bitcmp1_b32 s{sHG}, 1")
        A("s_cbranch_scc1 L_a_go")
        team_wait(int(OPT["ahold"]), 4, 1)
        A.label("L_a_go")
    for kb in range(8):
        dma_x(kb)
        A(f"s_lshl_b32 s{sT2}, s{sQR}, 13")
        A(f"s_add_u32 m0, s{sA2}, s{sT2}")
        A(f"s_lshl_b32 s{sT2}, s{sQR}, 16")
        A(f"s_add_u32 s{sT2}, s{sT2}, s{sA1}")
        A(f"buffer_load_dwordx4 v{vWd}, s[8:11], s{sT2} offen lds")
        A(f"s_add_u32 m0, m0, 1024")
        A(f"s_add_u32 s{sT2}, s{sT2}, 8192")
        A(f"buffer_load_dwordx4 v{vWd}, s[8:11], s{sT2} offen lds")
        if kb < 7:
            A(f"s_add_u32 s{sQR}, s{sQR}, 1")
            A(f"s_and_b32 s{sQR}, s{sQR}, 7")
    stamp()
    if OPT.get("alate", "1") != "1": a_setup()
    A("s_waitcnt vmcnt(0)")
    team_add(5)
    team_wait(5, 8, 1)
    stamp()
    chain(0, 32, 200, S0, 2048, 512, False)
    stamp()
    A(f"s_mov_b32 s{sT2}, {f2u(CSCALE):#x}")
    A(f"s_lshl_b32 s{sT3}, s{sRI}, 12")
    A(f"s_lshl_b32 s{sT4}, s{sJ}, 11")
    A(f"s_add_u32 s{sT4}, s{sT4}, s{sT3}")
    A(f"s_add_u32 s{sT4}, s{sT4}, {L_QX}")
    A(f"s_add_u32 s{sT3}, s{sT3}, {L_QX}")
    A(f"v_add_u32 v{vT}, s{sT4}, v{vK}")
    A(f"v_add_u32 v{vT3}, s{sT3}, v{vK}")
    sKB, sKE = 37, 54
    A(f"s_mul_i32 s{sKB}, s{sJ}, {32*TB}")
    A(f"s_add_u32 s{sKE}, s{sKB}, {32*TB}")
    A(f"s_mul_i32 s{sA0}, s{sRB}, {TB}")
    A(f"s_add_u32 s{sKV}, s{sKB}, s{sA0}")
    for r in range(0, 4, 2): A(f"v_pk_mov_b32 v[{SL[R-1]+8+r}:{SL[R-1]+9+r}], 0, 0")
    assert D < R - 1 or R == 4
    A(f"v_mov_b32 v{vIDX}, 0xdddddddd")
    A("s_nop 0")
    for r in range(16): A(f"v_mul_f32 v{S0+r}, s{sT2}, v{S0+r}")
    for r in range(8): A(f"v_cvt_pk_bf16_f32 v{S1+r}, v{S0+2*r}, v{S0+2*r+1}")
    A(f"ds_write_b128 v{vT}, {vr(S1,4)}")
    A(f"ds_write_b128 v{vT}, {vr(S1+4,4)} offset:1024")
    A("s_waitcnt lgkmcnt(0)")
    team_add(6)
    stamp()
    team_wait(11, 1, 1)
    stamp()
    def kv_load(slot, part):
        b = SL[slot]
        m = "" if "plain" in OPT else "sc1"
        if part == 0: return f"buffer_load_dwordx4 {vr(b,4)}, v{vK}, s[12:15], s{sKV} offen {m}"
        if part == 1: return f"buffer_load_dwordx4 {vr(b+4,4)}, v{vV}, s[12:15], s{sKV} offen {m}"
        return f"buffer_load_dwordx4 {vr(b+8,4)}, v{vV1}, s[12:15], s{sKV} offen {m}"
    KADV = [f"s_add_u32 s{sKV}, s{sKV}, {TB}", f"s_cmp_eq_u32 s{sKV}, s{sKE}", f"s_cselect_b32 s{sKV}, s{sKB}, s{sKV}"]
    A(f"buffer_load_dwordx4 {vr(KT0,4)}, v{vK}, s[12:15], s{sA0} offen sc1")
    for t in range(D):
        for part in range(3): A(kv_load(t, part))
        for x in KADV: A(x)
    team_wait(6, 4, 1)
    A(f"s_lshl_b32 s{sT2}, s{sJ}, 11")
    A(f"v_add_u32 v8, s{sT2}, v{vT3}")
    A(f"v_xor_b32 v7, 2048, v8")
    for q in range(4): A(f"ds_read_b128 {vr(Q+4*q,4)}, v{7 + q//2} offset:{(q&1)*1024}")
    A(f"s_mul_i32 s{sT2}, s{sW}, 4608")
    A(f"s_add_u32 s{sT2}, s{sT2}, {L_COMB}")
    A(f"s_cmp_eq_u32 s{sW}, 3")
    A(f"s_cselect_b32 s{sT2}, {L_COMB3}, s{sT2}")
    A(f"s_xor_b32 s{sT3}, s{sW}, 2")
    A(f"s_mul_i32 s{sT3}, s{sT3}, 4608")
    A(f"s_add_u32 s{sT3}, s{sT3}, {L_COMB}")
    A(f"s_cmp_eq_u32 s{sW}, 1")
    A(f"s_cselect_b32 s{sT3}, {L_COMB3}, s{sT3}")
    A(f"v_lshlrev_b32 v14, 2, v{vL}")
    A(f"v_add_u32 v11, s{sT2}, v{vK}")
    A(f"v_add_u32 v12, s{sT2}, v14")
    A(f"v_add_u32 v13, s{sT3}, v{vK}")
    A(f"v_add_u32 v14, s{sT3}, v14")
    A(f"s_lshl_b32 s{sA2}, s{sRB}, 1")
    A(f"s_add_u32 s{sA2}, s{sA2}, s{sRI}")
    A(f"s_lshl_b32 s{sA2}, s{sA2}, 6")
    A(f"s_lshl_b32 s{sT4}, s{sHG}, 2")
    A(f"s_add_u32 s{sA2}, s{sA2}, s{sT4}")
    A(f"s_lshl_b32 s{sT4}, s{sJ}, 1")
    A(f"s_add_u32 s{sA2}, s{sA2}, s{sT4}")
    A(f"s_lshl_b32 s{sA2}, s{sA2}, 10")
    A(f"s_add_u32 s{sA2}, s{sA2}, {WS_O:#x}")
    A(f"v_mov_b32 v{vT3}, {L_CNT + 64}")
    A(f"ds_read_b32 v{vT3}, v{vT3}")
    A(f"s_mov_b32 s{sCnt}, {32 // R - 1}")
    A("s_mov_b64 vcc, -1")
    A("s_waitcnt lgkmcnt(0)")
    team_add(7)
    A(f"v_readfirstlane_b32 s{sNON}, v{vT3}")
    A(f"s_waitcnt vmcnt({3*D})")
    T0 = [S0, S1, KT0 + 4, KT0 + 20] if R == 4 else [S0, S1, O + 32, O + 48]
    for q in range(4): A(f"{MF} {vr(T0[q],16)}, {vr(KT0,4)}, {vr(Q+4*q,4)}, 0")
    A("s_nop 7")
    A("s_nop 0")
    lane_max_all([T0[q] + r for q in range(4) for r in range(4)], vT, vT2)
    A(f"v_sub_f32 v{NEG}, 0, v{vT}")
    A(f"v_sub_f32 v{NEG+1}, 0, v{vT}")
    for r in range(2, 16, 2): A(f"v_pk_mov_b32 v[{NEG+r}:{NEG+r+1}], v[{NEG}:{NEG+1}], v[{NEG}:{NEG+1}] op_sel:[0,1]")
    A(f"s_waitcnt vmcnt({3*(D-1)})")
    A("s_nop 0")
    A(f"{MF} {vr(S0,16)}, {vr(SL[0],4)}, {vr(Q,4)}, {vr(NEG,16)}")
    if R == 4:
        A("s_nop 7")
        A("s_nop 3")
    else:
        for q in (2, 3):
            for r in range(0, 10, 2): A(f"v_pk_mov_b32 v[{O+16*q+r}:{O+16*q+r+1}], 0, 0")
        A("s_nop 1")
    stamp()
    if PROF: A("s_memtime s[68:69]")
    A.raw(".p2align 6")
    A.label("L_aloop")
    if PROF:
        A("s_waitcnt lgkmcnt(0)")
        A(f"s_add_u32 m0, s{sCnt}, 1")
        A("s_nop 0")
        A(f"v_writelane_b32 v255, s68, m0")
        A("s_memtime s[68:69]")
    for kb in range(R):
        for q in range(4):
            Sc, Sn = (S0, S1) if q % 2 == 0 else (S1, S0)
            cur, prv, nxt = SL[kb], SL[(kb - 1) % R], SL[(kb + 1) % R]
            Kq = cur if q < 3 else nxt
            nq = (q + 1) % 4
            Vp = cur if q > 0 else prv
            Op = O + 16 * ((q - 1) % 4); Oc = O + 16 * q
            ex = {}
            if q < 3: ex["X2"] = kv_load((kb + D) % R, q)
            if q == 0 and kb == CHK:
                ex["X1"] = "s_cbranch_vccnz L_afirst\nL_afirst_ret:"
            if q == 2: ex["X4"] = KADV[0]
            if q == 3:
                ex["X1"] = f"s_waitcnt vmcnt({3*(D-1)})"
                ex["X2"] = KADV[1]
                ex["X4"] = KADV[2]
                if kb == R - 1: ex["X4"] += f"\ns_sub_u32 s{sCnt}, s{sCnt}, 1"
            if "noload" in OPT.get("abl", ""):
                for x in ("X0", "X1", "X2", "X3", "X4"): ex.pop(x, None)
            if "nosalu" in OPT.get("abl", ""):
                for x in ("X1", "X2"): ex.pop(x, None)
            tile_code(Sc, f"{MF} {vr(Sn,16)}, {vr(Kq,4)}, {vr(Q+4*nq,4)}, {'0' if 'c0' in OPT.get('abl', '') else vr(NEG,16)}",
                      pv(Op, Vp + 8, Sn + 8), pv(Op, Vp + 4, Sn) if "pvhead" in OPT else pv(Oc, cur + 4, Sc), ex)
    if CHK == R:
        A("s_cbranch_vccnz L_afirst")
    A("s_cbranch_scc0 L_aloop")
    A("s_nop 0")
    A(pv(O + 48, SL[R-1] + 8, S1 + 8))
    for i in range(2):
        A(f"ds_write_b128 v11, {vr(O+16*i,4)} offset:{i*2304}")
        A(f"ds_write_b128 v11, {vr(O+16*i+4,4)} offset:{i*2304+1024}")
        A(f"ds_write_b32 v12, v{O+16*i+8} offset:{i*2304+2048}")
    stamp()
    A(f"s_mov_b32 s{sKV}, 0")
    A(f"s_mov_b32 s{sCnt}, 64")
    A("s_waitcnt lgkmcnt(0)")
    A("s_barrier")
    for i in range(2):
        A(f"ds_read_b32 v{S0+16*i+8}, v14 offset:{i*2304+2048}")
        A(f"ds_read_b128 {vr(S0+16*i,4)}, v13 offset:{i*2304}")
        A(f"ds_read_b128 {vr(S0+16*i+4,4)}, v13 offset:{i*2304+1024}")
    OK_ = O + 32
    def fin(i):
        o = OK_ + 16 * i; t = O + 16 * i
        A(f"v_rcp_f32 v{t+8}, v{o+8}")
        A("s_nop 0")
        for r in range(8): A(f"v_mul_f32 v{t+r}, v{o+r}, v{t+8}")
        for r in range(4): A(f"v_cvt_pk_bf16_f32 v{P+4*i+r}, v{t+2*r}, v{t+2*r+1}")
        A(f"buffer_store_dwordx4 {vr(P+4*i,4)}, v{vK}, s[12:15], s{sA2} offen offset:{i*1024} sc1")
    for i in range(2):
        o = OK_ + 16 * i
        A(f"s_waitcnt lgkmcnt({3*(1-i)})")
        A(f"v_add_f32 v{o+8}, v{o+8}, v{S0+16*i+8}")
        for r in range(0, 8, 2): A(f"v_pk_add_f32 v[{o+r}:{o+r+1}], v[{o+r}:{o+r+1}], v[{S0+16*i+r}:{S0+16*i+r+1}]")
        fin(i)
    for i in range(2):
        range_check(OK_ + 16 * i, f"L_a_slow{i}")
        A.label(f"L_a_ok{i}")
    A("s_waitcnt vmcnt(0)")
    stamp()
    A(f"s_lshl_b32 s{sA2}, s{sRB}, 8")
    A(f"s_lshl_b32 s{sT}, s{sHG}, 5")
    A(f"s_add_u32 s{sA2}, s{sA2}, s{sT}")
    A(f"s_add_u32 s{sA2}, s{sA2}, {FL_OA:#x}")
    A("s_barrier")
    A(f"s_cmp_lg_u32 s{sW}, 0")
    A("s_cbranch_scc1 L_a_noflag")
    flag_store(sA2)
    A.label("L_a_noflag")
    tail_dma("A")
    for m in range(len(MS)):
        A(f"s_waitcnt vmcnt({sum(MS[m+1:]) // 4})")
        A("s_barrier")
    if PROF:
        A("s_lshl_b32 s68, s2, 2")
        A(f"s_add_u32 s68, s68, s{sW}")
        A("s_lshl_b32 s68, s68, 8")
        A(f"s_add_u32 s68, s68, {WS_PROF + 0x80000:#x}")
        A(f"v_lshlrev_b32 v248, 2, v{vL}")
        A("buffer_store_dword v255, v248, s[12:15], s68 offen")
    stamp_flush()
    A("s_endpgm")
    A.label("L_afirst")
    team_wait(9, 1, 1)
    A("s_mov_b64 vcc, 0")
    A("s_branch L_aloop" if CHK == R else "s_branch L_afirst_ret")
    for i in range(2):
        slow_path(f"L_a_slow{i}", f"L_a_re{i}", Q + 8 + 4 * i, OK_ + 16 * i, sKV, sCnt, TB, False, SL[0], SL[0] + 4, None)
        A.label(f"L_a_re{i}")
        fin(i)
        A(f"s_branch L_a_ok{i}")

    NST[0] = 2
    if "bfirst" in OPT: A.raw("; @@A_END")
    A.label("L_bteam")
    A(f"s_setprio {OPT.get('bprio', 2)}")
    A(f"s_lshl_b32 s{sA2}, s{sJ}, 10")
    A("s_mov_b32 s6, 0x200000")
    A("s_mov_b32 s7, 0x00020000")
    A(f"s_bitcmp0_b32 s{sHG}, 1")
    A("s_cselect_b32 s42, 16384, 0")
    A("s_mov_b32 s43, 0x00020000")
    A(f"s_or_b32 s{sT3}, s2, s{sJ}")
    A(f"s_cmp_lt_u32 s{sHG}, 4")
    A("s_waitcnt lgkmcnt(0)")
    A(f"s_cselect_b32 s40, s{P_WK}, s{P_WV}")
    A(f"s_cselect_b32 s41, s{P_WK+1}, s{P_WV+1}")
    A(f"s_mov_b32 s4, s{P_X}")
    A(f"s_and_b32 s5, s{P_X+1}, 0xffff")
    A("s_and_b32 s41, s41, 0xffff")
    if "k0st" in OPT: kstamp()
    if "tfirst" in OPT:
        A(f"s_bitcmp0_b32 s{sHG}, 1")
        A("s_cbranch_scc1 L_b_notf")
        A(f"s_cmp_lt_u32 s{sJ}, 2")
        A(f"s_cselect_b32 s8, s{P_WK}, s{P_WS}")
        A(f"s_cselect_b32 s9, s{P_WK+1}, s{P_WS+1}")
        A(f"s_cmp_eq_u32 s{sJ}, 1")
        A(f"s_cselect_b32 s8, s{P_WV}, s8")
        A(f"s_cselect_b32 s9, s{P_WV+1}, s9")
        A(f"s_cmp_eq_u32 s{sJ}, 2")
        A(f"s_cselect_b32 s8, s{P_DBG}, s8")
        A(f"s_cselect_b32 s9, s{P_DBG+1}, s9")
        A("s_and_b32 s9, s9, 0xffff")
        A("s_mov_b32 s10, 256")
        A("s_mov_b32 s11, 0x00020000")
        A(f"v_mov_b32 v{vT}, 128")
        A("s_mov_b64 exec, 1")
        A(f"buffer_load_dword v254, v{vT}, s[8:11], 0 offen sc1")
        A("s_mov_b64 exec, -1")
        A.label("L_b_notf")
    for kb in range(8):
        dma_x_plain(kb)
        if "k0st" in OPT and kb in (0, 1): kstamp()
        if kb % 2 == 0:
            A(f"s_add_u32 m0, s{sA2}, {L_WKV + kb*2048}")
            A(f"s_add_u32 s{sT}, s{sA2}, {kb*2048}")
            A(f"buffer_load_dwordx4 v{vK}, s[40:43], s{sT} offen lds")
    A(f"s_or_b32 s{sT2}, s22, 1")
    A("s_mov_b32 s3, s22")
    srd(20, P_DBG, 256)
    srd(12, P_WS, WS_SIZE)
    A(f"s_cmp_lg_u32 s{sT3}, 1")
    A("s_cbranch_scc1 L_b_nononce")
    A(f"s_cmp_lg_u32 s2, 0")
    A("s_cbranch_scc1 L_b_nononce")
    A(f"v_mov_b32 v{vT}, s{sT2}")
    A(f"v_mov_b32 v{vT2}, 0")
    A("s_mov_b64 exec, 1")
    A(f"buffer_store_dword v{vT}, v{vT2}, s[20:23], 0 offen sc1")
    A("s_mov_b64 exec, -1")
    A.label("L_b_nononce")
    if "notouch" not in OPT:
        A(f"s_cmp_lg_u32 s{sJ}, 3")
        A("s_cbranch_scc1 L_b_notouch")
        A(f"v_lshlrev_b32 v{vT}, 21, v{vL}")
        if "touchfl" in OPT:
            A(f"s_lshl_b32 s{sT2}, s2, 7")
            A(f"s_add_u32 s{sT2}, s{sT2}, {WS_FL - 2048:#x}")
            A(f"v_writelane_b32 v{vT}, s{sT2}, 5")
            if NREP > 1:
                A(f"s_add_u32 s{sT2}, s{sT2}, 0x10000")
                A(f"v_writelane_b32 v{vT}, s{sT2}, 6")
            A(f"s_mov_b64 exec, {0x7f if NREP > 1 else 0x3f}")
        else:
            A("s_mov_b64 exec, 0x1f")
        A(f"buffer_load_dword v254, v{vT}, s[12:15], 0 offen offset:2048 sc1")
        A("s_mov_b64 exec, -1")
        A.label("L_b_notouch")
    stamp()
    A(f"s_and_b32 s{sT4}, s{sHG}, 1")
    A(f"s_lshl_b32 s{sT2}, s{sT4}, 12")
    x_frag_addr(vXa, sT2)
    A(f"s_mov_b32 s{sT2}, {L_WKV}")
    tr_addr(vWa, 8, 32, 0, sT2)
    v_lane_addr()
    vN = 14
    A(f"v_mov_b32 v{vN+1}, 0")
    def nonce_load(): A(f"buffer_load_dword v{vN}, v{vN+1}, s[20:23], 0 offen sc1")
    def nonce_wait():
        l = A.uid("nw"); d = A.uid("nwd")
        A(f"s_mov_b32 s{sSP}, {SPIN}")
        A.label(l)
        A("s_waitcnt vmcnt(0)")
        A(f"v_readfirstlane_b32 s{sNON}, v{vN}")
        r = A.uid("nwr")
        A("s_nop 1")
        A(f"s_cmp_eq_u32 s{sNON}, 0")
        A(f"s_cbranch_scc1 {r}")
        A(f"s_sub_u32 s{sT}, s3, s{sNON}")
        A(f"s_cmp_lt_i32 s{sT}, 1000")
        A(f"s_cbranch_scc1 {d}")
        A(f"s_cmp_lt_u32 s{sSP}, {SPIN - 64}")
        A(f"s_cbranch_scc1 {d}")
        A.label(r)
        A(f"s_sub_u32 s{sSP}, s{sSP}, 1")
        timeout_branch(d)
        nonce_load()
        A(f"s_branch {l}")
        A.label(d)
    ACC = 16
    A(f"s_lshl_b32 s{sRT0}, s{sRB}, 1")
    A(f"s_add_u32 s{sA0}, s{sRT0}, s{sT4}")
    A(f"s_mul_i32 s{sA0}, s{sA0}, {TB}")
    A(f"s_lshl_b32 s{sA1}, s{sRB}, 2")
    A(f"s_add_u32 s{sA1}, s{sA1}, s{sT4}")
    A(f"s_lshr_b32 s{sT2}, s{sHG}, 2")
    A(f"s_lshl_b32 s{sT2}, s{sT2}, 1")
    A(f"s_add_u32 s{sA1}, s{sA1}, s{sT2}")
    A(f"s_lshl_b32 s{sA1}, s{sA1}, {3 if 'dense' in OPT else 5}")
    A(f"s_add_u32 s{sA1}, s{sA1}, {FL_KVA:#x}")
    A("s_waitcnt vmcnt(6)")
    kstamp()
    ksv = NST[0]
    team_add(4)
    A(f"s_cmp_lg_u32 s{sJ}, 0")
    A("s_cbranch_scc1 L_b_idle")
    A(f"s_bitcmp1_b32 s{sHG}, 1")
    A("s_cbranch_scc1 L_b_idle")
    def kv_unit(swap):
        NST[0] = ksv
        team_wait(4, 4, 1)
        kstamp()
        chain(0, 16, 64, ACC, 512, 128, swap)
        kstamp()
        A("s_waitcnt vmcnt(0)")
        kstamp()
        nonce_load()
        team_add(5)
        team_add(8)
        team_wait(8, 4, 1)
        kstamp()
        chain(16, 16, 64, ACC, 512, 128, swap)
        kstamp()
    A(f"s_cmp_ge_u32 s{sHG}, 4")
    A("s_cbranch_scc1 L_b_vunit")
    kv_unit(False)
    A("s_nop 7")
    A("s_nop 3")
    for r in range(4): A(f"v_cvt_pk_bf16_f32 v{64+r}, v{ACC+2*r}, v{ACC+2*r+1}")
    A(f"buffer_store_dwordx4 {vr(64,4)}, v{vK}, s[12:15], s{sA0} offen sc1")
    A("s_branch L_b_kvpub")
    A.label("L_b_vunit")
    A(f"v_lshrrev_b32 v{vT2}, 5, v{vL}")
    A(f"v_lshlrev_b32 v7, 8, v{vT2}")
    A(f"v_and_b32 v{vT2}, 15, v{vL}")
    A(f"v_lshl_add_u32 v7, v{vT2}, 4, v7")
    A(f"v_bfe_u32 v{vT2}, v{vL}, 4, 1")
    A(f"v_lshl_add_u32 v7, v{vT2}, 30, v7")
    A(f"v_cmp_gt_u32 s[38:39], 8, v{vL}")
    A(f"v_mov_b32 v{vT2}, {OOB:#x}")
    for r in range(4): A(f"v_mov_b32 v{100+r}, {ONES:#x}")
    A(f"v_cndmask_b32_e64 v8, v{vT2}, v{vK}, s[38:39]")
    A(f"buffer_store_dwordx4 {vr(100,4)}, v8, s[12:15], s{sA0} offen offset:2048 sc1")
    kv_unit(True)
    A("s_nop 7")
    A("s_nop 3")
    for s in range(2):
        for r in range(4): A(f"v_cvt_pk_bf16_f32 v{64+4*s+r}, v{ACC+8*s+2*r}, v{ACC+8*s+2*r+1}")
        A("s_nop 1")
        A(f"v_permlane32_swap_b32 v{64+4*s}, v{66+4*s}")
        A(f"v_permlane32_swap_b32 v{65+4*s}, v{67+4*s}")
        A(f"buffer_store_dwordx4 {vr(64+4*s,4)}, v7, s[12:15], s{sA0} offen offset:{1024+s*512} sc1")
    A.label("L_b_kvpub")
    nonce_wait()
    kstamp()
    flag_store(sA1, NREP)
    A("s_branch L_b_pdone")
    A.label("L_b_idle")
    if KVP:
        NST[0] = ksv
        for _ in range(6): kstamp()
    A(f"s_cmp_eq_u32 s{sJ}, 3")
    A("s_cbranch_scc1 L_b_idle1")
    A("s_waitcnt vmcnt(0)")
    A.label("L_b_idle1")
    A("s_waitcnt vmcnt(1)")
    nonce_load()
    team_add(5)
    team_add(8)
    nonce_wait()
    A(f"v_mov_b32 v{vT}, {L_CNT + 64}")
    A(f"ds_write_b32 v{vT}, v{vN}")
    A.label("L_b_pdone")
    stamp()
    if KVP: STOFF[0] = True
    srd(8, P_WQKV, 512 * 3072)
    srd(40, P_GATE, 1024)
    A(f"s_mov_b32 m0, {L_GATE}")
    A(f"s_lshl_b32 s{sHEAD}, s{sHG}, 2")
    A(f"buffer_load_dwordx4 v{vK}, s[40:43], 0 offen lds")
    A(f"s_add_u32 s{sHEAD}, s{sHEAD}, s{sJ}")
    vD1, vX0, vW1, vW2, vG = 7, 9, 13, 8, 15
    w128_dma_addr(vD1, 3072)
    A(f"s_lshl_b32 s{sA0}, s{sJ}, 10")
    A(f"s_lshl_b32 s{sT2}, s{sHG}, 7")
    A(f"s_add_u32 s{sA0}, s{sA0}, s{sT2}")
    A(f"s_lshl_b32 s{sA1}, s{sJ}, 14")
    A(f"s_add_u32 s{sA1}, s{sA1}, {L_WQ}")
    sP3W = 37
    A(f"s_add_u32 s{sP3W}, s{sA0}, {512*3072}")
    if ROT:
        A(f"s_and_b32 s{sT3}, s{sRB}, 3")
        A(f"s_cmp_eq_u32 s{sJ}, 3")
        A(f"s_cselect_b32 s{sT3}, 0, s{sT3}")
        A(f"s_lshl_b32 s{sT2}, s{sT3}, 14")
        A(f"s_mul_i32 s{sT3}, s{sT3}, {128*3072}")
        A(f"s_add_u32 s{sA0}, s{sA0}, s{sT3}")
    else:
        A(f"s_mov_b32 s{sT2}, 0")
    x_frag_addr(vX0, sT2)
    w128_tr_addr(vW1, 8, sA1)
    A(f"v_xor_b32 v{vW2}, 64, v{vW1}")
    AC, FR = 16, 80
    for r in range(0, 64, 2): A(f"v_pk_mov_b32 v[{AC+r}:{AC+r+1}], 0, 0")
    A(f"s_mov_b32 s{sCnt}, 4")
    A(f"s_cmp_eq_u32 s{sJ}, 3")
    A("s_cbranch_scc1 L_b_gwave")
    if "p3early" in OPT: team_wait(6, 4, 1)
    else: team_wait(7, 4, 2)
    stamp()
    if "nob" in OPT: A("s_branch L_b_skip")
    if "pf" in OPT:
        A(f"s_lshr_b32 s{sT}, s2, 3")
        A(f"s_and_b32 s{sT3}, s2, 1")
        A(f"s_lshl_b32 s{sT3}, s{sT3}, 9")
        A(f"s_mul_i32 s{sT2}, s{sT}, {16*3072}")
        A(f"s_add_u32 s{sT2}, s{sT2}, s{sT3}")
        A(f"s_lshl_b32 s{sT4}, s{sJ}, 10")
        A(f"s_add_u32 s{sT2}, s{sT2}, s{sT4}")
        A(f"v_lshrrev_b32 v{vT}, 2, v{vL}")
        A(f"v_and_b32 v{vT2}, 3, v{vL}")
        A(f"v_lshlrev_b32 v{vT2}, 7, v{vT2}")
        A(f"v_lshl_add_u32 v{vT3}, v{vT}, 10, v{vT2}")
        A(f"v_mul_u32_u24 v{vT}, 3072, v{vT}")
        A(f"v_add_u32 v{vT}, v{vT}, v{vT2}")
        A(f"buffer_load_dword v254, v{vT}, s[8:11], s{sT2} offen sc1")
        A(f"s_cmp_eq_u32 s{sJ}, 2")
        A("s_cbranch_scc1 L_b_nopf")
        A(f"s_cmp_eq_u32 s{sJ}, 0")
        A(f"s_cselect_b32 s40, s{P_BWO}, s{P_AWO}")
        A(f"s_cselect_b32 s41, s{P_BWO+1}, s{P_AWO+1}")
        A("s_and_b32 s41, s41, 0xffff")
        A(f"s_mov_b32 s42, {512*1024:#x}")
        A(f"s_lshl_b32 s{sT2}, s{sT}, 14")
        A(f"s_add_u32 s{sT2}, s{sT2}, s{sT3}")
        A(f"buffer_load_dword v254, v{vT3}, s[40:43], s{sT2} offen sc1")
        A.label("L_b_nopf")
    def p3_dma(slot):
        A(f"s_add_u32 m0, s{sA1}, {slot*2048}")
        A(f"s_add_u32 s{sT2}, s{sA0}, {8*3072}")
        A(f"buffer_load_dwordx4 v{vD1}, s[8:11], s{sA0} offen lds")
        A(f"s_add_u32 m0, s{sA1}, {slot*2048+1024}")
        A(f"s_add_u32 s{sA0}, s{sA0}, {16*3072}")
        A(f"buffer_load_dwordx4 v{vD1}, s[8:11], s{sT2} offen lds")
    def p3_wrap():
        A(f"s_cmp_ge_u32 s{sA0}, s{sP3W}")
        A(f"s_cselect_b32 s{sT2}, {512*3072}, 0")
        A(f"s_sub_u32 s{sA0}, s{sA0}, s{sT2}")
    def p3_rd(i):
        if "nop3rd" in OPT.get("abl", ""): return
        b = FR + 16 * (i & 1); sl = (i % 8) * 2048
        if i == 8:
            for q in range(4):
                A(f"v_add_u32 v{vX0+q}, 16384, v{vX0+q}")
                A(f"v_and_b32 v{vX0+q}, 0xffff, v{vX0+q}")
        A(f"ds_read_b64_tr_b16 v[{b}:{b+1}], v{vW1} offset:{sl}")
        A(f"ds_read_b64_tr_b16 v[{b+2}:{b+3}], v{vW1} offset:{sl+512}")
        A(f"ds_read_b128 v[{b+8}:{b+11}], v{vX0+(i&3)} offset:{((i%8)>>2)*8192}")
        A(f"ds_read_b128 v[{b+12}:{b+15}], v{vX0+(i&3)} offset:{((i%8)>>2)*8192+4096}")
        A(f"ds_read_b64_tr_b16 v[{b+4}:{b+5}], v{vW2} offset:{sl}")
        A(f"ds_read_b64_tr_b16 v[{b+6}:{b+7}], v{vW2} offset:{sl+512}")
    LA = int(OPT.get("p3d", 8))
    for s in range(LA): p3_dma(s)
    if OPT.get("il") != "2":
        A(f"s_waitcnt vmcnt({2*LA-2})")
        p3_rd(0)
    def p3_loop_il(name, swap):
        A.label(name)
        for i in range(8):
            b = FR + 16 * (i & 1)
            mark = len(A.lines); p3_rd(i + 1); rd = A.lines[mark:]; del A.lines[mark:]
            pre = [l for l in rd if "ds_read" not in l]; rd = [l for l in rd if "ds_read" in l]
            mf = []
            for ct in range(2):
                for ri in range(2):
                    a = AC + 16 * (2 * ct + ri); wv, xv = vr(b + 4 * ct, 4), vr(b + 8 + 4 * ri, 4)
                    mf.append(f"{MF} {vr(a,16)}, {xv if swap else wv}, {wv if swap else xv}, {vr(a,16)}")
            A("s_waitcnt lgkmcnt(0)")
            A(mf[0])
            if i == (8 - LA) % 8:
                p3_wrap()
                A(f"s_cmp_eq_u32 s{sCnt}, 1")
                A(f"s_cselect_b32 s{sA0}, {OOB:#x}, s{sA0}")
            p3_dma((i + LA) % 8)
            A(mf[1])
            for l in pre: A(l)
            A(f"s_waitcnt vmcnt({2*LA-2})")
            for l in rd[:3]: A(l)
            if PACE: A(f"s_nop {PACE-1}")
            A(mf[2])
            for l in rd[3:]: A(l)
            if PACE: A(f"s_nop {PACE-1}")
            A(mf[3])
        A(f"s_sub_u32 s{sCnt}, s{sCnt}, 1")
        A(f"s_cmp_lg_u32 s{sCnt}, 0")
        A(f"s_cbranch_scc1 {name}")
    def p3_loop_jit(name, swap):
        A.label(name)
        b = FR
        def mf(ct, ri):
            a = AC + 16 * (2 * ct + ri); wv, xv = vr(b + 4 * ct, 4), vr(b + 8 + 4 * ri, 4)
            if "nop3mf" not in OPT.get("abl", ""): A(f"{MF} {vr(a,16)}, {xv if swap else wv}, {wv if swap else xv}, {vr(a,16)}")
        for i in range(8):
            sl = i * 2048; xo = (i >> 2) * 8192
            A(f"s_waitcnt vmcnt({2*LA-2})")
            A(f"ds_read_b64_tr_b16 v[{b}:{b+1}], v{vW1} offset:{sl}")
            A(f"ds_read_b64_tr_b16 v[{b+2}:{b+3}], v{vW1} offset:{sl+512}")
            A(f"ds_read_b128 v[{b+8}:{b+11}], v{vX0+(i&3)} offset:{xo}")
            A("s_waitcnt lgkmcnt(0)")
            mf(0, 0)
            A(f"ds_read_b128 v[{b+12}:{b+15}], v{vX0+(i&3)} offset:{xo+4096}")
            A("s_waitcnt lgkmcnt(0)")
            mf(0, 1)
            A(f"ds_read_b64_tr_b16 v[{b+4}:{b+5}], v{vW2} offset:{sl}")
            A(f"ds_read_b64_tr_b16 v[{b+6}:{b+7}], v{vW2} offset:{sl+512}")
            A("s_waitcnt lgkmcnt(0)")
            mf(1, 1)
            if i == (8 - LA) % 8:
                p3_wrap()
                A(f"s_cmp_eq_u32 s{sCnt}, 1")
                A(f"s_cselect_b32 s{sA0}, {OOB:#x}, s{sA0}")
            p3_dma((i + LA) % 8)
            mf(1, 0)
        for q in range(4):
            A(f"v_add_u32 v{vX0+q}, 16384, v{vX0+q}")
            A(f"v_and_b32 v{vX0+q}, 0xffff, v{vX0+q}")
        A(f"s_sub_u32 s{sCnt}, s{sCnt}, 1")
        A(f"s_cmp_lg_u32 s{sCnt}, 0")
        A(f"s_cbranch_scc1 {name}")
    def p3_loop(name, swap):
        if OPT.get("il") == "2": return p3_loop_jit(name, swap)
        if OPT.get("il") == "1": return p3_loop_il(name, swap)
        A.label(name)
        for i in range(8):
            A(f"s_waitcnt vmcnt({2*LA-4})")
            p3_rd(i + 1)
            if i == (8 - LA) % 8:
                p3_wrap()
                A(f"s_cmp_eq_u32 s{sCnt}, 1")
                A(f"s_cselect_b32 s{sA0}, {OOB:#x}, s{sA0}")
            A("s_waitcnt lgkmcnt(6)")
            b = FR + 16 * (i & 1)
            n = 0
            for ct in range(2):
                for ri in range(2):
                    a = AC + 16 * (2 * ct + ri); wv, xv = vr(b + 4 * ct, 4), vr(b + 8 + 4 * ri, 4)
                    if "nop3mf" not in OPT.get("abl", ""): A(f"{MF} {vr(a,16)}, {xv if swap else wv}, {wv if swap else xv}, {vr(a,16)}")
                    if n == 0: p3_dma((i + LA) % 8)
                    elif PACE: A(f"s_nop {PACE-1}")
                    n += 1
        A(f"s_sub_u32 s{sCnt}, s{sCnt}, 1")
        A(f"s_cmp_lg_u32 s{sCnt}, 0")
        A(f"s_cbranch_scc1 {name}")
    PACE = int(OPT.get("pace", 0))
    A(f"s_cmp_eq_u32 s{sJ}, 2")
    A("s_cbranch_scc1 L_p3v")
    p3_loop("L_p3qk", False)
    svst = NST[0]
    stamp()
    A(f"s_lshl_b32 s{sKV}, s{sHG}, 8")
    A(f"s_add_u32 s{sKV}, s{sKV}, s{sRT0}")
    A(f"s_mul_i32 s{sKV}, s{sKV}, {TB}")
    A(f"s_add_u32 s{sKV}, s{sKV}, {WS_KVB:#x}")
    A(f"s_mov_b32 s{sT2}, {f2u(CSCALE):#x}")
    A(f"v_add_u32 v{vT3}, {L_QX}, v{vK}")
    A("s_waitcnt lgkmcnt(0)")
    A(f"s_cmp_eq_u32 s{sJ}, 1")
    A("s_cbranch_scc1 L_p3k")
    team_wait(7, 4, 2)
    for ct in range(2):
        for ri in range(2):
            for hh in range(2):
                a = AC + 16 * (2 * ct + ri) + 8 * hh; p = FR + 4 * ((2 * ri + hh) & 3)
                for r in range(8): A(f"v_mul_f32 v{a+r}, s{sT2}, v{a+r}")
                for r in range(4): A(f"v_cvt_pk_bf16_f32 v{p+r}, v{a+2*r}, v{a+2*r+1}")
                A(f"ds_write_b128 v{vT3}, {vr(p,4)} offset:{(4*ri + 2*ct + hh)*1024}")
        if ct == 0: A("s_waitcnt lgkmcnt(0)")
    A("s_waitcnt vmcnt(0) lgkmcnt(0)")
    A("s_branch L_p3done")
    A.label("L_p3k")
    for ct in range(2):
        for hh in range(2):
            for ri in range(2):
                a = AC + 16 * (2 * ct + ri) + 8 * hh; p = FR + 4 * (4 * ct + 2 * hh + ri)
                for r in range(4): A(f"v_cvt_pk_bf16_f32 v{p+r}, v{a+2*r}, v{a+2*r+1}")
                A(f"buffer_store_dwordx4 {vr(p,4)}, v{vK}, s[12:15], s{sKV} offen offset:{ri*TB} sc1")
            A(f"s_add_u32 s{sKV}, s{sKV}, {64*TB}")
    A("s_branch L_p3pub")
    A.label("L_p3v")
    p3_loop("L_p3vl", True)
    NST[0] = svst
    stamp()
    A(f"s_lshl_b32 s{sKV}, s{sHG}, 8")
    A(f"s_add_u32 s{sKV}, s{sKV}, s{sRT0}")
    A(f"s_mul_i32 s{sKV}, s{sKV}, {TB}")
    A(f"s_add_u32 s{sKV}, s{sKV}, {WS_KVB:#x}")
    A(f"s_mov_b32 s{sT3}, {64*TB}")
    A(f"v_lshrrev_b32 v{vT}, 4, v{vL}")
    A(f"v_mul_lo_u32 v{vT}, v{vT}, s{sT3}")
    A(f"v_bfe_u32 v{vT2}, v{vL}, 3, 1")
    A(f"v_mul_u32_u24 v{vT2}, {TB}, v{vT2}")
    A(f"v_add_u32 v{vT}, v{vT}, v{vT2}")
    A(f"v_and_b32 v{vT2}, 7, v{vL}")
    A(f"v_lshl_add_u32 v{vT3}, v{vT2}, 4, v{vT}")
    for r in range(4): A(f"v_mov_b32 v{120+r}, {ONES:#x}")
    A(f"v_bfe_u32 v{vT}, v{vL}, 4, 1")
    A(f"v_mul_lo_u32 v{vT}, v{vT}, s{sT3}")
    A(f"v_lshrrev_b32 v{vT2}, 5, v{vL}")
    A(f"v_lshl_add_u32 v{vT}, v{vT2}, 8, v{vT}")
    A(f"v_and_b32 v{vT2}, 15, v{vL}")
    A(f"v_lshl_add_u32 v{vT}, v{vT2}, 4, v{vT}")
    A("s_waitcnt lgkmcnt(0)")
    A(f"buffer_store_dwordx4 {vr(120,4)}, v{vT3}, s[12:15], s{sKV} offen offset:2048 sc1")
    for ct in range(2):
        for ri in range(2):
            for s in range(2):
                a = AC + 16 * (2 * ct + ri) + 8 * s; p = FR + 4 * (4 * ct + 2 * ri + s)
                for r in range(4): A(f"v_cvt_pk_bf16_f32 v{p+r}, v{a+2*r}, v{a+2*r+1}")
                A("s_nop 1")
                A(f"v_permlane32_swap_b32 v{p}, v{p+2}")
                A(f"v_permlane32_swap_b32 v{p+1}, v{p+3}")
                A(f"buffer_store_dwordx4 {vr(p,4)}, v{vT}, s[12:15], s{sKV} offen offset:{1024+ri*TB+s*512} sc1")
        if ct == 0: A(f"s_add_u32 s{sKV}, s{sKV}, {128*TB}")
    A.label("L_p3pub")
    A("s_waitcnt vmcnt(0)")
    team_add(0, "L_p3done", 2)
    A(f"s_lshl_b32 s{sT3}, s{sHG}, 5")
    A(f"s_add_u32 s{sT3}, s{sT3}, s{sRB}")
    A(f"s_lshl_b32 s{sT3}, s{sT3}, 5")
    A(f"s_add_u32 s{sT3}, s{sT3}, {FL_KVB:#x}")
    flag_store(sT3)
    A("s_branch L_p3done")
    A.label("L_b_gwave")
    NST[0] = svst - 1
    if "touchw" in OPT:
        A(f"v_lshlrev_b32 v{vT}, 16, v{vL}")
        A(f"buffer_load_dword v254, v{vT}, s[8:11], 0 offen sc1")
        srd(40, P_BWO, 512 * 1024)
        A(f"buffer_load_dword v254, v{vT}, s[40:43], 0 offen sc1")
        srd(40, P_AWO, 512 * 1024)
        A(f"buffer_load_dword v254, v{vT}, s[40:43], 0 offen sc1")
    A(f"v_bfe_u32 v{vT3}, v{vL}, 1, 4")
    A(f"v_min_u32 v{vT3}, {G1-1}, v{vT3}")
    A(f"v_add_u32 v{vT3}, s{sRB}, v{vT3}")
    A(f"v_and_b32 v{vT3}, 31, v{vT3}")
    A(f"v_and_b32 v{vT}, 32, v{vL}")
    A(f"v_add_u32 v{vT3}, v{vT3}, v{vT}")
    A(f"v_and_b32 v{vT}, 1, v{vT3}")
    A(f"v_lshrrev_b32 v{vT3}, 1, v{vT3}")
    A(f"v_lshl_add_u32 v{vT3}, v{vT3}, 2, v{vT}")
    A(f"v_and_b32 v{vT}, 1, v{vL}")
    A(f"v_lshl_add_u32 v{vT3}, v{vT}, 1, v{vT3}")
    A(f"v_lshlrev_b32 v{vT3}, 5, v{vT3}")
    if OPT.get("pstart", "5") == "5": team_wait(5, 8, 2)
    elif OPT.get("pstart") == "6": team_wait(6, 4, 1)
    if NREP > 1:
        A(f"s_and_b32 s{sT3}, s{sHG}, {NREP-1}")
        A(f"s_lshl_b32 s{sT3}, s{sT3}, 12")
        A(f"s_add_u32 s{sT3}, s{sT3}, {FL_KVA:#x}")
    else:
        A(f"s_mov_b32 s{sT3}, {FL_KVA:#x}")
    if KVP:
        NST[0] = 5
        kstamp()
    poll_flags(vT3, sT3, slp=int(OPT.get("pslp", 1)))
    if KVP:
        kstamp()
        A("s_waitcnt lgkmcnt(0)")
        A(f"s_sub_u32 s{70+2*NST[0]}, {SPIN}, s{sSP}")
        A(f"s_add_u32 s{70+2*NST[0]}, s{70+2*NST[0]}, s72")
        NST[0] = svst
    A("s_waitcnt lgkmcnt(0)")
    team_add(11)
    if int(OPT.get('asl', 16)): A(f"s_sleep {OPT.get('asl', 16)}")
    A(f"v_lshlrev_b32 v{vT}, 5, v{vL}")
    poll_flags(vT, sT3, n2=2048, slp=4)
    team_add(9)
    if "nob" in OPT: A("s_branch L_b_skip")
    stamp()
    A(f"v_lshrrev_b32 v{vW1}, 5, v{vL}")
    A(f"v_lshlrev_b32 v{vW1}, 4, v{vW1}")
    A(f"v_add_u32 v{vW1}, {L_GATE}, v{vW1}")
    A(f"s_mov_b32 s{sCnt}, 8")
    A.label("L_gloop")
    for i in range(4):
        A(f"ds_read_b128 {vr(FR,4)}, v{vW1} offset:{i*32}")
        A(f"ds_read_b128 {vr(FR+4,4)}, v{vX0+i}")
        A("s_waitcnt lgkmcnt(0)")
        A(f"{MF} {vr(AC,16)}, {vr(FR,4)}, {vr(FR+4,4)}, {vr(AC,16)}")
        A(f"ds_read_b128 {vr(FR+8,4)}, v{vX0+i} offset:4096")
        A(f"v_add_u32 v{vX0+i}, 8192, v{vX0+i}")
        A("s_waitcnt lgkmcnt(0)")
        A(f"{MF} {vr(AC+16,16)}, {vr(FR,4)}, {vr(FR+8,4)}, {vr(AC+16,16)}")
    A(f"v_add_u32 v{vW1}, 128, v{vW1}")
    A(f"s_sub_u32 s{sCnt}, s{sCnt}, 1")
    A(f"s_cmp_lg_u32 s{sCnt}, 0")
    A("s_cbranch_scc1 L_gloop")
    stamp()
    A("s_mov_b32 s38, 0")
    A("s_mov_b32 s39, -1")
    A("s_nop 5")
    A(f"v_cndmask_b32_e64 v{vG}, v{AC}, v{AC+16}, s[38:39]")
    A(f"v_mul_f32 v{vG}, {f2u(-math.log2(math.e)):#x}, v{vG}")
    A(f"v_exp_f32 v{vG}, v{vG}")
    A(f"v_lshlrev_b32 v{vT}, 2, v{vL}")
    A(f"v_add_f32 v{vG}, 1.0, v{vG}")
    A(f"v_rcp_f32 v{vG}, v{vG}")
    A(f"v_add_u32 v{vT}, {L_G}, v{vT}")
    A(f"ds_write_b32 v{vT}, v{vG}")
    A("s_waitcnt lgkmcnt(0)")
    A.label("L_p3done")
    team_add(1)
    QB = 96; OB = 104; KV = 136
    A(f"s_lshl_b32 s{sKV}, s{sHEAD}, 6")
    A(f"s_add_u32 s{sKV}, s{sKV}, s{sRT0}")
    A(f"s_mul_i32 s{sKV}, s{sKV}, {TB}")
    A(f"s_add_u32 s{sKV}, s{sKV}, {WS_KVB:#x}")
    sWL, sWG, sWN = 37, 54, 55
    srd(8, P_BWO, 512 * 1024)
    srd(20, P_AWO, 512 * 1024)
    vWd2 = 11
    w128_dma_addr(vWd2, 1024)
    A(f"s_lshl_b32 s{sWL}, s{sJ}, 14")
    A(f"s_lshl_b32 s{sWG}, s{sJ}, 17")
    A(f"s_lshl_b32 s{sT}, s{sHG}, 7")
    A(f"s_add_u32 s{sWG}, s{sWG}, s{sT}")
    A(f"s_mov_b32 s{sWN}, 0")
    sWI, sWT = 56, 57
    if ROT:
        A(f"s_and_b32 s{sWI}, s{sRB}, {3 if 'map1' in OPT else 7}")
        A(f"s_lshl_b32 s{sWI}, s{sWI}, {2 if 'map1' in OPT else 1}")
    else:
        A(f"s_mov_b32 s{sWI}, 0")
    def w_loop(name, srd_, lds):
        A(f"s_mov_b32 s{sWN}, 16")
        A.label(name)
        A(f"s_lshl_b32 s{sWT}, s{sWI}, 10")
        A(f"s_add_u32 s{sWT}, s{sWT}, s{sWL}")
        A(f"s_add_u32 m0, s{sWT}, {lds}")
        A(f"s_lshl_b32 s{sWT}, s{sWI}, 13")
        A(f"s_add_u32 s{sWT}, s{sWT}, s{sWG}")
        A(f"buffer_load_dwordx4 v{vWd2}, s[{srd_}:{srd_+3}], s{sWT} offen lds")
        A(f"s_add_u32 s{sWI}, s{sWI}, 1")
        A(f"s_and_b32 s{sWI}, s{sWI}, 15")
        A(f"s_sub_u32 s{sWN}, s{sWN}, 1")
        A(f"s_waitcnt vmcnt({OPT.get('wd', 5)})")
        A(f"s_cmp_lg_u32 s{sWN}, 0")
        A(f"s_cbranch_scc1 {name}")
    A(f"s_lshl_b32 s{sT2}, s{sJ}, 10")
    A(f"s_add_u32 s{sT2}, s{sT2}, {L_QX}")
    A(f"v_add_u32 v7, s{sT2}, v{vK}")
    A(f"s_and_b32 s{sT2}, s{sJ}, 1")
    A(f"s_lshl_b32 s{sT2}, s{sT2}, 7")
    A(f"s_add_u32 s{sT2}, s{sT2}, {L_G}")
    A(f"v_and_b32 v9, 31, v{vL}")
    A(f"v_lshl_add_u32 v9, v9, 2, s{sT2}")
    stamp()
    team_wait(1)
    w_loop("L_wB", 8, L_X)
    A(f"s_cmp_lg_u32 s{sJ}, 3")
    A("s_cbranch_scc1 L_b_nokvb")
    A(f"v_min_u32 v{vT3}, 4, v{vL}")
    A(f"v_sub_u32 v{vT3}, s{sRB}, v{vT3}")
    A(f"v_max_i32 v{vT3}, 0, v{vT3}")
    A(f"v_lshlrev_b32 v{vT3}, 5, v{vT3}")
    A(f"s_lshl_b32 s{sT3}, s{sHG}, 10")
    A(f"s_add_u32 s{sT3}, s{sT3}, {FL_KVB:#x}")
    poll_flags(vT3, sT3, slp=2)
    team_add(10)
    A.label("L_b_nokvb")
    team_wait(10, 1)
    stamp()
    A(f"ds_read_b128 {vr(QB,4)}, v7")
    A(f"ds_read_b128 {vr(QB+4,4)}, v7 offset:4096")
    A(f"ds_read_b32 v{vG}, v9")
    A(f"s_add_u32 s{sA0}, s{sKV}, {TB}")
    A(f"s_add_u32 s{sA1}, s{sRT0}, 1")
    PRE = int(OPT.get("bpre", 4))
    def bkv(u):
        b = KV + 12 * u; o = []
        if u >= 2:
            o.append(f"s_cmp_ge_u32 s{sA1}, {u}")
            o.append(f"s_cselect_b32 s{sT}, s{sA0}, {OOB:#x}")
        sa = sT if u >= 2 else sA0
        o.append(f"buffer_load_dwordx4 {vr(b,4)}, v{vK}, s[12:15], s{sa} offen sc1")
        o.append(f"buffer_load_dwordx4 {vr(b+4,4)}, v{vV}, s[12:15], s{sa} offen sc1")
        o.append(f"buffer_load_dwordx4 {vr(b+8,4)}, v{vV1}, s[12:15], s{sa} offen sc1")
        if u < 9: o.append(f"s_sub_u32 s{sA0}, s{sA0}, {TB}")
        return "\n".join(o)
    order = []
    for u in range(PRE):
        A(bkv(u)); order += [("k", u), ("v", u), ("v2", u)]
    vBig = 7
    A(f"v_mov_b32 v{vIDX}, 0xdddddddd")
    A(f"v_mov_b32 v{vBig}, {f2u(-1e38):#x}")
    mask_tuple(NEG, f"v{vBig}", "0")
    for i in range(2):
        for r in range(0, 10, 2): A(f"v_pk_mov_b32 v[{OB+16*i+r}:{OB+16*i+r+1}], 0, 0")
    A(f"s_waitcnt vmcnt({3*PRE-4}) lgkmcnt(0)")
    A(f"{MF} {vr(S0,16)}, {vr(KV,4)}, {vr(QB+4,4)}, {vr(NEG,16)}")
    A(f"{MF} {vr(S1,16)}, {vr(KV+12,4)}, {vr(QB,4)}, {vr(NEG,16)}")
    A("s_nop 7")
    A("s_nop 3")
    lane_max_all(range(S0, S0 + 32), vT, vT2)
    A(f"v_sub_f32 v{NEG}, 0, v{vT}")
    A(f"v_sub_f32 v{NEG+1}, 0, v{vT}")
    for r in range(0, 32, 2): A(f"v_pk_add_f32 v[{S0+r}:{S0+r+1}], v[{S0+r}:{S0+r+1}], v[{NEG}:{NEG+1}]")
    for r in range(2, 16, 2): A(f"v_pk_mov_b32 v[{NEG+r}:{NEG+r+1}], v[{NEG}:{NEG+1}], v[{NEG}:{NEG+1}] op_sel:[0,1]")
    items = [(1, 0), (0, 1), (1, 1)]
    for u in range(2, 9): items += [(0, u), (1, u)]
    items += [(0, 9)]
    CF = KV
    waited = 3
    def need(tag):
        nonlocal waited
        k_ = order.index(tag)
        if k_ > waited:
            waited = k_
            return f"s_waitcnt vmcnt({len(order)-1-k_})"
        return None
    WPI = int(OPT.get("wpi", 1))
    wsteps = 0; nextu = PRE
    for n, (q, u) in enumerate(items):
        Sc, Sn = (S0, S1) if n % 2 == 0 else (S1, S0)
        ex = {}
        qk = None
        late = []
        if n % 2 == 1 and nextu < 10:
            ex["X4"] = bkv(nextu); late = [("k", nextu), ("v", nextu), ("v2", nextu)]; nextu += 1
        if n >= 1 and n + 1 < len(items):
            q2, u2 = items[n + 1]
            far = (q2, u2) in ((1, 8), (0, 9))
            ex["X3"] = need(("k", u2))
            qk = f"{MF} {vr(Sn,16)}, {vr(KV+12*u2,4)}, {vr(QB+4*q2,4)}, {vr(CF if far else NEG,16)}"
        ex["X5"] = need(("v2", u))
        order += late
        pv1 = None
        if n >= 1:
            qp, up = items[n - 1]
            pv1 = pv(OB + 16 * qp, KV + 12 * up + 8, Sn + 8)
        exit_here = (q == 1 and u in (1, 3, 5, 7))
        if exit_here: ex["X4"] = f"s_cmp_eq_u32 s{sA1}, {u}"
        if "nobat" in OPT.get("abl", ""):
            for x in sorted(ex):
                if ex[x]: A(ex[x])
            A("s_sleep 3")
        else:
            tile_code(Sc, qk, pv1, pv(OB + 16 * q, KV + 12 * u + 4, Sc), ex)
        if exit_here: A(f"s_cbranch_scc1 L_b_exit{u}")
        if n == 6: mask_tuple(CF, f"v{NEG}", f"v{vBig}")
    A("s_nop 1")
    A(pv(OB, KV + 12 * 9 + 8, S1 + 8))
    A.label("L_b_fin")
    stamp()
    A(f"s_lshl_b32 s{sA2}, s{sRT0}, 6")
    A(f"s_add_u32 s{sA2}, s{sA2}, s{sHEAD}")
    A(f"s_lshl_b32 s{sA2}, s{sA2}, 10")
    A(f"s_add_u32 s{sA2}, s{sA2}, {WS_O + 32*1024:#x}")
    A(f"s_min_u32 s{sCnt}, s{sA1}, 9")
    A("s_nop 7")
    for i in range(2):
        if not OPT.get("abl"): range_check(OB + 16 * i, f"L_b_slow{i}")
        A.label(f"L_b_ok{i}")
        normalize_store(OB + 16 * i, P + 4 * i, sA2)
        if i == 0:
            A(f"s_add_u32 s{sA2}, s{sA2}, 65536")
            A(f"s_add_u32 s{sKV}, s{sKV}, {TB}")
            A(f"s_add_u32 s{sCnt}, s{sRT0}, 2")
            A(f"s_min_u32 s{sCnt}, s{sCnt}, 9")
    A("s_waitcnt vmcnt(0)")
    team_add(2, "L_b_ob_nl")
    A(f"s_lshl_b32 s{sT3}, s{sRB}, 8")
    A(f"s_lshl_b32 s{sT4}, s{sHG}, 5")
    A(f"s_add_u32 s{sT3}, s{sT3}, s{sT4}")
    A(f"s_add_u32 s{sT3}, s{sT3}, {FL_OB:#x}")
    flag_store(sT3)
    A.label("L_b_ob_nl")
    A(f"s_and_b32 s{sT4}, s{sJ}, 1")
    A(f"s_lshr_b32 s{sT3}, s{sJ}, 1")
    vWp = 13
    w128_tr_addr(vWp, 4, None, sT3)
    A(f"v_and_b32 v{vT3}, 7, v{vL}")
    A(f"v_lshlrev_b32 v{vT3}, 5, v{vT3}")
    A(f"s_lshl_b32 s{sT3}, s{sRB}, 8")
    A(f"s_add_u32 s{sT3}, s{sT3}, {FL_OB:#x}")
    w_loop("L_wA", 20, L_WQ)
    A("s_waitcnt vmcnt(0)")
    team_add(3)
    OF = 128; WF = 64; ACB = 16; ACA = 32
    vWq = 12
    A(f"v_add_u32 v{vWq}, {L_WQ}, v{vWp}")
    team_wait(3)
    for s in range(32):
        if s % 7 == 0 and s: A("s_waitcnt lgkmcnt(0)")
        A(f"ds_read_b64_tr_b16 v[{OF+4*s}:{OF+4*s+1}], v{vWq} offset:{s*2048}")
        A(f"ds_read_b64_tr_b16 v[{OF+4*s+2}:{OF+4*s+3}], v{vWq} offset:{s*2048+1024}")
    A("s_waitcnt lgkmcnt(0)")
    team_add(12)
    poll_flags(vT3, sT3, slp=2)
    stamp()
    A(f"s_add_u32 s{sWG}, s{sRT0}, s{sT4}")
    A(f"s_lshl_b32 s{sWG}, s{sWG}, 16")
    A(f"s_lshr_b32 s{sA0}, s{sJ}, 1")
    A(f"s_lshl_b32 s{sA0}, s{sA0}, 14")
    A(f"s_add_u32 s{sWG}, s{sWG}, s{sA0}")
    A(f"s_add_u32 s{sWG}, s{sWG}, {WS_O + 32*1024:#x}")
    A(f"s_lshl_b32 s{sWL}, s{sT4}, 15")
    A(f"s_add_u32 s{sWL}, s{sWL}, s{sA0}")
    A(f"s_add_u32 s{sWL}, s{sWL}, {L_WQ}")
    team_wait(12)
    A(f"s_mov_b32 s{sWN}, 16")
    A.label("L_oB")
    A(f"s_mov_b32 m0, s{sWL}")
    A(f"s_add_u32 s{sWL}, s{sWL}, 1024")
    A(f"buffer_load_dwordx4 v{vK}, s[12:15], s{sWG} offen sc1 lds")
    A(f"s_add_u32 s{sWG}, s{sWG}, 1024")
    A(f"s_sub_u32 s{sWN}, s{sWN}, 1")
    A(f"s_waitcnt vmcnt({OPT.get('wd', 5)})")
    A(f"s_cmp_lg_u32 s{sWN}, 0")
    A("s_cbranch_scc1 L_oB")
    A.label("L_b_skip")
    A(f"s_and_b32 s{sT4}, s{sJ}, 1")
    srd(4, P_OUT, 2048 * 1024)
    vO = 8; vOa = 9
    A(f"v_and_b32 v{vT}, 31, v{vL}")
    A(f"v_lshlrev_b32 v{vT}, 10, v{vT}")
    A(f"v_lshrrev_b32 v{vT2}, 5, v{vL}")
    A(f"v_lshl_add_u32 v{vO}, v{vT2}, 4, v{vT}")
    A(f"s_add_u32 s{sKV}, s{sRT0}, s{sT4}")
    A(f"s_lshl_b32 s{sKV}, s{sKV}, 15")
    A(f"s_lshl_b32 s{sT}, s{sHG}, 7")
    A(f"s_add_u32 s{sKV}, s{sKV}, s{sT}")
    A(f"s_lshr_b32 s{sT}, s{sJ}, 1")
    A(f"s_lshl_b32 s{sT}, s{sT}, 6")
    A(f"s_add_u32 s{sKV}, s{sKV}, s{sT}")
    A(f"s_lshl_b32 s{sT}, s{sT4}, 15")
    A(f"v_add_u32 v{vOa}, s{sT}, v{vK}")
    if "touchout" in OPT:
        A(f"buffer_load_dword v{WF}, v{vO}, s[4:7], s{sKV} offen")
        A("s_waitcnt vmcnt(0)")
    OS = int(OPT.get("oarep", 5))
    A(f"s_lshl_b32 s{sA2}, s{sRB}, {OS+6 if 'oarep' in OPT else 8}")
    A(f"s_lshl_b32 s{sT}, s{sHG}, {OS}")
    A(f"s_add_u32 s{sA2}, s{sA2}, s{sT}")
    A(f"s_add_u32 s{sA2}, s{sA2}, {FL_OA:#x}")
    if "oarep" in OPT:
        A(f"s_lshl_b32 s{sT}, s{sRB}, 3")
        A(f"s_add_u32 s{sT}, s{sT}, s{sHG}")
        A(f"s_lshl_b32 s{sT}, s{sT}, {OS+3}")
        A(f"s_add_u32 s{sT}, s{sT}, {FL_OA:#x}")
        A(f"v_and_b32 v{vT}, 7, v{vL}")
        A(f"v_lshlrev_b32 v{vT}, {OS}, v{vT}")
        A(f"buffer_load_dword v{vT2}, v{vT}, s[12:15], s{sT} offen sc1")
        A("s_waitcnt vmcnt(0)")
    A(f"v_add_u32 v{vWq}, {L_WQ}, v{vOa}")
    A("s_waitcnt vmcnt(0) lgkmcnt(0)")
    stamp()
    if "lowp" in OPT: A("s_setprio 0")
    A("s_barrier")
    def rdb(s):
        b = WF + 8 * (s % 4)
        A(f"ds_read_b64_tr_b16 v[{b}:{b+1}], v{vWp} offset:{s*2048}")
        A(f"ds_read_b64_tr_b16 v[{b+2}:{b+3}], v{vWp} offset:{s*2048+1024}")
        A(f"ds_read_b128 v[{b+4}:{b+7}], v{vWq} offset:{s*1024}")
    NB1 = int(OPT.get("nb1", 32))
    for s in range(3): rdb(s)
    for s in range(32):
        if s == NB1:
            A("s_barrier")
        if s + 3 < 32: rdb(s + 3)
        A(f"s_waitcnt lgkmcnt({3 * (min(s + 3, 31) - s)})")
        b = WF + 8 * (s % 4)
        A(f"{MF} {vr(ACB,16)}, {vr(b,4)}, {vr(b+4,4)}, {'0' if s == 0 else vr(ACB,16)}")
    if NB1 == 32: A("s_barrier")
    tail_dma("B")
    A(f"v_sub_f32 v{vT3}, 1.0, v{vG}")
    A(f"v_mov_b32 v14, v{vG}")
    for r in range(16): A(f"v_mul_f32 v{ACB+r}, v{ACB+r}, v{vT3}")
    for m in range(len(MS)):
        A(f"s_waitcnt vmcnt({sum(MS[m+1:]) // 4})")
        A("s_barrier")
        n = MS[m]
        for i in range(n): A(f"ds_read_b128 {vr(WF+4*i,4)}, v{vOa} offset:{(sum(MS[:m])+i)*1024}")
        for i in range(n):
            s = sum(MS[:m]) + i
            A(f"s_waitcnt lgkmcnt({n-1-i})")
            c = "0" if s == 0 else vr(ACA, 16)
            A(f"{MF} {vr(ACA,16)}, {vr(OF+4*s,4)}, {vr(WF+4*i,4)}, {c}")
    A("s_nop 7")
    A("s_nop 3")
    for r in range(0, 16, 2): A(f"v_pk_fma_f32 v[{ACB+r}:{ACB+r+1}], v[{ACA+r}:{ACA+r+1}], v[14:15], v[{ACB+r}:{ACB+r+1}]")
    for r in range(8): A(f"v_cvt_pk_bf16_f32 v{WF+r}, v{ACB+2*r}, v{ACB+2*r+1}")
    A("s_nop 1")
    for g in range(2):
        A(f"v_permlane32_swap_b32 v{WF+4*g}, v{WF+4*g+2}")
        A(f"v_permlane32_swap_b32 v{WF+4*g+1}, v{WF+4*g+3}")
    for g in range(2): A(f"buffer_store_dwordx4 {vr(WF+4*g,4)}, v{vO}, s[4:7], s{sKV} offen offset:{g*32} {OPT.get('om', '').replace('_', ' ')}")
    if PROF: A("s_waitcnt vmcnt(0)")
    stamp_flush()
    A.label("L_exit")
    A("s_endpgm")
    for u in (1, 3, 5, 7):
        A.label(f"L_b_exit{u}")
        A("s_nop 0")
        A(pv(OB + 16, KV + 12 * u + 8, S0 + 8))
        A("s_branch L_b_fin")
    for i in range(2):
        slow_path(f"L_b_slow{i}", f"L_b_ok{i}", QB + 4 * i, OB + 16 * i, sKV, sCnt, -TB, True, KV, KV + 4, KV + 16)
    timeout_blocks()
    return k

DOC = """; One persistent launch, 256 workgroups (one per CU), each owning 64 rows x 4 heads.
;   waves 0-3 (A team): Q projection of the MQA branch, then MQA attention (4 query tiles per wave, half of the keys),
;                       the fp32 probabilities directly (only their high halves are selected); a ones row gives the row sum.
;   waves 4-7 (B team): shared K/V projection, QKV + gate projection, sliding-window attention, output projection.
;   The row shift is a sampled maximum; rows whose sum leaves the safe range are redone with the true row maximum.
"""

def main():
    hdr = open("cdna_kernels/" + NAME + ".s.ref").read().split("\n")
    head = [l for l in hdr if l.startswith(";") and "@launch" not in l]
    out = "\n".join(head) + "\n"
    out += "; @launch grid=(256,1,1) block=(512,1,1) lds=163840\n"
    out += '.amdgcn_target "amdgcn-amd-amdhsa--gfx950"\n.text\n'
    out += DOC
    k = gen()
    body = A.text()
    if "bfirst" in OPT:
        i = body.index("; @@A_BEGIN\n"); j = body.index("; @@A_END\n")
        body = body[:i] + body[j + len("; @@A_END\n"):] + body[i + len("; @@A_BEGIN\n"):j]
    body += "L_code_end:\n    s_endpgm\n"
    errs = check_hazards(body)
    for e in errs: print("HAZARD", e, file=sys.stderr)
    out += body
    out += f""".section .rodata,"a"
.p2align 6
.amdhsa_kernel {k}
  .amdhsa_next_free_vgpr 256
  .amdhsa_next_free_sgpr 102
  .amdhsa_accum_offset 256
  .amdhsa_group_segment_fixed_size 0
  .amdhsa_kernarg_size 96
  .amdhsa_user_sgpr_count 2
  .amdhsa_user_sgpr_kernarg_segment_ptr 1
  .amdhsa_system_sgpr_workgroup_id_x 1
.end_amdhsa_kernel
"""
    paths = [a for a in sys.argv[1:] if a.endswith(".s")]
    path = paths[0] if paths else "f20.s"
    open(path, "w").write(out)
    print("wrote", path, len(out), "bytes;", len(errs), "hazard warnings")
main()
```

```python
import sys, math, struct, re
from asmlib import Asm, vr, sr, check_hazards

NAME = "gated_mix__grouped_kv_mqa__sliding_block__prompt"
def f2u(x): return struct.unpack("<I", struct.pack("<f", x))[0]
CSCALE = 0.25 * math.log2(math.e)
OPT = dict(a[2:].split("=") if "=" in a else (a[2:], "1") for a in sys.argv[1:] if a.startswith("--"))
for _k, _v in (("bfirst", "1"), ("cpf", "1"), ("pace", "0"), ("p3d", "4"), ("bpre", "3"), ("od", "6"), ("il", "2"), ("tp", "one"), ("touchw", "1"), ("nrep", "8"), ("asl", "0"), ("ge", "2"), ("nb1", "8"), ("lowp", "1"), ("j4", "1"), ("pstart", "6"), ("touchfl", "1"), ("k3", "1")): OPT.setdefault(_k, _v)
PROF = "prof" in OPT

ROT = "norot" not in OPT
TB = 2176
WS_KVA = 0
WS_FL = 0x40000
NREP = int(OPT.get('nrep', 1))
FL_KVA, FL_KVB, FL_OB, FL_OA = (WS_FL + 0x10000 if NREP > 1 else WS_FL), WS_FL + 0x1000, WS_FL + 0x4000, (WS_FL + 0x20000 if 'oarep' in OPT else WS_FL + 0x6000)
WS_KVB = 0x100000
WS_O = 0x600000
WS_PROF = 15 << 20
WS_SIZE = 16 << 20
OOB = 0x40000000
ONES = 0x3F803F80
L_X, L_WQ, L_WKV, L_QX, L_GATE, L_CNT, L_COMB = 0, 65536, 131072, 147456, 155648, 156672, 131072
L_G = L_CNT + 256
L_COMB3 = L_G + 256
assert L_COMB + 3 * 4608 <= L_QX and L_COMB3 + 4608 <= 163840
SPIN = 50000
KS = int(OPT.get('ks', 1))
MS = [int(x) for x in OPT.get('ms', '8,8,8,8').split(',')]
MF = "v_mfma_f32_32x32x16_bf16"
SMF = "v_smfmac_f32_32x32x32_bf16"
vIDX = 10
A = Asm()

sW, sHG, sRB, sNON = 16, 17, 18, 19
sT, sT2, sT3, sT4 = 24, 25, 26, 27
sJ, sKV, sCnt, sHEAD, sRT0, sA0, sA1, sA2 = 28, 29, 30, 31, 32, 33, 34, 35
sSP = 36
P_X, P_WQ, P_WK, P_WV, P_AWO, P_WQKV, P_BWO, P_GATE, P_OUT, P_DBG, P_WS = 44, 46, 48, 50, 52, 56, 58, 60, 62, 64, 66
vL, vK, vV, vT, vT2, vT3 = 1, 2, 3, 4, 5, 6
vV1 = 0

def srd(d, ptr, size):
    A(f"s_mov_b32 s{d}, s{ptr}")
    A(f"s_and_b32 s{d+1}, s{ptr+1}, 0xffff")
    A(f"s_mov_b32 s{d+2}, {size:#x}")
    A(f"s_mov_b32 s{d+3}, 0x00020000")

NST = [0]
TM = [0]; TMS = []
def timeout_branch(d):
    if "tmark" not in OPT:
        A(f"s_cbranch_scc1 {d}"); return
    TM[0] += 1
    t = f"L_tm{TM[0]}"
    A(f"s_cbranch_scc1 {t}")
    TMS.append((t, d, TM[0]))
def timeout_blocks():
    for t, d, k in TMS:
        A.label(t)
        A("s_mov_b64 exec, 1")
        A(f"v_mov_b32 v253, {0x70000 + 4*k}")
        A("v_mov_b32 v252, s2")
        A("buffer_store_dword v252, v253, s[12:15], 0 offen sc1")
        A("s_mov_b64 exec, -1")
        A(f"s_branch {d}")
KVP = OPT.get("prof") in ("kv", "kvrt")
STOFF = [False]
def kstamp():
    if KVP: stamp(force=True)
def stamp(real=False, force=False):
    if not PROF: return
    if STOFF[0] and not force and not real: return
    i = NST[0]; NST[0] += 1
    assert 70 + 2 * i + 1 <= 101, "too many stamps"
    A(f"{'s_memrealtime' if real or OPT.get('prof') in ('rt', 'kvrt') else 's_memtime'} s[{70+2*i}:{71+2*i}]")
def stamp_flush():
    if not PROF: return
    stamp(force=True); stamp(real=True)
    A("s_waitcnt lgkmcnt(0)")
    A("s_lshl_b32 s68, s2, 4")
    A(f"s_add_u32 s68, s68, s{sW}")
    A("s_lshl_b32 s68, s68, 6")
    A(f"s_add_u32 s68, s68, {WS_PROF:#x}")
    A("v_mov_b32 v251, 0")
    for i in range(NST[0]):
        A(f"v_mov_b32 v250, s{70+2*i}")
        A(f"buffer_store_dword v250, v251, s[12:15], s68 offen offset:{4*i}")
    A("s_waitcnt vmcnt(0)")

def poll_flags(va, soff, n2=None, slp=2, vd=None, x4=False):
    vd = vd if vd is not None else vT2
    l = A.uid("poll"); d = A.uid("polld")
    A(f"s_mov_b32 s{sSP}, {SPIN}")
    A.label(l)
    if x4: A(f"buffer_load_dwordx4 {vr(vd,4)}, v{va}, s[12:15], s{soff} offen sc1")
    else: A(f"buffer_load_dword v{vd}, v{va}, s[12:15], s{soff} offen sc1")
    if n2 is not None: A(f"buffer_load_dword v{vd+1}, v{va}, s[12:15], s{soff} offen offset:{n2} sc1")
    A("s_waitcnt vmcnt(0)")
    A(f"v_cmp_ne_u32 vcc, s{sNON}, v{vd}")
    if n2 is not None or x4:
        A(f"v_cmp_ne_u32 s[38:39], s{sNON}, v{vd+(2 if x4 else 1)}")
        A("s_nop 1")
        A("s_or_b64 vcc, vcc, s[38:39]")
    else:
        A("s_nop 1")
    A(f"s_cbranch_vccz {d}")
    A("s_mov_b64 exec, vcc")
    A(f"s_sub_u32 s{sSP}, s{sSP}, 1")
    timeout_branch(d)
    if slp: A(f"s_sleep {slp}")
    A(f"s_branch {l}")
    A.label(d)
    A("s_mov_b64 exec, -1")

def flag_store(soff, nrep=1, sh=12):
    A(f"v_mov_b32 v{vT}, s{sNON}")
    if nrep > 1: A(f"v_lshlrev_b32 v{vT2}, {sh}, v{vL}")
    else: A(f"v_mov_b32 v{vT2}, 0")
    A(f"s_mov_b64 exec, {(1 << nrep) - 1}")
    A(f"buffer_store_dword v{vT}, v{vT2}, s[12:15], s{soff} offen sc1")
    A("s_mov_b64 exec, -1")

def team_add(cnt, last_label=None, n=4):
    A(f"v_mov_b32 v{vT}, {L_CNT + 4*cnt}")
    A(f"v_mov_b32 v{vT2}, 1")
    A("s_mov_b64 exec, 1")
    if last_label:
        A(f"ds_add_rtn_u32 v{vT2}, v{vT}, v{vT2}")
        A("s_waitcnt lgkmcnt(0)")
        A("s_mov_b64 exec, -1")
        A(f"v_readfirstlane_b32 s{sT}, v{vT2}")
        A("s_nop 1")
        A(f"s_cmp_lg_u32 s{sT}, {n-1}")
        A(f"s_cbranch_scc1 {last_label}")
    else:
        A(f"ds_add_u32 v{vT}, v{vT2}")
        A("s_mov_b64 exec, -1")

def team_wait(cnt, n=4, slp=2):
    l = A.uid("tw"); d = A.uid("twd")
    A(f"v_mov_b32 v{vT}, {L_CNT + 4*cnt}")
    A(f"s_mov_b32 s{sSP}, {SPIN}")
    A.label(l)
    A(f"ds_read_b32 v{vT2}, v{vT}")
    A("s_waitcnt lgkmcnt(0)")
    A(f"v_readfirstlane_b32 s{sT}, v{vT2}")
    A("s_nop 1")
    A(f"s_cmp_ge_u32 s{sT}, {n}")
    A(f"s_cbranch_scc1 {d}")
    A(f"s_sub_u32 s{sSP}, s{sSP}, 1")
    timeout_branch(d)
    if slp: A(f"s_sleep {slp}")
    A(f"s_branch {l}")
    A.label(d)

def pv(O, V, S):
    return f"{SMF} {vr(O,16)}, {vr(V,4)}, {vr(S,8)}, v{vIDX}"

def tile_code(Sc, qk, pv1, pv0, extra):
    d = {}
    for i in range(16): d[f"e{i}"] = f"v_exp_f32 v{Sc+i}, v{Sc+i}"
    d["PV1"] = pv1; d["QK"] = qk; d["PV0"] = pv0
    ABL = OPT.get("abl", "").split(",")
    if "nopv" in ABL: d["PV1"] = d["PV0"] = "s_nop 2"
    if "noqk" in ABL: d["QK"] = "s_nop 1"
    if "noexp" in ABL:
        for i in range(16): d[f"e{i}"] = "s_nop 1"
    order = OPT.get("order", "e0 e1 PV1 X1 e2 e3 e4 X3 QK X2 e5 e6 e7 e8 e9 e10 X5 PV0 X4 e11 e12 e13 e14 e15").replace("_", " ")
    for x in order.split():
        if x[0] == "X":
            if extra.get(x): A(extra[x])
        elif d[x]: A(d[x])

NEG, S0, S1, P = 16, 32, 48, 64

def lane_max_all(regs, dst, tmp):
    regs = list(regs)
    A(f"v_max3_f32 v{dst}, v{regs[0]}, v{regs[1]}, v{regs[2]}")
    A(f"v_max3_f32 v{tmp}, v{regs[3]}, v{regs[4]}, v{regs[5]}")
    rest = regs[6:]; t = [dst, tmp]; n = 0
    while rest:
        a, b = rest.pop(0), rest.pop(0)
        A(f"v_max3_f32 v{t[n&1]}, v{t[n&1]}, v{a}, v{b}"); n += 1
    A(f"v_max_f32 v{dst}, v{dst}, v{tmp}")
    A(f"v_mov_b32 v{tmp}, v{dst}")
    A("s_nop 1")
    A(f"v_permlane32_swap_b32 v{dst}, v{tmp}")
    A(f"v_max_f32 v{dst}, v{dst}, v{tmp}")

def mask_tuple(dst, v_true, v_false):
    for r in range(16):
        c0 = (r & 3) + 8 * (r >> 2)
        p = 40 + 2 * (r & 1)
        A(f"s_mov_b32 s{p}, {(1 << c0) - 1:#x}")
        A(f"s_mov_b32 s{p+1}, {(1 << (c0 + 4)) - 1:#x}")
        A(f"v_cndmask_b32_e64 v{dst+r}, {v_false}, {v_true}, s[{p}:{p+1}]")

def range_check(O, bad):
    A(f"v_max3_f32 v{vT}, |v{O}|, |v{O+1}|, |v{O+2}|")
    A(f"v_max3_f32 v{vT2}, |v{O+3}|, |v{O+4}|, |v{O+5}|")
    A(f"v_max3_f32 v{vT}, v{vT}, |v{O+6}|, |v{O+7}|")
    A(f"s_mov_b32 s{sT}, {f2u(2.0**-60):#x}")
    A(f"s_mov_b32 s{sT2}, {f2u(2.0**40):#x}")
    A(f"s_mov_b32 s{sT3}, {f2u(2.0**120):#x}")
    A(f"v_add_f32 v{vT}, v{vT}, v{vT2}")
    A(f"v_cmp_nlt_f32 vcc, s{sT}, v{O+8}")
    A(f"v_cmp_ngt_f32 s[38:39], s{sT2}, v{O+8}")
    A(f"v_cmp_ngt_f32 s[40:41], s{sT3}, v{vT}")
    A("s_nop 1")
    A("s_or_b64 vcc, vcc, s[38:39]")
    A("s_or_b64 vcc, vcc, s[40:41]")
    A(f"s_cbranch_vccnz {bad}")

def slow_path(name, ret, Qr, O, s_base, s_n, step, masks, KB, VB, MK):
    lp1, lp2 = A.uid("sp1"), A.uid("sp2")
    vM, vM2, vBig = 7, 8, 9
    A.label(name)
    A("s_waitcnt vmcnt(0) lgkmcnt(0)")
    A(f"v_mov_b32 v{vBig}, {f2u(-1e38):#x}")
    def set_mask():
        if not masks:
            return
        l0, l8, ld = A.uid("m0"), A.uid("m8"), A.uid("md")
        A(f"s_cmp_eq_u32 s{sA1}, 0")
        A(f"s_cbranch_scc1 {l0}")
        A(f"s_cmp_eq_u32 s{sA1}, 8")
        A(f"s_cbranch_scc1 {l8}")
        for r in range(16): A(f"v_mov_b32 v{MK+r}, 0")
        A(f"s_branch {ld}")
        A.label(l0); mask_tuple(MK, f"v{vBig}", "0"); A(f"s_branch {ld}")
        A.label(l8); mask_tuple(MK, "0", f"v{vBig}")
        A.label(ld)
    C = vr(MK, 16) if masks else "0"
    A(f"v_mov_b32 v{vM}, v{vBig}")
    A(f"s_mov_b32 s{sA0}, s{s_base}")
    A(f"s_mov_b32 s{sA1}, 0")
    A.label(lp1)
    A(f"buffer_load_dwordx4 {vr(KB,4)}, v{vK}, s[12:15], s{sA0} offen sc1")
    set_mask()
    A("s_waitcnt vmcnt(0)")
    A("s_nop 1")
    A(f"{MF} {vr(S0,16)}, {vr(KB,4)}, {vr(Qr,4)}, {C}")
    A(f"s_add_u32 s{sA0}, s{sA0}, {step & 0xffffffff:#x}")
    A(f"s_add_u32 s{sA1}, s{sA1}, 1")
    A("s_nop 15")
    for i in range(8): A(f"v_max3_f32 v{vM}, v{vM}, v{S0+2*i}, v{S0+2*i+1}")
    A(f"s_cmp_lt_u32 s{sA1}, s{s_n}")
    A(f"s_cbranch_scc1 {lp1}")
    A(f"v_mov_b32 v{vM2}, v{vM}")
    A("s_nop 1")
    A(f"v_permlane32_swap_b32 v{vM}, v{vM2}")
    A(f"v_max_f32 v{vM}, v{vM}, v{vM2}")
    for r in range(16): A(f"v_mov_b32 v{O+r}, 0")
    A(f"s_mov_b32 s{sA0}, s{s_base}")
    A(f"s_mov_b32 s{sA1}, 0")
    A.label(lp2)
    A(f"buffer_load_dwordx4 {vr(KB,4)}, v{vK}, s[12:15], s{sA0} offen sc1")
    A(f"buffer_load_dwordx4 {vr(VB,4)}, v{vV}, s[12:15], s{sA0} offen sc1")
    A(f"buffer_load_dwordx4 {vr(VB+4,4)}, v{vV1}, s[12:15], s{sA0} offen sc1")
    set_mask()
    A("s_waitcnt vmcnt(0)")
    A("s_nop 1")
    A(f"{MF} {vr(S0,16)}, {vr(KB,4)}, {vr(Qr,4)}, {C}")
    A(f"s_add_u32 s{sA0}, s{sA0}, {step & 0xffffffff:#x}")
    A(f"s_add_u32 s{sA1}, s{sA1}, 1")
    A("s_nop 15")
    for r in range(16): A(f"v_sub_f32 v{S0+r}, v{S0+r}, v{vM}")
    for r in range(16): A(f"v_exp_f32 v{S0+r}, v{S0+r}")
    A("s_nop 2")
    A(pv(O, VB, S0))
    A(pv(O, VB + 4, S0 + 8))
    A(f"s_cmp_lt_u32 s{sA1}, s{s_n}")
    A("s_nop 15")
    A(f"s_cbranch_scc1 {lp2}")
    A(f"s_branch {ret}")

def normalize_store(O, PK, soff):
    A(f"v_rcp_f32 v{vT}, v{O+8}")
    A("s_nop 0")
    for r in range(8): A(f"v_mul_f32 v{O+r}, v{O+r}, v{vT}")
    for r in range(4): A(f"v_cvt_pk_bf16_f32 v{PK+r}, v{O+2*r}, v{O+2*r+1}")
    A(f"buffer_store_dwordx4 {vr(PK,4)}, v{vK}, s[12:15], s{soff} offen sc1")

def tail_dma(team):
    A(f"v_and_b32 v{vT}, 7, v{vL}")
    A(f"v_lshlrev_b32 v{vT}, 5, v{vT}")
    if "oarep" in OPT:
        OS = int(OPT["oarep"])
        A(f"v_and_b32 v{vT}, 7, v{vL}")
        A(f"v_lshlrev_b32 v{vT}, {OS}, v{vT}")
        A(f"s_lshl_b32 s{sT3}, s{sRB}, 3")
        A(f"s_add_u32 s{sT3}, s{sT3}, s{sHG}")
        A(f"s_lshl_b32 s{sT3}, s{sT3}, {OS+3}")
    else:
        A(f"s_lshl_b32 s{sT3}, s{sRB}, 8")
    A(f"s_add_u32 s{sT3}, s{sT3}, {FL_OA:#x}")
    A(f"s_and_b32 s{sT}, s{sW}, 1")
    A(f"s_lshr_b32 s{sT2}, s{sW}, 1")
    A(f"s_lshl_b32 s{sA0}, s{sT}, 15")
    A(f"s_lshl_b32 s{sA1}, s{sRB}, 1")
    A(f"s_add_u32 s{sA1}, s{sA1}, s{sT}")
    A(f"s_lshl_b32 s{sA1}, s{sA1}, 16")
    A(f"s_add_u32 s{sA1}, s{sA1}, {WS_O:#x}")
    for m in range(len(MS)):
        A(f"s_mul_i32 s{40+m}, s{sT2}, {MS[m] // 4 * 1024}")
        A(f"s_add_u32 s{40+m}, s{40+m}, {sum(MS[:m]) * 1024}")
    if OPT.get("tp", "all") == "one":
        l = A.uid("tp")
        if team == "A":
            A(f"s_cmp_lg_u32 s{sW}, 0")
            A(f"s_cbranch_scc1 {l}")
            poll_flags(vT, sT3, slp=int(OPT.get("tslp", 1)))
        A.label(l)
        A("s_barrier")
    else:
        poll_flags(vT, sT3, slp=1)
    stamp()
    for m in range(len(MS)):
        A(f"s_add_u32 m0, s{sA0}, s{40+m}")
        A(f"s_add_u32 s{sT}, s{sA1}, s{40+m}")
        for i in range(MS[m] // 4): A(f"buffer_load_dwordx4 v{vK}, s[12:15], s{sT} offen offset:{i*1024} sc1 lds")

def gen():
    k = NAME + "_kernel"
    A.raw(f".globl {k}\n.p2align 8\n.type {k},@function\n{k}:")
    A("s_cmp_ge_u32 s2, 256")
    A("s_cbranch_scc1 L_exit")
    stamp(real=True); stamp()
    if "hwmap0" in OPT:
        A("s_getreg_b32 s3, hwreg(HW_REG_HW_ID)")
        A("s_getreg_b32 s2, hwreg(HW_REG_XCC_ID)")
        A("s_and_b32 s2, s2, 7")
        A("s_bfe_u32 s4, s3, 0x30008")
        A("s_lshl_b32 s4, s4, 3")
        A("s_or_b32 s2, s2, s4")
        A("s_bfe_u32 s4, s3, 0x2000d")
        A("s_lshl_b32 s4, s4, 6")
        A("s_or_b32 s2, s2, s4")
    if "scr" in OPT:
        A("s_bfe_u32 s3, s2, 0x30003")
        A("s_xor_b32 s2, s2, s3")
    vXd, vWd, vXa, vWa = 7, 8, 9, 13
    A(f"v_lshrrev_b32 v{vT}, 6, v0")
    A(f"v_and_b32 v{vL}, 63, v0")
    A(f"v_readfirstlane_b32 s{sW}, v{vT}")
    A(f"v_lshlrev_b32 v{vT2}, 2, v{vL}")
    A(f"s_cmp_lg_u32 s{sW}, 3")
    A("s_cbranch_scc1 L_nozero")
    A(f"v_mov_b32 v{vT}, 0")
    A(f"v_add_u32 v{vT2}, {L_CNT}, v{vT2}")
    A(f"ds_write_b32 v{vT2}, v{vT}")
    A("s_waitcnt lgkmcnt(0)")
    A.label("L_nozero")
    A("s_load_dwordx16 s[44:59], s[0:1], 0")
    A("s_load_dwordx8 s[60:67], s[0:1], 64")
    A("s_memrealtime s[22:23]")
    A(f"s_and_b32 s{sHG}, s2, 1")
    A(f"s_lshl_b32 s{sHG}, s{sHG}, 2")
    if "map1" in OPT:
        A(f"s_bfe_u32 s{sHG}, s2, 0x10004")
        A(f"s_lshl_b32 s{sHG}, s{sHG}, 2")
        A(f"s_bfe_u32 s{sT}, s2, 0x10003")
        A(f"s_add_u32 s{sHG}, s{sHG}, s{sT}")
        A(f"s_lshr_b32 s{sT}, s2, 7")
        A(f"s_lshl_b32 s{sT}, s{sT}, 1")
        A(f"s_add_u32 s{sHG}, s{sHG}, s{sT}")
        A(f"s_and_b32 s{sRB}, s2, 7")
        A(f"s_lshl_b32 s{sRB}, s{sRB}, 2")
        A(f"s_bfe_u32 s{sT}, s2, 0x20005")
        A(f"s_add_u32 s{sRB}, s{sRB}, s{sT}")
    elif "oldmap" in OPT:
        A(f"s_bfe_u32 s{sT}, s2, 0x20003")
        A(f"s_add_u32 s{sHG}, s{sHG}, s{sT}")
        A(f"s_bfe_u32 s{sRB}, s2, 0x20001")
        A(f"s_lshl_b32 s{sRB}, s{sRB}, 3")
        A(f"s_lshr_b32 s{sT}, s2, 5")
        A(f"s_add_u32 s{sRB}, s{sRB}, s{sT}")
    else:
        A(f"s_bfe_u32 s{sT}, s2, 0x10003")
        A(f"s_add_u32 s{sHG}, s{sHG}, s{sT}")
        A(f"s_lshr_b32 s{sT}, s2, 7")
        A(f"s_lshl_b32 s{sT}, s{sT}, 1")
        A(f"s_add_u32 s{sHG}, s{sHG}, s{sT}")
        A(f"s_bfe_u32 s{sRB}, s2, 0x20001")
        A(f"s_lshl_b32 s{sRB}, s{sRB}, 3")
        A(f"s_bfe_u32 s{sT}, s2, 0x30004")
        A(f"s_add_u32 s{sRB}, s{sRB}, s{sT}")
    A(f"v_lshlrev_b32 v{vK}, 4, v{vL}")
    A("s_barrier")
    A(f"s_lshr_b32 s{sT}, s{sW}, 2")
    A(f"s_xor_b32 s{sT}, s{sT}, s{sHG}")
    A(f"s_and_b32 s{sT}, s{sT}, 1")
    A(f"s_xor_b32 s{sT}, s{sT}, 1")
    A(f"s_lshl_b32 s{sT}, s{sT}, 2")
    A(f"s_and_b32 s{sJ}, s{sW}, 3")
    A(f"s_add_u32 s{sT}, s{sT}, s{sJ}")
    A(f"s_lshl_b32 s{sT4}, s{sT}, 10")
    A(f"s_lshl_b32 s{sT}, s{sT}, 3")
    A(f"v_lshrrev_b32 v{vT}, 3, v{vL}")
    A(f"v_add_u32 v{vT}, s{sT}, v{vT}")
    A(f"v_lshrrev_b32 v{vT2}, 1, v{vT}")
    A(f"v_xor_b32 v{vT2}, v{vT2}, v{vL}")
    A(f"v_and_b32 v{vT2}, 7, v{vT2}")
    A(f"v_lshlrev_b32 v{vT2}, 4, v{vT2}")
    A(f"v_lshl_add_u32 v{vXd}, v{vT}, 10, v{vT2}")
    A(f"s_lshl_b32 s{sA0}, s{sRB}, 16")
    if ROT:
        A(f"s_and_b32 s37, s{sHG}, 2")
        A(f"s_add_u32 s37, s37, 4")
    else:
        A("s_mov_b32 s37, 0")
    if "bfirst" in OPT:
        A(f"s_cmp_lt_u32 s{sW}, 4")
        A("s_cbranch_scc1 L_ateam")
        A.raw("; @@A_BEGIN")
        A.label("L_ateam")
    else:
        A(f"s_cmp_ge_u32 s{sW}, 4")
        A("s_cbranch_scc1 L_bteam")

    sXR, sQR = 37, 54
    def dma_x_plain(kb):
        kb = [3, 0, 1, 2, 4, 5, 6, 7][kb] if "k3" in OPT else kb
        A(f"s_add_u32 m0, s{sT4}, {L_X + kb*8192 - kb*128}")
        A("s_nop 0")
        A(f"buffer_load_dwordx4 v{vXd}, s[4:7], s{sA0} offen offset:{kb*128} lds")
    def dma_x(kb):
        A(f"s_lshl_b32 s{sT2}, s{sXR}, 13")
        A(f"s_add_u32 m0, s{sT4}, s{sT2}")
        A(f"s_lshl_b32 s{sT2}, s{sXR}, 7")
        A(f"s_add_u32 s{sT2}, s{sT2}, s{sA0}")
        A(f"buffer_load_dwordx4 v{vXd}, s[4:7], s{sT2} offen lds")
        if kb < 7:
            A(f"s_add_u32 s{sXR}, s{sXR}, 1")
            A(f"s_and_b32 s{sXR}, s{sXR}, 7")

    def x_frag_addr(dst, s_off):
        A(f"v_and_b32 v{vT}, 31, v{vL}")
        A(f"v_lshrrev_b32 v{vT2}, 5, v{vL}")
        A(f"v_bfe_u32 v{vT3}, v{vL}, 1, 3")
        A(f"v_xor_b32 v{vT2}, v{vT2}, v{vT3}")
        A(f"v_lshl_add_u32 v{vT}, v{vT}, 7, s{s_off}")
        for q in range(4):
            A(f"v_xor_b32 v{vT3}, {2*q}, v{vT2}")
            A(f"v_lshl_add_u32 v{dst+q}, v{vT3}, 4, v{vT}")

    def tr_addr(dst, hmul, rowb, cgmul, s_off):
        A(f"v_lshrrev_b32 v{vT}, 5, v{vL}")
        A(f"v_bfe_u32 v{vT2}, v{vL}, 2, 2")
        A(f"v_mad_u32_u24 v{vT}, v{vT}, {hmul}, v{vT2}")
        A(f"v_and_b32 v{vT2}, 3, v{vL}")
        A(f"v_lshlrev_b32 v{vT2}, 3, v{vT2}")
        if cgmul:
            A(f"v_bfe_u32 v{vT3}, v{vL}, 4, 1")
            A(f"v_lshl_add_u32 v{vT2}, v{vT3}, {int(math.log2(cgmul))}, v{vT2}")
        A(f"v_lshl_add_u32 v{dst}, v{vT}, {int(math.log2(rowb))}, v{vT2}")
        A(f"v_add_u32 v{dst}, s{s_off}, v{dst}")

    def w128_dma_addr(dst, stride):
        A(f"v_lshrrev_b32 v{vT}, 3, v{vL}")
        if stride == 1024: A(f"v_lshlrev_b32 v{vT}, 10, v{vT}")
        else: A(f"v_mul_u32_u24 v{vT}, {stride}, v{vT}")
        A(f"v_lshrrev_b32 v{vT2}, 2, v{vL}")
        A(f"v_and_b32 v{vT2}, 4, v{vT2}")
        A(f"v_xor_b32 v{vT2}, v{vT2}, v{vL}")
        A(f"v_and_b32 v{vT2}, 7, v{vT2}")
        A(f"v_lshl_add_u32 v{dst}, v{vT2}, 4, v{vT}")

    def w128_tr_addr(dst, hmul, s_off, s_ct=None):
        A(f"v_lshrrev_b32 v{vT}, 5, v{vL}")
        A(f"v_bfe_u32 v{vT2}, v{vL}, 2, 2")
        A(f"v_mad_u32_u24 v{vT}, v{vT}, {hmul}, v{vT2}")
        A(f"v_and_b32 v{vT2}, 3, v{vL}")
        A(f"v_lshlrev_b32 v{vT2}, 3, v{vT2}")
        A(f"v_lshl_add_u32 v{vT}, v{vT}, 7, v{vT2}")
        A(f"v_bfe_u32 v{vT2}, v{vL}, 4, 1")
        A(f"v_lshl_add_u32 v{vT}, v{vT2}, 5, v{vT}")
        A(f"v_bfe_u32 v{vT2}, v{vL}, 3, 1")
        if s_ct is not None: A(f"v_xor_b32 v{vT2}, s{s_ct}, v{vT2}")
        A(f"v_lshl_add_u32 v{vT}, v{vT2}, 6, v{vT}")
        if s_off is None: A(f"v_mov_b32 v{dst}, v{vT}")
        else: A(f"v_add_u32 v{dst}, s{s_off}, v{vT}")

    def v_lane_addr():
        A(f"v_and_b32 v{vT}, 31, v{vL}")
        A(f"v_lshrrev_b32 v{vT2}, 5, v{vL}")
        A(f"v_lshlrev_b32 v{vT2}, 8, v{vT2}")
        A(f"v_lshl_add_u32 v{vV}, v{vT}, 4, v{vT2}")
        A(f"v_add_u32 v{vV}, 1024, v{vV}")
        A(f"v_mov_b32 v{vT2}, {OOB:#x}")
        A(f"v_cmp_gt_u32 s[38:39], 16, v{vT}")
        A(f"v_and_b32 v{vT}, 27, v{vT}")
        A(f"v_mov_b32 v{vT3}, 2048")
        A(f"v_cndmask_b32_e64 v{vV}, v{vT2}, v{vV}, s[38:39]")
        A(f"v_cmp_eq_u32 s[38:39], 16, v{vT}")
        A(f"v_add_u32 v{vV1}, 512, v{vV}")
        A("s_nop 0")
        A(f"v_cndmask_b32_e64 v{vV}, v{vV}, v{vT3}, s[38:39]")
        A(f"v_cndmask_b32_e64 v{vV1}, v{vV1}, v{vT3}, s[38:39]")
        if "zerov" in OPT.get("abl", ""):
            A(f"v_mov_b32 v{vV}, {OOB:#x}")
            A(f"v_mov_b32 v{vV1}, {OOB:#x}")

    def chain(s0, n, FR, ACC, kstride, second, swap):
        def rd(s):
            b = FR + 8 * (s % 4)
            A(f"ds_read_b64_tr_b16 v[{b}:{b+1}], v{vWa} offset:{s*kstride}")
            A(f"ds_read_b64_tr_b16 v[{b+2}:{b+3}], v{vWa} offset:{s*kstride+second}")
            A(f"ds_read_b128 v[{b+4}:{b+7}], v{vXa+(s&3)} offset:{(s>>2)*8192}")
        for s in range(s0, s0 + 3): rd(s)
        for s in range(s0, s0 + n):
            if s + 3 < s0 + n: rd(s + 3)
            A(f"s_waitcnt lgkmcnt({3 * (min(s + 3, s0 + n - 1) - s)})")
            b = FR + 8 * (s % 4)
            c = "0" if s == 0 else vr(ACC, 16)
            if swap: A(f"{MF} {vr(ACC,16)}, {vr(b+4,4)}, {vr(b,4)}, {c}")
            else:    A(f"{MF} {vr(ACC,16)}, {vr(b,4)}, {vr(b+4,4)}, {c}")

    R = int(OPT.get("ring", 4))
    D = int(OPT.get("depth", R - 1))
    G1 = int(OPT.get("g1", 2 * R - 1 if R == 4 else 7))
    CHK = G1 - D
    assert 0 < CHK <= R and D < R
    SL = [72, 84] + [176 + 12 * i for i in range(R - 2)]
    Q = 96; O = 112
    KT0 = 176 + 12 * (R - 2) if R == 4 else SL[R - 2]
    w128_dma_addr(vWd, 1024)
    A(f"s_lshl_b32 s{sA1}, s{sW}, 14")
    A(f"s_lshl_b32 s{sT}, s{sHG}, 7")
    A(f"s_add_u32 s{sA1}, s{sA1}, s{sT}")
    A(f"s_lshl_b32 s{sA2}, s{sW}, 11")
    A(f"s_add_u32 s{sA2}, s{sA2}, {L_WQ}")
    A("s_waitcnt lgkmcnt(0)")
    srd(4, P_X, 2048 * 1024)
    srd(8, P_WQ, 512 * 1024)
    if "cpf" in OPT:
        A(f"s_cmp_lg_u32 s{sW}, 3")
        A("s_cbranch_scc1 L_nocpf")
        A("s_getpc_b64 s[38:39]")
        A.label("L_pc")
        A(f"s_sub_u32 s38, s38, L_pc-{k}")
        A("s_subb_u32 s39, s39, 0")
        A(f"s_lshr_b32 s{sT}, s2, 3")
        A(f"v_lshlrev_b32 v{vT}, 5, v{vL}")
        A(f"v_add_u32 v{vT}, s{sT}, v{vT}")
        A(f"v_lshlrev_b32 v{vT}, 7, v{vT}")
        A(f"v_cmp_gt_u32 vcc, L_code_end-{k}, v{vT}")
        A(f"v_mov_b32 v{vT3}, s39")
        A(f"v_add_co_u32 v{vT}, s[40:41], s38, v{vT}")
        A("s_nop 1")
        A(f"v_addc_co_u32 v{vT2}, s[40:41], 0, v{vT3}, s[40:41]")
        A("s_mov_b64 exec, vcc")
        A(f"global_load_dword v254, v[{vT}:{vT2}], off")
        A("s_mov_b64 exec, -1")
        A.label("L_nocpf")
    if ROT and "map1" in OPT:
        A(f"s_and_b32 s{sQR}, s{sRB}, 3")
        A(f"s_lshl_b32 s{sQR}, s{sQR}, 1")
        A(f"s_bfe_u32 s{sT}, s{sRB}, 0x10002")
        A(f"s_add_u32 s{sQR}, s{sQR}, s{sT}")
    elif ROT: A(f"s_and_b32 s{sQR}, s{sRB}, 7")
    else: A(f"s_mov_b32 s{sQR}, 0")
    if "pf0" in OPT:
        A(f"s_lshr_b32 s{sT}, s2, 3")
        A(f"s_cmp_ge_u32 s{sW}, 2")
        A("s_cbranch_scc1 L_a_pfq")
        A(f"s_bfe_u32 s{sT2}, s2, 0x20001")
        A(f"s_lshl_b32 s{sT2}, s{sT2}, 19")
        A(f"s_lshl_b32 s{sT}, s{sT}, 14")
        A(f"s_add_u32 s{sT2}, s{sT2}, s{sT}")
        A(f"s_lshl_b32 s{sT}, s{sW}, 13")
        A(f"s_add_u32 s{sT2}, s{sT2}, s{sT}")
        A(f"v_lshlrev_b32 v{vT}, 7, v{vL}")
        A(f"buffer_load_dword v254, v{vT}, s[4:7], s{sT2} offen sc1")
        A("s_branch L_a_pfd")
        A.label("L_a_pfq")
        A(f"s_cmp_eq_u32 s{sW}, 3")
        A("s_cbranch_scc1 L_a_pfd")
        A(f"s_and_b32 s{sT2}, s2, 1")
        A(f"s_lshl_b32 s{sT2}, s{sT2}, 9")
        A(f"s_lshl_b32 s{sT}, s{sT}, 14")
        A(f"s_add_u32 s{sT2}, s{sT2}, s{sT}")
        A(f"v_lshrrev_b32 v{vT}, 2, v{vL}")
        A(f"v_lshlrev_b32 v{vT}, 10, v{vT}")
        A(f"v_and_b32 v{vT2}, 3, v{vL}")
        A(f"v_lshl_add_u32 v{vT}, v{vT2}, 7, v{vT}")
        A(f"buffer_load_dword v254, v{vT}, s[8:11], s{sT2} offen sc1")
        A.label("L_a_pfd")
    sRI = 55
    def a_setup():
        srd(12, P_WS, WS_SIZE)
        A(f"s_and_b32 s{sRI}, s{sW}, 1")
        A(f"s_lshl_b32 s{sT2}, s{sRI}, 12")
        x_frag_addr(vXa, sT2)
        A(f"s_lshr_b32 s{sJ}, s{sW}, 1")
        A(f"s_mov_b32 s{sT2}, {L_WQ}")
        w128_tr_addr(vWa, 8, sT2, sJ)
        v_lane_addr()
        for q in range(4):
            for r in range(0, 10, 2): A(f"v_pk_mov_b32 v[{O+16*q+r}:{O+16*q+r+1}], 0, 0")
    if OPT.get("alate", "1") == "1": a_setup()
    if OPT.get("ahold"):
        A(f"s_bitcmp1_b32 s{sHG}, 1")
        A("s_cbranch_scc1 L_a_go")
        team_wait(int(OPT["ahold"]), 4, 1)
        A.label("L_a_go")
    for kb in range(8):
        dma_x(kb)
        A(f"s_lshl_b32 s{sT2}, s{sQR}, 13")
        A(f"s_add_u32 m0, s{sA2}, s{sT2}")
        A(f"s_lshl_b32 s{sT2}, s{sQR}, 16")
        A(f"s_add_u32 s{sT2}, s{sT2}, s{sA1}")
        A(f"buffer_load_dwordx4 v{vWd}, s[8:11], s{sT2} offen lds")
        A(f"s_add_u32 m0, m0, 1024")
        A(f"s_add_u32 s{sT2}, s{sT2}, 8192")
        A(f"buffer_load_dwordx4 v{vWd}, s[8:11], s{sT2} offen lds")
        if kb < 7:
            A(f"s_add_u32 s{sQR}, s{sQR}, 1")
            A(f"s_and_b32 s{sQR}, s{sQR}, 7")
    stamp()
    if OPT.get("alate", "1") != "1": a_setup()
    A("s_waitcnt vmcnt(0)")
    team_add(5)
    team_wait(5, 8, 1)
    stamp()
    chain(0, 32, 200, S0, 2048, 512, False)
    stamp()
    A(f"s_mov_b32 s{sT2}, {f2u(CSCALE):#x}")
    A(f"s_lshl_b32 s{sT3}, s{sRI}, 12")
    A(f"s_lshl_b32 s{sT4}, s{sJ}, 11")
    A(f"s_add_u32 s{sT4}, s{sT4}, s{sT3}")
    A(f"s_add_u32 s{sT4}, s{sT4}, {L_QX}")
    A(f"s_add_u32 s{sT3}, s{sT3}, {L_QX}")
    A(f"v_add_u32 v{vT}, s{sT4}, v{vK}")
    A(f"v_add_u32 v{vT3}, s{sT3}, v{vK}")
    sKB, sKE = 37, 54
    A(f"s_mul_i32 s{sKB}, s{sJ}, {32*TB}")
    A(f"s_add_u32 s{sKE}, s{sKB}, {32*TB}")
    A(f"s_mul_i32 s{sA0}, s{sRB}, {TB}")
    A(f"s_add_u32 s{sKV}, s{sKB}, s{sA0}")
    for r in range(0, 4, 2): A(f"v_pk_mov_b32 v[{SL[R-1]+8+r}:{SL[R-1]+9+r}], 0, 0")
    assert D < R - 1 or R == 4
    A(f"v_mov_b32 v{vIDX}, 0xdddddddd")
    A("s_nop 0")
    for r in range(16): A(f"v_mul_f32 v{S0+r}, s{sT2}, v{S0+r}")
    for r in range(8): A(f"v_cvt_pk_bf16_f32 v{S1+r}, v{S0+2*r}, v{S0+2*r+1}")
    A(f"ds_write_b128 v{vT}, {vr(S1,4)}")
    A(f"ds_write_b128 v{vT}, {vr(S1+4,4)} offset:1024")
    A("s_waitcnt lgkmcnt(0)")
    team_add(6)
    stamp()
    team_wait(11, 1, 1)
    stamp()
    def kv_load(slot, part):
        b = SL[slot]
        m = "" if "plain" in OPT else "sc1"
        if part == 0: return f"buffer_load_dwordx4 {vr(b,4)}, v{vK}, s[12:15], s{sKV} offen {m}"
        if part == 1: return f"buffer_load_dwordx4 {vr(b+4,4)}, v{vV}, s[12:15], s{sKV} offen {m}"
        return f"buffer_load_dwordx4 {vr(b+8,4)}, v{vV1}, s[12:15], s{sKV} offen {m}"
    KADV = [f"s_add_u32 s{sKV}, s{sKV}, {TB}", f"s_cmp_eq_u32 s{sKV}, s{sKE}", f"s_cselect_b32 s{sKV}, s{sKB}, s{sKV}"]
    A(f"buffer_load_dwordx4 {vr(KT0,4)}, v{vK}, s[12:15], s{sA0} offen sc1")
    for t in range(D):
        for part in range(3): A(kv_load(t, part))
        for x in KADV: A(x)
    team_wait(6, 4, 1)
    A(f"s_lshl_b32 s{sT2}, s{sJ}, 11")
    A(f"v_add_u32 v8, s{sT2}, v{vT3}")
    A(f"v_xor_b32 v7, 2048, v8")
    for q in range(4): A(f"ds_read_b128 {vr(Q+4*q,4)}, v{7 + q//2} offset:{(q&1)*1024}")
    A(f"s_mul_i32 s{sT2}, s{sW}, 4608")
    A(f"s_add_u32 s{sT2}, s{sT2}, {L_COMB}")
    A(f"s_cmp_eq_u32 s{sW}, 3")
    A(f"s_cselect_b32 s{sT2}, {L_COMB3}, s{sT2}")
    A(f"s_xor_b32 s{sT3}, s{sW}, 2")
    A(f"s_mul_i32 s{sT3}, s{sT3}, 4608")
    A(f"s_add_u32 s{sT3}, s{sT3}, {L_COMB}")
    A(f"s_cmp_eq_u32 s{sW}, 1")
    A(f"s_cselect_b32 s{sT3}, {L_COMB3}, s{sT3}")
    A(f"v_lshlrev_b32 v14, 2, v{vL}")
    A(f"v_add_u32 v11, s{sT2}, v{vK}")
    A(f"v_add_u32 v12, s{sT2}, v14")
    A(f"v_add_u32 v13, s{sT3}, v{vK}")
    A(f"v_add_u32 v14, s{sT3}, v14")
    A(f"s_lshl_b32 s{sA2}, s{sRB}, 1")
    A(f"s_add_u32 s{sA2}, s{sA2}, s{sRI}")
    A(f"s_lshl_b32 s{sA2}, s{sA2}, 6")
    A(f"s_lshl_b32 s{sT4}, s{sHG}, 2")
    A(f"s_add_u32 s{sA2}, s{sA2}, s{sT4}")
    A(f"s_lshl_b32 s{sT4}, s{sJ}, 1")
    A(f"s_add_u32 s{sA2}, s{sA2}, s{sT4}")
    A(f"s_lshl_b32 s{sA2}, s{sA2}, 10")
    A(f"s_add_u32 s{sA2}, s{sA2}, {WS_O:#x}")
    A(f"v_mov_b32 v{vT3}, {L_CNT + 64}")
    A(f"ds_read_b32 v{vT3}, v{vT3}")
    A(f"s_mov_b32 s{sCnt}, {32 // R - 1}")
    A("s_mov_b64 vcc, -1")
    A("s_waitcnt lgkmcnt(0)")
    team_add(7)
    A(f"v_readfirstlane_b32 s{sNON}, v{vT3}")
    A(f"s_waitcnt vmcnt({3*D})")
    T0 = [S0, S1, KT0 + 4, KT0 + 20] if R == 4 else [S0, S1, O + 32, O + 48]
    for q in range(4): A(f"{MF} {vr(T0[q],16)}, {vr(KT0,4)}, {vr(Q+4*q,4)}, 0")
    A("s_nop 7")
    A("s_nop 0")
    lane_max_all([T0[q] + r for q in range(4) for r in range(4)], vT, vT2)
    A(f"v_sub_f32 v{NEG}, 0, v{vT}")
    A(f"v_sub_f32 v{NEG+1}, 0, v{vT}")
    for r in range(2, 16, 2): A(f"v_pk_mov_b32 v[{NEG+r}:{NEG+r+1}], v[{NEG}:{NEG+1}], v[{NEG}:{NEG+1}] op_sel:[0,1]")
    A(f"s_waitcnt vmcnt({3*(D-1)})")
    A("s_nop 0")
    A(f"{MF} {vr(S0,16)}, {vr(SL[0],4)}, {vr(Q,4)}, {vr(NEG,16)}")
    if R == 4:
        A("s_nop 7")
        A("s_nop 3")
    else:
        for q in (2, 3):
            for r in range(0, 10, 2): A(f"v_pk_mov_b32 v[{O+16*q+r}:{O+16*q+r+1}], 0, 0")
        A("s_nop 1")
    stamp()
    if PROF: A("s_memtime s[68:69]")
    A.raw(".p2align 6")
    A.label("L_aloop")
    if PROF:
        A("s_waitcnt lgkmcnt(0)")
        A(f"s_add_u32 m0, s{sCnt}, 1")
        A("s_nop 0")
        A(f"v_writelane_b32 v255, s68, m0")
        A("s_memtime s[68:69]")
    for kb in range(R):
        for q in range(4):
            Sc, Sn = (S0, S1) if q % 2 == 0 else (S1, S0)
            cur, prv, nxt = SL[kb], SL[(kb - 1) % R], SL[(kb + 1) % R]
            Kq = cur if q < 3 else nxt
            nq = (q + 1) % 4
            Vp = cur if q > 0 else prv
            Op = O + 16 * ((q - 1) % 4); Oc = O + 16 * q
            ex = {}
            if q < 3: ex["X2"] = kv_load((kb + D) % R, q)
            if q == 0 and kb == CHK:
                ex["X1"] = "s_cbranch_vccnz L_afirst\nL_afirst_ret:"
            if q == 2: ex["X4"] = KADV[0]
            if q == 3:
                ex["X1"] = f"s_waitcnt vmcnt({3*(D-1)})"
                ex["X2"] = KADV[1]
                ex["X4"] = KADV[2]
                if kb == R - 1: ex["X4"] += f"\ns_sub_u32 s{sCnt}, s{sCnt}, 1"
            if "noload" in OPT.get("abl", ""):
                for x in ("X0", "X1", "X2", "X3", "X4"): ex.pop(x, None)
            if "nosalu" in OPT.get("abl", ""):
                for x in ("X1", "X2"): ex.pop(x, None)
            tile_code(Sc, f"{MF} {vr(Sn,16)}, {vr(Kq,4)}, {vr(Q+4*nq,4)}, {'0' if 'c0' in OPT.get('abl', '') else vr(NEG,16)}",
                      pv(Op, Vp + 8, Sn + 8), pv(Op, Vp + 4, Sn) if "pvhead" in OPT else pv(Oc, cur + 4, Sc), ex)
    if CHK == R:
        A("s_cbranch_vccnz L_afirst")
    A("s_cbranch_scc0 L_aloop")
    A("s_nop 0")
    A(pv(O + 48, SL[R-1] + 8, S1 + 8))
    for i in range(2):
        A(f"ds_write_b128 v11, {vr(O+16*i,4)} offset:{i*2304}")
        A(f"ds_write_b128 v11, {vr(O+16*i+4,4)} offset:{i*2304+1024}")
        A(f"ds_write_b32 v12, v{O+16*i+8} offset:{i*2304+2048}")
    stamp()
    A(f"s_mov_b32 s{sKV}, 0")
    A(f"s_mov_b32 s{sCnt}, 64")
    A("s_waitcnt lgkmcnt(0)")
    A("s_barrier")
    for i in range(2):
        A(f"ds_read_b32 v{S0+16*i+8}, v14 offset:{i*2304+2048}")
        A(f"ds_read_b128 {vr(S0+16*i,4)}, v13 offset:{i*2304}")
        A(f"ds_read_b128 {vr(S0+16*i+4,4)}, v13 offset:{i*2304+1024}")
    OK_ = O + 32
    def fin(i):
        o = OK_ + 16 * i; t = O + 16 * i
        A(f"v_rcp_f32 v{t+8}, v{o+8}")
        A("s_nop 0")
        for r in range(8): A(f"v_mul_f32 v{t+r}, v{o+r}, v{t+8}")
        for r in range(4): A(f"v_cvt_pk_bf16_f32 v{P+4*i+r}, v{t+2*r}, v{t+2*r+1}")
        A(f"buffer_store_dwordx4 {vr(P+4*i,4)}, v{vK}, s[12:15], s{sA2} offen offset:{i*1024} sc1")
    for i in range(2):
        o = OK_ + 16 * i
        A(f"s_waitcnt lgkmcnt({3*(1-i)})")
        A(f"v_add_f32 v{o+8}, v{o+8}, v{S0+16*i+8}")
        for r in range(0, 8, 2): A(f"v_pk_add_f32 v[{o+r}:{o+r+1}], v[{o+r}:{o+r+1}], v[{S0+16*i+r}:{S0+16*i+r+1}]")
        fin(i)
    for i in range(2):
        range_check(OK_ + 16 * i, f"L_a_slow{i}")
        A.label(f"L_a_ok{i}")
    A("s_waitcnt vmcnt(0)")
    stamp()
    A(f"s_lshl_b32 s{sA2}, s{sRB}, 8")
    A(f"s_lshl_b32 s{sT}, s{sHG}, 5")
    A(f"s_add_u32 s{sA2}, s{sA2}, s{sT}")
    A(f"s_add_u32 s{sA2}, s{sA2}, {FL_OA:#x}")
    A("s_barrier")
    A(f"s_cmp_lg_u32 s{sW}, 0")
    A("s_cbranch_scc1 L_a_noflag")
    flag_store(sA2)
    A.label("L_a_noflag")
    tail_dma("A")
    for m in range(len(MS)):
        A(f"s_waitcnt vmcnt({sum(MS[m+1:]) // 4})")
        A("s_barrier")
    if PROF:
        A("s_lshl_b32 s68, s2, 2")
        A(f"s_add_u32 s68, s68, s{sW}")
        A("s_lshl_b32 s68, s68, 8")
        A(f"s_add_u32 s68, s68, {WS_PROF + 0x80000:#x}")
        A(f"v_lshlrev_b32 v248, 2, v{vL}")
        A("buffer_store_dword v255, v248, s[12:15], s68 offen")
    stamp_flush()
    A("s_endpgm")
    A.label("L_afirst")
    team_wait(9, 1, 1)
    A("s_mov_b64 vcc, 0")
    A("s_branch L_aloop" if CHK == R else "s_branch L_afirst_ret")
    for i in range(2):
        slow_path(f"L_a_slow{i}", f"L_a_re{i}", Q + 8 + 4 * i, OK_ + 16 * i, sKV, sCnt, TB, False, SL[0], SL[0] + 4, None)
        A.label(f"L_a_re{i}")
        fin(i)
        A(f"s_branch L_a_ok{i}")

    NST[0] = 2
    if "bfirst" in OPT: A.raw("; @@A_END")
    A.label("L_bteam")
    A(f"s_setprio {OPT.get('bprio', 2)}")
    A(f"s_lshl_b32 s{sA2}, s{sJ}, 10")
    A("s_mov_b32 s6, 0x200000")
    A("s_mov_b32 s7, 0x00020000")
    A(f"s_bitcmp0_b32 s{sHG}, 1")
    A("s_cselect_b32 s42, 16384, 0")
    A("s_mov_b32 s43, 0x00020000")
    A(f"s_or_b32 s{sT3}, s2, s{sJ}")
    A(f"s_cmp_lt_u32 s{sHG}, 4")
    A("s_waitcnt lgkmcnt(0)")
    A(f"s_cselect_b32 s40, s{P_WK}, s{P_WV}")
    A(f"s_cselect_b32 s41, s{P_WK+1}, s{P_WV+1}")
    A(f"s_mov_b32 s4, s{P_X}")
    A(f"s_and_b32 s5, s{P_X+1}, 0xffff")
    A("s_and_b32 s41, s41, 0xffff")
    if "k0st" in OPT: kstamp()
    if "tfirst" in OPT:
        A(f"s_bitcmp0_b32 s{sHG}, 1")
        A("s_cbranch_scc1 L_b_notf")
        A(f"s_cmp_lt_u32 s{sJ}, 2")
        A(f"s_cselect_b32 s8, s{P_WK}, s{P_WS}")
        A(f"s_cselect_b32 s9, s{P_WK+1}, s{P_WS+1}")
        A(f"s_cmp_eq_u32 s{sJ}, 1")
        A(f"s_cselect_b32 s8, s{P_WV}, s8")
        A(f"s_cselect_b32 s9, s{P_WV+1}, s9")
        A(f"s_cmp_eq_u32 s{sJ}, 2")
        A(f"s_cselect_b32 s8, s{P_DBG}, s8")
        A(f"s_cselect_b32 s9, s{P_DBG+1}, s9")
        A("s_and_b32 s9, s9, 0xffff")
        A("s_mov_b32 s10, 256")
        A("s_mov_b32 s11, 0x00020000")
        A(f"v_mov_b32 v{vT}, 128")
        A("s_mov_b64 exec, 1")
        A(f"buffer_load_dword v254, v{vT}, s[8:11], 0 offen sc1")
        A("s_mov_b64 exec, -1")
        A.label("L_b_notf")
    for kb in range(8):
        dma_x_plain(kb)
        if "k0st" in OPT and kb in (0, 1): kstamp()
        if kb % 2 == 0:
            A(f"s_add_u32 m0, s{sA2}, {L_WKV + kb*2048}")
            A(f"s_add_u32 s{sT}, s{sA2}, {kb*2048}")
            A(f"buffer_load_dwordx4 v{vK}, s[40:43], s{sT} offen lds")
    A(f"s_or_b32 s{sT2}, s22, 1")
    A("s_mov_b32 s3, s22")
    srd(20, P_DBG, 256)
    srd(12, P_WS, WS_SIZE)
    A(f"s_cmp_lg_u32 s{sT3}, 1")
    A("s_cbranch_scc1 L_b_nononce")
    A(f"s_cmp_lg_u32 s2, 0")
    A("s_cbranch_scc1 L_b_nononce")
    A(f"v_mov_b32 v{vT}, s{sT2}")
    A(f"v_mov_b32 v{vT2}, 0")
    A("s_mov_b64 exec, 1")
    A(f"buffer_store_dword v{vT}, v{vT2}, s[20:23], 0 offen sc1")
    A("s_mov_b64 exec, -1")
    A.label("L_b_nononce")
    if "notouch" not in OPT:
        A(f"s_cmp_lg_u32 s{sJ}, 3")
        A("s_cbranch_scc1 L_b_notouch")
        A(f"v_lshlrev_b32 v{vT}, 21, v{vL}")
        if "touchfl" in OPT:
            A(f"s_lshl_b32 s{sT2}, s2, 7")
            A(f"s_add_u32 s{sT2}, s{sT2}, {WS_FL - 2048:#x}")
            A(f"v_writelane_b32 v{vT}, s{sT2}, 5")
            if NREP > 1:
                A(f"s_add_u32 s{sT2}, s{sT2}, 0x10000")
                A(f"v_writelane_b32 v{vT}, s{sT2}, 6")
            A(f"s_mov_b64 exec, {0x7f if NREP > 1 else 0x3f}")
        else:
            A("s_mov_b64 exec, 0x1f")
        A(f"buffer_load_dword v254, v{vT}, s[12:15], 0 offen offset:2048 sc1")
        A("s_mov_b64 exec, -1")
        A.label("L_b_notouch")
    stamp()
    A(f"s_and_b32 s{sT4}, s{sHG}, 1")
    A(f"s_lshl_b32 s{sT2}, s{sT4}, 12")
    x_frag_addr(vXa, sT2)
    A(f"s_mov_b32 s{sT2}, {L_WKV}")
    tr_addr(vWa, 8, 32, 0, sT2)
    v_lane_addr()
    vN = 14
    A(f"v_mov_b32 v{vN+1}, 0")
    def nonce_load(): A(f"buffer_load_dword v{vN}, v{vN+1}, s[20:23], 0 offen sc1")
    def nonce_wait():
        l = A.uid("nw"); d = A.uid("nwd")
        A(f"s_mov_b32 s{sSP}, {SPIN}")
        A.label(l)
        A("s_waitcnt vmcnt(0)")
        A(f"v_readfirstlane_b32 s{sNON}, v{vN}")
        r = A.uid("nwr")
        A("s_nop 1")
        A(f"s_cmp_eq_u32 s{sNON}, 0")
        A(f"s_cbranch_scc1 {r}")
        A(f"s_sub_u32 s{sT}, s3, s{sNON}")
        A(f"s_cmp_lt_i32 s{sT}, 1000")
        A(f"s_cbranch_scc1 {d}")
        A(f"s_cmp_lt_u32 s{sSP}, {SPIN - 64}")
        A(f"s_cbranch_scc1 {d}")
        A.label(r)
        A(f"s_sub_u32 s{sSP}, s{sSP}, 1")
        timeout_branch(d)
        nonce_load()
        A(f"s_branch {l}")
        A.label(d)
    ACC = 16
    A(f"s_lshl_b32 s{sRT0}, s{sRB}, 1")
    A(f"s_add_u32 s{sA0}, s{sRT0}, s{sT4}")
    A(f"s_mul_i32 s{sA0}, s{sA0}, {TB}")
    A(f"s_lshl_b32 s{sA1}, s{sRB}, 2")
    A(f"s_add_u32 s{sA1}, s{sA1}, s{sT4}")
    A(f"s_lshr_b32 s{sT2}, s{sHG}, 2")
    A(f"s_lshl_b32 s{sT2}, s{sT2}, 1")
    A(f"s_add_u32 s{sA1}, s{sA1}, s{sT2}")
    A(f"s_lshl_b32 s{sA1}, s{sA1}, {3 if 'dense' in OPT else 5}")
    A(f"s_add_u32 s{sA1}, s{sA1}, {FL_KVA:#x}")
    A("s_waitcnt vmcnt(6)")
    kstamp()
    ksv = NST[0]
    A(f"s_cmp_lg_u32 s{sJ}, 0")
    A("s_cbranch_scc1 L_b_idle")
    A(f"s_bitcmp1_b32 s{sHG}, 1")
    A("s_cbranch_scc1 L_b_idle")
    def kv_unit(swap):
        NST[0] = ksv
        team_wait(4, 3, KS)
        kstamp()
        chain(0, 16, 64, ACC, 512, 128, swap)
        kstamp()
        A("s_waitcnt vmcnt(0)")
        kstamp()
        nonce_load()
        if swap: A(f"buffer_store_dwordx4 {vr(100,4)}, v8, s[12:15], s{sA0} offen offset:2048 sc1")
        team_wait(8, 3, KS)
        team_add(5)
        kstamp()
        chain(16, 16, 64, ACC, 512, 128, swap)
        kstamp()
    A(f"s_cmp_ge_u32 s{sHG}, 4")
    A("s_cbranch_scc1 L_b_vunit")
    kv_unit(False)
    A("s_nop 7")
    A("s_nop 3")
    for r in range(4): A(f"v_cvt_pk_bf16_f32 v{64+r}, v{ACC+2*r}, v{ACC+2*r+1}")
    A(f"buffer_store_dwordx4 {vr(64,4)}, v{vK}, s[12:15], s{sA0} offen sc1")
    A("s_branch L_b_kvpub")
    A.label("L_b_vunit")
    A(f"v_lshrrev_b32 v{vT2}, 5, v{vL}")
    A(f"v_lshlrev_b32 v7, 8, v{vT2}")
    A(f"v_and_b32 v{vT2}, 15, v{vL}")
    A(f"v_lshl_add_u32 v7, v{vT2}, 4, v7")
    A(f"v_bfe_u32 v{vT2}, v{vL}, 4, 1")
    A(f"v_lshl_add_u32 v7, v{vT2}, 30, v7")
    A(f"v_cmp_gt_u32 s[38:39], 8, v{vL}")
    A(f"v_mov_b32 v{vT2}, {OOB:#x}")
    for r in range(4): A(f"v_mov_b32 v{100+r}, {ONES:#x}")
    A(f"v_cndmask_b32_e64 v8, v{vT2}, v{vK}, s[38:39]")
    kv_unit(True)
    A("s_nop 7")
    A("s_nop 3")
    for s in range(2):
        for r in range(4): A(f"v_cvt_pk_bf16_f32 v{64+4*s+r}, v{ACC+8*s+2*r}, v{ACC+8*s+2*r+1}")
        A("s_nop 1")
        A(f"v_permlane32_swap_b32 v{64+4*s}, v{66+4*s}")
        A(f"v_permlane32_swap_b32 v{65+4*s}, v{67+4*s}")
        A(f"buffer_store_dwordx4 {vr(64+4*s,4)}, v7, s[12:15], s{sA0} offen offset:{1024+s*512} sc1")
    A.label("L_b_kvpub")
    nonce_wait()
    kstamp()
    flag_store(sA1, NREP)
    A("s_branch L_b_pdone")
    A.label("L_b_idle")
    team_add(4)
    if KVP:
        NST[0] = ksv
        for _ in range(6): kstamp()
    A(f"s_cmp_eq_u32 s{sJ}, 3")
    A("s_cbranch_scc1 L_b_idle1")
    A("s_waitcnt vmcnt(0)")
    A.label("L_b_idle1")
    A("s_waitcnt vmcnt(1)")
    nonce_load()
    team_add(5)
    team_add(8)
    nonce_wait()
    A(f"v_mov_b32 v{vT}, {L_CNT + 64}")
    A(f"ds_write_b32 v{vT}, v{vN}")
    A.label("L_b_pdone")
    stamp()
    if KVP: STOFF[0] = True
    srd(8, P_WQKV, 512 * 3072)
    srd(40, P_GATE, 1024)
    A(f"s_mov_b32 m0, {L_GATE}")
    A(f"s_lshl_b32 s{sHEAD}, s{sHG}, 2")
    A(f"buffer_load_dwordx4 v{vK}, s[40:43], 0 offen lds")
    A(f"s_add_u32 s{sHEAD}, s{sHEAD}, s{sJ}")
    vD1, vX0, vW1, vW2, vG = 7, 9, 13, 8, 15
    w128_dma_addr(vD1, 3072)
    A(f"s_lshl_b32 s{sA0}, s{sJ}, 10")
    A(f"s_lshl_b32 s{sT2}, s{sHG}, 7")
    A(f"s_add_u32 s{sA0}, s{sA0}, s{sT2}")
    A(f"s_lshl_b32 s{sA1}, s{sJ}, 14")
    A(f"s_add_u32 s{sA1}, s{sA1}, {L_WQ}")
    sP3W = 37
    A(f"s_add_u32 s{sP3W}, s{sA0}, {512*3072}")
    if ROT:
        A(f"s_and_b32 s{sT3}, s{sRB}, 3")
        A(f"s_cmp_eq_u32 s{sJ}, 3")
        A(f"s_cselect_b32 s{sT3}, 0, s{sT3}")
        A(f"s_lshl_b32 s{sT2}, s{sT3}, 14")
        A(f"s_mul_i32 s{sT3}, s{sT3}, {128*3072}")
        A(f"s_add_u32 s{sA0}, s{sA0}, s{sT3}")
    else:
        A(f"s_mov_b32 s{sT2}, 0")
    x_frag_addr(vX0, sT2)
    w128_tr_addr(vW1, 8, sA1)
    A(f"v_xor_b32 v{vW2}, 64, v{vW1}")
    AC, FR = 16, 80
    for r in range(0, 64, 2): A(f"v_pk_mov_b32 v[{AC+r}:{AC+r+1}], 0, 0")
    A(f"s_mov_b32 s{sCnt}, 4")
    A(f"s_cmp_eq_u32 s{sJ}, 3")
    A("s_cbranch_scc1 L_b_gwave")
    if "p3early" in OPT: team_wait(6, 4, 1)
    else: team_wait(7, 4, 2)
    stamp()
    if "nob" in OPT: A("s_branch L_b_skip")
    if "pf" in OPT:
        A(f"s_lshr_b32 s{sT}, s2, 3")
        A(f"s_and_b32 s{sT3}, s2, 1")
        A(f"s_lshl_b32 s{sT3}, s{sT3}, 9")
        A(f"s_mul_i32 s{sT2}, s{sT}, {16*3072}")
        A(f"s_add_u32 s{sT2}, s{sT2}, s{sT3}")
        A(f"s_lshl_b32 s{sT4}, s{sJ}, 10")
        A(f"s_add_u32 s{sT2}, s{sT2}, s{sT4}")
        A(f"v_lshrrev_b32 v{vT}, 2, v{vL}")
        A(f"v_and_b32 v{vT2}, 3, v{vL}")
        A(f"v_lshlrev_b32 v{vT2}, 7, v{vT2}")
        A(f"v_lshl_add_u32 v{vT3}, v{vT}, 10, v{vT2}")
        A(f"v_mul_u32_u24 v{vT}, 3072, v{vT}")
        A(f"v_add_u32 v{vT}, v{vT}, v{vT2}")
        A(f"buffer_load_dword v254, v{vT}, s[8:11], s{sT2} offen sc1")
        A(f"s_cmp_eq_u32 s{sJ}, 2")
        A("s_cbranch_scc1 L_b_nopf")
        A(f"s_cmp_eq_u32 s{sJ}, 0")
        A(f"s_cselect_b32 s40, s{P_BWO}, s{P_AWO}")
        A(f"s_cselect_b32 s41, s{P_BWO+1}, s{P_AWO+1}")
        A("s_and_b32 s41, s41, 0xffff")
        A(f"s_mov_b32 s42, {512*1024:#x}")
        A(f"s_lshl_b32 s{sT2}, s{sT}, 14")
        A(f"s_add_u32 s{sT2}, s{sT2}, s{sT3}")
        A(f"buffer_load_dword v254, v{vT3}, s[40:43], s{sT2} offen sc1")
        A.label("L_b_nopf")
    def p3_dma(slot):
        A(f"s_add_u32 m0, s{sA1}, {slot*2048}")
        A(f"s_add_u32 s{sT2}, s{sA0}, {8*3072}")
        A(f"buffer_load_dwordx4 v{vD1}, s[8:11], s{sA0} offen lds")
        A(f"s_add_u32 m0, s{sA1}, {slot*2048+1024}")
        A(f"s_add_u32 s{sA0}, s{sA0}, {16*3072}")
        A(f"buffer_load_dwordx4 v{vD1}, s[8:11], s{sT2} offen lds")
    def p3_wrap():
        A(f"s_cmp_ge_u32 s{sA0}, s{sP3W}")
        A(f"s_cselect_b32 s{sT2}, {512*3072}, 0")
        A(f"s_sub_u32 s{sA0}, s{sA0}, s{sT2}")
    def p3_rd(i):
        if "nop3rd" in OPT.get("abl", ""): return
        b = FR + 16 * (i & 1); sl = (i % 8) * 2048
        if i == 8:
            for q in range(4):
                A(f"v_add_u32 v{vX0+q}, 16384, v{vX0+q}")
                A(f"v_and_b32 v{vX0+q}, 0xffff, v{vX0+q}")
        A(f"ds_read_b64_tr_b16 v[{b}:{b+1}], v{vW1} offset:{sl}")
        A(f"ds_read_b64_tr_b16 v[{b+2}:{b+3}], v{vW1} offset:{sl+512}")
        A(f"ds_read_b128 v[{b+8}:{b+11}], v{vX0+(i&3)} offset:{((i%8)>>2)*8192}")
        A(f"ds_read_b128 v[{b+12}:{b+15}], v{vX0+(i&3)} offset:{((i%8)>>2)*8192+4096}")
        A(f"ds_read_b64_tr_b16 v[{b+4}:{b+5}], v{vW2} offset:{sl}")
        A(f"ds_read_b64_tr_b16 v[{b+6}:{b+7}], v{vW2} offset:{sl+512}")
    LA = int(OPT.get("p3d", 8))
    for s in range(LA): p3_dma(s)
    if OPT.get("il") != "2":
        A(f"s_waitcnt vmcnt({2*LA-2})")
        p3_rd(0)
    def p3_loop_il(name, swap):
        A.label(name)
        for i in range(8):
            b = FR + 16 * (i & 1)
            mark = len(A.lines); p3_rd(i + 1); rd = A.lines[mark:]; del A.lines[mark:]
            pre = [l for l in rd if "ds_read" not in l]; rd = [l for l in rd if "ds_read" in l]
            mf = []
            for ct in range(2):
                for ri in range(2):
                    a = AC + 16 * (2 * ct + ri); wv, xv = vr(b + 4 * ct, 4), vr(b + 8 + 4 * ri, 4)
                    mf.append(f"{MF} {vr(a,16)}, {xv if swap else wv}, {wv if swap else xv}, {vr(a,16)}")
            A("s_waitcnt lgkmcnt(0)")
            A(mf[0])
            if i == (8 - LA) % 8:
                p3_wrap()
                A(f"s_cmp_eq_u32 s{sCnt}, 1")
                A(f"s_cselect_b32 s{sA0}, {OOB:#x}, s{sA0}")
            p3_dma((i + LA) % 8)
            A(mf[1])
            for l in pre: A(l)
            A(f"s_waitcnt vmcnt({2*LA-2})")
            for l in rd[:3]: A(l)
            if PACE: A(f"s_nop {PACE-1}")
            A(mf[2])
            for l in rd[3:]: A(l)
            if PACE: A(f"s_nop {PACE-1}")
            A(mf[3])
        A(f"s_sub_u32 s{sCnt}, s{sCnt}, 1")
        A(f"s_cmp_lg_u32 s{sCnt}, 0")
        A(f"s_cbranch_scc1 {name}")
    def p3_loop_jit(name, swap):
        A.label(name)
        b = FR
        def mf(ct, ri):
            a = AC + 16 * (2 * ct + ri); wv, xv = vr(b + 4 * ct, 4), vr(b + 8 + 4 * ri, 4)
            if "nop3mf" not in OPT.get("abl", ""): A(f"{MF} {vr(a,16)}, {xv if swap else wv}, {wv if swap else xv}, {vr(a,16)}")
        for i in range(8):
            sl = i * 2048; xo = (i >> 2) * 8192
            A(f"s_waitcnt vmcnt({2*LA-2})")
            A(f"ds_read_b64_tr_b16 v[{b}:{b+1}], v{vW1} offset:{sl}")
            A(f"ds_read_b64_tr_b16 v[{b+2}:{b+3}], v{vW1} offset:{sl+512}")
            A(f"ds_read_b128 v[{b+8}:{b+11}], v{vX0+(i&3)} offset:{xo}")
            A("s_waitcnt lgkmcnt(0)")
            mf(0, 0)
            A(f"ds_read_b128 v[{b+12}:{b+15}], v{vX0+(i&3)} offset:{xo+4096}")
            A("s_waitcnt lgkmcnt(0)")
            mf(0, 1)
            A(f"ds_read_b64_tr_b16 v[{b+4}:{b+5}], v{vW2} offset:{sl}")
            A(f"ds_read_b64_tr_b16 v[{b+6}:{b+7}], v{vW2} offset:{sl+512}")
            A("s_waitcnt lgkmcnt(0)")
            mf(1, 1)
            if i == (8 - LA) % 8:
                p3_wrap()
                A(f"s_cmp_eq_u32 s{sCnt}, 1")
                A(f"s_cselect_b32 s{sA0}, {OOB:#x}, s{sA0}")
            p3_dma((i + LA) % 8)
            mf(1, 0)
        for q in range(4):
            A(f"v_add_u32 v{vX0+q}, 16384, v{vX0+q}")
            A(f"v_and_b32 v{vX0+q}, 0xffff, v{vX0+q}")
        A(f"s_sub_u32 s{sCnt}, s{sCnt}, 1")
        A(f"s_cmp_lg_u32 s{sCnt}, 0")
        A(f"s_cbranch_scc1 {name}")
    def p3_loop(name, swap):
        if OPT.get("il") == "2": return p3_loop_jit(name, swap)
        if OPT.get("il") == "1": return p3_loop_il(name, swap)
        A.label(name)
        for i in range(8):
            A(f"s_waitcnt vmcnt({2*LA-4})")
            p3_rd(i + 1)
            if i == (8 - LA) % 8:
                p3_wrap()
                A(f"s_cmp_eq_u32 s{sCnt}, 1")
                A(f"s_cselect_b32 s{sA0}, {OOB:#x}, s{sA0}")
            A("s_waitcnt lgkmcnt(6)")
            b = FR + 16 * (i & 1)
            n = 0
            for ct in range(2):
                for ri in range(2):
                    a = AC + 16 * (2 * ct + ri); wv, xv = vr(b + 4 * ct, 4), vr(b + 8 + 4 * ri, 4)
                    if "nop3mf" not in OPT.get("abl", ""): A(f"{MF} {vr(a,16)}, {xv if swap else wv}, {wv if swap else xv}, {vr(a,16)}")
                    if n == 0: p3_dma((i + LA) % 8)
                    elif PACE: A(f"s_nop {PACE-1}")
                    n += 1
        A(f"s_sub_u32 s{sCnt}, s{sCnt}, 1")
        A(f"s_cmp_lg_u32 s{sCnt}, 0")
        A(f"s_cbranch_scc1 {name}")
    PACE = int(OPT.get("pace", 0))
    A(f"s_cmp_eq_u32 s{sJ}, 2")
    A("s_cbranch_scc1 L_p3v")
    p3_loop("L_p3qk", False)
    svst = NST[0]
    stamp()
    A(f"s_lshl_b32 s{sKV}, s{sHG}, 8")
    A(f"s_add_u32 s{sKV}, s{sKV}, s{sRT0}")
    A(f"s_mul_i32 s{sKV}, s{sKV}, {TB}")
    A(f"s_add_u32 s{sKV}, s{sKV}, {WS_KVB:#x}")
    A(f"s_mov_b32 s{sT2}, {f2u(CSCALE):#x}")
    A(f"v_add_u32 v{vT3}, {L_QX}, v{vK}")
    A("s_waitcnt lgkmcnt(0)")
    A(f"s_cmp_eq_u32 s{sJ}, 1")
    A("s_cbranch_scc1 L_p3k")
    team_wait(7, 4, 2)
    for ct in range(2):
        for ri in range(2):
            for hh in range(2):
                a = AC + 16 * (2 * ct + ri) + 8 * hh; p = FR + 4 * ((2 * ri + hh) & 3)
                for r in range(8): A(f"v_mul_f32 v{a+r}, s{sT2}, v{a+r}")
                for r in range(4): A(f"v_cvt_pk_bf16_f32 v{p+r}, v{a+2*r}, v{a+2*r+1}")
                A(f"ds_write_b128 v{vT3}, {vr(p,4)} offset:{(4*ri + 2*ct + hh)*1024}")
        if ct == 0: A("s_waitcnt lgkmcnt(0)")
    A("s_waitcnt vmcnt(0) lgkmcnt(0)")
    A("s_branch L_p3done")
    A.label("L_p3k")
    for ct in range(2):
        for hh in range(2):
            for ri in range(2):
                a = AC + 16 * (2 * ct + ri) + 8 * hh; p = FR + 4 * (4 * ct + 2 * hh + ri)
                for r in range(4): A(f"v_cvt_pk_bf16_f32 v{p+r}, v{a+2*r}, v{a+2*r+1}")
                A(f"buffer_store_dwordx4 {vr(p,4)}, v{vK}, s[12:15], s{sKV} offen offset:{ri*TB} sc1")
            A(f"s_add_u32 s{sKV}, s{sKV}, {64*TB}")
    A("s_branch L_p3pub")
    A.label("L_p3v")
    p3_loop("L_p3vl", True)
    NST[0] = svst
    stamp()
    A(f"s_lshl_b32 s{sKV}, s{sHG}, 8")
    A(f"s_add_u32 s{sKV}, s{sKV}, s{sRT0}")
    A(f"s_mul_i32 s{sKV}, s{sKV}, {TB}")
    A(f"s_add_u32 s{sKV}, s{sKV}, {WS_KVB:#x}")
    A(f"s_mov_b32 s{sT3}, {64*TB}")
    A(f"v_lshrrev_b32 v{vT}, 4, v{vL}")
    A(f"v_mul_lo_u32 v{vT}, v{vT}, s{sT3}")
    A(f"v_bfe_u32 v{vT2}, v{vL}, 3, 1")
    A(f"v_mul_u32_u24 v{vT2}, {TB}, v{vT2}")
    A(f"v_add_u32 v{vT}, v{vT}, v{vT2}")
    A(f"v_and_b32 v{vT2}, 7, v{vL}")
    A(f"v_lshl_add_u32 v{vT3}, v{vT2}, 4, v{vT}")
    for r in range(4): A(f"v_mov_b32 v{120+r}, {ONES:#x}")
    A(f"v_bfe_u32 v{vT}, v{vL}, 4, 1")
    A(f"v_mul_lo_u32 v{vT}, v{vT}, s{sT3}")
    A(f"v_lshrrev_b32 v{vT2}, 5, v{vL}")
    A(f"v_lshl_add_u32 v{vT}, v{vT2}, 8, v{vT}")
    A(f"v_and_b32 v{vT2}, 15, v{vL}")
    A(f"v_lshl_add_u32 v{vT}, v{vT2}, 4, v{vT}")
    A("s_waitcnt lgkmcnt(0)")
    A(f"buffer_store_dwordx4 {vr(120,4)}, v{vT3}, s[12:15], s{sKV} offen offset:2048 sc1")
    for ct in range(2):
        for ri in range(2):
            for s in range(2):
                a = AC + 16 * (2 * ct + ri) + 8 * s; p = FR + 4 * (4 * ct + 2 * ri + s)
                for r in range(4): A(f"v_cvt_pk_bf16_f32 v{p+r}, v{a+2*r}, v{a+2*r+1}")
                A("s_nop 1")
                A(f"v_permlane32_swap_b32 v{p}, v{p+2}")
                A(f"v_permlane32_swap_b32 v{p+1}, v{p+3}")
                A(f"buffer_store_dwordx4 {vr(p,4)}, v{vT}, s[12:15], s{sKV} offen offset:{1024+ri*TB+s*512} sc1")
        if ct == 0: A(f"s_add_u32 s{sKV}, s{sKV}, {128*TB}")
    A.label("L_p3pub")
    A("s_waitcnt vmcnt(0)")
    team_add(0, "L_p3done", 2)
    A(f"s_lshl_b32 s{sT3}, s{sHG}, 5")
    A(f"s_add_u32 s{sT3}, s{sT3}, s{sRB}")
    A(f"s_lshl_b32 s{sT3}, s{sT3}, 5")
    A(f"s_add_u32 s{sT3}, s{sT3}, {FL_KVB:#x}")
    flag_store(sT3)
    A("s_branch L_p3done")
    A.label("L_b_gwave")
    NST[0] = svst - 1
    if "touchw" in OPT:
        A(f"v_lshlrev_b32 v{vT}, 16, v{vL}")
        A(f"buffer_load_dword v254, v{vT}, s[8:11], 0 offen sc1")
        srd(40, P_BWO, 512 * 1024)
        A(f"buffer_load_dword v254, v{vT}, s[40:43], 0 offen sc1")
        srd(40, P_AWO, 512 * 1024)
        A(f"buffer_load_dword v254, v{vT}, s[40:43], 0 offen sc1")
    A(f"v_bfe_u32 v{vT3}, v{vL}, 1, 4")
    A(f"v_min_u32 v{vT3}, {G1-1}, v{vT3}")
    A(f"v_add_u32 v{vT3}, s{sRB}, v{vT3}")
    A(f"v_and_b32 v{vT3}, 31, v{vT3}")
    A(f"v_and_b32 v{vT}, 32, v{vL}")
    A(f"v_add_u32 v{vT3}, v{vT3}, v{vT}")
    A(f"v_and_b32 v{vT}, 1, v{vT3}")
    A(f"v_lshrrev_b32 v{vT3}, 1, v{vT3}")
    A(f"v_lshl_add_u32 v{vT3}, v{vT3}, 2, v{vT}")
    A(f"v_and_b32 v{vT}, 1, v{vL}")
    A(f"v_lshl_add_u32 v{vT3}, v{vT}, 1, v{vT3}")
    A(f"v_lshlrev_b32 v{vT3}, 5, v{vT3}")
    GE = int(OPT.get("ge", 0))
    A(f"v_lshrrev_b32 v{vW1}, 5, v{vL}")
    A(f"v_lshlrev_b32 v{vW1}, 4, v{vW1}")
    A(f"v_add_u32 v{vW1}, {L_GATE}, v{vW1}")
    def gate_loop(name, n):
        A(f"s_mov_b32 s{sCnt}, {n}")
        A.label(name)
        for i in range(4):
            A(f"ds_read_b128 {vr(FR,4)}, v{vW1} offset:{i*32}")
            A(f"ds_read_b128 {vr(FR+4,4)}, v{vX0+i}")
            A("s_waitcnt lgkmcnt(0)")
            A(f"{MF} {vr(AC,16)}, {vr(FR,4)}, {vr(FR+4,4)}, {vr(AC,16)}")
            A(f"ds_read_b128 {vr(FR+8,4)}, v{vX0+i} offset:4096")
            A(f"v_add_u32 v{vX0+i}, 8192, v{vX0+i}")
            A("s_waitcnt lgkmcnt(0)")
            A(f"{MF} {vr(AC+16,16)}, {vr(FR,4)}, {vr(FR+8,4)}, {vr(AC+16,16)}")
        A(f"v_add_u32 v{vW1}, 128, v{vW1}")
        A(f"s_sub_u32 s{sCnt}, s{sCnt}, 1")
        A(f"s_cmp_lg_u32 s{sCnt}, 0")
        A(f"s_cbranch_scc1 {name}")
    if GE:
        A("s_waitcnt vmcnt(0)")
        team_wait(5, 8, 1)
        gate_loop("L_gloop0", GE)
    elif OPT.get("pstart", "5") == "5": team_wait(5, 8, 2)
    elif OPT.get("pstart") == "6": team_wait(6, 4, 1)
    if NREP > 1:
        A(f"s_and_b32 s{sT3}, s{sHG}, {NREP-1}")
        A(f"s_lshl_b32 s{sT3}, s{sT3}, 12")
        A(f"s_add_u32 s{sT3}, s{sT3}, {FL_KVA:#x}")
    else:
        A(f"s_mov_b32 s{sT3}, {FL_KVA:#x}")
    if KVP:
        NST[0] = 5
        kstamp()
    poll_flags(vT3, sT3, slp=int(OPT.get("pslp", 1)))
    if KVP:
        kstamp()
        A("s_waitcnt lgkmcnt(0)")
        A(f"s_sub_u32 s{70+2*NST[0]}, {SPIN}, s{sSP}")
        A(f"s_add_u32 s{70+2*NST[0]}, s{70+2*NST[0]}, s72")
        NST[0] = svst
    A("s_waitcnt lgkmcnt(0)")
    team_add(11)
    if int(OPT.get('asl', 16)): A(f"s_sleep {OPT.get('asl', 16)}")
    A(f"v_lshlrev_b32 v{vT}, 5, v{vL}")
    poll_flags(vT, sT3, n2=2048, slp=4)
    team_add(9)
    if "nob" in OPT: A("s_branch L_b_skip")
    stamp()
    gate_loop("L_gloop", 8 - GE)
    stamp()
    A("s_mov_b32 s38, 0")
    A("s_mov_b32 s39, -1")
    A("s_nop 5")
    A(f"v_cndmask_b32_e64 v{vG}, v{AC}, v{AC+16}, s[38:39]")
    A(f"v_mul_f32 v{vG}, {f2u(-math.log2(math.e)):#x}, v{vG}")
    A(f"v_exp_f32 v{vG}, v{vG}")
    A(f"v_lshlrev_b32 v{vT}, 2, v{vL}")
    A(f"v_add_f32 v{vG}, 1.0, v{vG}")
    A(f"v_rcp_f32 v{vG}, v{vG}")
    A(f"v_add_u32 v{vT}, {L_G}, v{vT}")
    A(f"ds_write_b32 v{vT}, v{vG}")
    A("s_waitcnt lgkmcnt(0)")
    A.label("L_p3done")
    team_add(1)
    QB = 96; OB = 104; KV = 136
    A(f"s_lshl_b32 s{sKV}, s{sHEAD}, 6")
    A(f"s_add_u32 s{sKV}, s{sKV}, s{sRT0}")
    A(f"s_mul_i32 s{sKV}, s{sKV}, {TB}")
    A(f"s_add_u32 s{sKV}, s{sKV}, {WS_KVB:#x}")
    sWL, sWG, sWN = 37, 54, 55
    srd(8, P_BWO, 512 * 1024)
    srd(20, P_AWO, 512 * 1024)
    vWd2 = 11
    w128_dma_addr(vWd2, 1024)
    A(f"s_lshl_b32 s{sWL}, s{sJ}, 14")
    A(f"s_lshl_b32 s{sWG}, s{sJ}, 17")
    A(f"s_lshl_b32 s{sT}, s{sHG}, 7")
    A(f"s_add_u32 s{sWG}, s{sWG}, s{sT}")
    A(f"s_mov_b32 s{sWN}, 0")
    sWI, sWT = 56, 57
    if ROT:
        A(f"s_and_b32 s{sWI}, s{sRB}, {3 if 'map1' in OPT else 7}")
        A(f"s_lshl_b32 s{sWI}, s{sWI}, {2 if 'map1' in OPT else 1}")
    else:
        A(f"s_mov_b32 s{sWI}, 0")
    def w_loop(name, srd_, lds):
        A(f"s_mov_b32 s{sWN}, 16")
        A.label(name)
        A(f"s_lshl_b32 s{sWT}, s{sWI}, 10")
        A(f"s_add_u32 s{sWT}, s{sWT}, s{sWL}")
        A(f"s_add_u32 m0, s{sWT}, {lds}")
        A(f"s_lshl_b32 s{sWT}, s{sWI}, 13")
        A(f"s_add_u32 s{sWT}, s{sWT}, s{sWG}")
        A(f"buffer_load_dwordx4 v{vWd2}, s[{srd_}:{srd_+3}], s{sWT} offen lds")
        A(f"s_add_u32 s{sWI}, s{sWI}, 1")
        A(f"s_and_b32 s{sWI}, s{sWI}, 15")
        A(f"s_sub_u32 s{sWN}, s{sWN}, 1")
        A(f"s_waitcnt vmcnt({OPT.get('wd', 5)})")
        A(f"s_cmp_lg_u32 s{sWN}, 0")
        A(f"s_cbranch_scc1 {name}")
    A(f"s_lshl_b32 s{sT2}, s{sJ}, 10")
    A(f"s_add_u32 s{sT2}, s{sT2}, {L_QX}")
    A(f"v_add_u32 v7, s{sT2}, v{vK}")
    A(f"s_and_b32 s{sT2}, s{sJ}, 1")
    A(f"s_lshl_b32 s{sT2}, s{sT2}, 7")
    A(f"s_add_u32 s{sT2}, s{sT2}, {L_G}")
    A(f"v_and_b32 v9, 31, v{vL}")
    A(f"v_lshl_add_u32 v9, v9, 2, s{sT2}")
    stamp()
    team_wait(1)
    w_loop("L_wB", 8, L_X)
    A(f"s_cmp_lg_u32 s{sJ}, 3")
    A("s_cbranch_scc1 L_b_nokvb")
    A(f"v_min_u32 v{vT3}, 4, v{vL}")
    A(f"v_sub_u32 v{vT3}, s{sRB}, v{vT3}")
    A(f"v_max_i32 v{vT3}, 0, v{vT3}")
    A(f"v_lshlrev_b32 v{vT3}, 5, v{vT3}")
    A(f"s_lshl_b32 s{sT3}, s{sHG}, 10")
    A(f"s_add_u32 s{sT3}, s{sT3}, {FL_KVB:#x}")
    poll_flags(vT3, sT3, slp=2)
    team_add(10)
    A.label("L_b_nokvb")
    team_wait(10, 1)
    stamp()
    A(f"ds_read_b128 {vr(QB,4)}, v7")
    A(f"ds_read_b128 {vr(QB+4,4)}, v7 offset:4096")
    A(f"ds_read_b32 v{vG}, v9")
    A(f"s_add_u32 s{sA0}, s{sKV}, {TB}")
    A(f"s_add_u32 s{sA1}, s{sRT0}, 1")
    PRE = int(OPT.get("bpre", 4))
    def bkv(u):
        b = KV + 12 * u; o = []
        if u >= 2:
            o.append(f"s_cmp_ge_u32 s{sA1}, {u}")
            o.append(f"s_cselect_b32 s{sT}, s{sA0}, {OOB:#x}")
        sa = sT if u >= 2 else sA0
        o.append(f"buffer_load_dwordx4 {vr(b,4)}, v{vK}, s[12:15], s{sa} offen sc1")
        o.append(f"buffer_load_dwordx4 {vr(b+4,4)}, v{vV}, s[12:15], s{sa} offen sc1")
        o.append(f"buffer_load_dwordx4 {vr(b+8,4)}, v{vV1}, s[12:15], s{sa} offen sc1")
        if u < 9: o.append(f"s_sub_u32 s{sA0}, s{sA0}, {TB}")
        return "\n".join(o)
    order = []
    for u in range(PRE):
        A(bkv(u)); order += [("k", u), ("v", u), ("v2", u)]
    vBig = 7
    A(f"v_mov_b32 v{vIDX}, 0xdddddddd")
    A(f"v_mov_b32 v{vBig}, {f2u(-1e38):#x}")
    mask_tuple(NEG, f"v{vBig}", "0")
    for i in range(2):
        for r in range(0, 10, 2): A(f"v_pk_mov_b32 v[{OB+16*i+r}:{OB+16*i+r+1}], 0, 0")
    A(f"s_waitcnt vmcnt({3*PRE-4}) lgkmcnt(0)")
    A(f"{MF} {vr(S0,16)}, {vr(KV,4)}, {vr(QB+4,4)}, {vr(NEG,16)}")
    A(f"{MF} {vr(S1,16)}, {vr(KV+12,4)}, {vr(QB,4)}, {vr(NEG,16)}")
    A("s_nop 7")
    A("s_nop 3")
    lane_max_all(range(S0, S0 + 32), vT, vT2)
    A(f"v_sub_f32 v{NEG}, 0, v{vT}")
    A(f"v_sub_f32 v{NEG+1}, 0, v{vT}")
    for r in range(0, 32, 2): A(f"v_pk_add_f32 v[{S0+r}:{S0+r+1}], v[{S0+r}:{S0+r+1}], v[{NEG}:{NEG+1}]")
    for r in range(2, 16, 2): A(f"v_pk_mov_b32 v[{NEG+r}:{NEG+r+1}], v[{NEG}:{NEG+1}], v[{NEG}:{NEG+1}] op_sel:[0,1]")
    items = [(1, 0), (0, 1), (1, 1)]
    for u in range(2, 9): items += [(0, u), (1, u)]
    items += [(0, 9)]
    CF = KV
    waited = 3
    def need(tag):
        nonlocal waited
        k_ = order.index(tag)
        if k_ > waited:
            waited = k_
            return f"s_waitcnt vmcnt({len(order)-1-k_})"
        return None
    WPI = int(OPT.get("wpi", 1))
    wsteps = 0; nextu = PRE
    for n, (q, u) in enumerate(items):
        Sc, Sn = (S0, S1) if n % 2 == 0 else (S1, S0)
        ex = {}
        qk = None
        late = []
        if n % 2 == 1 and nextu < 10:
            ex["X4"] = bkv(nextu); late = [("k", nextu), ("v", nextu), ("v2", nextu)]; nextu += 1
        if n >= 1 and n + 1 < len(items):
            q2, u2 = items[n + 1]
            far = (q2, u2) in ((1, 8), (0, 9))
            ex["X3"] = need(("k", u2))
            qk = f"{MF} {vr(Sn,16)}, {vr(KV+12*u2,4)}, {vr(QB+4*q2,4)}, {vr(CF if far else NEG,16)}"
        ex["X5"] = need(("v2", u))
        order += late
        pv1 = None
        if n >= 1:
            qp, up = items[n - 1]
            pv1 = pv(OB + 16 * qp, KV + 12 * up + 8, Sn + 8)
        exit_here = (q == 1 and u in (1, 3, 5, 7))
        if exit_here: ex["X4"] = f"s_cmp_eq_u32 s{sA1}, {u}"
        if "nobat" in OPT.get("abl", ""):
            for x in sorted(ex):
                if ex[x]: A(ex[x])
            A("s_sleep 3")
        else:
            tile_code(Sc, qk, pv1, pv(OB + 16 * q, KV + 12 * u + 4, Sc), ex)
        if exit_here: A(f"s_cbranch_scc1 L_b_exit{u}")
        if n == 6: mask_tuple(CF, f"v{NEG}", f"v{vBig}")
    A("s_nop 1")
    A(pv(OB, KV + 12 * 9 + 8, S1 + 8))
    A.label("L_b_fin")
    stamp()
    A(f"s_lshl_b32 s{sA2}, s{sRT0}, 6")
    A(f"s_add_u32 s{sA2}, s{sA2}, s{sHEAD}")
    A(f"s_lshl_b32 s{sA2}, s{sA2}, 10")
    A(f"s_add_u32 s{sA2}, s{sA2}, {WS_O + 32*1024:#x}")
    A(f"s_min_u32 s{sCnt}, s{sA1}, 9")
    A("s_nop 7")
    for i in range(2):
        if not OPT.get("abl"): range_check(OB + 16 * i, f"L_b_slow{i}")
        A.label(f"L_b_ok{i}")
        normalize_store(OB + 16 * i, P + 4 * i, sA2)
        if i == 0:
            A(f"s_add_u32 s{sA2}, s{sA2}, 65536")
            A(f"s_add_u32 s{sKV}, s{sKV}, {TB}")
            A(f"s_add_u32 s{sCnt}, s{sRT0}, 2")
            A(f"s_min_u32 s{sCnt}, s{sCnt}, 9")
    A("s_waitcnt vmcnt(0)")
    team_add(2, "L_b_ob_nl")
    A(f"s_lshl_b32 s{sT3}, s{sRB}, 8")
    A(f"s_lshl_b32 s{sT4}, s{sHG}, 5")
    A(f"s_add_u32 s{sT3}, s{sT3}, s{sT4}")
    A(f"s_add_u32 s{sT3}, s{sT3}, {FL_OB:#x}")
    flag_store(sT3)
    A.label("L_b_ob_nl")
    A(f"s_and_b32 s{sT4}, s{sJ}, 1")
    A(f"s_lshr_b32 s{sT3}, s{sJ}, 1")
    vWp = 13
    w128_tr_addr(vWp, 4, None, sT3)
    A(f"v_and_b32 v{vT3}, 7, v{vL}")
    A(f"v_lshlrev_b32 v{vT3}, 5, v{vT3}")
    A(f"s_lshl_b32 s{sT3}, s{sRB}, 8")
    A(f"s_add_u32 s{sT3}, s{sT3}, {FL_OB:#x}")
    w_loop("L_wA", 20, L_WQ)
    A("s_waitcnt vmcnt(0)")
    team_add(3)
    OF = 128; WF = 64; ACB = 16; ACA = 32
    vWq = 12
    A(f"v_add_u32 v{vWq}, {L_WQ}, v{vWp}")
    team_wait(3)
    for s in range(32):
        if s % 7 == 0 and s: A("s_waitcnt lgkmcnt(0)")
        A(f"ds_read_b64_tr_b16 v[{OF+4*s}:{OF+4*s+1}], v{vWq} offset:{s*2048}")
        A(f"ds_read_b64_tr_b16 v[{OF+4*s+2}:{OF+4*s+3}], v{vWq} offset:{s*2048+1024}")
    A("s_waitcnt lgkmcnt(0)")
    team_add(12)
    poll_flags(vT3, sT3, slp=2)
    stamp()
    A(f"s_add_u32 s{sWG}, s{sRT0}, s{sT4}")
    A(f"s_lshl_b32 s{sWG}, s{sWG}, 16")
    A(f"s_lshr_b32 s{sA0}, s{sJ}, 1")
    A(f"s_lshl_b32 s{sA0}, s{sA0}, 14")
    A(f"s_add_u32 s{sWG}, s{sWG}, s{sA0}")
    A(f"s_add_u32 s{sWG}, s{sWG}, {WS_O + 32*1024:#x}")
    A(f"s_lshl_b32 s{sWL}, s{sT4}, 15")
    A(f"s_add_u32 s{sWL}, s{sWL}, s{sA0}")
    A(f"s_add_u32 s{sWL}, s{sWL}, {L_WQ}")
    team_wait(12)
    A(f"s_mov_b32 s{sWN}, 16")
    A.label("L_oB")
    A(f"s_mov_b32 m0, s{sWL}")
    A(f"s_add_u32 s{sWL}, s{sWL}, 1024")
    A(f"buffer_load_dwordx4 v{vK}, s[12:15], s{sWG} offen sc1 lds")
    A(f"s_add_u32 s{sWG}, s{sWG}, 1024")
    A(f"s_sub_u32 s{sWN}, s{sWN}, 1")
    A(f"s_waitcnt vmcnt({OPT.get('wd', 5)})")
    A(f"s_cmp_lg_u32 s{sWN}, 0")
    A("s_cbranch_scc1 L_oB")
    A.label("L_b_skip")
    A(f"s_and_b32 s{sT4}, s{sJ}, 1")
    srd(4, P_OUT, 2048 * 1024)
    vO = 8; vOa = 9
    A(f"v_and_b32 v{vT}, 31, v{vL}")
    A(f"v_lshlrev_b32 v{vT}, 10, v{vT}")
    A(f"v_lshrrev_b32 v{vT2}, 5, v{vL}")
    A(f"v_lshl_add_u32 v{vO}, v{vT2}, 4, v{vT}")
    A(f"s_add_u32 s{sKV}, s{sRT0}, s{sT4}")
    A(f"s_lshl_b32 s{sKV}, s{sKV}, 15")
    A(f"s_lshl_b32 s{sT}, s{sHG}, 7")
    A(f"s_add_u32 s{sKV}, s{sKV}, s{sT}")
    A(f"s_lshr_b32 s{sT}, s{sJ}, 1")
    A(f"s_lshl_b32 s{sT}, s{sT}, 6")
    A(f"s_add_u32 s{sKV}, s{sKV}, s{sT}")
    A(f"s_lshl_b32 s{sT}, s{sT4}, 15")
    A(f"v_add_u32 v{vOa}, s{sT}, v{vK}")
    if "touchout" in OPT:
        A(f"buffer_load_dword v{WF}, v{vO}, s[4:7], s{sKV} offen")
        A("s_waitcnt vmcnt(0)")
    OS = int(OPT.get("oarep", 5))
    A(f"s_lshl_b32 s{sA2}, s{sRB}, {OS+6 if 'oarep' in OPT else 8}")
    A(f"s_lshl_b32 s{sT}, s{sHG}, {OS}")
    A(f"s_add_u32 s{sA2}, s{sA2}, s{sT}")
    A(f"s_add_u32 s{sA2}, s{sA2}, {FL_OA:#x}")
    if "oarep" in OPT:
        A(f"s_lshl_b32 s{sT}, s{sRB}, 3")
        A(f"s_add_u32 s{sT}, s{sT}, s{sHG}")
        A(f"s_lshl_b32 s{sT}, s{sT}, {OS+3}")
        A(f"s_add_u32 s{sT}, s{sT}, {FL_OA:#x}")
        A(f"v_and_b32 v{vT}, 7, v{vL}")
        A(f"v_lshlrev_b32 v{vT}, {OS}, v{vT}")
        A(f"buffer_load_dword v{vT2}, v{vT}, s[12:15], s{sT} offen sc1")
        A("s_waitcnt vmcnt(0)")
    A(f"v_add_u32 v{vWq}, {L_WQ}, v{vOa}")
    A("s_waitcnt vmcnt(0) lgkmcnt(0)")
    stamp()
    if "lowp" in OPT: A("s_setprio 0")
    A("s_barrier")
    def rdb(s):
        b = WF + 8 * (s % 4)
        A(f"ds_read_b64_tr_b16 v[{b}:{b+1}], v{vWp} offset:{s*2048}")
        A(f"ds_read_b64_tr_b16 v[{b+2}:{b+3}], v{vWp} offset:{s*2048+1024}")
        A(f"ds_read_b128 v[{b+4}:{b+7}], v{vWq} offset:{s*1024}")
    NB1 = int(OPT.get("nb1", 32))
    for s in range(3): rdb(s)
    for s in range(32):
        if s == NB1:
            A("s_barrier")
        if s + 3 < 32: rdb(s + 3)
        A(f"s_waitcnt lgkmcnt({3 * (min(s + 3, 31) - s)})")
        b = WF + 8 * (s % 4)
        A(f"{MF} {vr(ACB,16)}, {vr(b,4)}, {vr(b+4,4)}, {'0' if s == 0 else vr(ACB,16)}")
    if NB1 == 32: A("s_barrier")
    tail_dma("B")
    A(f"v_sub_f32 v{vT3}, 1.0, v{vG}")
    A(f"v_mov_b32 v14, v{vG}")
    for r in range(16): A(f"v_mul_f32 v{ACB+r}, v{ACB+r}, v{vT3}")
    for m in range(len(MS)):
        A(f"s_waitcnt vmcnt({sum(MS[m+1:]) // 4})")
        A("s_barrier")
        n = MS[m]
        for i in range(n): A(f"ds_read_b128 {vr(WF+4*i,4)}, v{vOa} offset:{(sum(MS[:m])+i)*1024}")
        for i in range(n):
            s = sum(MS[:m]) + i
            A(f"s_waitcnt lgkmcnt({n-1-i})")
            c = "0" if s == 0 else vr(ACA, 16)
            A(f"{MF} {vr(ACA,16)}, {vr(OF+4*s,4)}, {vr(WF+4*i,4)}, {c}")
    A("s_nop 7")
    A("s_nop 3")
    for r in range(0, 16, 2): A(f"v_pk_fma_f32 v[{ACB+r}:{ACB+r+1}], v[{ACA+r}:{ACA+r+1}], v[14:15], v[{ACB+r}:{ACB+r+1}]")
    for r in range(8): A(f"v_cvt_pk_bf16_f32 v{WF+r}, v{ACB+2*r}, v{ACB+2*r+1}")
    A("s_nop 1")
    for g in range(2):
        A(f"v_permlane32_swap_b32 v{WF+4*g}, v{WF+4*g+2}")
        A(f"v_permlane32_swap_b32 v{WF+4*g+1}, v{WF+4*g+3}")
    for g in range(2): A(f"buffer_store_dwordx4 {vr(WF+4*g,4)}, v{vO}, s[4:7], s{sKV} offen offset:{g*32} {OPT.get('om', '').replace('_', ' ')}")
    if PROF: A("s_waitcnt vmcnt(0)")
    stamp_flush()
    A.label("L_exit")
    A("s_endpgm")
    for u in (1, 3, 5, 7):
        A.label(f"L_b_exit{u}")
        A("s_nop 0")
        A(pv(OB + 16, KV + 12 * u + 8, S0 + 8))
        A("s_branch L_b_fin")
    for i in range(2):
        slow_path(f"L_b_slow{i}", f"L_b_ok{i}", QB + 4 * i, OB + 16 * i, sKV, sCnt, -TB, True, KV, KV + 4, KV + 16)
    timeout_blocks()
    return k

DOC = """; One persistent launch, 256 workgroups (one per CU), each owning 64 rows x 4 heads.
;   waves 0-3 (A team): Q projection of the MQA branch, then MQA attention (4 query tiles per wave, half of the keys),
;                       the fp32 probabilities directly (only their high halves are selected); a ones row gives the row sum.
;   waves 4-7 (B team): shared K/V projection, QKV + gate projection, sliding-window attention, output projection.
;   The row shift is a sampled maximum; rows whose sum leaves the safe range are redone with the true row maximum.
"""

def main():
    hdr = open("cdna_kernels/" + NAME + ".s.ref").read().split("\n")
    head = [l for l in hdr if l.startswith(";") and "@launch" not in l]
    out = "\n".join(head) + "\n"
    out += "; @launch grid=(256,1,1) block=(512,1,1) lds=163840\n"
    out += '.amdgcn_target "amdgcn-amd-amdhsa--gfx950"\n.text\n'
    out += DOC
    k = gen()
    body = A.text()
    if "bfirst" in OPT:
        i = body.index("; @@A_BEGIN\n"); j = body.index("; @@A_END\n")
        body = body[:i] + body[j + len("; @@A_END\n"):] + body[i + len("; @@A_BEGIN\n"):j]
    body += "L_code_end:\n    s_endpgm\n"
    errs = check_hazards(body)
    for e in errs: print("HAZARD", e, file=sys.stderr)
    out += body
    out += f""".section .rodata,"a"
.p2align 6
.amdhsa_kernel {k}
  .amdhsa_next_free_vgpr 256
  .amdhsa_next_free_sgpr 102
  .amdhsa_accum_offset 256
  .amdhsa_group_segment_fixed_size 0
  .amdhsa_kernarg_size 96
  .amdhsa_user_sgpr_count 2
  .amdhsa_user_sgpr_kernarg_segment_ptr 1
  .amdhsa_system_sgpr_workgroup_id_x 1
.end_amdhsa_kernel
"""
    paths = [a for a in sys.argv[1:] if a.endswith(".s")]
    path = paths[0] if paths else "f20.s"
    open(path, "w").write(out)
    print("wrote", path, len(out), "bytes;", len(errs), "hazard warnings")
main()
```

```python
import sys, math, struct, re
from asmlib import Asm, vr, sr, check_hazards

NAME = "gated_mix__grouped_kv_mqa__sliding_block__prompt"
def f2u(x): return struct.unpack("<I", struct.pack("<f", x))[0]
CSCALE = 0.25 * math.log2(math.e)
OPT = dict(a[2:].split("=") if "=" in a else (a[2:], "1") for a in sys.argv[1:] if a.startswith("--"))
for _k, _v in (("bfirst", "1"), ("cpf", "1"), ("pace", "0"), ("p3d", "4"), ("bpre", "3"), ("od", "6"), ("il", "2"), ("tp", "one"), ("touchw", "1"), ("nrep", "8"), ("asl", "0"), ("rs", "0"), ("pslp", "0"), ("ks", "0"), ("ge", "2"), ("nb1", "8"), ("lowp", "1"), ("j4", "1"), ("pstart", "6"), ("touchfl", "1"), ("k3", "1")): OPT.setdefault(_k, _v)
PROF = "prof" in OPT

ROT = "norot" not in OPT
TB = 2176
WS_KVA = 0
WS_FL = 0x40000
NREP = int(OPT.get('nrep', 1))
FL_KVA, FL_KVB, FL_OB, FL_OA = (WS_FL + 0x10000 if NREP > 1 else WS_FL), WS_FL + 0x1000, WS_FL + 0x4000, (WS_FL + 0x20000 if 'oarep' in OPT else WS_FL + 0x6000)
WS_KVB = 0x100000
WS_O = 0x600000
WS_PROF = 15 << 20
WS_SIZE = 16 << 20
OOB = 0x40000000
ONES = 0x3F803F80
L_X, L_WQ, L_WKV, L_QX, L_GATE, L_CNT, L_COMB = 0, 65536, 131072, 147456, 155648, 156672, 131072
L_G = L_CNT + 256
L_COMB3 = L_G + 256
assert L_COMB + 3 * 4608 <= L_QX and L_COMB3 + 4608 <= 163840
SPIN = 50000
KS = int(OPT.get('ks', 1))
MS = [int(x) for x in OPT.get('ms', '8,8,8,8').split(',')]
MF = "v_mfma_f32_32x32x16_bf16"
SMF = "v_smfmac_f32_32x32x32_bf16"
vIDX = 10
A = Asm()

sW, sHG, sRB, sNON = 16, 17, 18, 19
sT, sT2, sT3, sT4 = 24, 25, 26, 27
sJ, sKV, sCnt, sHEAD, sRT0, sA0, sA1, sA2 = 28, 29, 30, 31, 32, 33, 34, 35
sSP = 36
P_X, P_WQ, P_WK, P_WV, P_AWO, P_WQKV, P_BWO, P_GATE, P_OUT, P_DBG, P_WS = 44, 46, 48, 50, 52, 56, 58, 60, 62, 64, 66
vL, vK, vV, vT, vT2, vT3 = 1, 2, 3, 4, 5, 6
vV1 = 0

def srd(d, ptr, size):
    A(f"s_mov_b32 s{d}, s{ptr}")
    A(f"s_and_b32 s{d+1}, s{ptr+1}, 0xffff")
    A(f"s_mov_b32 s{d+2}, {size:#x}")
    A(f"s_mov_b32 s{d+3}, 0x00020000")

NST = [0]
TM = [0]; TMS = []
def timeout_branch(d):
    if "tmark" not in OPT:
        A(f"s_cbranch_scc1 {d}"); return
    TM[0] += 1
    t = f"L_tm{TM[0]}"
    A(f"s_cbranch_scc1 {t}")
    TMS.append((t, d, TM[0]))
def timeout_blocks():
    for t, d, k in TMS:
        A.label(t)
        A("s_mov_b64 exec, 1")
        A(f"v_mov_b32 v253, {0x70000 + 4*k}")
        A("v_mov_b32 v252, s2")
        A("buffer_store_dword v252, v253, s[12:15], 0 offen sc1")
        A("s_mov_b64 exec, -1")
        A(f"s_branch {d}")
KVP = OPT.get("prof") in ("kv", "kvrt")
STOFF = [False]
def kstamp():
    if KVP: stamp(force=True)
def stamp(real=False, force=False):
    if not PROF: return
    if STOFF[0] and not force and not real: return
    i = NST[0]; NST[0] += 1
    assert 70 + 2 * i + 1 <= 101, "too many stamps"
    A(f"{'s_memrealtime' if real or OPT.get('prof') in ('rt', 'kvrt') else 's_memtime'} s[{70+2*i}:{71+2*i}]")
def stamp_flush():
    if not PROF: return
    stamp(force=True); stamp(real=True)
    A("s_waitcnt lgkmcnt(0)")
    A("s_lshl_b32 s68, s2, 4")
    A(f"s_add_u32 s68, s68, s{sW}")
    A("s_lshl_b32 s68, s68, 6")
    A(f"s_add_u32 s68, s68, {WS_PROF:#x}")
    A("v_mov_b32 v251, 0")
    for i in range(NST[0]):
        A(f"v_mov_b32 v250, s{70+2*i}")
        A(f"buffer_store_dword v250, v251, s[12:15], s68 offen offset:{4*i}")
    A("s_waitcnt vmcnt(0)")

def poll_flags(va, soff, n2=None, slp=2, vd=None, x4=False):
    vd = vd if vd is not None else vT2
    l = A.uid("poll"); d = A.uid("polld")
    A(f"s_mov_b32 s{sSP}, {SPIN}")
    A.label(l)
    if x4: A(f"buffer_load_dwordx4 {vr(vd,4)}, v{va}, s[12:15], s{soff} offen sc1")
    else: A(f"buffer_load_dword v{vd}, v{va}, s[12:15], s{soff} offen sc1")
    if n2 is not None: A(f"buffer_load_dword v{vd+1}, v{va}, s[12:15], s{soff} offen offset:{n2} sc1")
    A("s_waitcnt vmcnt(0)")
    A(f"v_cmp_ne_u32 vcc, s{sNON}, v{vd}")
    if n2 is not None or x4:
        A(f"v_cmp_ne_u32 s[38:39], s{sNON}, v{vd+(2 if x4 else 1)}")
        A("s_nop 1")
        A("s_or_b64 vcc, vcc, s[38:39]")
    else:
        A("s_nop 1")
    A(f"s_cbranch_vccz {d}")
    A("s_mov_b64 exec, vcc")
    A(f"s_sub_u32 s{sSP}, s{sSP}, 1")
    timeout_branch(d)
    if slp: A(f"s_sleep {slp}")
    A(f"s_branch {l}")
    A.label(d)
    A("s_mov_b64 exec, -1")

def flag_store(soff, nrep=1, sh=12):
    A(f"v_mov_b32 v{vT}, s{sNON}")
    if nrep > 1: A(f"v_lshlrev_b32 v{vT2}, {sh}, v{vL}")
    else: A(f"v_mov_b32 v{vT2}, 0")
    A(f"s_mov_b64 exec, {(1 << nrep) - 1}")
    A(f"buffer_store_dword v{vT}, v{vT2}, s[12:15], s{soff} offen sc1")
    A("s_mov_b64 exec, -1")

def team_add(cnt, last_label=None, n=4):
    A(f"v_mov_b32 v{vT}, {L_CNT + 4*cnt}")
    A(f"v_mov_b32 v{vT2}, 1")
    A("s_mov_b64 exec, 1")
    if last_label:
        A(f"ds_add_rtn_u32 v{vT2}, v{vT}, v{vT2}")
        A("s_waitcnt lgkmcnt(0)")
        A("s_mov_b64 exec, -1")
        A(f"v_readfirstlane_b32 s{sT}, v{vT2}")
        A("s_nop 1")
        A(f"s_cmp_lg_u32 s{sT}, {n-1}")
        A(f"s_cbranch_scc1 {last_label}")
    else:
        A(f"ds_add_u32 v{vT}, v{vT2}")
        A("s_mov_b64 exec, -1")

def team_wait(cnt, n=4, slp=2):
    l = A.uid("tw"); d = A.uid("twd")
    A(f"v_mov_b32 v{vT}, {L_CNT + 4*cnt}")
    A(f"s_mov_b32 s{sSP}, {SPIN}")
    A.label(l)
    A(f"ds_read_b32 v{vT2}, v{vT}")
    A("s_waitcnt lgkmcnt(0)")
    A(f"v_readfirstlane_b32 s{sT}, v{vT2}")
    A("s_nop 1")
    A(f"s_cmp_ge_u32 s{sT}, {n}")
    A(f"s_cbranch_scc1 {d}")
    A(f"s_sub_u32 s{sSP}, s{sSP}, 1")
    timeout_branch(d)
    if slp: A(f"s_sleep {slp}")
    A(f"s_branch {l}")
    A.label(d)

def pv(O, V, S):
    return f"{SMF} {vr(O,16)}, {vr(V,4)}, {vr(S,8)}, v{vIDX}"

def tile_code(Sc, qk, pv1, pv0, extra):
    d = {}
    for i in range(16): d[f"e{i}"] = f"v_exp_f32 v{Sc+i}, v{Sc+i}"
    d["PV1"] = pv1; d["QK"] = qk; d["PV0"] = pv0
    ABL = OPT.get("abl", "").split(",")
    if "nopv" in ABL: d["PV1"] = d["PV0"] = "s_nop 2"
    if "noqk" in ABL: d["QK"] = "s_nop 1"
    if "noexp" in ABL:
        for i in range(16): d[f"e{i}"] = "s_nop 1"
    order = OPT.get("order", "e0 e1 PV1 X1 e2 e3 e4 X3 QK X2 e5 e6 e7 e8 e9 e10 X5 PV0 X4 e11 e12 e13 e14 e15").replace("_", " ")
    for x in order.split():
        if x[0] == "X":
            if extra.get(x): A(extra[x])
        elif d[x]: A(d[x])

NEG, S0, S1, P = 16, 32, 48, 64

def lane_max_all(regs, dst, tmp):
    regs = list(regs)
    A(f"v_max3_f32 v{dst}, v{regs[0]}, v{regs[1]}, v{regs[2]}")
    A(f"v_max3_f32 v{tmp}, v{regs[3]}, v{regs[4]}, v{regs[5]}")
    rest = regs[6:]; t = [dst, tmp]; n = 0
    while rest:
        a, b = rest.pop(0), rest.pop(0)
        A(f"v_max3_f32 v{t[n&1]}, v{t[n&1]}, v{a}, v{b}"); n += 1
    A(f"v_max_f32 v{dst}, v{dst}, v{tmp}")
    A(f"v_mov_b32 v{tmp}, v{dst}")
    A("s_nop 1")
    A(f"v_permlane32_swap_b32 v{dst}, v{tmp}")
    A(f"v_max_f32 v{dst}, v{dst}, v{tmp}")

def mask_tuple(dst, v_true, v_false):
    for r in range(16):
        c0 = (r & 3) + 8 * (r >> 2)
        p = 40 + 2 * (r & 1)
        A(f"s_mov_b32 s{p}, {(1 << c0) - 1:#x}")
        A(f"s_mov_b32 s{p+1}, {(1 << (c0 + 4)) - 1:#x}")
        A(f"v_cndmask_b32_e64 v{dst+r}, {v_false}, {v_true}, s[{p}:{p+1}]")

def range_check(O, bad):
    A(f"v_max3_f32 v{vT}, |v{O}|, |v{O+1}|, |v{O+2}|")
    A(f"v_max3_f32 v{vT2}, |v{O+3}|, |v{O+4}|, |v{O+5}|")
    A(f"v_max3_f32 v{vT}, v{vT}, |v{O+6}|, |v{O+7}|")
    A(f"s_mov_b32 s{sT}, {f2u(2.0**-60):#x}")
    A(f"s_mov_b32 s{sT2}, {f2u(2.0**40):#x}")
    A(f"s_mov_b32 s{sT3}, {f2u(2.0**120):#x}")
    A(f"v_add_f32 v{vT}, v{vT}, v{vT2}")
    A(f"v_cmp_nlt_f32 vcc, s{sT}, v{O+8}")
    A(f"v_cmp_ngt_f32 s[38:39], s{sT2}, v{O+8}")
    A(f"v_cmp_ngt_f32 s[40:41], s{sT3}, v{vT}")
    A("s_nop 1")
    A("s_or_b64 vcc, vcc, s[38:39]")
    A("s_or_b64 vcc, vcc, s[40:41]")
    A(f"s_cbranch_vccnz {bad}")

def slow_path(name, ret, Qr, O, s_base, s_n, step, masks, KB, VB, MK):
    lp1, lp2 = A.uid("sp1"), A.uid("sp2")
    vM, vM2, vBig = 7, 8, 9
    A.label(name)
    A("s_waitcnt vmcnt(0) lgkmcnt(0)")
    A(f"v_mov_b32 v{vBig}, {f2u(-1e38):#x}")
    def set_mask():
        if not masks:
            return
        l0, l8, ld = A.uid("m0"), A.uid("m8"), A.uid("md")
        A(f"s_cmp_eq_u32 s{sA1}, 0")
        A(f"s_cbranch_scc1 {l0}")
        A(f"s_cmp_eq_u32 s{sA1}, 8")
        A(f"s_cbranch_scc1 {l8}")
        for r in range(16): A(f"v_mov_b32 v{MK+r}, 0")
        A(f"s_branch {ld}")
        A.label(l0); mask_tuple(MK, f"v{vBig}", "0"); A(f"s_branch {ld}")
        A.label(l8); mask_tuple(MK, "0", f"v{vBig}")
        A.label(ld)
    C = vr(MK, 16) if masks else "0"
    A(f"v_mov_b32 v{vM}, v{vBig}")
    A(f"s_mov_b32 s{sA0}, s{s_base}")
    A(f"s_mov_b32 s{sA1}, 0")
    A.label(lp1)
    A(f"buffer_load_dwordx4 {vr(KB,4)}, v{vK}, s[12:15], s{sA0} offen sc1")
    set_mask()
    A("s_waitcnt vmcnt(0)")
    A("s_nop 1")
    A(f"{MF} {vr(S0,16)}, {vr(KB,4)}, {vr(Qr,4)}, {C}")
    A(f"s_add_u32 s{sA0}, s{sA0}, {step & 0xffffffff:#x}")
    A(f"s_add_u32 s{sA1}, s{sA1}, 1")
    A("s_nop 15")
    for i in range(8): A(f"v_max3_f32 v{vM}, v{vM}, v{S0+2*i}, v{S0+2*i+1}")
    A(f"s_cmp_lt_u32 s{sA1}, s{s_n}")
    A(f"s_cbranch_scc1 {lp1}")
    A(f"v_mov_b32 v{vM2}, v{vM}")
    A("s_nop 1")
    A(f"v_permlane32_swap_b32 v{vM}, v{vM2}")
    A(f"v_max_f32 v{vM}, v{vM}, v{vM2}")
    for r in range(16): A(f"v_mov_b32 v{O+r}, 0")
    A(f"s_mov_b32 s{sA0}, s{s_base}")
    A(f"s_mov_b32 s{sA1}, 0")
    A.label(lp2)
    A(f"buffer_load_dwordx4 {vr(KB,4)}, v{vK}, s[12:15], s{sA0} offen sc1")
    A(f"buffer_load_dwordx4 {vr(VB,4)}, v{vV}, s[12:15], s{sA0} offen sc1")
    A(f"buffer_load_dwordx4 {vr(VB+4,4)}, v{vV1}, s[12:15], s{sA0} offen sc1")
    set_mask()
    A("s_waitcnt vmcnt(0)")
    A("s_nop 1")
    A(f"{MF} {vr(S0,16)}, {vr(KB,4)}, {vr(Qr,4)}, {C}")
    A(f"s_add_u32 s{sA0}, s{sA0}, {step & 0xffffffff:#x}")
    A(f"s_add_u32 s{sA1}, s{sA1}, 1")
    A("s_nop 15")
    for r in range(16): A(f"v_sub_f32 v{S0+r}, v{S0+r}, v{vM}")
    for r in range(16): A(f"v_exp_f32 v{S0+r}, v{S0+r}")
    A("s_nop 2")
    A(pv(O, VB, S0))
    A(pv(O, VB + 4, S0 + 8))
    A(f"s_cmp_lt_u32 s{sA1}, s{s_n}")
    A("s_nop 15")
    A(f"s_cbranch_scc1 {lp2}")
    A(f"s_branch {ret}")

def normalize_store(O, PK, soff):
    A(f"v_rcp_f32 v{vT}, v{O+8}")
    A("s_nop 0")
    for r in range(8): A(f"v_mul_f32 v{O+r}, v{O+r}, v{vT}")
    for r in range(4): A(f"v_cvt_pk_bf16_f32 v{PK+r}, v{O+2*r}, v{O+2*r+1}")
    A(f"buffer_store_dwordx4 {vr(PK,4)}, v{vK}, s[12:15], s{soff} offen sc1")

def tail_dma(team):
    A(f"v_and_b32 v{vT}, 7, v{vL}")
    A(f"v_lshlrev_b32 v{vT}, 5, v{vT}")
    if "oarep" in OPT:
        OS = int(OPT["oarep"])
        A(f"v_and_b32 v{vT}, 7, v{vL}")
        A(f"v_lshlrev_b32 v{vT}, {OS}, v{vT}")
        A(f"s_lshl_b32 s{sT3}, s{sRB}, 3")
        A(f"s_add_u32 s{sT3}, s{sT3}, s{sHG}")
        A(f"s_lshl_b32 s{sT3}, s{sT3}, {OS+3}")
    else:
        A(f"s_lshl_b32 s{sT3}, s{sRB}, 8")
    A(f"s_add_u32 s{sT3}, s{sT3}, {FL_OA:#x}")
    A(f"s_and_b32 s{sT}, s{sW}, 1")
    A(f"s_lshr_b32 s{sT2}, s{sW}, 1")
    A(f"s_lshl_b32 s{sA0}, s{sT}, 15")
    A(f"s_lshl_b32 s{sA1}, s{sRB}, 1")
    A(f"s_add_u32 s{sA1}, s{sA1}, s{sT}")
    A(f"s_lshl_b32 s{sA1}, s{sA1}, 16")
    A(f"s_add_u32 s{sA1}, s{sA1}, {WS_O:#x}")
    for m in range(len(MS)):
        A(f"s_mul_i32 s{40+m}, s{sT2}, {MS[m] // 4 * 1024}")
        A(f"s_add_u32 s{40+m}, s{40+m}, {sum(MS[:m]) * 1024}")
    if OPT.get("tp", "all") == "one":
        l = A.uid("tp")
        if team == "A":
            A(f"s_cmp_lg_u32 s{sW}, 0")
            A(f"s_cbranch_scc1 {l}")
            poll_flags(vT, sT3, slp=int(OPT.get("tslp", 1)))
        A.label(l)
        A("s_barrier")
    else:
        poll_flags(vT, sT3, slp=1)
    stamp()
    for m in range(len(MS)):
        A(f"s_add_u32 m0, s{sA0}, s{40+m}")
        A(f"s_add_u32 s{sT}, s{sA1}, s{40+m}")
        for i in range(MS[m] // 4): A(f"buffer_load_dwordx4 v{vK}, s[12:15], s{sT} offen offset:{i*1024} sc1 lds")

def gen():
    k = NAME + "_kernel"
    A.raw(f".globl {k}\n.p2align 8\n.type {k},@function\n{k}:")
    A("s_cmp_ge_u32 s2, 256")
    A("s_cbranch_scc1 L_exit")
    stamp(real=True); stamp()
    if "hwmap0" in OPT:
        A("s_getreg_b32 s3, hwreg(HW_REG_HW_ID)")
        A("s_getreg_b32 s2, hwreg(HW_REG_XCC_ID)")
        A("s_and_b32 s2, s2, 7")
        A("s_bfe_u32 s4, s3, 0x30008")
        A("s_lshl_b32 s4, s4, 3")
        A("s_or_b32 s2, s2, s4")
        A("s_bfe_u32 s4, s3, 0x2000d")
        A("s_lshl_b32 s4, s4, 6")
        A("s_or_b32 s2, s2, s4")
    if "scr" in OPT:
        A("s_bfe_u32 s3, s2, 0x30003")
        A("s_xor_b32 s2, s2, s3")
    vXd, vWd, vXa, vWa = 7, 8, 9, 13
    A(f"v_lshrrev_b32 v{vT}, 6, v0")
    A(f"v_and_b32 v{vL}, 63, v0")
    A(f"v_readfirstlane_b32 s{sW}, v{vT}")
    A(f"v_lshlrev_b32 v{vT2}, 2, v{vL}")
    A(f"s_cmp_lg_u32 s{sW}, 3")
    A("s_cbranch_scc1 L_nozero")
    A(f"v_mov_b32 v{vT}, 0")
    A(f"v_add_u32 v{vT2}, {L_CNT}, v{vT2}")
    A(f"ds_write_b32 v{vT2}, v{vT}")
    A("s_waitcnt lgkmcnt(0)")
    A.label("L_nozero")
    A("s_load_dwordx16 s[44:59], s[0:1], 0")
    A("s_load_dwordx8 s[60:67], s[0:1], 64")
    A("s_memrealtime s[22:23]")
    A(f"s_and_b32 s{sHG}, s2, 1")
    A(f"s_lshl_b32 s{sHG}, s{sHG}, 2")
    if "map1" in OPT:
        A(f"s_bfe_u32 s{sHG}, s2, 0x10004")
        A(f"s_lshl_b32 s{sHG}, s{sHG}, 2")
        A(f"s_bfe_u32 s{sT}, s2, 0x10003")
        A(f"s_add_u32 s{sHG}, s{sHG}, s{sT}")
        A(f"s_lshr_b32 s{sT}, s2, 7")
        A(f"s_lshl_b32 s{sT}, s{sT}, 1")
        A(f"s_add_u32 s{sHG}, s{sHG}, s{sT}")
        A(f"s_and_b32 s{sRB}, s2, 7")
        A(f"s_lshl_b32 s{sRB}, s{sRB}, 2")
        A(f"s_bfe_u32 s{sT}, s2, 0x20005")
        A(f"s_add_u32 s{sRB}, s{sRB}, s{sT}")
    elif "oldmap" in OPT:
        A(f"s_bfe_u32 s{sT}, s2, 0x20003")
        A(f"s_add_u32 s{sHG}, s{sHG}, s{sT}")
        A(f"s_bfe_u32 s{sRB}, s2, 0x20001")
        A(f"s_lshl_b32 s{sRB}, s{sRB}, 3")
        A(f"s_lshr_b32 s{sT}, s2, 5")
        A(f"s_add_u32 s{sRB}, s{sRB}, s{sT}")
    else:
        A(f"s_bfe_u32 s{sT}, s2, 0x10003")
        A(f"s_add_u32 s{sHG}, s{sHG}, s{sT}")
        A(f"s_lshr_b32 s{sT}, s2, 7")
        A(f"s_lshl_b32 s{sT}, s{sT}, 1")
        A(f"s_add_u32 s{sHG}, s{sHG}, s{sT}")
        A(f"s_bfe_u32 s{sRB}, s2, 0x20001")
        A(f"s_lshl_b32 s{sRB}, s{sRB}, 3")
        A(f"s_bfe_u32 s{sT}, s2, 0x30004")
        A(f"s_add_u32 s{sRB}, s{sRB}, s{sT}")
    A(f"v_lshlrev_b32 v{vK}, 4, v{vL}")
    A("s_barrier")
    A(f"s_lshr_b32 s{sT}, s{sW}, 2")
    A(f"s_xor_b32 s{sT}, s{sT}, s{sHG}")
    A(f"s_and_b32 s{sT}, s{sT}, 1")
    A(f"s_xor_b32 s{sT}, s{sT}, 1")
    A(f"s_lshl_b32 s{sT}, s{sT}, 2")
    A(f"s_and_b32 s{sJ}, s{sW}, 3")
    A(f"s_add_u32 s{sT}, s{sT}, s{sJ}")
    A(f"s_lshl_b32 s{sT4}, s{sT}, 10")
    A(f"s_lshl_b32 s{sT}, s{sT}, 3")
    A(f"v_lshrrev_b32 v{vT}, 3, v{vL}")
    A(f"v_add_u32 v{vT}, s{sT}, v{vT}")
    A(f"v_lshrrev_b32 v{vT2}, 1, v{vT}")
    A(f"v_xor_b32 v{vT2}, v{vT2}, v{vL}")
    A(f"v_and_b32 v{vT2}, 7, v{vT2}")
    A(f"v_lshlrev_b32 v{vT2}, 4, v{vT2}")
    A(f"v_lshl_add_u32 v{vXd}, v{vT}, 10, v{vT2}")
    A(f"s_lshl_b32 s{sA0}, s{sRB}, 16")
    if ROT:
        A(f"s_and_b32 s37, s{sHG}, 2")
        A(f"s_add_u32 s37, s37, 4")
    else:
        A("s_mov_b32 s37, 0")
    if "bfirst" in OPT:
        A(f"s_cmp_lt_u32 s{sW}, 4")
        A("s_cbranch_scc1 L_ateam")
        A.raw("; @@A_BEGIN")
        A.label("L_ateam")
    else:
        A(f"s_cmp_ge_u32 s{sW}, 4")
        A("s_cbranch_scc1 L_bteam")

    sXR, sQR = 37, 54
    def dma_x_plain(kb):
        kb = [3, 0, 1, 2, 4, 5, 6, 7][kb] if "k3" in OPT else kb
        A(f"s_add_u32 m0, s{sT4}, {L_X + kb*8192 - kb*128}")
        A("s_nop 0")
        A(f"buffer_load_dwordx4 v{vXd}, s[4:7], s{sA0} offen offset:{kb*128} lds")
    def dma_x(kb):
        A(f"s_lshl_b32 s{sT2}, s{sXR}, 13")
        A(f"s_add_u32 m0, s{sT4}, s{sT2}")
        A(f"s_lshl_b32 s{sT2}, s{sXR}, 7")
        A(f"s_add_u32 s{sT2}, s{sT2}, s{sA0}")
        A(f"buffer_load_dwordx4 v{vXd}, s[4:7], s{sT2} offen lds")
        if kb < 7:
            A(f"s_add_u32 s{sXR}, s{sXR}, 1")
            A(f"s_and_b32 s{sXR}, s{sXR}, 7")

    def x_frag_addr(dst, s_off):
        A(f"v_and_b32 v{vT}, 31, v{vL}")
        A(f"v_lshrrev_b32 v{vT2}, 5, v{vL}")
        A(f"v_bfe_u32 v{vT3}, v{vL}, 1, 3")
        A(f"v_xor_b32 v{vT2}, v{vT2}, v{vT3}")
        A(f"v_lshl_add_u32 v{vT}, v{vT}, 7, s{s_off}")
        for q in range(4):
            A(f"v_xor_b32 v{vT3}, {2*q}, v{vT2}")
            A(f"v_lshl_add_u32 v{dst+q}, v{vT3}, 4, v{vT}")

    def tr_addr(dst, hmul, rowb, cgmul, s_off):
        A(f"v_lshrrev_b32 v{vT}, 5, v{vL}")
        A(f"v_bfe_u32 v{vT2}, v{vL}, 2, 2")
        A(f"v_mad_u32_u24 v{vT}, v{vT}, {hmul}, v{vT2}")
        A(f"v_and_b32 v{vT2}, 3, v{vL}")
        A(f"v_lshlrev_b32 v{vT2}, 3, v{vT2}")
        if cgmul:
            A(f"v_bfe_u32 v{vT3}, v{vL}, 4, 1")
            A(f"v_lshl_add_u32 v{vT2}, v{vT3}, {int(math.log2(cgmul))}, v{vT2}")
        A(f"v_lshl_add_u32 v{dst}, v{vT}, {int(math.log2(rowb))}, v{vT2}")
        A(f"v_add_u32 v{dst}, s{s_off}, v{dst}")

    def w128_dma_addr(dst, stride):
        A(f"v_lshrrev_b32 v{vT}, 3, v{vL}")
        if stride == 1024: A(f"v_lshlrev_b32 v{vT}, 10, v{vT}")
        else: A(f"v_mul_u32_u24 v{vT}, {stride}, v{vT}")
        A(f"v_lshrrev_b32 v{vT2}, 2, v{vL}")
        A(f"v_and_b32 v{vT2}, 4, v{vT2}")
        A(f"v_xor_b32 v{vT2}, v{vT2}, v{vL}")
        A(f"v_and_b32 v{vT2}, 7, v{vT2}")
        A(f"v_lshl_add_u32 v{dst}, v{vT2}, 4, v{vT}")

    def w128_tr_addr(dst, hmul, s_off, s_ct=None):
        A(f"v_lshrrev_b32 v{vT}, 5, v{vL}")
        A(f"v_bfe_u32 v{vT2}, v{vL}, 2, 2")
        A(f"v_mad_u32_u24 v{vT}, v{vT}, {hmul}, v{vT2}")
        A(f"v_and_b32 v{vT2}, 3, v{vL}")
        A(f"v_lshlrev_b32 v{vT2}, 3, v{vT2}")
        A(f"v_lshl_add_u32 v{vT}, v{vT}, 7, v{vT2}")
        A(f"v_bfe_u32 v{vT2}, v{vL}, 4, 1")
        A(f"v_lshl_add_u32 v{vT}, v{vT2}, 5, v{vT}")
        A(f"v_bfe_u32 v{vT2}, v{vL}, 3, 1")
        if s_ct is not None: A(f"v_xor_b32 v{vT2}, s{s_ct}, v{vT2}")
        A(f"v_lshl_add_u32 v{vT}, v{vT2}, 6, v{vT}")
        if s_off is None: A(f"v_mov_b32 v{dst}, v{vT}")
        else: A(f"v_add_u32 v{dst}, s{s_off}, v{vT}")

    def v_lane_addr():
        A(f"v_and_b32 v{vT}, 31, v{vL}")
        A(f"v_lshrrev_b32 v{vT2}, 5, v{vL}")
        A(f"v_lshlrev_b32 v{vT2}, 8, v{vT2}")
        A(f"v_lshl_add_u32 v{vV}, v{vT}, 4, v{vT2}")
        A(f"v_add_u32 v{vV}, 1024, v{vV}")
        A(f"v_mov_b32 v{vT2}, {OOB:#x}")
        A(f"v_cmp_gt_u32 s[38:39], 16, v{vT}")
        A(f"v_and_b32 v{vT}, 27, v{vT}")
        A(f"v_mov_b32 v{vT3}, 2048")
        A(f"v_cndmask_b32_e64 v{vV}, v{vT2}, v{vV}, s[38:39]")
        A(f"v_cmp_eq_u32 s[38:39], 16, v{vT}")
        A(f"v_add_u32 v{vV1}, 512, v{vV}")
        A("s_nop 0")
        A(f"v_cndmask_b32_e64 v{vV}, v{vV}, v{vT3}, s[38:39]")
        A(f"v_cndmask_b32_e64 v{vV1}, v{vV1}, v{vT3}, s[38:39]")
        if "zerov" in OPT.get("abl", ""):
            A(f"v_mov_b32 v{vV}, {OOB:#x}")
            A(f"v_mov_b32 v{vV1}, {OOB:#x}")

    def chain(s0, n, FR, ACC, kstride, second, swap):
        def rd(s):
            b = FR + 8 * (s % 4)
            A(f"ds_read_b64_tr_b16 v[{b}:{b+1}], v{vWa} offset:{s*kstride}")
            A(f"ds_read_b64_tr_b16 v[{b+2}:{b+3}], v{vWa} offset:{s*kstride+second}")
            A(f"ds_read_b128 v[{b+4}:{b+7}], v{vXa+(s&3)} offset:{(s>>2)*8192}")
        for s in range(s0, s0 + 3): rd(s)
        for s in range(s0, s0 + n):
            if s + 3 < s0 + n: rd(s + 3)
            A(f"s_waitcnt lgkmcnt({3 * (min(s + 3, s0 + n - 1) - s)})")
            b = FR + 8 * (s % 4)
            c = "0" if s == 0 else vr(ACC, 16)
            if swap: A(f"{MF} {vr(ACC,16)}, {vr(b+4,4)}, {vr(b,4)}, {c}")
            else:    A(f"{MF} {vr(ACC,16)}, {vr(b,4)}, {vr(b+4,4)}, {c}")

    R = int(OPT.get("ring", 4))
    D = int(OPT.get("depth", R - 1))
    G1 = int(OPT.get("g1", 2 * R - 1 if R == 4 else 7))
    CHK = G1 - D
    assert 0 < CHK <= R and D < R
    SL = [72, 84] + [176 + 12 * i for i in range(R - 2)]
    Q = 96; O = 112
    KT0 = 176 + 12 * (R - 2) if R == 4 else SL[R - 2]
    w128_dma_addr(vWd, 1024)
    A(f"s_lshl_b32 s{sA1}, s{sW}, 14")
    A(f"s_lshl_b32 s{sT}, s{sHG}, 7")
    A(f"s_add_u32 s{sA1}, s{sA1}, s{sT}")
    A(f"s_lshl_b32 s{sA2}, s{sW}, 11")
    A(f"s_add_u32 s{sA2}, s{sA2}, {L_WQ}")
    A("s_waitcnt lgkmcnt(0)")
    srd(4, P_X, 2048 * 1024)
    srd(8, P_WQ, 512 * 1024)
    if "cpf" in OPT:
        A(f"s_cmp_lg_u32 s{sW}, 3")
        A("s_cbranch_scc1 L_nocpf")
        A("s_getpc_b64 s[38:39]")
        A.label("L_pc")
        A(f"s_sub_u32 s38, s38, L_pc-{k}")
        A("s_subb_u32 s39, s39, 0")
        A(f"s_lshr_b32 s{sT}, s2, 3")
        A(f"v_lshlrev_b32 v{vT}, 5, v{vL}")
        A(f"v_add_u32 v{vT}, s{sT}, v{vT}")
        A(f"v_lshlrev_b32 v{vT}, 7, v{vT}")
        A(f"v_cmp_gt_u32 vcc, L_code_end-{k}, v{vT}")
        A(f"v_mov_b32 v{vT3}, s39")
        A(f"v_add_co_u32 v{vT}, s[40:41], s38, v{vT}")
        A("s_nop 1")
        A(f"v_addc_co_u32 v{vT2}, s[40:41], 0, v{vT3}, s[40:41]")
        A("s_mov_b64 exec, vcc")
        A(f"global_load_dword v254, v[{vT}:{vT2}], off")
        A("s_mov_b64 exec, -1")
        A.label("L_nocpf")
    if ROT and "map1" in OPT:
        A(f"s_and_b32 s{sQR}, s{sRB}, 3")
        A(f"s_lshl_b32 s{sQR}, s{sQR}, 1")
        A(f"s_bfe_u32 s{sT}, s{sRB}, 0x10002")
        A(f"s_add_u32 s{sQR}, s{sQR}, s{sT}")
    elif ROT: A(f"s_and_b32 s{sQR}, s{sRB}, 7")
    else: A(f"s_mov_b32 s{sQR}, 0")
    if "pf0" in OPT:
        A(f"s_lshr_b32 s{sT}, s2, 3")
        A(f"s_cmp_ge_u32 s{sW}, 2")
        A("s_cbranch_scc1 L_a_pfq")
        A(f"s_bfe_u32 s{sT2}, s2, 0x20001")
        A(f"s_lshl_b32 s{sT2}, s{sT2}, 19")
        A(f"s_lshl_b32 s{sT}, s{sT}, 14")
        A(f"s_add_u32 s{sT2}, s{sT2}, s{sT}")
        A(f"s_lshl_b32 s{sT}, s{sW}, 13")
        A(f"s_add_u32 s{sT2}, s{sT2}, s{sT}")
        A(f"v_lshlrev_b32 v{vT}, 7, v{vL}")
        A(f"buffer_load_dword v254, v{vT}, s[4:7], s{sT2} offen sc1")
        A("s_branch L_a_pfd")
        A.label("L_a_pfq")
        A(f"s_cmp_eq_u32 s{sW}, 3")
        A("s_cbranch_scc1 L_a_pfd")
        A(f"s_and_b32 s{sT2}, s2, 1")
        A(f"s_lshl_b32 s{sT2}, s{sT2}, 9")
        A(f"s_lshl_b32 s{sT}, s{sT}, 14")
        A(f"s_add_u32 s{sT2}, s{sT2}, s{sT}")
        A(f"v_lshrrev_b32 v{vT}, 2, v{vL}")
        A(f"v_lshlrev_b32 v{vT}, 10, v{vT}")
        A(f"v_and_b32 v{vT2}, 3, v{vL}")
        A(f"v_lshl_add_u32 v{vT}, v{vT2}, 7, v{vT}")
        A(f"buffer_load_dword v254, v{vT}, s[8:11], s{sT2} offen sc1")
        A.label("L_a_pfd")
    sRI = 55
    def a_setup():
        srd(12, P_WS, WS_SIZE)
        A(f"s_and_b32 s{sRI}, s{sW}, 1")
        A(f"s_lshl_b32 s{sT2}, s{sRI}, 12")
        x_frag_addr(vXa, sT2)
        A(f"s_lshr_b32 s{sJ}, s{sW}, 1")
        A(f"s_mov_b32 s{sT2}, {L_WQ}")
        w128_tr_addr(vWa, 8, sT2, sJ)
        v_lane_addr()
        for q in range(4):
            for r in range(0, 10, 2): A(f"v_pk_mov_b32 v[{O+16*q+r}:{O+16*q+r+1}], 0, 0")
    if OPT.get("alate", "1") == "1": a_setup()
    if OPT.get("ahold"):
        A(f"s_bitcmp1_b32 s{sHG}, 1")
        A("s_cbranch_scc1 L_a_go")
        team_wait(int(OPT["ahold"]), 4, 1)
        A.label("L_a_go")
    for kb in range(8):
        dma_x(kb)
        A(f"s_lshl_b32 s{sT2}, s{sQR}, 13")
        A(f"s_add_u32 m0, s{sA2}, s{sT2}")
        A(f"s_lshl_b32 s{sT2}, s{sQR}, 16")
        A(f"s_add_u32 s{sT2}, s{sT2}, s{sA1}")
        A(f"buffer_load_dwordx4 v{vWd}, s[8:11], s{sT2} offen lds")
        A(f"s_add_u32 m0, m0, 1024")
        A(f"s_add_u32 s{sT2}, s{sT2}, 8192")
        A(f"buffer_load_dwordx4 v{vWd}, s[8:11], s{sT2} offen lds")
        if kb < 7:
            A(f"s_add_u32 s{sQR}, s{sQR}, 1")
            A(f"s_and_b32 s{sQR}, s{sQR}, 7")
    stamp()
    if OPT.get("alate", "1") != "1": a_setup()
    A("s_waitcnt vmcnt(0)")
    team_add(5)
    team_wait(5, 8, 1)
    stamp()
    if 'dq' in OPT: A(f"s_sleep {OPT['dq']}")
    chain(0, 32, 200, S0, 2048, 512, False)
    stamp()
    A(f"s_mov_b32 s{sT2}, {f2u(CSCALE):#x}")
    A(f"s_lshl_b32 s{sT3}, s{sRI}, 12")
    A(f"s_lshl_b32 s{sT4}, s{sJ}, 11")
    A(f"s_add_u32 s{sT4}, s{sT4}, s{sT3}")
    A(f"s_add_u32 s{sT4}, s{sT4}, {L_QX}")
    A(f"s_add_u32 s{sT3}, s{sT3}, {L_QX}")
    A(f"v_add_u32 v{vT}, s{sT4}, v{vK}")
    A(f"v_add_u32 v{vT3}, s{sT3}, v{vK}")
    sKB, sKE = 37, 54
    A(f"s_mul_i32 s{sKB}, s{sJ}, {32*TB}")
    A(f"s_add_u32 s{sKE}, s{sKB}, {32*TB}")
    A(f"s_mul_i32 s{sA0}, s{sRB}, {TB}")
    A(f"s_add_u32 s{sKV}, s{sKB}, s{sA0}")
    for r in range(0, 4, 2): A(f"v_pk_mov_b32 v[{SL[R-1]+8+r}:{SL[R-1]+9+r}], 0, 0")
    assert D < R - 1 or R == 4
    A(f"v_mov_b32 v{vIDX}, 0xdddddddd")
    A("s_nop 0")
    for r in range(16): A(f"v_mul_f32 v{S0+r}, s{sT2}, v{S0+r}")
    for r in range(8): A(f"v_cvt_pk_bf16_f32 v{S1+r}, v{S0+2*r}, v{S0+2*r+1}")
    A(f"ds_write_b128 v{vT}, {vr(S1,4)}")
    A(f"ds_write_b128 v{vT}, {vr(S1+4,4)} offset:1024")
    A("s_waitcnt lgkmcnt(0)")
    team_add(6)
    stamp()
    team_wait(11, 1, int(OPT.get('rs', 1)))
    stamp()
    def kv_load(slot, part):
        b = SL[slot]
        m = "" if "plain" in OPT else "sc1"
        if part == 0: return f"buffer_load_dwordx4 {vr(b,4)}, v{vK}, s[12:15], s{sKV} offen {m}"
        if part == 1: return f"buffer_load_dwordx4 {vr(b+4,4)}, v{vV}, s[12:15], s{sKV} offen {m}"
        return f"buffer_load_dwordx4 {vr(b+8,4)}, v{vV1}, s[12:15], s{sKV} offen {m}"
    KADV = [f"s_add_u32 s{sKV}, s{sKV}, {TB}", f"s_cmp_eq_u32 s{sKV}, s{sKE}", f"s_cselect_b32 s{sKV}, s{sKB}, s{sKV}"]
    A(f"buffer_load_dwordx4 {vr(KT0,4)}, v{vK}, s[12:15], s{sA0} offen sc1")
    for t in range(D):
        for part in range(3): A(kv_load(t, part))
        for x in KADV: A(x)
    team_wait(6, 4, 1)
    A(f"s_lshl_b32 s{sT2}, s{sJ}, 11")
    A(f"v_add_u32 v8, s{sT2}, v{vT3}")
    A(f"v_xor_b32 v7, 2048, v8")
    for q in range(4): A(f"ds_read_b128 {vr(Q+4*q,4)}, v{7 + q//2} offset:{(q&1)*1024}")
    A(f"s_mul_i32 s{sT2}, s{sW}, 4608")
    A(f"s_add_u32 s{sT2}, s{sT2}, {L_COMB}")
    A(f"s_cmp_eq_u32 s{sW}, 3")
    A(f"s_cselect_b32 s{sT2}, {L_COMB3}, s{sT2}")
    A(f"s_xor_b32 s{sT3}, s{sW}, 2")
    A(f"s_mul_i32 s{sT3}, s{sT3}, 4608")
    A(f"s_add_u32 s{sT3}, s{sT3}, {L_COMB}")
    A(f"s_cmp_eq_u32 s{sW}, 1")
    A(f"s_cselect_b32 s{sT3}, {L_COMB3}, s{sT3}")
    A(f"v_lshlrev_b32 v14, 2, v{vL}")
    A(f"v_add_u32 v11, s{sT2}, v{vK}")
    A(f"v_add_u32 v12, s{sT2}, v14")
    A(f"v_add_u32 v13, s{sT3}, v{vK}")
    A(f"v_add_u32 v14, s{sT3}, v14")
    A(f"s_lshl_b32 s{sA2}, s{sRB}, 1")
    A(f"s_add_u32 s{sA2}, s{sA2}, s{sRI}")
    A(f"s_lshl_b32 s{sA2}, s{sA2}, 6")
    A(f"s_lshl_b32 s{sT4}, s{sHG}, 2")
    A(f"s_add_u32 s{sA2}, s{sA2}, s{sT4}")
    A(f"s_lshl_b32 s{sT4}, s{sJ}, 1")
    A(f"s_add_u32 s{sA2}, s{sA2}, s{sT4}")
    A(f"s_lshl_b32 s{sA2}, s{sA2}, 10")
    A(f"s_add_u32 s{sA2}, s{sA2}, {WS_O:#x}")
    A(f"v_mov_b32 v{vT3}, {L_CNT + 64}")
    A(f"ds_read_b32 v{vT3}, v{vT3}")
    A(f"s_mov_b32 s{sCnt}, {32 // R - 1}")
    A("s_mov_b64 vcc, -1")
    A("s_waitcnt lgkmcnt(0)")
    team_add(7)
    A(f"v_readfirstlane_b32 s{sNON}, v{vT3}")
    A(f"s_waitcnt vmcnt({3*D})")
    T0 = [S0, S1, KT0 + 4, KT0 + 20] if R == 4 else [S0, S1, O + 32, O + 48]
    for q in range(4): A(f"{MF} {vr(T0[q],16)}, {vr(KT0,4)}, {vr(Q+4*q,4)}, 0")
    A("s_nop 7")
    A("s_nop 0")
    lane_max_all([T0[q] + r for q in range(4) for r in range(4)], vT, vT2)
    A(f"v_sub_f32 v{NEG}, 0, v{vT}")
    A(f"v_sub_f32 v{NEG+1}, 0, v{vT}")
    for r in range(2, 16, 2): A(f"v_pk_mov_b32 v[{NEG+r}:{NEG+r+1}], v[{NEG}:{NEG+1}], v[{NEG}:{NEG+1}] op_sel:[0,1]")
    A(f"s_waitcnt vmcnt({3*(D-1)})")
    A("s_nop 0")
    A(f"{MF} {vr(S0,16)}, {vr(SL[0],4)}, {vr(Q,4)}, {vr(NEG,16)}")
    if R == 4:
        A("s_nop 7")
        A("s_nop 3")
    else:
        for q in (2, 3):
            for r in range(0, 10, 2): A(f"v_pk_mov_b32 v[{O+16*q+r}:{O+16*q+r+1}], 0, 0")
        A("s_nop 1")
    stamp()
    if PROF: A("s_memtime s[68:69]")
    A.raw(".p2align 6")
    A.label("L_aloop")
    if PROF:
        A("s_waitcnt lgkmcnt(0)")
        A(f"s_add_u32 m0, s{sCnt}, 1")
        A("s_nop 0")
        A(f"v_writelane_b32 v255, s68, m0")
        A("s_memtime s[68:69]")
    for kb in range(R):
        for q in range(4):
            Sc, Sn = (S0, S1) if q % 2 == 0 else (S1, S0)
            cur, prv, nxt = SL[kb], SL[(kb - 1) % R], SL[(kb + 1) % R]
            Kq = cur if q < 3 else nxt
            nq = (q + 1) % 4
            Vp = cur if q > 0 else prv
            Op = O + 16 * ((q - 1) % 4); Oc = O + 16 * q
            ex = {}
            if q < 3: ex["X2"] = kv_load((kb + D) % R, q)
            if q == 0 and kb == CHK:
                ex["X1"] = "s_cbranch_vccnz L_afirst\nL_afirst_ret:"
            if q == 2: ex["X4"] = KADV[0]
            if q == 3:
                ex["X1"] = f"s_waitcnt vmcnt({3*(D-1)})"
                ex["X2"] = KADV[1]
                ex["X4"] = KADV[2]
                if kb == R - 1: ex["X4"] += f"\ns_sub_u32 s{sCnt}, s{sCnt}, 1"
            if "noload" in OPT.get("abl", ""):
                for x in ("X0", "X1", "X2", "X3", "X4"): ex.pop(x, None)
            if "nosalu" in OPT.get("abl", ""):
                for x in ("X1", "X2"): ex.pop(x, None)
            tile_code(Sc, f"{MF} {vr(Sn,16)}, {vr(Kq,4)}, {vr(Q+4*nq,4)}, {'0' if 'c0' in OPT.get('abl', '') else vr(NEG,16)}",
                      pv(Op, Vp + 8, Sn + 8), pv(Op, Vp + 4, Sn) if "pvhead" in OPT else pv(Oc, cur + 4, Sc), ex)
    if CHK == R:
        A("s_cbranch_vccnz L_afirst")
    A("s_cbranch_scc0 L_aloop")
    A("s_nop 0")
    A(pv(O + 48, SL[R-1] + 8, S1 + 8))
    for i in range(2):
        A(f"ds_write_b128 v11, {vr(O+16*i,4)} offset:{i*2304}")
        A(f"ds_write_b128 v11, {vr(O+16*i+4,4)} offset:{i*2304+1024}")
        A(f"ds_write_b32 v12, v{O+16*i+8} offset:{i*2304+2048}")
    stamp()
    A(f"s_mov_b32 s{sKV}, 0")
    A(f"s_mov_b32 s{sCnt}, 64")
    A("s_waitcnt lgkmcnt(0)")
    A("s_barrier")
    for i in range(2):
        A(f"ds_read_b32 v{S0+16*i+8}, v14 offset:{i*2304+2048}")
        A(f"ds_read_b128 {vr(S0+16*i,4)}, v13 offset:{i*2304}")
        A(f"ds_read_b128 {vr(S0+16*i+4,4)}, v13 offset:{i*2304+1024}")
    OK_ = O + 32
    def fin(i):
        o = OK_ + 16 * i; t = O + 16 * i
        A(f"v_rcp_f32 v{t+8}, v{o+8}")
        A("s_nop 0")
        for r in range(8): A(f"v_mul_f32 v{t+r}, v{o+r}, v{t+8}")
        for r in range(4): A(f"v_cvt_pk_bf16_f32 v{P+4*i+r}, v{t+2*r}, v{t+2*r+1}")
        A(f"buffer_store_dwordx4 {vr(P+4*i,4)}, v{vK}, s[12:15], s{sA2} offen offset:{i*1024} sc1")
    for i in range(2):
        o = OK_ + 16 * i
        A(f"s_waitcnt lgkmcnt({3*(1-i)})")
        A(f"v_add_f32 v{o+8}, v{o+8}, v{S0+16*i+8}")
        for r in range(0, 8, 2): A(f"v_pk_add_f32 v[{o+r}:{o+r+1}], v[{o+r}:{o+r+1}], v[{S0+16*i+r}:{S0+16*i+r+1}]")
        fin(i)
    for i in range(2):
        range_check(OK_ + 16 * i, f"L_a_slow{i}")
        A.label(f"L_a_ok{i}")
    A("s_waitcnt vmcnt(0)")
    stamp()
    A(f"s_lshl_b32 s{sA2}, s{sRB}, 8")
    A(f"s_lshl_b32 s{sT}, s{sHG}, 5")
    A(f"s_add_u32 s{sA2}, s{sA2}, s{sT}")
    A(f"s_add_u32 s{sA2}, s{sA2}, {FL_OA:#x}")
    A("s_barrier")
    A(f"s_cmp_lg_u32 s{sW}, 0")
    A("s_cbranch_scc1 L_a_noflag")
    flag_store(sA2)
    A.label("L_a_noflag")
    tail_dma("A")
    for m in range(len(MS)):
        A(f"s_waitcnt vmcnt({sum(MS[m+1:]) // 4})")
        A("s_barrier")
    if PROF:
        A("s_lshl_b32 s68, s2, 2")
        A(f"s_add_u32 s68, s68, s{sW}")
        A("s_lshl_b32 s68, s68, 8")
        A(f"s_add_u32 s68, s68, {WS_PROF + 0x80000:#x}")
        A(f"v_lshlrev_b32 v248, 2, v{vL}")
        A("buffer_store_dword v255, v248, s[12:15], s68 offen")
    stamp_flush()
    A("s_endpgm")
    A.label("L_afirst")
    team_wait(9, 1, 1)
    A("s_mov_b64 vcc, 0")
    A("s_branch L_aloop" if CHK == R else "s_branch L_afirst_ret")
    for i in range(2):
        slow_path(f"L_a_slow{i}", f"L_a_re{i}", Q + 8 + 4 * i, OK_ + 16 * i, sKV, sCnt, TB, False, SL[0], SL[0] + 4, None)
        A.label(f"L_a_re{i}")
        fin(i)
        A(f"s_branch L_a_ok{i}")

    NST[0] = 2
    if "bfirst" in OPT: A.raw("; @@A_END")
    A.label("L_bteam")
    A(f"s_setprio {OPT.get('bprio', 2)}")
    A(f"s_lshl_b32 s{sA2}, s{sJ}, 10")
    A("s_mov_b32 s6, 0x200000")
    A("s_mov_b32 s7, 0x00020000")
    A(f"s_bitcmp0_b32 s{sHG}, 1")
    A("s_cselect_b32 s42, 16384, 0")
    A("s_mov_b32 s43, 0x00020000")
    A(f"s_or_b32 s{sT3}, s2, s{sJ}")
    A(f"s_cmp_lt_u32 s{sHG}, 4")
    A("s_waitcnt lgkmcnt(0)")
    A(f"s_cselect_b32 s40, s{P_WK}, s{P_WV}")
    A(f"s_cselect_b32 s41, s{P_WK+1}, s{P_WV+1}")
    A(f"s_mov_b32 s4, s{P_X}")
    A(f"s_and_b32 s5, s{P_X+1}, 0xffff")
    A("s_and_b32 s41, s41, 0xffff")
    if "k0st" in OPT: kstamp()
    if "tfirst" in OPT:
        A(f"s_bitcmp0_b32 s{sHG}, 1")
        A("s_cbranch_scc1 L_b_notf")
        A(f"s_cmp_lt_u32 s{sJ}, 2")
        A(f"s_cselect_b32 s8, s{P_WK}, s{P_WS}")
        A(f"s_cselect_b32 s9, s{P_WK+1}, s{P_WS+1}")
        A(f"s_cmp_eq_u32 s{sJ}, 1")
        A(f"s_cselect_b32 s8, s{P_WV}, s8")
        A(f"s_cselect_b32 s9, s{P_WV+1}, s9")
        A(f"s_cmp_eq_u32 s{sJ}, 2")
        A(f"s_cselect_b32 s8, s{P_DBG}, s8")
        A(f"s_cselect_b32 s9, s{P_DBG+1}, s9")
        A("s_and_b32 s9, s9, 0xffff")
        A("s_mov_b32 s10, 256")
        A("s_mov_b32 s11, 0x00020000")
        A(f"v_mov_b32 v{vT}, 128")
        A("s_mov_b64 exec, 1")
        A(f"buffer_load_dword v254, v{vT}, s[8:11], 0 offen sc1")
        A("s_mov_b64 exec, -1")
        A.label("L_b_notf")
    for kb in range(8):
        dma_x_plain(kb)
        if "k0st" in OPT and kb in (0, 1): kstamp()
        if kb % 2 == 0:
            A(f"s_add_u32 m0, s{sA2}, {L_WKV + kb*2048}")
            A(f"s_add_u32 s{sT}, s{sA2}, {kb*2048}")
            A(f"buffer_load_dwordx4 v{vK}, s[40:43], s{sT} offen lds")
    A(f"s_or_b32 s{sT2}, s22, 1")
    A("s_mov_b32 s3, s22")
    srd(20, P_DBG, 256)
    srd(12, P_WS, WS_SIZE)
    A(f"s_cmp_lg_u32 s{sT3}, 1")
    A("s_cbranch_scc1 L_b_nononce")
    A(f"s_cmp_lg_u32 s2, 0")
    A("s_cbranch_scc1 L_b_nononce")
    A(f"v_mov_b32 v{vT}, s{sT2}")
    A(f"v_mov_b32 v{vT2}, 0")
    A("s_mov_b64 exec, 1")
    A(f"buffer_store_dword v{vT}, v{vT2}, s[20:23], 0 offen sc1")
    A("s_mov_b64 exec, -1")
    A.label("L_b_nononce")
    if "notouch" not in OPT:
        A(f"s_cmp_lg_u32 s{sJ}, 3")
        A("s_cbranch_scc1 L_b_notouch")
        A(f"v_lshlrev_b32 v{vT}, 21, v{vL}")
        if "touchfl" in OPT:
            A(f"s_lshl_b32 s{sT2}, s2, 7")
            A(f"s_add_u32 s{sT2}, s{sT2}, {WS_FL - 2048:#x}")
            A(f"v_writelane_b32 v{vT}, s{sT2}, 5")
            if NREP > 1:
                A(f"s_add_u32 s{sT2}, s{sT2}, 0x10000")
                A(f"v_writelane_b32 v{vT}, s{sT2}, 6")
            A(f"s_mov_b64 exec, {0x7f if NREP > 1 else 0x3f}")
        else:
            A("s_mov_b64 exec, 0x1f")
        A(f"buffer_load_dword v254, v{vT}, s[12:15], 0 offen offset:2048 sc1")
        A("s_mov_b64 exec, -1")
        A.label("L_b_notouch")
    stamp()
    A(f"s_and_b32 s{sT4}, s{sHG}, 1")
    A(f"s_lshl_b32 s{sT2}, s{sT4}, 12")
    x_frag_addr(vXa, sT2)
    A(f"s_mov_b32 s{sT2}, {L_WKV}")
    tr_addr(vWa, 8, 32, 0, sT2)
    v_lane_addr()
    vN = 14
    A(f"v_mov_b32 v{vN+1}, 0")
    def nonce_load(): A(f"buffer_load_dword v{vN}, v{vN+1}, s[20:23], 0 offen sc1")
    def nonce_wait():
        l = A.uid("nw"); d = A.uid("nwd")
        A(f"s_mov_b32 s{sSP}, {SPIN}")
        A.label(l)
        A("s_waitcnt vmcnt(0)")
        A(f"v_readfirstlane_b32 s{sNON}, v{vN}")
        r = A.uid("nwr")
        A("s_nop 1")
        A(f"s_cmp_eq_u32 s{sNON}, 0")
        A(f"s_cbranch_scc1 {r}")
        A(f"s_sub_u32 s{sT}, s3, s{sNON}")
        A(f"s_cmp_lt_i32 s{sT}, 1000")
        A(f"s_cbranch_scc1 {d}")
        A(f"s_cmp_lt_u32 s{sSP}, {SPIN - 64}")
        A(f"s_cbranch_scc1 {d}")
        A.label(r)
        A(f"s_sub_u32 s{sSP}, s{sSP}, 1")
        timeout_branch(d)
        nonce_load()
        A(f"s_branch {l}")
        A.label(d)
    ACC = 16
    A(f"s_lshl_b32 s{sRT0}, s{sRB}, 1")
    A(f"s_add_u32 s{sA0}, s{sRT0}, s{sT4}")
    A(f"s_mul_i32 s{sA0}, s{sA0}, {TB}")
    A(f"s_lshl_b32 s{sA1}, s{sRB}, 2")
    A(f"s_add_u32 s{sA1}, s{sA1}, s{sT4}")
    A(f"s_lshr_b32 s{sT2}, s{sHG}, 2")
    A(f"s_lshl_b32 s{sT2}, s{sT2}, 1")
    A(f"s_add_u32 s{sA1}, s{sA1}, s{sT2}")
    A(f"s_lshl_b32 s{sA1}, s{sA1}, {3 if 'dense' in OPT else 5}")
    A(f"s_add_u32 s{sA1}, s{sA1}, {FL_KVA:#x}")
    A("s_waitcnt vmcnt(6)")
    kstamp()
    ksv = NST[0]
    A(f"s_cmp_lg_u32 s{sJ}, 0")
    A("s_cbranch_scc1 L_b_idle")
    A(f"s_bitcmp1_b32 s{sHG}, 1")
    A("s_cbranch_scc1 L_b_idle")
    def kv_unit(swap):
        NST[0] = ksv
        team_wait(4, 3, KS)
        kstamp()
        chain(0, 16, 64, ACC, 512, 128, swap)
        kstamp()
        A("s_waitcnt vmcnt(0)")
        kstamp()
        nonce_load()
        if swap: A(f"buffer_store_dwordx4 {vr(100,4)}, v8, s[12:15], s{sA0} offen offset:2048 sc1")
        team_wait(8, 3, KS)
        team_add(5)
        kstamp()
        chain(16, 16, 64, ACC, 512, 128, swap)
        kstamp()
    A(f"s_cmp_ge_u32 s{sHG}, 4")
    A("s_cbranch_scc1 L_b_vunit")
    kv_unit(False)
    A("s_nop 7")
    A("s_nop 3")
    for r in range(4): A(f"v_cvt_pk_bf16_f32 v{64+r}, v{ACC+2*r}, v{ACC+2*r+1}")
    A(f"buffer_store_dwordx4 {vr(64,4)}, v{vK}, s[12:15], s{sA0} offen sc1")
    A("s_branch L_b_kvpub")
    A.label("L_b_vunit")
    A(f"v_lshrrev_b32 v{vT2}, 5, v{vL}")
    A(f"v_lshlrev_b32 v7, 8, v{vT2}")
    A(f"v_and_b32 v{vT2}, 15, v{vL}")
    A(f"v_lshl_add_u32 v7, v{vT2}, 4, v7")
    A(f"v_bfe_u32 v{vT2}, v{vL}, 4, 1")
    A(f"v_lshl_add_u32 v7, v{vT2}, 30, v7")
    A(f"v_cmp_gt_u32 s[38:39], 8, v{vL}")
    A(f"v_mov_b32 v{vT2}, {OOB:#x}")
    for r in range(4): A(f"v_mov_b32 v{100+r}, {ONES:#x}")
    A(f"v_cndmask_b32_e64 v8, v{vT2}, v{vK}, s[38:39]")
    kv_unit(True)
    A("s_nop 7")
    A("s_nop 3")
    for s in range(2):
        for r in range(4): A(f"v_cvt_pk_bf16_f32 v{64+4*s+r}, v{ACC+8*s+2*r}, v{ACC+8*s+2*r+1}")
        A("s_nop 1")
        A(f"v_permlane32_swap_b32 v{64+4*s}, v{66+4*s}")
        A(f"v_permlane32_swap_b32 v{65+4*s}, v{67+4*s}")
        A(f"buffer_store_dwordx4 {vr(64+4*s,4)}, v7, s[12:15], s{sA0} offen offset:{1024+s*512} sc1")
    A.label("L_b_kvpub")
    nonce_wait()
    kstamp()
    if 'dkv' in OPT: A(f"s_sleep {OPT['dkv']}")
    flag_store(sA1, NREP)
    A("s_branch L_b_pdone")
    A.label("L_b_idle")
    team_add(4)
    if KVP:
        NST[0] = ksv
        for _ in range(6): kstamp()
    A(f"s_cmp_eq_u32 s{sJ}, 3")
    A("s_cbranch_scc1 L_b_idle1")
    A("s_waitcnt vmcnt(0)")
    A.label("L_b_idle1")
    A("s_waitcnt vmcnt(1)")
    nonce_load()
    team_add(5)
    team_add(8)
    nonce_wait()
    A(f"v_mov_b32 v{vT}, {L_CNT + 64}")
    A(f"ds_write_b32 v{vT}, v{vN}")
    A.label("L_b_pdone")
    stamp()
    if KVP: STOFF[0] = True
    srd(8, P_WQKV, 512 * 3072)
    srd(40, P_GATE, 1024)
    A(f"s_mov_b32 m0, {L_GATE}")
    A(f"s_lshl_b32 s{sHEAD}, s{sHG}, 2")
    A(f"buffer_load_dwordx4 v{vK}, s[40:43], 0 offen lds")
    A(f"s_add_u32 s{sHEAD}, s{sHEAD}, s{sJ}")
    vD1, vX0, vW1, vW2, vG = 7, 9, 13, 8, 15
    w128_dma_addr(vD1, 3072)
    A(f"s_lshl_b32 s{sA0}, s{sJ}, 10")
    A(f"s_lshl_b32 s{sT2}, s{sHG}, 7")
    A(f"s_add_u32 s{sA0}, s{sA0}, s{sT2}")
    A(f"s_lshl_b32 s{sA1}, s{sJ}, 14")
    A(f"s_add_u32 s{sA1}, s{sA1}, {L_WQ}")
    sP3W = 37
    A(f"s_add_u32 s{sP3W}, s{sA0}, {512*3072}")
    if ROT:
        A(f"s_and_b32 s{sT3}, s{sRB}, 3")
        A(f"s_cmp_eq_u32 s{sJ}, 3")
        A(f"s_cselect_b32 s{sT3}, 0, s{sT3}")
        A(f"s_lshl_b32 s{sT2}, s{sT3}, 14")
        A(f"s_mul_i32 s{sT3}, s{sT3}, {128*3072}")
        A(f"s_add_u32 s{sA0}, s{sA0}, s{sT3}")
    else:
        A(f"s_mov_b32 s{sT2}, 0")
    x_frag_addr(vX0, sT2)
    w128_tr_addr(vW1, 8, sA1)
    A(f"v_xor_b32 v{vW2}, 64, v{vW1}")
    AC, FR = 16, 80
    for r in range(0, 64, 2): A(f"v_pk_mov_b32 v[{AC+r}:{AC+r+1}], 0, 0")
    A(f"s_mov_b32 s{sCnt}, 4")
    A(f"s_cmp_eq_u32 s{sJ}, 3")
    A("s_cbranch_scc1 L_b_gwave")
    if "touchw" in OPT:
        A(f"s_cmp_lg_u32 s{sJ}, 1")
        A("s_cbranch_scc1 L_b_notw")
        A(f"v_lshlrev_b32 v{vT}, 16, v{vL}")
        A(f"buffer_load_dword v254, v{vT}, s[8:11], 0 offen sc1")
        srd(40, P_BWO, 512 * 1024)
        A(f"buffer_load_dword v254, v{vT}, s[40:43], 0 offen sc1")
        srd(40, P_AWO, 512 * 1024)
        A(f"buffer_load_dword v254, v{vT}, s[40:43], 0 offen sc1")
        A.label("L_b_notw")
    if "p3early" in OPT: team_wait(6, 4, 1)
    else: team_wait(7, 4, 2)
    stamp()
    if "nob" in OPT: A("s_branch L_b_skip")
    if "pf" in OPT:
        A(f"s_lshr_b32 s{sT}, s2, 3")
        A(f"s_and_b32 s{sT3}, s2, 1")
        A(f"s_lshl_b32 s{sT3}, s{sT3}, 9")
        A(f"s_mul_i32 s{sT2}, s{sT}, {16*3072}")
        A(f"s_add_u32 s{sT2}, s{sT2}, s{sT3}")
        A(f"s_lshl_b32 s{sT4}, s{sJ}, 10")
        A(f"s_add_u32 s{sT2}, s{sT2}, s{sT4}")
        A(f"v_lshrrev_b32 v{vT}, 2, v{vL}")
        A(f"v_and_b32 v{vT2}, 3, v{vL}")
        A(f"v_lshlrev_b32 v{vT2}, 7, v{vT2}")
        A(f"v_lshl_add_u32 v{vT3}, v{vT}, 10, v{vT2}")
        A(f"v_mul_u32_u24 v{vT}, 3072, v{vT}")
        A(f"v_add_u32 v{vT}, v{vT}, v{vT2}")
        A(f"buffer_load_dword v254, v{vT}, s[8:11], s{sT2} offen sc1")
        A(f"s_cmp_eq_u32 s{sJ}, 2")
        A("s_cbranch_scc1 L_b_nopf")
        A(f"s_cmp_eq_u32 s{sJ}, 0")
        A(f"s_cselect_b32 s40, s{P_BWO}, s{P_AWO}")
        A(f"s_cselect_b32 s41, s{P_BWO+1}, s{P_AWO+1}")
        A("s_and_b32 s41, s41, 0xffff")
        A(f"s_mov_b32 s42, {512*1024:#x}")
        A(f"s_lshl_b32 s{sT2}, s{sT}, 14")
        A(f"s_add_u32 s{sT2}, s{sT2}, s{sT3}")
        A(f"buffer_load_dword v254, v{vT3}, s[40:43], s{sT2} offen sc1")
        A.label("L_b_nopf")
    def p3_dma(slot):
        A(f"s_add_u32 m0, s{sA1}, {slot*2048}")
        A(f"s_add_u32 s{sT2}, s{sA0}, {8*3072}")
        A(f"buffer_load_dwordx4 v{vD1}, s[8:11], s{sA0} offen lds")
        A(f"s_add_u32 m0, s{sA1}, {slot*2048+1024}")
        A(f"s_add_u32 s{sA0}, s{sA0}, {16*3072}")
        A(f"buffer_load_dwordx4 v{vD1}, s[8:11], s{sT2} offen lds")
    def p3_wrap():
        A(f"s_cmp_ge_u32 s{sA0}, s{sP3W}")
        A(f"s_cselect_b32 s{sT2}, {512*3072}, 0")
        A(f"s_sub_u32 s{sA0}, s{sA0}, s{sT2}")
    def p3_rd(i):
        if "nop3rd" in OPT.get("abl", ""): return
        b = FR + 16 * (i & 1); sl = (i % 8) * 2048
        if i == 8:
            for q in range(4):
                A(f"v_add_u32 v{vX0+q}, 16384, v{vX0+q}")
                A(f"v_and_b32 v{vX0+q}, 0xffff, v{vX0+q}")
        A(f"ds_read_b64_tr_b16 v[{b}:{b+1}], v{vW1} offset:{sl}")
        A(f"ds_read_b64_tr_b16 v[{b+2}:{b+3}], v{vW1} offset:{sl+512}")
        A(f"ds_read_b128 v[{b+8}:{b+11}], v{vX0+(i&3)} offset:{((i%8)>>2)*8192}")
        A(f"ds_read_b128 v[{b+12}:{b+15}], v{vX0+(i&3)} offset:{((i%8)>>2)*8192+4096}")
        A(f"ds_read_b64_tr_b16 v[{b+4}:{b+5}], v{vW2} offset:{sl}")
        A(f"ds_read_b64_tr_b16 v[{b+6}:{b+7}], v{vW2} offset:{sl+512}")
    LA = int(OPT.get("p3d", 8))
    for s in range(LA): p3_dma(s)
    if OPT.get("il") != "2":
        A(f"s_waitcnt vmcnt({2*LA-2})")
        p3_rd(0)
    def p3_loop_il(name, swap):
        A.label(name)
        for i in range(8):
            b = FR + 16 * (i & 1)
            mark = len(A.lines); p3_rd(i + 1); rd = A.lines[mark:]; del A.lines[mark:]
            pre = [l for l in rd if "ds_read" not in l]; rd = [l for l in rd if "ds_read" in l]
            mf = []
            for ct in range(2):
                for ri in range(2):
                    a = AC + 16 * (2 * ct + ri); wv, xv = vr(b + 4 * ct, 4), vr(b + 8 + 4 * ri, 4)
                    mf.append(f"{MF} {vr(a,16)}, {xv if swap else wv}, {wv if swap else xv}, {vr(a,16)}")
            A("s_waitcnt lgkmcnt(0)")
            A(mf[0])
            if i == (8 - LA) % 8:
                p3_wrap()
                A(f"s_cmp_eq_u32 s{sCnt}, 1")
                A(f"s_cselect_b32 s{sA0}, {OOB:#x}, s{sA0}")
            p3_dma((i + LA) % 8)
            A(mf[1])
            for l in pre: A(l)
            A(f"s_waitcnt vmcnt({2*LA-2})")
            for l in rd[:3]: A(l)
            if PACE: A(f"s_nop {PACE-1}")
            A(mf[2])
            for l in rd[3:]: A(l)
            if PACE: A(f"s_nop {PACE-1}")
            A(mf[3])
        A(f"s_sub_u32 s{sCnt}, s{sCnt}, 1")
        A(f"s_cmp_lg_u32 s{sCnt}, 0")
        A(f"s_cbranch_scc1 {name}")
    def p3_loop_jit(name, swap):
        A.label(name)
        b = FR
        def mf(ct, ri):
            a = AC + 16 * (2 * ct + ri); wv, xv = vr(b + 4 * ct, 4), vr(b + 8 + 4 * ri, 4)
            if "nop3mf" not in OPT.get("abl", ""): A(f"{MF} {vr(a,16)}, {xv if swap else wv}, {wv if swap else xv}, {vr(a,16)}")
        for i in range(8):
            sl = i * 2048; xo = (i >> 2) * 8192
            A(f"s_waitcnt vmcnt({2*LA-2})")
            A(f"ds_read_b64_tr_b16 v[{b}:{b+1}], v{vW1} offset:{sl}")
            A(f"ds_read_b64_tr_b16 v[{b+2}:{b+3}], v{vW1} offset:{sl+512}")
            A(f"ds_read_b128 v[{b+8}:{b+11}], v{vX0+(i&3)} offset:{xo}")
            A("s_waitcnt lgkmcnt(0)")
            mf(0, 0)
            A(f"ds_read_b128 v[{b+12}:{b+15}], v{vX0+(i&3)} offset:{xo+4096}")
            A("s_waitcnt lgkmcnt(0)")
            mf(0, 1)
            A(f"ds_read_b64_tr_b16 v[{b+4}:{b+5}], v{vW2} offset:{sl}")
            A(f"ds_read_b64_tr_b16 v[{b+6}:{b+7}], v{vW2} offset:{sl+512}")
            A("s_waitcnt lgkmcnt(0)")
            mf(1, 1)
            if i == (8 - LA) % 8:
                p3_wrap()
                A(f"s_cmp_eq_u32 s{sCnt}, 1")
                A(f"s_cselect_b32 s{sA0}, {OOB:#x}, s{sA0}")
            p3_dma((i + LA) % 8)
            mf(1, 0)
        for q in range(4):
            A(f"v_add_u32 v{vX0+q}, 16384, v{vX0+q}")
            A(f"v_and_b32 v{vX0+q}, 0xffff, v{vX0+q}")
        A(f"s_sub_u32 s{sCnt}, s{sCnt}, 1")
        A(f"s_cmp_lg_u32 s{sCnt}, 0")
        A(f"s_cbranch_scc1 {name}")
    def p3_loop(name, swap):
        if OPT.get("il") == "2": return p3_loop_jit(name, swap)
        if OPT.get("il") == "1": return p3_loop_il(name, swap)
        A.label(name)
        for i in range(8):
            A(f"s_waitcnt vmcnt({2*LA-4})")
            p3_rd(i + 1)
            if i == (8 - LA) % 8:
                p3_wrap()
                A(f"s_cmp_eq_u32 s{sCnt}, 1")
                A(f"s_cselect_b32 s{sA0}, {OOB:#x}, s{sA0}")
            A("s_waitcnt lgkmcnt(6)")
            b = FR + 16 * (i & 1)
            n = 0
            for ct in range(2):
                for ri in range(2):
                    a = AC + 16 * (2 * ct + ri); wv, xv = vr(b + 4 * ct, 4), vr(b + 8 + 4 * ri, 4)
                    if "nop3mf" not in OPT.get("abl", ""): A(f"{MF} {vr(a,16)}, {xv if swap else wv}, {wv if swap else xv}, {vr(a,16)}")
                    if n == 0: p3_dma((i + LA) % 8)
                    elif PACE: A(f"s_nop {PACE-1}")
                    n += 1
        A(f"s_sub_u32 s{sCnt}, s{sCnt}, 1")
        A(f"s_cmp_lg_u32 s{sCnt}, 0")
        A(f"s_cbranch_scc1 {name}")
    PACE = int(OPT.get("pace", 0))
    A(f"s_cmp_eq_u32 s{sJ}, 2")
    A("s_cbranch_scc1 L_p3v")
    p3_loop("L_p3qk", False)
    svst = NST[0]
    stamp()
    A(f"s_lshl_b32 s{sKV}, s{sHG}, 8")
    A(f"s_add_u32 s{sKV}, s{sKV}, s{sRT0}")
    A(f"s_mul_i32 s{sKV}, s{sKV}, {TB}")
    A(f"s_add_u32 s{sKV}, s{sKV}, {WS_KVB:#x}")
    A(f"s_mov_b32 s{sT2}, {f2u(CSCALE):#x}")
    A(f"v_add_u32 v{vT3}, {L_QX}, v{vK}")
    A("s_waitcnt lgkmcnt(0)")
    A(f"s_cmp_eq_u32 s{sJ}, 1")
    A("s_cbranch_scc1 L_p3k")
    team_wait(7, 4, 2)
    for ct in range(2):
        for ri in range(2):
            for hh in range(2):
                a = AC + 16 * (2 * ct + ri) + 8 * hh; p = FR + 4 * ((2 * ri + hh) & 3)
                for r in range(8): A(f"v_mul_f32 v{a+r}, s{sT2}, v{a+r}")
                for r in range(4): A(f"v_cvt_pk_bf16_f32 v{p+r}, v{a+2*r}, v{a+2*r+1}")
                A(f"ds_write_b128 v{vT3}, {vr(p,4)} offset:{(4*ri + 2*ct + hh)*1024}")
        if ct == 0: A("s_waitcnt lgkmcnt(0)")
    A("s_waitcnt vmcnt(0) lgkmcnt(0)")
    A("s_branch L_p3done")
    A.label("L_p3k")
    for ct in range(2):
        for hh in range(2):
            for ri in range(2):
                a = AC + 16 * (2 * ct + ri) + 8 * hh; p = FR + 4 * (4 * ct + 2 * hh + ri)
                for r in range(4): A(f"v_cvt_pk_bf16_f32 v{p+r}, v{a+2*r}, v{a+2*r+1}")
                A(f"buffer_store_dwordx4 {vr(p,4)}, v{vK}, s[12:15], s{sKV} offen offset:{ri*TB} sc1")
            A(f"s_add_u32 s{sKV}, s{sKV}, {64*TB}")
    A("s_branch L_p3pub")
    A.label("L_p3v")
    p3_loop("L_p3vl", True)
    NST[0] = svst
    stamp()
    A(f"s_lshl_b32 s{sKV}, s{sHG}, 8")
    A(f"s_add_u32 s{sKV}, s{sKV}, s{sRT0}")
    A(f"s_mul_i32 s{sKV}, s{sKV}, {TB}")
    A(f"s_add_u32 s{sKV}, s{sKV}, {WS_KVB:#x}")
    A(f"s_mov_b32 s{sT3}, {64*TB}")
    A(f"v_lshrrev_b32 v{vT}, 4, v{vL}")
    A(f"v_mul_lo_u32 v{vT}, v{vT}, s{sT3}")
    A(f"v_bfe_u32 v{vT2}, v{vL}, 3, 1")
    A(f"v_mul_u32_u24 v{vT2}, {TB}, v{vT2}")
    A(f"v_add_u32 v{vT}, v{vT}, v{vT2}")
    A(f"v_and_b32 v{vT2}, 7, v{vL}")
    A(f"v_lshl_add_u32 v{vT3}, v{vT2}, 4, v{vT}")
    for r in range(4): A(f"v_mov_b32 v{120+r}, {ONES:#x}")
    A(f"v_bfe_u32 v{vT}, v{vL}, 4, 1")
    A(f"v_mul_lo_u32 v{vT}, v{vT}, s{sT3}")
    A(f"v_lshrrev_b32 v{vT2}, 5, v{vL}")
    A(f"v_lshl_add_u32 v{vT}, v{vT2}, 8, v{vT}")
    A(f"v_and_b32 v{vT2}, 15, v{vL}")
    A(f"v_lshl_add_u32 v{vT}, v{vT2}, 4, v{vT}")
    A("s_waitcnt lgkmcnt(0)")
    A(f"buffer_store_dwordx4 {vr(120,4)}, v{vT3}, s[12:15], s{sKV} offen offset:2048 sc1")
    for ct in range(2):
        for ri in range(2):
            for s in range(2):
                a = AC + 16 * (2 * ct + ri) + 8 * s; p = FR + 4 * (4 * ct + 2 * ri + s)
                for r in range(4): A(f"v_cvt_pk_bf16_f32 v{p+r}, v{a+2*r}, v{a+2*r+1}")
                A("s_nop 1")
                A(f"v_permlane32_swap_b32 v{p}, v{p+2}")
                A(f"v_permlane32_swap_b32 v{p+1}, v{p+3}")
                A(f"buffer_store_dwordx4 {vr(p,4)}, v{vT}, s[12:15], s{sKV} offen offset:{1024+ri*TB+s*512} sc1")
        if ct == 0: A(f"s_add_u32 s{sKV}, s{sKV}, {128*TB}")
    A.label("L_p3pub")
    A("s_waitcnt vmcnt(0)")
    team_add(0, "L_p3done", 2)
    A(f"s_lshl_b32 s{sT3}, s{sHG}, 5")
    A(f"s_add_u32 s{sT3}, s{sT3}, s{sRB}")
    A(f"s_lshl_b32 s{sT3}, s{sT3}, 5")
    A(f"s_add_u32 s{sT3}, s{sT3}, {FL_KVB:#x}")
    flag_store(sT3)
    A("s_branch L_p3done")
    A.label("L_b_gwave")
    NST[0] = svst - 1
    A(f"v_bfe_u32 v{vT3}, v{vL}, 1, 4")
    A(f"v_min_u32 v{vT3}, {G1-1}, v{vT3}")
    A(f"v_add_u32 v{vT3}, s{sRB}, v{vT3}")
    A(f"v_and_b32 v{vT3}, 31, v{vT3}")
    A(f"v_and_b32 v{vT}, 32, v{vL}")
    A(f"v_add_u32 v{vT3}, v{vT3}, v{vT}")
    A(f"v_and_b32 v{vT}, 1, v{vT3}")
    A(f"v_lshrrev_b32 v{vT3}, 1, v{vT3}")
    A(f"v_lshl_add_u32 v{vT3}, v{vT3}, 2, v{vT}")
    A(f"v_and_b32 v{vT}, 1, v{vL}")
    A(f"v_lshl_add_u32 v{vT3}, v{vT}, 1, v{vT3}")
    A(f"v_lshlrev_b32 v{vT3}, 5, v{vT3}")
    GE = int(OPT.get("ge", 0))
    A(f"v_lshrrev_b32 v{vW1}, 5, v{vL}")
    A(f"v_lshlrev_b32 v{vW1}, 4, v{vW1}")
    A(f"v_add_u32 v{vW1}, {L_GATE}, v{vW1}")
    def gate_loop(name, n):
        A(f"s_mov_b32 s{sCnt}, {n}")
        A.label(name)
        for i in range(4):
            A(f"ds_read_b128 {vr(FR,4)}, v{vW1} offset:{i*32}")
            A(f"ds_read_b128 {vr(FR+4,4)}, v{vX0+i}")
            A("s_waitcnt lgkmcnt(0)")
            A(f"{MF} {vr(AC,16)}, {vr(FR,4)}, {vr(FR+4,4)}, {vr(AC,16)}")
            A(f"ds_read_b128 {vr(FR+8,4)}, v{vX0+i} offset:4096")
            A(f"v_add_u32 v{vX0+i}, 8192, v{vX0+i}")
            A("s_waitcnt lgkmcnt(0)")
            A(f"{MF} {vr(AC+16,16)}, {vr(FR,4)}, {vr(FR+8,4)}, {vr(AC+16,16)}")
        A(f"v_add_u32 v{vW1}, 128, v{vW1}")
        A(f"s_sub_u32 s{sCnt}, s{sCnt}, 1")
        A(f"s_cmp_lg_u32 s{sCnt}, 0")
        A(f"s_cbranch_scc1 {name}")
    if GE:
        A("s_waitcnt vmcnt(0)")
        team_wait(5, 8, 1)
        gate_loop("L_gloop0", GE)
    elif OPT.get("pstart", "5") == "5": team_wait(5, 8, 2)
    elif OPT.get("pstart") == "6": team_wait(6, 4, 1)
    if NREP > 1:
        A(f"s_and_b32 s{sT3}, s{sHG}, {NREP-1}")
        A(f"s_lshl_b32 s{sT3}, s{sT3}, 12")
        A(f"s_add_u32 s{sT3}, s{sT3}, {FL_KVA:#x}")
    else:
        A(f"s_mov_b32 s{sT3}, {FL_KVA:#x}")
    if KVP:
        NST[0] = 5
        kstamp()
    poll_flags(vT3, sT3, slp=int(OPT.get("pslp", 1)))
    if KVP:
        kstamp()
        A("s_waitcnt lgkmcnt(0)")
        A(f"s_sub_u32 s{70+2*NST[0]}, {SPIN}, s{sSP}")
        A(f"s_add_u32 s{70+2*NST[0]}, s{70+2*NST[0]}, s72")
        NST[0] = svst
    A("s_waitcnt lgkmcnt(0)")
    team_add(11)
    if int(OPT.get('asl', 16)): A(f"s_sleep {OPT.get('asl', 16)}")
    A(f"v_lshlrev_b32 v{vT}, 5, v{vL}")
    poll_flags(vT, sT3, n2=2048, slp=4)
    team_add(9)
    if "nob" in OPT: A("s_branch L_b_skip")
    stamp()
    gate_loop("L_gloop", 8 - GE)
    stamp()
    A("s_mov_b32 s38, 0")
    A("s_mov_b32 s39, -1")
    A("s_nop 5")
    A(f"v_cndmask_b32_e64 v{vG}, v{AC}, v{AC+16}, s[38:39]")
    A(f"v_mul_f32 v{vG}, {f2u(-math.log2(math.e)):#x}, v{vG}")
    A(f"v_exp_f32 v{vG}, v{vG}")
    A(f"v_lshlrev_b32 v{vT}, 2, v{vL}")
    A(f"v_add_f32 v{vG}, 1.0, v{vG}")
    A(f"v_rcp_f32 v{vG}, v{vG}")
    A(f"v_add_u32 v{vT}, {L_G}, v{vT}")
    A(f"ds_write_b32 v{vT}, v{vG}")
    A("s_waitcnt lgkmcnt(0)")
    A.label("L_p3done")
    team_add(1)
    QB = 96; OB = 104; KV = 136
    A(f"s_lshl_b32 s{sKV}, s{sHEAD}, 6")
    A(f"s_add_u32 s{sKV}, s{sKV}, s{sRT0}")
    A(f"s_mul_i32 s{sKV}, s{sKV}, {TB}")
    A(f"s_add_u32 s{sKV}, s{sKV}, {WS_KVB:#x}")
    sWL, sWG, sWN = 37, 54, 55
    srd(8, P_BWO, 512 * 1024)
    srd(20, P_AWO, 512 * 1024)
    vWd2 = 11
    w128_dma_addr(vWd2, 1024)
    A(f"s_lshl_b32 s{sWL}, s{sJ}, 14")
    A(f"s_lshl_b32 s{sWG}, s{sJ}, 17")
    A(f"s_lshl_b32 s{sT}, s{sHG}, 7")
    A(f"s_add_u32 s{sWG}, s{sWG}, s{sT}")
    A(f"s_mov_b32 s{sWN}, 0")
    sWI, sWT = 56, 57
    if ROT:
        A(f"s_and_b32 s{sWI}, s{sRB}, {3 if 'map1' in OPT else 7}")
        A(f"s_lshl_b32 s{sWI}, s{sWI}, {2 if 'map1' in OPT else 1}")
    else:
        A(f"s_mov_b32 s{sWI}, 0")
    def w_loop(name, srd_, lds):
        A(f"s_mov_b32 s{sWN}, 16")
        A.label(name)
        A(f"s_lshl_b32 s{sWT}, s{sWI}, 10")
        A(f"s_add_u32 s{sWT}, s{sWT}, s{sWL}")
        A(f"s_add_u32 m0, s{sWT}, {lds}")
        A(f"s_lshl_b32 s{sWT}, s{sWI}, 13")
        A(f"s_add_u32 s{sWT}, s{sWT}, s{sWG}")
        A(f"buffer_load_dwordx4 v{vWd2}, s[{srd_}:{srd_+3}], s{sWT} offen lds")
        A(f"s_add_u32 s{sWI}, s{sWI}, 1")
        A(f"s_and_b32 s{sWI}, s{sWI}, 15")
        A(f"s_sub_u32 s{sWN}, s{sWN}, 1")
        A(f"s_waitcnt vmcnt({OPT.get('wd', 5)})")
        A(f"s_cmp_lg_u32 s{sWN}, 0")
        A(f"s_cbranch_scc1 {name}")
    A(f"s_lshl_b32 s{sT2}, s{sJ}, 10")
    A(f"s_add_u32 s{sT2}, s{sT2}, {L_QX}")
    A(f"v_add_u32 v7, s{sT2}, v{vK}")
    A(f"s_and_b32 s{sT2}, s{sJ}, 1")
    A(f"s_lshl_b32 s{sT2}, s{sT2}, 7")
    A(f"s_add_u32 s{sT2}, s{sT2}, {L_G}")
    A(f"v_and_b32 v9, 31, v{vL}")
    A(f"v_lshl_add_u32 v9, v9, 2, s{sT2}")
    stamp()
    team_wait(1)
    w_loop("L_wB", 8, L_X)
    A(f"s_cmp_lg_u32 s{sJ}, 3")
    A("s_cbranch_scc1 L_b_nokvb")
    A(f"v_min_u32 v{vT3}, 4, v{vL}")
    A(f"v_sub_u32 v{vT3}, s{sRB}, v{vT3}")
    A(f"v_max_i32 v{vT3}, 0, v{vT3}")
    A(f"v_lshlrev_b32 v{vT3}, 5, v{vT3}")
    A(f"s_lshl_b32 s{sT3}, s{sHG}, 10")
    A(f"s_add_u32 s{sT3}, s{sT3}, {FL_KVB:#x}")
    poll_flags(vT3, sT3, slp=2)
    team_add(10)
    A.label("L_b_nokvb")
    team_wait(10, 1)
    stamp()
    A(f"ds_read_b128 {vr(QB,4)}, v7")
    A(f"ds_read_b128 {vr(QB+4,4)}, v7 offset:4096")
    A(f"ds_read_b32 v{vG}, v9")
    A(f"s_add_u32 s{sA0}, s{sKV}, {TB}")
    A(f"s_add_u32 s{sA1}, s{sRT0}, 1")
    PRE = int(OPT.get("bpre", 4))
    def bkv(u):
        b = KV + 12 * u; o = []
        if u >= 2:
            o.append(f"s_cmp_ge_u32 s{sA1}, {u}")
            o.append(f"s_cselect_b32 s{sT}, s{sA0}, {OOB:#x}")
        sa = sT if u >= 2 else sA0
        o.append(f"buffer_load_dwordx4 {vr(b,4)}, v{vK}, s[12:15], s{sa} offen sc1")
        o.append(f"buffer_load_dwordx4 {vr(b+4,4)}, v{vV}, s[12:15], s{sa} offen sc1")
        o.append(f"buffer_load_dwordx4 {vr(b+8,4)}, v{vV1}, s[12:15], s{sa} offen sc1")
        if u < 9: o.append(f"s_sub_u32 s{sA0}, s{sA0}, {TB}")
        return "\n".join(o)
    order = []
    for u in range(PRE):
        A(bkv(u)); order += [("k", u), ("v", u), ("v2", u)]
    vBig = 7
    A(f"v_mov_b32 v{vIDX}, 0xdddddddd")
    A(f"v_mov_b32 v{vBig}, {f2u(-1e38):#x}")
    mask_tuple(NEG, f"v{vBig}", "0")
    for i in range(2):
        for r in range(0, 10, 2): A(f"v_pk_mov_b32 v[{OB+16*i+r}:{OB+16*i+r+1}], 0, 0")
    A(f"s_waitcnt vmcnt({3*PRE-4}) lgkmcnt(0)")
    A(f"{MF} {vr(S0,16)}, {vr(KV,4)}, {vr(QB+4,4)}, {vr(NEG,16)}")
    A(f"{MF} {vr(S1,16)}, {vr(KV+12,4)}, {vr(QB,4)}, {vr(NEG,16)}")
    A("s_nop 7")
    A("s_nop 3")
    lane_max_all(range(S0, S0 + 32), vT, vT2)
    A(f"v_sub_f32 v{NEG}, 0, v{vT}")
    A(f"v_sub_f32 v{NEG+1}, 0, v{vT}")
    for r in range(0, 32, 2): A(f"v_pk_add_f32 v[{S0+r}:{S0+r+1}], v[{S0+r}:{S0+r+1}], v[{NEG}:{NEG+1}]")
    for r in range(2, 16, 2): A(f"v_pk_mov_b32 v[{NEG+r}:{NEG+r+1}], v[{NEG}:{NEG+1}], v[{NEG}:{NEG+1}] op_sel:[0,1]")
    items = [(1, 0), (0, 1), (1, 1)]
    for u in range(2, 9): items += [(0, u), (1, u)]
    items += [(0, 9)]
    CF = KV
    waited = 3
    def need(tag):
        nonlocal waited
        k_ = order.index(tag)
        if k_ > waited:
            waited = k_
            return f"s_waitcnt vmcnt({len(order)-1-k_})"
        return None
    WPI = int(OPT.get("wpi", 1))
    wsteps = 0; nextu = PRE
    for n, (q, u) in enumerate(items):
        Sc, Sn = (S0, S1) if n % 2 == 0 else (S1, S0)
        ex = {}
        qk = None
        late = []
        if n % 2 == 1 and nextu < 10:
            ex["X4"] = bkv(nextu); late = [("k", nextu), ("v", nextu), ("v2", nextu)]; nextu += 1
        if n >= 1 and n + 1 < len(items):
            q2, u2 = items[n + 1]
            far = (q2, u2) in ((1, 8), (0, 9))
            ex["X3"] = need(("k", u2))
            qk = f"{MF} {vr(Sn,16)}, {vr(KV+12*u2,4)}, {vr(QB+4*q2,4)}, {vr(CF if far else NEG,16)}"
        ex["X5"] = need(("v2", u))
        order += late
        pv1 = None
        if n >= 1:
            qp, up = items[n - 1]
            pv1 = pv(OB + 16 * qp, KV + 12 * up + 8, Sn + 8)
        exit_here = (q == 1 and u in (1, 3, 5, 7))
        if exit_here: ex["X4"] = f"s_cmp_eq_u32 s{sA1}, {u}"
        if "nobat" in OPT.get("abl", ""):
            for x in sorted(ex):
                if ex[x]: A(ex[x])
            A("s_sleep 3")
        else:
            tile_code(Sc, qk, pv1, pv(OB + 16 * q, KV + 12 * u + 4, Sc), ex)
        if exit_here: A(f"s_cbranch_scc1 L_b_exit{u}")
        if n == 6: mask_tuple(CF, f"v{NEG}", f"v{vBig}")
    A("s_nop 1")
    A(pv(OB, KV + 12 * 9 + 8, S1 + 8))
    A.label("L_b_fin")
    stamp()
    A(f"s_lshl_b32 s{sA2}, s{sRT0}, 6")
    A(f"s_add_u32 s{sA2}, s{sA2}, s{sHEAD}")
    A(f"s_lshl_b32 s{sA2}, s{sA2}, 10")
    A(f"s_add_u32 s{sA2}, s{sA2}, {WS_O + 32*1024:#x}")
    A(f"s_min_u32 s{sCnt}, s{sA1}, 9")
    A("s_nop 7")
    for i in range(2):
        if not OPT.get("abl"): range_check(OB + 16 * i, f"L_b_slow{i}")
        A.label(f"L_b_ok{i}")
        normalize_store(OB + 16 * i, P + 4 * i, sA2)
        if i == 0:
            A(f"s_add_u32 s{sA2}, s{sA2}, 65536")
            A(f"s_add_u32 s{sKV}, s{sKV}, {TB}")
            A(f"s_add_u32 s{sCnt}, s{sRT0}, 2")
            A(f"s_min_u32 s{sCnt}, s{sCnt}, 9")
    A("s_waitcnt vmcnt(0)")
    team_add(2, "L_b_ob_nl")
    A(f"s_lshl_b32 s{sT3}, s{sRB}, 8")
    A(f"s_lshl_b32 s{sT4}, s{sHG}, 5")
    A(f"s_add_u32 s{sT3}, s{sT3}, s{sT4}")
    A(f"s_add_u32 s{sT3}, s{sT3}, {FL_OB:#x}")
    flag_store(sT3)
    A.label("L_b_ob_nl")
    A(f"s_and_b32 s{sT4}, s{sJ}, 1")
    A(f"s_lshr_b32 s{sT3}, s{sJ}, 1")
    vWp = 13
    w128_tr_addr(vWp, 4, None, sT3)
    A(f"v_and_b32 v{vT3}, 7, v{vL}")
    A(f"v_lshlrev_b32 v{vT3}, 5, v{vT3}")
    A(f"s_lshl_b32 s{sT3}, s{sRB}, 8")
    A(f"s_add_u32 s{sT3}, s{sT3}, {FL_OB:#x}")
    w_loop("L_wA", 20, L_WQ)
    A("s_waitcnt vmcnt(0)")
    team_add(3)
    OF = 128; WF = 64; ACB = 16; ACA = 32
    vWq = 12
    A(f"v_add_u32 v{vWq}, {L_WQ}, v{vWp}")
    team_wait(3)
    for s in range(32):
        if s % 7 == 0 and s: A("s_waitcnt lgkmcnt(0)")
        A(f"ds_read_b64_tr_b16 v[{OF+4*s}:{OF+4*s+1}], v{vWq} offset:{s*2048}")
        A(f"ds_read_b64_tr_b16 v[{OF+4*s+2}:{OF+4*s+3}], v{vWq} offset:{s*2048+1024}")
    A("s_waitcnt lgkmcnt(0)")
    team_add(12)
    poll_flags(vT3, sT3, slp=2)
    stamp()
    A(f"s_add_u32 s{sWG}, s{sRT0}, s{sT4}")
    A(f"s_lshl_b32 s{sWG}, s{sWG}, 16")
    A(f"s_lshr_b32 s{sA0}, s{sJ}, 1")
    A(f"s_lshl_b32 s{sA0}, s{sA0}, 14")
    A(f"s_add_u32 s{sWG}, s{sWG}, s{sA0}")
    A(f"s_add_u32 s{sWG}, s{sWG}, {WS_O + 32*1024:#x}")
    A(f"s_lshl_b32 s{sWL}, s{sT4}, 15")
    A(f"s_add_u32 s{sWL}, s{sWL}, s{sA0}")
    A(f"s_add_u32 s{sWL}, s{sWL}, {L_WQ}")
    team_wait(12)
    A(f"s_mov_b32 s{sWN}, 16")
    A.label("L_oB")
    A(f"s_mov_b32 m0, s{sWL}")
    A(f"s_add_u32 s{sWL}, s{sWL}, 1024")
    A(f"buffer_load_dwordx4 v{vK}, s[12:15], s{sWG} offen sc1 lds")
    A(f"s_add_u32 s{sWG}, s{sWG}, 1024")
    A(f"s_sub_u32 s{sWN}, s{sWN}, 1")
    A(f"s_waitcnt vmcnt({OPT.get('wd', 5)})")
    A(f"s_cmp_lg_u32 s{sWN}, 0")
    A("s_cbranch_scc1 L_oB")
    A.label("L_b_skip")
    A(f"s_and_b32 s{sT4}, s{sJ}, 1")
    srd(4, P_OUT, 2048 * 1024)
    vO = 8; vOa = 9
    A(f"v_and_b32 v{vT}, 31, v{vL}")
    A(f"v_lshlrev_b32 v{vT}, 10, v{vT}")
    A(f"v_lshrrev_b32 v{vT2}, 5, v{vL}")
    A(f"v_lshl_add_u32 v{vO}, v{vT2}, 4, v{vT}")
    A(f"s_add_u32 s{sKV}, s{sRT0}, s{sT4}")
    A(f"s_lshl_b32 s{sKV}, s{sKV}, 15")
    A(f"s_lshl_b32 s{sT}, s{sHG}, 7")
    A(f"s_add_u32 s{sKV}, s{sKV}, s{sT}")
    A(f"s_lshr_b32 s{sT}, s{sJ}, 1")
    A(f"s_lshl_b32 s{sT}, s{sT}, 6")
    A(f"s_add_u32 s{sKV}, s{sKV}, s{sT}")
    A(f"s_lshl_b32 s{sT}, s{sT4}, 15")
    A(f"v_add_u32 v{vOa}, s{sT}, v{vK}")
    if "touchout" in OPT:
        A(f"buffer_load_dword v{WF}, v{vO}, s[4:7], s{sKV} offen")
        A("s_waitcnt vmcnt(0)")
    OS = int(OPT.get("oarep", 5))
    A(f"s_lshl_b32 s{sA2}, s{sRB}, {OS+6 if 'oarep' in OPT else 8}")
    A(f"s_lshl_b32 s{sT}, s{sHG}, {OS}")
    A(f"s_add_u32 s{sA2}, s{sA2}, s{sT}")
    A(f"s_add_u32 s{sA2}, s{sA2}, {FL_OA:#x}")
    if "oarep" in OPT:
        A(f"s_lshl_b32 s{sT}, s{sRB}, 3")
        A(f"s_add_u32 s{sT}, s{sT}, s{sHG}")
        A(f"s_lshl_b32 s{sT}, s{sT}, {OS+3}")
        A(f"s_add_u32 s{sT}, s{sT}, {FL_OA:#x}")
        A(f"v_and_b32 v{vT}, 7, v{vL}")
        A(f"v_lshlrev_b32 v{vT}, {OS}, v{vT}")
        A(f"buffer_load_dword v{vT2}, v{vT}, s[12:15], s{sT} offen sc1")
        A("s_waitcnt vmcnt(0)")
    A(f"v_add_u32 v{vWq}, {L_WQ}, v{vOa}")
    A("s_waitcnt vmcnt(0) lgkmcnt(0)")
    stamp()
    if "lowp" in OPT: A("s_setprio 0")
    A("s_barrier")
    def rdb(s):
        b = WF + 8 * (s % 4)
        A(f"ds_read_b64_tr_b16 v[{b}:{b+1}], v{vWp} offset:{s*2048}")
        A(f"ds_read_b64_tr_b16 v[{b+2}:{b+3}], v{vWp} offset:{s*2048+1024}")
        A(f"ds_read_b128 v[{b+4}:{b+7}], v{vWq} offset:{s*1024}")
    NB1 = int(OPT.get("nb1", 32))
    for s in range(3): rdb(s)
    for s in range(32):
        if s == NB1:
            A("s_barrier")
        if s + 3 < 32: rdb(s + 3)
        A(f"s_waitcnt lgkmcnt({3 * (min(s + 3, 31) - s)})")
        b = WF + 8 * (s % 4)
        A(f"{MF} {vr(ACB,16)}, {vr(b,4)}, {vr(b+4,4)}, {'0' if s == 0 else vr(ACB,16)}")
    if NB1 == 32: A("s_barrier")
    tail_dma("B")
    A(f"v_sub_f32 v{vT3}, 1.0, v{vG}")
    A(f"v_mov_b32 v14, v{vG}")
    for r in range(16): A(f"v_mul_f32 v{ACB+r}, v{ACB+r}, v{vT3}")
    for m in range(len(MS)):
        A(f"s_waitcnt vmcnt({sum(MS[m+1:]) // 4})")
        A("s_barrier")
        n = MS[m]
        for i in range(n): A(f"ds_read_b128 {vr(WF+4*i,4)}, v{vOa} offset:{(sum(MS[:m])+i)*1024}")
        for i in range(n):
            s = sum(MS[:m]) + i
            A(f"s_waitcnt lgkmcnt({n-1-i})")
            c = "0" if s == 0 else vr(ACA, 16)
            A(f"{MF} {vr(ACA,16)}, {vr(OF+4*s,4)}, {vr(WF+4*i,4)}, {c}")
    A("s_nop 7")
    A("s_nop 3")
    for r in range(0, 16, 2): A(f"v_pk_fma_f32 v[{ACB+r}:{ACB+r+1}], v[{ACA+r}:{ACA+r+1}], v[14:15], v[{ACB+r}:{ACB+r+1}]")
    for r in range(8): A(f"v_cvt_pk_bf16_f32 v{WF+r}, v{ACB+2*r}, v{ACB+2*r+1}")
    A("s_nop 1")
    for g in range(2):
        A(f"v_permlane32_swap_b32 v{WF+4*g}, v{WF+4*g+2}")
        A(f"v_permlane32_swap_b32 v{WF+4*g+1}, v{WF+4*g+3}")
    for g in range(2): A(f"buffer_store_dwordx4 {vr(WF+4*g,4)}, v{vO}, s[4:7], s{sKV} offen offset:{g*32} {OPT.get('om', '').replace('_', ' ')}")
    if PROF: A("s_waitcnt vmcnt(0)")
    stamp_flush()
    A.label("L_exit")
    A("s_endpgm")
    for u in (1, 3, 5, 7):
        A.label(f"L_b_exit{u}")
        A("s_nop 0")
        A(pv(OB + 16, KV + 12 * u + 8, S0 + 8))
        A("s_branch L_b_fin")
    for i in range(2):
        slow_path(f"L_b_slow{i}", f"L_b_ok{i}", QB + 4 * i, OB + 16 * i, sKV, sCnt, -TB, True, KV, KV + 4, KV + 16)
    timeout_blocks()
    return k

DOC = """; One persistent launch, 256 workgroups (one per CU), each owning 64 rows x 4 heads.
;   waves 0-3 (A team): Q projection of the MQA branch, then MQA attention (4 query tiles per wave, half of the keys),
;                       the fp32 probabilities directly (only their high halves are selected); a ones row gives the row sum.
;   waves 4-7 (B team): shared K/V projection, QKV + gate projection, sliding-window attention, output projection.
;   The row shift is a sampled maximum; rows whose sum leaves the safe range are redone with the true row maximum.
"""

def main():
    hdr = open("cdna_kernels/" + NAME + ".s.ref").read().split("\n")
    head = [l for l in hdr if l.startswith(";") and "@launch" not in l]
    out = "\n".join(head) + "\n"
    out += "; @launch grid=(256,1,1) block=(512,1,1) lds=163840\n"
    out += '.amdgcn_target "amdgcn-amd-amdhsa--gfx950"\n.text\n'
    out += DOC
    k = gen()
    body = A.text()
    if "bfirst" in OPT:
        i = body.index("; @@A_BEGIN\n"); j = body.index("; @@A_END\n")
        body = body[:i] + body[j + len("; @@A_END\n"):] + body[i + len("; @@A_BEGIN\n"):j]
    body += "L_code_end:\n    s_endpgm\n"
    errs = check_hazards(body)
    for e in errs: print("HAZARD", e, file=sys.stderr)
    out += body
    out += f""".section .rodata,"a"
.p2align 6
.amdhsa_kernel {k}
  .amdhsa_next_free_vgpr 256
  .amdhsa_next_free_sgpr 102
  .amdhsa_accum_offset 256
  .amdhsa_group_segment_fixed_size 0
  .amdhsa_kernarg_size 96
  .amdhsa_user_sgpr_count 2
  .amdhsa_user_sgpr_kernarg_segment_ptr 1
  .amdhsa_system_sgpr_workgroup_id_x 1
.end_amdhsa_kernel
"""
    paths = [a for a in sys.argv[1:] if a.endswith(".s")]
    path = paths[0] if paths else "f20.s"
    open(path, "w").write(out)
    print("wrote", path, len(out), "bytes;", len(errs), "hazard warnings")
main()
```

```python
import sys, math, struct, re
from asmlib import Asm, vr, sr, check_hazards

NAME = "gated_mix__grouped_kv_mqa__sliding_block__prompt"
def f2u(x): return struct.unpack("<I", struct.pack("<f", x))[0]
CSCALE = 0.25 * math.log2(math.e)
OPT = dict(a[2:].split("=") if "=" in a else (a[2:], "1") for a in sys.argv[1:] if a.startswith("--"))
for _k, _v in (("bfirst", "1"), ("cpf", "1"), ("pace", "0"), ("p3d", "4"), ("bpre", "3"), ("od", "6"), ("il", "2"), ("tp", "one"), ("touchw", "1"), ("nrep", "8"), ("asl", "0"), ("rs", "0"), ("pslp", "0"), ("ks", "0"), ("ge", "2"), ("nb1", "8"), ("lowp", "1"), ("j4", "1"), ("pstart", "6"), ("touchfl", "1"), ("k3", "1")): OPT.setdefault(_k, _v)
PROF = "prof" in OPT

ROT = "norot" not in OPT
TB = 2176
WS_KVA = 0
WS_FL = 0x40000
NREP = int(OPT.get('nrep', 1))
FL_KVA, FL_KVB, FL_OB, FL_OA = (WS_FL + 0x10000 if NREP > 1 else WS_FL), WS_FL + 0x1000, WS_FL + 0x4000, (WS_FL + 0x20000 if 'oarep' in OPT else WS_FL + 0x6000)
WS_KVB = 0x100000
WS_O = 0x600000
WS_PROF = 15 << 20
WS_SIZE = 16 << 20
OOB = 0x40000000
ONES = 0x3F803F80
L_X, L_WQ, L_WKV, L_QX, L_GATE, L_CNT, L_COMB = 0, 65536, 131072, 147456, 155648, 156672, 131072
L_G = L_CNT + 256
L_COMB3 = L_G + 256
assert L_COMB + 3 * 4608 <= L_QX and L_COMB3 + 4608 <= 163840
SPIN = 400000
KS = int(OPT.get('ks', 1))
MS = [int(x) for x in OPT.get('ms', '8,8,8,8').split(',')]
MF = "v_mfma_f32_32x32x16_bf16"
SMF = "v_smfmac_f32_32x32x32_bf16"
vIDX = 10
A = Asm()

sW, sHG, sRB, sNON = 16, 17, 18, 19
sT, sT2, sT3, sT4 = 24, 25, 26, 27
sJ, sKV, sCnt, sHEAD, sRT0, sA0, sA1, sA2 = 28, 29, 30, 31, 32, 33, 34, 35
sSP = 36
P_X, P_WQ, P_WK, P_WV, P_AWO, P_WQKV, P_BWO, P_GATE, P_OUT, P_DBG, P_WS = 44, 46, 48, 50, 52, 56, 58, 60, 62, 64, 66
vL, vK, vV, vT, vT2, vT3 = 1, 2, 3, 4, 5, 6
vV1 = 0

def srd(d, ptr, size):
    A(f"s_mov_b32 s{d}, s{ptr}")
    A(f"s_and_b32 s{d+1}, s{ptr+1}, 0xffff")
    A(f"s_mov_b32 s{d+2}, {size:#x}")
    A(f"s_mov_b32 s{d+3}, 0x00020000")

NST = [0]
TM = [0]; TMS = []
def timeout_branch(d):
    if "tmark" not in OPT:
        A(f"s_cbranch_scc1 {d}"); return
    TM[0] += 1
    t = f"L_tm{TM[0]}"
    A(f"s_cbranch_scc1 {t}")
    TMS.append((t, d, TM[0]))
def timeout_blocks():
    for t, d, k in TMS:
        A.label(t)
        A("s_mov_b64 exec, 1")
        A(f"v_mov_b32 v253, {0x70000 + 4*k}")
        A("v_mov_b32 v252, s2")
        A("buffer_store_dword v252, v253, s[12:15], 0 offen sc1")
        A("s_mov_b64 exec, -1")
        A(f"s_branch {d}")
KVP = OPT.get("prof") in ("kv", "kvrt")
STOFF = [False]
def kstamp():
    if KVP: stamp(force=True)
def stamp(real=False, force=False):
    if not PROF: return
    if STOFF[0] and not force and not real: return
    i = NST[0]; NST[0] += 1
    assert 70 + 2 * i + 1 <= 101, "too many stamps"
    A(f"{'s_memrealtime' if real or OPT.get('prof') in ('rt', 'kvrt') else 's_memtime'} s[{70+2*i}:{71+2*i}]")
def stamp_flush():
    if not PROF: return
    stamp(force=True); stamp(real=True)
    A("s_waitcnt lgkmcnt(0)")
    A("s_lshl_b32 s68, s2, 4")
    A(f"s_add_u32 s68, s68, s{sW}")
    A("s_lshl_b32 s68, s68, 6")
    A(f"s_add_u32 s68, s68, {WS_PROF:#x}")
    A("v_mov_b32 v251, 0")
    for i in range(NST[0]):
        A(f"v_mov_b32 v250, s{70+2*i}")
        A(f"buffer_store_dword v250, v251, s[12:15], s68 offen offset:{4*i}")
    A("s_waitcnt vmcnt(0)")

def poll_flags(va, soff, n2=None, slp=2, vd=None, x4=False):
    vd = vd if vd is not None else vT2
    l = A.uid("poll"); d = A.uid("polld")
    A(f"s_mov_b32 s{sSP}, {SPIN}")
    A.label(l)
    if x4: A(f"buffer_load_dwordx4 {vr(vd,4)}, v{va}, s[12:15], s{soff} offen sc1")
    else: A(f"buffer_load_dword v{vd}, v{va}, s[12:15], s{soff} offen sc1")
    if n2 is not None: A(f"buffer_load_dword v{vd+1}, v{va}, s[12:15], s{soff} offen offset:{n2} sc1")
    A("s_waitcnt vmcnt(0)")
    A(f"v_cmp_ne_u32 vcc, s{sNON}, v{vd}")
    if n2 is not None or x4:
        A(f"v_cmp_ne_u32 s[38:39], s{sNON}, v{vd+(2 if x4 else 1)}")
        A("s_nop 1")
        A("s_or_b64 vcc, vcc, s[38:39]")
    else:
        A("s_nop 1")
    A(f"s_cbranch_vccz {d}")
    A("s_mov_b64 exec, vcc")
    A(f"s_sub_u32 s{sSP}, s{sSP}, 1")
    timeout_branch(d)
    if slp: A(f"s_sleep {slp}")
    A(f"s_branch {l}")
    A.label(d)
    A("s_mov_b64 exec, -1")

def flag_store(soff, nrep=1, sh=12):
    A(f"v_mov_b32 v{vT}, s{sNON}")
    if nrep > 1: A(f"v_lshlrev_b32 v{vT2}, {sh}, v{vL}")
    else: A(f"v_mov_b32 v{vT2}, 0")
    A(f"s_mov_b64 exec, {(1 << nrep) - 1}")
    A(f"buffer_store_dword v{vT}, v{vT2}, s[12:15], s{soff} offen sc1")
    A("s_mov_b64 exec, -1")

def team_add(cnt, last_label=None, n=4):
    A(f"v_mov_b32 v{vT}, {L_CNT + 4*cnt}")
    A(f"v_mov_b32 v{vT2}, 1")
    A("s_mov_b64 exec, 1")
    if last_label:
        A(f"ds_add_rtn_u32 v{vT2}, v{vT}, v{vT2}")
        A("s_waitcnt lgkmcnt(0)")
        A("s_mov_b64 exec, -1")
        A(f"v_readfirstlane_b32 s{sT}, v{vT2}")
        A("s_nop 1")
        A(f"s_cmp_lg_u32 s{sT}, {n-1}")
        A(f"s_cbranch_scc1 {last_label}")
    else:
        A(f"ds_add_u32 v{vT}, v{vT2}")
        A("s_mov_b64 exec, -1")

def team_wait(cnt, n=4, slp=2):
    l = A.uid("tw"); d = A.uid("twd")
    A(f"v_mov_b32 v{vT}, {L_CNT + 4*cnt}")
    A(f"s_mov_b32 s{sSP}, {SPIN}")
    A.label(l)
    A(f"ds_read_b32 v{vT2}, v{vT}")
    A("s_waitcnt lgkmcnt(0)")
    A(f"v_readfirstlane_b32 s{sT}, v{vT2}")
    A("s_nop 1")
    A(f"s_cmp_ge_u32 s{sT}, {n}")
    A(f"s_cbranch_scc1 {d}")
    A(f"s_sub_u32 s{sSP}, s{sSP}, 1")
    timeout_branch(d)
    if slp: A(f"s_sleep {slp}")
    A(f"s_branch {l}")
    A.label(d)

def pv(O, V, S):
    return f"{SMF} {vr(O,16)}, {vr(V,4)}, {vr(S,8)}, v{vIDX}"

def tile_code(Sc, qk, pv1, pv0, extra):
    d = {}
    for i in range(16): d[f"e{i}"] = f"v_exp_f32 v{Sc+i}, v{Sc+i}"
    d["PV1"] = pv1; d["QK"] = qk; d["PV0"] = pv0
    ABL = OPT.get("abl", "").split(",")
    if "nopv" in ABL: d["PV1"] = d["PV0"] = "s_nop 2"
    if "noqk" in ABL: d["QK"] = "s_nop 1"
    if "noexp" in ABL:
        for i in range(16): d[f"e{i}"] = "s_nop 1"
    order = OPT.get("order", "e0 e1 PV1 X1 e2 e3 e4 X3 QK X2 e5 e6 e7 e8 e9 e10 X5 PV0 X4 e11 e12 e13 e14 e15").replace("_", " ")
    for x in order.split():
        if x[0] == "X":
            if extra.get(x): A(extra[x])
        elif d[x]: A(d[x])

NEG, S0, S1, P = 16, 32, 48, 64

def lane_max_all(regs, dst, tmp):
    regs = list(regs)
    A(f"v_max3_f32 v{dst}, v{regs[0]}, v{regs[1]}, v{regs[2]}")
    A(f"v_max3_f32 v{tmp}, v{regs[3]}, v{regs[4]}, v{regs[5]}")
    rest = regs[6:]; t = [dst, tmp]; n = 0
    while rest:
        a, b = rest.pop(0), rest.pop(0)
        A(f"v_max3_f32 v{t[n&1]}, v{t[n&1]}, v{a}, v{b}"); n += 1
    A(f"v_max_f32 v{dst}, v{dst}, v{tmp}")
    A(f"v_mov_b32 v{tmp}, v{dst}")
    A("s_nop 1")
    A(f"v_permlane32_swap_b32 v{dst}, v{tmp}")
    A(f"v_max_f32 v{dst}, v{dst}, v{tmp}")

def mask_tuple(dst, v_true, v_false):
    for r in range(16):
        c0 = (r & 3) + 8 * (r >> 2)
        p = 40 + 2 * (r & 1)
        A(f"s_mov_b32 s{p}, {(1 << c0) - 1:#x}")
        A(f"s_mov_b32 s{p+1}, {(1 << (c0 + 4)) - 1:#x}")
        A(f"v_cndmask_b32_e64 v{dst+r}, {v_false}, {v_true}, s[{p}:{p+1}]")

def range_check(O, bad):
    A(f"v_max3_f32 v{vT}, |v{O}|, |v{O+1}|, |v{O+2}|")
    A(f"v_max3_f32 v{vT2}, |v{O+3}|, |v{O+4}|, |v{O+5}|")
    A(f"v_max3_f32 v{vT}, v{vT}, |v{O+6}|, |v{O+7}|")
    A(f"s_mov_b32 s{sT}, {f2u(2.0**-60):#x}")
    A(f"s_mov_b32 s{sT2}, {f2u(2.0**40):#x}")
    A(f"s_mov_b32 s{sT3}, {f2u(2.0**120):#x}")
    A(f"v_add_f32 v{vT}, v{vT}, v{vT2}")
    A(f"v_cmp_nlt_f32 vcc, s{sT}, v{O+8}")
    A(f"v_cmp_ngt_f32 s[38:39], s{sT2}, v{O+8}")
    A(f"v_cmp_ngt_f32 s[40:41], s{sT3}, v{vT}")
    A("s_nop 1")
    A("s_or_b64 vcc, vcc, s[38:39]")
    A("s_or_b64 vcc, vcc, s[40:41]")
    A(f"s_cbranch_vccnz {bad}")

def slow_path(name, ret, Qr, O, s_base, s_n, step, masks, KB, VB, MK):
    lp1, lp2 = A.uid("sp1"), A.uid("sp2")
    vM, vM2, vBig = 7, 8, 9
    A.label(name)
    A("s_waitcnt vmcnt(0) lgkmcnt(0)")
    A(f"v_mov_b32 v{vBig}, {f2u(-1e38):#x}")
    def set_mask():
        if not masks:
            return
        l0, l8, ld = A.uid("m0"), A.uid("m8"), A.uid("md")
        A(f"s_cmp_eq_u32 s{sA1}, 0")
        A(f"s_cbranch_scc1 {l0}")
        A(f"s_cmp_eq_u32 s{sA1}, 8")
        A(f"s_cbranch_scc1 {l8}")
        for r in range(16): A(f"v_mov_b32 v{MK+r}, 0")
        A(f"s_branch {ld}")
        A.label(l0); mask_tuple(MK, f"v{vBig}", "0"); A(f"s_branch {ld}")
        A.label(l8); mask_tuple(MK, "0", f"v{vBig}")
        A.label(ld)
    C = vr(MK, 16) if masks else "0"
    A(f"v_mov_b32 v{vM}, v{vBig}")
    A(f"s_mov_b32 s{sA0}, s{s_base}")
    A(f"s_mov_b32 s{sA1}, 0")
    A.label(lp1)
    A(f"buffer_load_dwordx4 {vr(KB,4)}, v{vK}, s[12:15], s{sA0} offen sc1")
    set_mask()
    A("s_waitcnt vmcnt(0)")
    A("s_nop 1")
    A(f"{MF} {vr(S0,16)}, {vr(KB,4)}, {vr(Qr,4)}, {C}")
    A(f"s_add_u32 s{sA0}, s{sA0}, {step & 0xffffffff:#x}")
    A(f"s_add_u32 s{sA1}, s{sA1}, 1")
    A("s_nop 15")
    for i in range(8): A(f"v_max3_f32 v{vM}, v{vM}, v{S0+2*i}, v{S0+2*i+1}")
    A(f"s_cmp_lt_u32 s{sA1}, s{s_n}")
    A(f"s_cbranch_scc1 {lp1}")
    A(f"v_mov_b32 v{vM2}, v{vM}")
    A("s_nop 1")
    A(f"v_permlane32_swap_b32 v{vM}, v{vM2}")
    A(f"v_max_f32 v{vM}, v{vM}, v{vM2}")
    for r in range(16): A(f"v_mov_b32 v{O+r}, 0")
    A(f"s_mov_b32 s{sA0}, s{s_base}")
    A(f"s_mov_b32 s{sA1}, 0")
    A.label(lp2)
    A(f"buffer_load_dwordx4 {vr(KB,4)}, v{vK}, s[12:15], s{sA0} offen sc1")
    A(f"buffer_load_dwordx4 {vr(VB,4)}, v{vV}, s[12:15], s{sA0} offen sc1")
    A(f"buffer_load_dwordx4 {vr(VB+4,4)}, v{vV1}, s[12:15], s{sA0} offen sc1")
    set_mask()
    A("s_waitcnt vmcnt(0)")
    A("s_nop 1")
    A(f"{MF} {vr(S0,16)}, {vr(KB,4)}, {vr(Qr,4)}, {C}")
    A(f"s_add_u32 s{sA0}, s{sA0}, {step & 0xffffffff:#x}")
    A(f"s_add_u32 s{sA1}, s{sA1}, 1")
    A("s_nop 15")
    for r in range(16): A(f"v_sub_f32 v{S0+r}, v{S0+r}, v{vM}")
    for r in range(16): A(f"v_exp_f32 v{S0+r}, v{S0+r}")
    A("s_nop 2")
    A(pv(O, VB, S0))
    A(pv(O, VB + 4, S0 + 8))
    A(f"s_cmp_lt_u32 s{sA1}, s{s_n}")
    A("s_nop 15")
    A(f"s_cbranch_scc1 {lp2}")
    A(f"s_branch {ret}")

def normalize_store(O, PK, soff):
    A(f"v_rcp_f32 v{vT}, v{O+8}")
    A("s_nop 0")
    for r in range(8): A(f"v_mul_f32 v{O+r}, v{O+r}, v{vT}")
    for r in range(4): A(f"v_cvt_pk_bf16_f32 v{PK+r}, v{O+2*r}, v{O+2*r+1}")
    A(f"buffer_store_dwordx4 {vr(PK,4)}, v{vK}, s[12:15], s{soff} offen sc1")

def tail_dma(team):
    A(f"v_and_b32 v{vT}, 7, v{vL}")
    A(f"v_lshlrev_b32 v{vT}, 5, v{vT}")
    if "oarep" in OPT:
        OS = int(OPT["oarep"])
        A(f"v_and_b32 v{vT}, 7, v{vL}")
        A(f"v_lshlrev_b32 v{vT}, {OS}, v{vT}")
        A(f"s_lshl_b32 s{sT3}, s{sRB}, 3")
        A(f"s_add_u32 s{sT3}, s{sT3}, s{sHG}")
        A(f"s_lshl_b32 s{sT3}, s{sT3}, {OS+3}")
    else:
        A(f"s_lshl_b32 s{sT3}, s{sRB}, 8")
    A(f"s_add_u32 s{sT3}, s{sT3}, {FL_OA:#x}")
    A(f"s_and_b32 s{sT}, s{sW}, 1")
    A(f"s_lshr_b32 s{sT2}, s{sW}, 1")
    A(f"s_lshl_b32 s{sA0}, s{sT}, 15")
    A(f"s_lshl_b32 s{sA1}, s{sRB}, 1")
    A(f"s_add_u32 s{sA1}, s{sA1}, s{sT}")
    A(f"s_lshl_b32 s{sA1}, s{sA1}, 16")
    A(f"s_add_u32 s{sA1}, s{sA1}, {WS_O:#x}")
    for m in range(len(MS)):
        A(f"s_mul_i32 s{40+m}, s{sT2}, {MS[m] // 4 * 1024}")
        A(f"s_add_u32 s{40+m}, s{40+m}, {sum(MS[:m]) * 1024}")
    if OPT.get("tp", "all") == "one":
        l = A.uid("tp")
        if team == "A":
            A(f"s_cmp_lg_u32 s{sW}, 0")
            A(f"s_cbranch_scc1 {l}")
            poll_flags(vT, sT3, slp=int(OPT.get("tslp", 1)))
        A.label(l)
        A("s_barrier")
    else:
        poll_flags(vT, sT3, slp=1)
    stamp()
    for m in range(len(MS)):
        A(f"s_add_u32 m0, s{sA0}, s{40+m}")
        A(f"s_add_u32 s{sT}, s{sA1}, s{40+m}")
        for i in range(MS[m] // 4): A(f"buffer_load_dwordx4 v{vK}, s[12:15], s{sT} offen offset:{i*1024} sc1 lds")

def gen():
    k = NAME + "_kernel"
    A.raw(f".globl {k}\n.p2align 8\n.type {k},@function\n{k}:")
    A("s_cmp_ge_u32 s2, 256")
    A("s_cbranch_scc1 L_exit")
    stamp(real=True); stamp()
    if "hwmap0" in OPT:
        A("s_getreg_b32 s3, hwreg(HW_REG_HW_ID)")
        A("s_getreg_b32 s2, hwreg(HW_REG_XCC_ID)")
        A("s_and_b32 s2, s2, 7")
        A("s_bfe_u32 s4, s3, 0x30008")
        A("s_lshl_b32 s4, s4, 3")
        A("s_or_b32 s2, s2, s4")
        A("s_bfe_u32 s4, s3, 0x2000d")
        A("s_lshl_b32 s4, s4, 6")
        A("s_or_b32 s2, s2, s4")
    if "scr" in OPT:
        A("s_bfe_u32 s3, s2, 0x30003")
        A("s_xor_b32 s2, s2, s3")
    vXd, vWd, vXa, vWa = 7, 8, 9, 13
    A(f"v_lshrrev_b32 v{vT}, 6, v0")
    A(f"v_and_b32 v{vL}, 63, v0")
    A(f"v_readfirstlane_b32 s{sW}, v{vT}")
    A(f"v_lshlrev_b32 v{vT2}, 2, v{vL}")
    A(f"s_cmp_lg_u32 s{sW}, 3")
    A("s_cbranch_scc1 L_nozero")
    A(f"v_mov_b32 v{vT}, 0")
    A(f"v_add_u32 v{vT2}, {L_CNT}, v{vT2}")
    A(f"ds_write_b32 v{vT2}, v{vT}")
    A("s_waitcnt lgkmcnt(0)")
    A.label("L_nozero")
    A("s_load_dwordx16 s[44:59], s[0:1], 0")
    A("s_load_dwordx8 s[60:67], s[0:1], 64")
    A("s_memrealtime s[22:23]")
    A(f"s_and_b32 s{sHG}, s2, 1")
    A(f"s_lshl_b32 s{sHG}, s{sHG}, 2")
    if "map1" in OPT:
        A(f"s_bfe_u32 s{sHG}, s2, 0x10004")
        A(f"s_lshl_b32 s{sHG}, s{sHG}, 2")
        A(f"s_bfe_u32 s{sT}, s2, 0x10003")
        A(f"s_add_u32 s{sHG}, s{sHG}, s{sT}")
        A(f"s_lshr_b32 s{sT}, s2, 7")
        A(f"s_lshl_b32 s{sT}, s{sT}, 1")
        A(f"s_add_u32 s{sHG}, s{sHG}, s{sT}")
        A(f"s_and_b32 s{sRB}, s2, 7")
        A(f"s_lshl_b32 s{sRB}, s{sRB}, 2")
        A(f"s_bfe_u32 s{sT}, s2, 0x20005")
        A(f"s_add_u32 s{sRB}, s{sRB}, s{sT}")
    elif "oldmap" in OPT:
        A(f"s_bfe_u32 s{sT}, s2, 0x20003")
        A(f"s_add_u32 s{sHG}, s{sHG}, s{sT}")
        A(f"s_bfe_u32 s{sRB}, s2, 0x20001")
        A(f"s_lshl_b32 s{sRB}, s{sRB}, 3")
        A(f"s_lshr_b32 s{sT}, s2, 5")
        A(f"s_add_u32 s{sRB}, s{sRB}, s{sT}")
    else:
        A(f"s_bfe_u32 s{sT}, s2, 0x10003")
        A(f"s_add_u32 s{sHG}, s{sHG}, s{sT}")
        A(f"s_lshr_b32 s{sT}, s2, 7")
        A(f"s_lshl_b32 s{sT}, s{sT}, 1")
        A(f"s_add_u32 s{sHG}, s{sHG}, s{sT}")
        A(f"s_bfe_u32 s{sRB}, s2, 0x20001")
        A(f"s_lshl_b32 s{sRB}, s{sRB}, 3")
        A(f"s_bfe_u32 s{sT}, s2, 0x30004")
        A(f"s_add_u32 s{sRB}, s{sRB}, s{sT}")
    A(f"v_lshlrev_b32 v{vK}, 4, v{vL}")
    A("s_barrier")
    A(f"s_lshr_b32 s{sT}, s{sW}, 2")
    A(f"s_xor_b32 s{sT}, s{sT}, s{sHG}")
    A(f"s_and_b32 s{sT}, s{sT}, 1")
    A(f"s_xor_b32 s{sT}, s{sT}, 1")
    A(f"s_lshl_b32 s{sT}, s{sT}, 2")
    A(f"s_and_b32 s{sJ}, s{sW}, 3")
    A(f"s_add_u32 s{sT}, s{sT}, s{sJ}")
    A(f"s_lshl_b32 s{sT4}, s{sT}, 10")
    A(f"s_lshl_b32 s{sT}, s{sT}, 3")
    A(f"v_lshrrev_b32 v{vT}, 3, v{vL}")
    A(f"v_add_u32 v{vT}, s{sT}, v{vT}")
    A(f"v_lshrrev_b32 v{vT2}, 1, v{vT}")
    A(f"v_xor_b32 v{vT2}, v{vT2}, v{vL}")
    A(f"v_and_b32 v{vT2}, 7, v{vT2}")
    A(f"v_lshlrev_b32 v{vT2}, 4, v{vT2}")
    A(f"v_lshl_add_u32 v{vXd}, v{vT}, 10, v{vT2}")
    A(f"s_lshl_b32 s{sA0}, s{sRB}, 16")
    if ROT:
        A(f"s_and_b32 s37, s{sHG}, 2")
        A(f"s_add_u32 s37, s37, 4")
    else:
        A("s_mov_b32 s37, 0")
    if "bfirst" in OPT:
        A(f"s_cmp_lt_u32 s{sW}, 4")
        A("s_cbranch_scc1 L_ateam")
        A.raw("; @@A_BEGIN")
        A.label("L_ateam")
    else:
        A(f"s_cmp_ge_u32 s{sW}, 4")
        A("s_cbranch_scc1 L_bteam")

    sXR, sQR = 37, 54
    def dma_x_plain(kb):
        kb = [3, 0, 1, 2, 4, 5, 6, 7][kb] if "k3" in OPT else kb
        A(f"s_add_u32 m0, s{sT4}, {L_X + kb*8192 - kb*128}")
        A("s_nop 0")
        A(f"buffer_load_dwordx4 v{vXd}, s[4:7], s{sA0} offen offset:{kb*128} lds")
    def dma_x(kb):
        A(f"s_lshl_b32 s{sT2}, s{sXR}, 13")
        A(f"s_add_u32 m0, s{sT4}, s{sT2}")
        A(f"s_lshl_b32 s{sT2}, s{sXR}, 7")
        A(f"s_add_u32 s{sT2}, s{sT2}, s{sA0}")
        A(f"buffer_load_dwordx4 v{vXd}, s[4:7], s{sT2} offen lds")
        if kb < 7:
            A(f"s_add_u32 s{sXR}, s{sXR}, 1")
            A(f"s_and_b32 s{sXR}, s{sXR}, 7")

    def x_frag_addr(dst, s_off):
        A(f"v_and_b32 v{vT}, 31, v{vL}")
        A(f"v_lshrrev_b32 v{vT2}, 5, v{vL}")
        A(f"v_bfe_u32 v{vT3}, v{vL}, 1, 3")
        A(f"v_xor_b32 v{vT2}, v{vT2}, v{vT3}")
        A(f"v_lshl_add_u32 v{vT}, v{vT}, 7, s{s_off}")
        for q in range(4):
            A(f"v_xor_b32 v{vT3}, {2*q}, v{vT2}")
            A(f"v_lshl_add_u32 v{dst+q}, v{vT3}, 4, v{vT}")

    def tr_addr(dst, hmul, rowb, cgmul, s_off):
        A(f"v_lshrrev_b32 v{vT}, 5, v{vL}")
        A(f"v_bfe_u32 v{vT2}, v{vL}, 2, 2")
        A(f"v_mad_u32_u24 v{vT}, v{vT}, {hmul}, v{vT2}")
        A(f"v_and_b32 v{vT2}, 3, v{vL}")
        A(f"v_lshlrev_b32 v{vT2}, 3, v{vT2}")
        if cgmul:
            A(f"v_bfe_u32 v{vT3}, v{vL}, 4, 1")
            A(f"v_lshl_add_u32 v{vT2}, v{vT3}, {int(math.log2(cgmul))}, v{vT2}")
        A(f"v_lshl_add_u32 v{dst}, v{vT}, {int(math.log2(rowb))}, v{vT2}")
        A(f"v_add_u32 v{dst}, s{s_off}, v{dst}")

    def w128_dma_addr(dst, stride):
        A(f"v_lshrrev_b32 v{vT}, 3, v{vL}")
        if stride == 1024: A(f"v_lshlrev_b32 v{vT}, 10, v{vT}")
        else: A(f"v_mul_u32_u24 v{vT}, {stride}, v{vT}")
        A(f"v_lshrrev_b32 v{vT2}, 2, v{vL}")
        A(f"v_and_b32 v{vT2}, 4, v{vT2}")
        A(f"v_xor_b32 v{vT2}, v{vT2}, v{vL}")
        A(f"v_and_b32 v{vT2}, 7, v{vT2}")
        A(f"v_lshl_add_u32 v{dst}, v{vT2}, 4, v{vT}")

    def w128_tr_addr(dst, hmul, s_off, s_ct=None):
        A(f"v_lshrrev_b32 v{vT}, 5, v{vL}")
        A(f"v_bfe_u32 v{vT2}, v{vL}, 2, 2")
        A(f"v_mad_u32_u24 v{vT}, v{vT}, {hmul}, v{vT2}")
        A(f"v_and_b32 v{vT2}, 3, v{vL}")
        A(f"v_lshlrev_b32 v{vT2}, 3, v{vT2}")
        A(f"v_lshl_add_u32 v{vT}, v{vT}, 7, v{vT2}")
        A(f"v_bfe_u32 v{vT2}, v{vL}, 4, 1")
        A(f"v_lshl_add_u32 v{vT}, v{vT2}, 5, v{vT}")
        A(f"v_bfe_u32 v{vT2}, v{vL}, 3, 1")
        if s_ct is not None: A(f"v_xor_b32 v{vT2}, s{s_ct}, v{vT2}")
        A(f"v_lshl_add_u32 v{vT}, v{vT2}, 6, v{vT}")
        if s_off is None: A(f"v_mov_b32 v{dst}, v{vT}")
        else: A(f"v_add_u32 v{dst}, s{s_off}, v{vT}")

    def v_lane_addr():
        A(f"v_and_b32 v{vT}, 31, v{vL}")
        A(f"v_lshrrev_b32 v{vT2}, 5, v{vL}")
        A(f"v_lshlrev_b32 v{vT2}, 8, v{vT2}")
        A(f"v_lshl_add_u32 v{vV}, v{vT}, 4, v{vT2}")
        A(f"v_add_u32 v{vV}, 1024, v{vV}")
        A(f"v_mov_b32 v{vT2}, {OOB:#x}")
        A(f"v_cmp_gt_u32 s[38:39], 16, v{vT}")
        A(f"v_and_b32 v{vT}, 27, v{vT}")
        A(f"v_mov_b32 v{vT3}, 2048")
        A(f"v_cndmask_b32_e64 v{vV}, v{vT2}, v{vV}, s[38:39]")
        A(f"v_cmp_eq_u32 s[38:39], 16, v{vT}")
        A(f"v_add_u32 v{vV1}, 512, v{vV}")
        A("s_nop 0")
        A(f"v_cndmask_b32_e64 v{vV}, v{vV}, v{vT3}, s[38:39]")
        A(f"v_cndmask_b32_e64 v{vV1}, v{vV1}, v{vT3}, s[38:39]")
        if "zerov" in OPT.get("abl", ""):
            A(f"v_mov_b32 v{vV}, {OOB:#x}")
            A(f"v_mov_b32 v{vV1}, {OOB:#x}")

    def chain(s0, n, FR, ACC, kstride, second, swap):
        def rd(s):
            b = FR + 8 * (s % 4)
            A(f"ds_read_b64_tr_b16 v[{b}:{b+1}], v{vWa} offset:{s*kstride}")
            A(f"ds_read_b64_tr_b16 v[{b+2}:{b+3}], v{vWa} offset:{s*kstride+second}")
            A(f"ds_read_b128 v[{b+4}:{b+7}], v{vXa+(s&3)} offset:{(s>>2)*8192}")
        for s in range(s0, s0 + 3): rd(s)
        for s in range(s0, s0 + n):
            if s + 3 < s0 + n: rd(s + 3)
            A(f"s_waitcnt lgkmcnt({3 * (min(s + 3, s0 + n - 1) - s)})")
            b = FR + 8 * (s % 4)
            c = "0" if s == 0 else vr(ACC, 16)
            if swap: A(f"{MF} {vr(ACC,16)}, {vr(b+4,4)}, {vr(b,4)}, {c}")
            else:    A(f"{MF} {vr(ACC,16)}, {vr(b,4)}, {vr(b+4,4)}, {c}")

    R = int(OPT.get("ring", 4))
    D = int(OPT.get("depth", R - 1))
    G1 = int(OPT.get("g1", 2 * R - 1 if R == 4 else 7))
    CHK = G1 - D
    assert 0 < CHK <= R and D < R
    SL = [72, 84] + [176 + 12 * i for i in range(R - 2)]
    Q = 96; O = 112
    KT0 = 176 + 12 * (R - 2) if R == 4 else SL[R - 2]
    w128_dma_addr(vWd, 1024)
    A(f"s_lshl_b32 s{sA1}, s{sW}, 14")
    A(f"s_lshl_b32 s{sT}, s{sHG}, 7")
    A(f"s_add_u32 s{sA1}, s{sA1}, s{sT}")
    A(f"s_lshl_b32 s{sA2}, s{sW}, 11")
    A(f"s_add_u32 s{sA2}, s{sA2}, {L_WQ}")
    A("s_waitcnt lgkmcnt(0)")
    srd(4, P_X, 2048 * 1024)
    srd(8, P_WQ, 512 * 1024)
    if "cpf" in OPT:
        A(f"s_cmp_lg_u32 s{sW}, 3")
        A("s_cbranch_scc1 L_nocpf")
        A("s_getpc_b64 s[38:39]")
        A.label("L_pc")
        A(f"s_sub_u32 s38, s38, L_pc-{k}")
        A("s_subb_u32 s39, s39, 0")
        A(f"s_lshr_b32 s{sT}, s2, 3")
        A(f"v_lshlrev_b32 v{vT}, 5, v{vL}")
        A(f"v_add_u32 v{vT}, s{sT}, v{vT}")
        A(f"v_lshlrev_b32 v{vT}, 7, v{vT}")
        A(f"v_cmp_gt_u32 vcc, L_code_end-{k}, v{vT}")
        A(f"v_mov_b32 v{vT3}, s39")
        A(f"v_add_co_u32 v{vT}, s[40:41], s38, v{vT}")
        A("s_nop 1")
        A(f"v_addc_co_u32 v{vT2}, s[40:41], 0, v{vT3}, s[40:41]")
        A("s_mov_b64 exec, vcc")
        A(f"global_load_dword v254, v[{vT}:{vT2}], off")
        A("s_mov_b64 exec, -1")
        A.label("L_nocpf")
    if ROT and "map1" in OPT:
        A(f"s_and_b32 s{sQR}, s{sRB}, 3")
        A(f"s_lshl_b32 s{sQR}, s{sQR}, 1")
        A(f"s_bfe_u32 s{sT}, s{sRB}, 0x10002")
        A(f"s_add_u32 s{sQR}, s{sQR}, s{sT}")
    elif ROT: A(f"s_and_b32 s{sQR}, s{sRB}, 7")
    else: A(f"s_mov_b32 s{sQR}, 0")
    if "pf0" in OPT:
        A(f"s_lshr_b32 s{sT}, s2, 3")
        A(f"s_cmp_ge_u32 s{sW}, 2")
        A("s_cbranch_scc1 L_a_pfq")
        A(f"s_bfe_u32 s{sT2}, s2, 0x20001")
        A(f"s_lshl_b32 s{sT2}, s{sT2}, 19")
        A(f"s_lshl_b32 s{sT}, s{sT}, 14")
        A(f"s_add_u32 s{sT2}, s{sT2}, s{sT}")
        A(f"s_lshl_b32 s{sT}, s{sW}, 13")
        A(f"s_add_u32 s{sT2}, s{sT2}, s{sT}")
        A(f"v_lshlrev_b32 v{vT}, 7, v{vL}")
        A(f"buffer_load_dword v254, v{vT}, s[4:7], s{sT2} offen sc1")
        A("s_branch L_a_pfd")
        A.label("L_a_pfq")
        A(f"s_cmp_eq_u32 s{sW}, 3")
        A("s_cbranch_scc1 L_a_pfd")
        A(f"s_and_b32 s{sT2}, s2, 1")
        A(f"s_lshl_b32 s{sT2}, s{sT2}, 9")
        A(f"s_lshl_b32 s{sT}, s{sT}, 14")
        A(f"s_add_u32 s{sT2}, s{sT2}, s{sT}")
        A(f"v_lshrrev_b32 v{vT}, 2, v{vL}")
        A(f"v_lshlrev_b32 v{vT}, 10, v{vT}")
        A(f"v_and_b32 v{vT2}, 3, v{vL}")
        A(f"v_lshl_add_u32 v{vT}, v{vT2}, 7, v{vT}")
        A(f"buffer_load_dword v254, v{vT}, s[8:11], s{sT2} offen sc1")
        A.label("L_a_pfd")
    sRI = 55
    def a_setup():
        srd(12, P_WS, WS_SIZE)
        A(f"s_and_b32 s{sRI}, s{sW}, 1")
        A(f"s_lshl_b32 s{sT2}, s{sRI}, 12")
        x_frag_addr(vXa, sT2)
        A(f"s_lshr_b32 s{sJ}, s{sW}, 1")
        A(f"s_mov_b32 s{sT2}, {L_WQ}")
        w128_tr_addr(vWa, 8, sT2, sJ)
        v_lane_addr()
        for q in range(4):
            for r in range(0, 10, 2): A(f"v_pk_mov_b32 v[{O+16*q+r}:{O+16*q+r+1}], 0, 0")
    if OPT.get("alate", "1") == "1": a_setup()
    if OPT.get("ahold"):
        A(f"s_bitcmp1_b32 s{sHG}, 1")
        A("s_cbranch_scc1 L_a_go")
        team_wait(int(OPT["ahold"]), 4, 1)
        A.label("L_a_go")
    for kb in range(8):
        dma_x(kb)
        A(f"s_lshl_b32 s{sT2}, s{sQR}, 13")
        A(f"s_add_u32 m0, s{sA2}, s{sT2}")
        A(f"s_lshl_b32 s{sT2}, s{sQR}, 16")
        A(f"s_add_u32 s{sT2}, s{sT2}, s{sA1}")
        A(f"buffer_load_dwordx4 v{vWd}, s[8:11], s{sT2} offen lds")
        A(f"s_add_u32 m0, m0, 1024")
        A(f"s_add_u32 s{sT2}, s{sT2}, 8192")
        A(f"buffer_load_dwordx4 v{vWd}, s[8:11], s{sT2} offen lds")
        if kb < 7:
            A(f"s_add_u32 s{sQR}, s{sQR}, 1")
            A(f"s_and_b32 s{sQR}, s{sQR}, 7")
    stamp()
    if OPT.get("alate", "1") != "1": a_setup()
    A("s_waitcnt vmcnt(0)")
    team_add(5)
    team_wait(5, 8, 1)
    stamp()
    if 'dq' in OPT: A(f"s_sleep {OPT['dq']}")
    chain(0, 32, 200, S0, 2048, 512, False)
    stamp()
    A(f"s_mov_b32 s{sT2}, {f2u(CSCALE):#x}")
    A(f"s_lshl_b32 s{sT3}, s{sRI}, 12")
    A(f"s_lshl_b32 s{sT4}, s{sJ}, 11")
    A(f"s_add_u32 s{sT4}, s{sT4}, s{sT3}")
    A(f"s_add_u32 s{sT4}, s{sT4}, {L_QX}")
    A(f"s_add_u32 s{sT3}, s{sT3}, {L_QX}")
    A(f"v_add_u32 v{vT}, s{sT4}, v{vK}")
    A(f"v_add_u32 v{vT3}, s{sT3}, v{vK}")
    sKB, sKE = 37, 54
    A(f"s_mul_i32 s{sKB}, s{sJ}, {32*TB}")
    A(f"s_add_u32 s{sKE}, s{sKB}, {32*TB}")
    A(f"s_mul_i32 s{sA0}, s{sRB}, {TB}")
    A(f"s_add_u32 s{sKV}, s{sKB}, s{sA0}")
    for r in range(0, 4, 2): A(f"v_pk_mov_b32 v[{SL[R-1]+8+r}:{SL[R-1]+9+r}], 0, 0")
    assert D < R - 1 or R == 4
    A(f"v_mov_b32 v{vIDX}, 0xdddddddd")
    A("s_nop 0")
    for r in range(16): A(f"v_mul_f32 v{S0+r}, s{sT2}, v{S0+r}")
    for r in range(8): A(f"v_cvt_pk_bf16_f32 v{S1+r}, v{S0+2*r}, v{S0+2*r+1}")
    A(f"ds_write_b128 v{vT}, {vr(S1,4)}")
    A(f"ds_write_b128 v{vT}, {vr(S1+4,4)} offset:1024")
    A("s_waitcnt lgkmcnt(0)")
    team_add(6)
    stamp()
    team_wait(11, 1, int(OPT.get('rs', 1)))
    stamp()
    def kv_load(slot, part):
        b = SL[slot]
        m = "" if "plain" in OPT else "sc1"
        if part == 0: return f"buffer_load_dwordx4 {vr(b,4)}, v{vK}, s[12:15], s{sKV} offen {m}"
        if part == 1: return f"buffer_load_dwordx4 {vr(b+4,4)}, v{vV}, s[12:15], s{sKV} offen {m}"
        return f"buffer_load_dwordx4 {vr(b+8,4)}, v{vV1}, s[12:15], s{sKV} offen {m}"
    KADV = [f"s_add_u32 s{sKV}, s{sKV}, {TB}", f"s_cmp_eq_u32 s{sKV}, s{sKE}", f"s_cselect_b32 s{sKV}, s{sKB}, s{sKV}"]
    A(f"buffer_load_dwordx4 {vr(KT0,4)}, v{vK}, s[12:15], s{sA0} offen sc1")
    for t in range(D):
        for part in range(3): A(kv_load(t, part))
        for x in KADV: A(x)
    team_wait(6, 4, 1)
    A(f"s_lshl_b32 s{sT2}, s{sJ}, 11")
    A(f"v_add_u32 v8, s{sT2}, v{vT3}")
    A(f"v_xor_b32 v7, 2048, v8")
    for q in range(4): A(f"ds_read_b128 {vr(Q+4*q,4)}, v{7 + q//2} offset:{(q&1)*1024}")
    A(f"s_mul_i32 s{sT2}, s{sW}, 4608")
    A(f"s_add_u32 s{sT2}, s{sT2}, {L_COMB}")
    A(f"s_cmp_eq_u32 s{sW}, 3")
    A(f"s_cselect_b32 s{sT2}, {L_COMB3}, s{sT2}")
    A(f"s_xor_b32 s{sT3}, s{sW}, 2")
    A(f"s_mul_i32 s{sT3}, s{sT3}, 4608")
    A(f"s_add_u32 s{sT3}, s{sT3}, {L_COMB}")
    A(f"s_cmp_eq_u32 s{sW}, 1")
    A(f"s_cselect_b32 s{sT3}, {L_COMB3}, s{sT3}")
    A(f"v_lshlrev_b32 v14, 2, v{vL}")
    A(f"v_add_u32 v11, s{sT2}, v{vK}")
    A(f"v_add_u32 v12, s{sT2}, v14")
    A(f"v_add_u32 v13, s{sT3}, v{vK}")
    A(f"v_add_u32 v14, s{sT3}, v14")
    A(f"s_lshl_b32 s{sA2}, s{sRB}, 1")
    A(f"s_add_u32 s{sA2}, s{sA2}, s{sRI}")
    A(f"s_lshl_b32 s{sA2}, s{sA2}, 6")
    A(f"s_lshl_b32 s{sT4}, s{sHG}, 2")
    A(f"s_add_u32 s{sA2}, s{sA2}, s{sT4}")
    A(f"s_lshl_b32 s{sT4}, s{sJ}, 1")
    A(f"s_add_u32 s{sA2}, s{sA2}, s{sT4}")
    A(f"s_lshl_b32 s{sA2}, s{sA2}, 10")
    A(f"s_add_u32 s{sA2}, s{sA2}, {WS_O:#x}")
    A(f"v_mov_b32 v{vT3}, {L_CNT + 64}")
    A(f"ds_read_b32 v{vT3}, v{vT3}")
    A("s_mov_b32 s56, 0xffff")
    A("s_mov_b32 s57, 0xffff")
    A(f"s_mov_b32 s{sCnt}, {32 // R - 1}")
    A("s_mov_b64 vcc, -1")
    A("s_waitcnt lgkmcnt(0)")
    team_add(7)
    A(f"v_readfirstlane_b32 s{sNON}, v{vT3}")
    A(f"s_waitcnt vmcnt({3*D})")
    T0 = [S0, S1, KT0 + 4, KT0 + 20] if R == 4 else [S0, S1, O + 32, O + 48]
    for q in range(4): A(f"{MF} {vr(T0[q],16)}, {vr(KT0,4)}, {vr(Q+4*q,4)}, 0")
    A("s_nop 7")
    A("s_nop 0")
    lane_max_all([T0[q] + r for q in range(4) for r in range(4)], vT, vT2)
    A(f"v_sub_f32 v{NEG}, 0, v{vT}")
    A(f"v_sub_f32 v{NEG+1}, 0, v{vT}")
    for r in range(2, 16, 2): A(f"v_pk_mov_b32 v[{NEG+r}:{NEG+r+1}], v[{NEG}:{NEG+1}], v[{NEG}:{NEG+1}] op_sel:[0,1]")
    A(f"s_waitcnt vmcnt({3*(D-1)})")
    if "vmask" in OPT:
        A("s_mov_b32 exec_lo, 0xffff0000")
        A("s_mov_b32 exec_hi, 0xffff0000")
        for r in range(0, 8, 2): A(f"v_pk_mov_b32 v[{SL[R-1]+4+r}:{SL[R-1]+5+r}], v[{SL[0]+4}:{SL[0]+5}], v[{SL[0]+4}:{SL[0]+5}] op_sel:[0,1]")
        A("s_mov_b64 exec, -1")
        for r in range(8, 16, 2): A(f"v_pk_mov_b32 v[{S1+r}:{S1+r+1}], 0, 0")
    A("s_nop 0")
    A(f"{MF} {vr(S0,16)}, {vr(SL[0],4)}, {vr(Q,4)}, {vr(NEG,16)}")
    if R == 4:
        A("s_nop 7")
        A("s_nop 3")
    else:
        for q in (2, 3):
            for r in range(0, 10, 2): A(f"v_pk_mov_b32 v[{O+16*q+r}:{O+16*q+r+1}], 0, 0")
        A("s_nop 1")
    stamp()
    if PROF: A("s_memtime s[68:69]")
    A.raw(".p2align 6")
    A.label("L_aloop")
    if PROF:
        A("s_waitcnt lgkmcnt(0)")
        A(f"s_add_u32 m0, s{sCnt}, 1")
        A("s_nop 0")
        A(f"v_writelane_b32 v255, s68, m0")
        A("s_memtime s[68:69]")
    for kb in range(R):
        for q in range(4):
            Sc, Sn = (S0, S1) if q % 2 == 0 else (S1, S0)
            cur, prv, nxt = SL[kb], SL[(kb - 1) % R], SL[(kb + 1) % R]
            Kq = cur if q < 3 else nxt
            nq = (q + 1) % 4
            Vp = cur if q > 0 else prv
            Op = O + 16 * ((q - 1) % 4); Oc = O + 16 * q
            ex = {}
            if "vmask" in OPT:
                if q == 0: ex["X2"] = kv_load((kb + D) % R, 0)
                if OPT["vmask"] == "1" and q == 1: ex["X2"] = "s_mov_b64 exec, s[56:57]\n" + kv_load((kb + D) % R, 1) + "\n" + kv_load((kb + D) % R, 2) + "\ns_mov_b64 exec, -1"
                if OPT["vmask"] == "2" and q in (1, 2): ex["X2"] = "s_mov_b64 exec, s[56:57]\n" + kv_load((kb + D) % R, q) + "\ns_mov_b64 exec, -1"
            elif q < 3: ex["X2"] = kv_load((kb + D) % R, q)
            if q == 0 and kb == CHK:
                ex["X1"] = "s_cbranch_vccnz L_afirst\nL_afirst_ret:"
            if q == 2: ex["X4"] = KADV[0]
            if q == 3:
                ex["X1"] = f"s_waitcnt vmcnt({3*(D-1)})"
                ex["X2"] = KADV[1]
                ex["X4"] = KADV[2]
                if kb == R - 1: ex["X4"] += f"\ns_sub_u32 s{sCnt}, s{sCnt}, 1"
            if "noload" in OPT.get("abl", "") and q < 3: ex.pop("X2", None)
            if "halfload" in OPT.get("abl", "") and q < 3 and kb % 2: ex.pop("X2", None)
            if ("noload" in OPT.get("abl", "") or "halfload" in OPT.get("abl", "")) and q == 3: ex["X1"] = "s_waitcnt vmcnt(3)"
            if "nosalu" in OPT.get("abl", ""):
                for x in ("X1", "X2"): ex.pop(x, None)
            tile_code(Sc, f"{MF} {vr(Sn,16)}, {vr(Kq,4)}, {vr(Q+4*nq,4)}, {'0' if 'c0' in OPT.get('abl', '') else vr(NEG,16)}",
                      pv(Op, Vp + 8, Sn + 8), pv(Op, Vp + 4, Sn) if "pvhead" in OPT else pv(Oc, cur + 4, Sc), ex)
    if CHK == R:
        A("s_cbranch_vccnz L_afirst")
    A("s_cbranch_scc0 L_aloop")
    A("s_nop 0")
    A(pv(O + 48, SL[R-1] + 8, S1 + 8))
    for i in range(2):
        A(f"ds_write_b128 v11, {vr(O+16*i,4)} offset:{i*2304}")
        A(f"ds_write_b128 v11, {vr(O+16*i+4,4)} offset:{i*2304+1024}")
        A(f"ds_write_b32 v12, v{O+16*i+8} offset:{i*2304+2048}")
    stamp()
    A(f"s_mov_b32 s{sKV}, 0")
    A(f"s_mov_b32 s{sCnt}, 64")
    A("s_waitcnt lgkmcnt(0)")
    A("s_barrier")
    for i in range(2):
        A(f"ds_read_b32 v{S0+16*i+8}, v14 offset:{i*2304+2048}")
        A(f"ds_read_b128 {vr(S0+16*i,4)}, v13 offset:{i*2304}")
        A(f"ds_read_b128 {vr(S0+16*i+4,4)}, v13 offset:{i*2304+1024}")
    OK_ = O + 32
    def fin(i):
        o = OK_ + 16 * i; t = O + 16 * i
        A(f"v_rcp_f32 v{t+8}, v{o+8}")
        A("s_nop 0")
        for r in range(8): A(f"v_mul_f32 v{t+r}, v{o+r}, v{t+8}")
        for r in range(4): A(f"v_cvt_pk_bf16_f32 v{P+4*i+r}, v{t+2*r}, v{t+2*r+1}")
        A(f"buffer_store_dwordx4 {vr(P+4*i,4)}, v{vK}, s[12:15], s{sA2} offen offset:{i*1024} sc1")
    for i in range(2):
        o = OK_ + 16 * i
        A(f"s_waitcnt lgkmcnt({3*(1-i)})")
        A(f"v_add_f32 v{o+8}, v{o+8}, v{S0+16*i+8}")
        for r in range(0, 8, 2): A(f"v_pk_add_f32 v[{o+r}:{o+r+1}], v[{o+r}:{o+r+1}], v[{S0+16*i+r}:{S0+16*i+r+1}]")
        fin(i)
    for i in range(2):
        range_check(OK_ + 16 * i, f"L_a_slow{i}")
        A.label(f"L_a_ok{i}")
    A("s_waitcnt vmcnt(0)")
    stamp()
    A(f"s_lshl_b32 s{sA2}, s{sRB}, 8")
    A(f"s_lshl_b32 s{sT}, s{sHG}, 5")
    A(f"s_add_u32 s{sA2}, s{sA2}, s{sT}")
    A(f"s_add_u32 s{sA2}, s{sA2}, {FL_OA:#x}")
    A("s_barrier")
    A(f"s_cmp_lg_u32 s{sW}, 0")
    A("s_cbranch_scc1 L_a_noflag")
    flag_store(sA2)
    A.label("L_a_noflag")
    tail_dma("A")
    for m in range(len(MS)):
        A(f"s_waitcnt vmcnt({sum(MS[m+1:]) // 4})")
        A("s_barrier")
    if PROF:
        A("s_lshl_b32 s68, s2, 2")
        A(f"s_add_u32 s68, s68, s{sW}")
        A("s_lshl_b32 s68, s68, 8")
        A(f"s_add_u32 s68, s68, {WS_PROF + 0x80000:#x}")
        A(f"v_lshlrev_b32 v248, 2, v{vL}")
        A("buffer_store_dword v255, v248, s[12:15], s68 offen")
    stamp_flush()
    A("s_endpgm")
    A.label("L_afirst")
    team_wait(9, 1, 1)
    A("s_mov_b64 vcc, 0")
    A("s_branch L_aloop" if CHK == R else "s_branch L_afirst_ret")
    for i in range(2):
        slow_path(f"L_a_slow{i}", f"L_a_re{i}", Q + 8 + 4 * i, OK_ + 16 * i, sKV, sCnt, TB, False, SL[0], SL[0] + 4, None)
        A.label(f"L_a_re{i}")
        fin(i)
        A(f"s_branch L_a_ok{i}")

    NST[0] = 2
    if "bfirst" in OPT: A.raw("; @@A_END")
    A.label("L_bteam")
    A(f"s_setprio {OPT.get('bprio', 2)}")
    A(f"s_lshl_b32 s{sA2}, s{sJ}, 10")
    A("s_mov_b32 s6, 0x200000")
    A("s_mov_b32 s7, 0x00020000")
    A(f"s_bitcmp0_b32 s{sHG}, 1")
    A("s_cselect_b32 s42, 16384, 0")
    A("s_mov_b32 s43, 0x00020000")
    A(f"s_or_b32 s{sT3}, s2, s{sJ}")
    A(f"s_cmp_lt_u32 s{sHG}, 4")
    A("s_waitcnt lgkmcnt(0)")
    A(f"s_cselect_b32 s40, s{P_WK}, s{P_WV}")
    A(f"s_cselect_b32 s41, s{P_WK+1}, s{P_WV+1}")
    A(f"s_mov_b32 s4, s{P_X}")
    A(f"s_and_b32 s5, s{P_X+1}, 0xffff")
    A("s_and_b32 s41, s41, 0xffff")
    if "k0st" in OPT: kstamp()
    if "tfirst" in OPT:
        A(f"s_bitcmp0_b32 s{sHG}, 1")
        A("s_cbranch_scc1 L_b_notf")
        A(f"s_cmp_lt_u32 s{sJ}, 2")
        A(f"s_cselect_b32 s8, s{P_WK}, s{P_WS}")
        A(f"s_cselect_b32 s9, s{P_WK+1}, s{P_WS+1}")
        A(f"s_cmp_eq_u32 s{sJ}, 1")
        A(f"s_cselect_b32 s8, s{P_WV}, s8")
        A(f"s_cselect_b32 s9, s{P_WV+1}, s9")
        A(f"s_cmp_eq_u32 s{sJ}, 2")
        A(f"s_cselect_b32 s8, s{P_DBG}, s8")
        A(f"s_cselect_b32 s9, s{P_DBG+1}, s9")
        A("s_and_b32 s9, s9, 0xffff")
        A("s_mov_b32 s10, 256")
        A("s_mov_b32 s11, 0x00020000")
        A(f"v_mov_b32 v{vT}, 128")
        A("s_mov_b64 exec, 1")
        A(f"buffer_load_dword v254, v{vT}, s[8:11], 0 offen sc1")
        A("s_mov_b64 exec, -1")
        A.label("L_b_notf")
    for kb in range(8):
        dma_x_plain(kb)
        if "k0st" in OPT and kb in (0, 1): kstamp()
        if kb % 2 == 0:
            A(f"s_add_u32 m0, s{sA2}, {L_WKV + kb*2048}")
            A(f"s_add_u32 s{sT}, s{sA2}, {kb*2048}")
            A(f"buffer_load_dwordx4 v{vK}, s[40:43], s{sT} offen lds")
    A(f"s_or_b32 s{sT2}, s22, 1")
    A("s_mov_b32 s3, s22")
    srd(20, P_DBG, 256)
    srd(12, P_WS, WS_SIZE)
    A(f"s_cmp_lg_u32 s{sT3}, 1")
    A("s_cbranch_scc1 L_b_nononce")
    A(f"s_cmp_lg_u32 s2, 0")
    A("s_cbranch_scc1 L_b_nononce")
    A(f"v_mov_b32 v{vT}, s{sT2}")
    A(f"v_mov_b32 v{vT2}, 0")
    A("s_mov_b64 exec, 1")
    A(f"buffer_store_dword v{vT}, v{vT2}, s[20:23], 0 offen sc1")
    A("s_mov_b64 exec, -1")
    A.label("L_b_nononce")
    if "notouch" not in OPT:
        A(f"s_cmp_lg_u32 s{sJ}, 3")
        A("s_cbranch_scc1 L_b_notouch")
        A(f"v_lshlrev_b32 v{vT}, 21, v{vL}")
        if "touchfl" in OPT:
            A(f"s_lshl_b32 s{sT2}, s2, 7")
            A(f"s_add_u32 s{sT2}, s{sT2}, {WS_FL - 2048:#x}")
            A(f"v_writelane_b32 v{vT}, s{sT2}, 5")
            if NREP > 1:
                A(f"s_add_u32 s{sT2}, s{sT2}, 0x10000")
                A(f"v_writelane_b32 v{vT}, s{sT2}, 6")
            A(f"s_mov_b64 exec, {0x7f if NREP > 1 else 0x3f}")
        else:
            A("s_mov_b64 exec, 0x1f")
        A(f"buffer_load_dword v254, v{vT}, s[12:15], 0 offen offset:2048 sc1")
        A("s_mov_b64 exec, -1")
        A.label("L_b_notouch")
    stamp()
    A(f"s_and_b32 s{sT4}, s{sHG}, 1")
    A(f"s_lshl_b32 s{sT2}, s{sT4}, 12")
    x_frag_addr(vXa, sT2)
    A(f"s_mov_b32 s{sT2}, {L_WKV}")
    tr_addr(vWa, 8, 32, 0, sT2)
    v_lane_addr()
    vN = 14
    A(f"v_mov_b32 v{vN+1}, 0")
    def nonce_load(): A(f"buffer_load_dword v{vN}, v{vN+1}, s[20:23], 0 offen sc1")
    def nonce_wait():
        l = A.uid("nw"); d = A.uid("nwd")
        A(f"s_mov_b32 s{sSP}, {SPIN}")
        A.label(l)
        A("s_waitcnt vmcnt(0)")
        A(f"v_readfirstlane_b32 s{sNON}, v{vN}")
        r = A.uid("nwr")
        A("s_nop 1")
        A(f"s_cmp_eq_u32 s{sNON}, 0")
        A(f"s_cbranch_scc1 {r}")
        A(f"s_sub_u32 s{sT}, s3, s{sNON}")
        A(f"s_cmp_lt_i32 s{sT}, 1000")
        A(f"s_cbranch_scc1 {d}")
        A(f"s_cmp_lt_u32 s{sSP}, {SPIN - 64}")
        A(f"s_cbranch_scc1 {d}")
        A.label(r)
        A(f"s_sub_u32 s{sSP}, s{sSP}, 1")
        timeout_branch(d)
        nonce_load()
        A(f"s_branch {l}")
        A.label(d)
    ACC = 16
    A(f"s_lshl_b32 s{sRT0}, s{sRB}, 1")
    A(f"s_add_u32 s{sA0}, s{sRT0}, s{sT4}")
    A(f"s_mul_i32 s{sA0}, s{sA0}, {TB}")
    A(f"s_lshl_b32 s{sA1}, s{sRB}, 2")
    A(f"s_add_u32 s{sA1}, s{sA1}, s{sT4}")
    A(f"s_lshr_b32 s{sT2}, s{sHG}, 2")
    A(f"s_lshl_b32 s{sT2}, s{sT2}, 1")
    A(f"s_add_u32 s{sA1}, s{sA1}, s{sT2}")
    A(f"s_lshl_b32 s{sA1}, s{sA1}, {3 if 'dense' in OPT else 5}")
    A(f"s_add_u32 s{sA1}, s{sA1}, {FL_KVA:#x}")
    A("s_waitcnt vmcnt(6)")
    kstamp()
    ksv = NST[0]
    A(f"s_cmp_lg_u32 s{sJ}, 0")
    A("s_cbranch_scc1 L_b_idle")
    A(f"s_bitcmp1_b32 s{sHG}, 1")
    A("s_cbranch_scc1 L_b_idle")
    def kv_unit(swap):
        NST[0] = ksv
        team_wait(4, 3, KS)
        kstamp()
        chain(0, 16, 64, ACC, 512, 128, swap)
        kstamp()
        A("s_waitcnt vmcnt(0)")
        kstamp()
        nonce_load()
        if swap: A(f"buffer_store_dwordx4 {vr(100,4)}, v8, s[12:15], s{sA0} offen offset:2048 sc1")
        team_wait(8, 3, KS)
        team_add(5)
        kstamp()
        chain(16, 16, 64, ACC, 512, 128, swap)
        kstamp()
    A(f"s_cmp_ge_u32 s{sHG}, 4")
    A("s_cbranch_scc1 L_b_vunit")
    kv_unit(False)
    A("s_nop 7")
    A("s_nop 3")
    for r in range(4): A(f"v_cvt_pk_bf16_f32 v{64+r}, v{ACC+2*r}, v{ACC+2*r+1}")
    A(f"buffer_store_dwordx4 {vr(64,4)}, v{vK}, s[12:15], s{sA0} offen sc1")
    A("s_branch L_b_kvpub")
    A.label("L_b_vunit")
    A(f"v_lshrrev_b32 v{vT2}, 5, v{vL}")
    A(f"v_lshlrev_b32 v7, 8, v{vT2}")
    A(f"v_and_b32 v{vT2}, 15, v{vL}")
    A(f"v_lshl_add_u32 v7, v{vT2}, 4, v7")
    A(f"v_bfe_u32 v{vT2}, v{vL}, 4, 1")
    A(f"v_lshl_add_u32 v7, v{vT2}, 30, v7")
    A(f"v_cmp_gt_u32 s[38:39], 8, v{vL}")
    A(f"v_mov_b32 v{vT2}, {OOB:#x}")
    for r in range(4): A(f"v_mov_b32 v{100+r}, {ONES:#x}")
    A(f"v_cndmask_b32_e64 v8, v{vT2}, v{vK}, s[38:39]")
    kv_unit(True)
    A("s_nop 7")
    A("s_nop 3")
    for s in range(2):
        for r in range(4): A(f"v_cvt_pk_bf16_f32 v{64+4*s+r}, v{ACC+8*s+2*r}, v{ACC+8*s+2*r+1}")
        A("s_nop 1")
        A(f"v_permlane32_swap_b32 v{64+4*s}, v{66+4*s}")
        A(f"v_permlane32_swap_b32 v{65+4*s}, v{67+4*s}")
        A(f"buffer_store_dwordx4 {vr(64+4*s,4)}, v7, s[12:15], s{sA0} offen offset:{1024+s*512} sc1")
    A.label("L_b_kvpub")
    nonce_wait()
    kstamp()
    if 'dkv' in OPT: A(f"s_sleep {OPT['dkv']}")
    flag_store(sA1, NREP)
    A("s_branch L_b_pdone")
    A.label("L_b_idle")
    team_add(4)
    if KVP:
        NST[0] = ksv
        for _ in range(6): kstamp()
    A(f"s_cmp_eq_u32 s{sJ}, 3")
    A("s_cbranch_scc1 L_b_idle1")
    A("s_waitcnt vmcnt(0)")
    A.label("L_b_idle1")
    A("s_waitcnt vmcnt(1)")
    nonce_load()
    team_add(5)
    team_add(8)
    nonce_wait()
    A(f"v_mov_b32 v{vT}, {L_CNT + 64}")
    A(f"ds_write_b32 v{vT}, v{vN}")
    A.label("L_b_pdone")
    stamp()
    if KVP: STOFF[0] = True
    srd(8, P_WQKV, 512 * 3072)
    srd(40, P_GATE, 1024)
    A(f"s_mov_b32 m0, {L_GATE}")
    A(f"s_lshl_b32 s{sHEAD}, s{sHG}, 2")
    A(f"buffer_load_dwordx4 v{vK}, s[40:43], 0 offen lds")
    A(f"s_add_u32 s{sHEAD}, s{sHEAD}, s{sJ}")
    vD1, vX0, vW1, vW2, vG = 7, 9, 13, 8, 15
    w128_dma_addr(vD1, 3072)
    A(f"s_lshl_b32 s{sA0}, s{sJ}, 10")
    A(f"s_lshl_b32 s{sT2}, s{sHG}, 7")
    A(f"s_add_u32 s{sA0}, s{sA0}, s{sT2}")
    A(f"s_lshl_b32 s{sA1}, s{sJ}, 14")
    A(f"s_add_u32 s{sA1}, s{sA1}, {L_WQ}")
    sP3W = 37
    A(f"s_add_u32 s{sP3W}, s{sA0}, {512*3072}")
    if ROT:
        A(f"s_and_b32 s{sT3}, s{sRB}, 3")
        A(f"s_cmp_eq_u32 s{sJ}, 3")
        A(f"s_cselect_b32 s{sT3}, 0, s{sT3}")
        A(f"s_lshl_b32 s{sT2}, s{sT3}, 14")
        A(f"s_mul_i32 s{sT3}, s{sT3}, {128*3072}")
        A(f"s_add_u32 s{sA0}, s{sA0}, s{sT3}")
    else:
        A(f"s_mov_b32 s{sT2}, 0")
    x_frag_addr(vX0, sT2)
    w128_tr_addr(vW1, 8, sA1)
    A(f"v_xor_b32 v{vW2}, 64, v{vW1}")
    AC, FR = 16, 80
    for r in range(0, 64, 2): A(f"v_pk_mov_b32 v[{AC+r}:{AC+r+1}], 0, 0")
    A(f"s_mov_b32 s{sCnt}, 4")
    A(f"s_cmp_eq_u32 s{sJ}, 3")
    A("s_cbranch_scc1 L_b_gwave")
    if "touchw" in OPT:
        A(f"s_cmp_lg_u32 s{sJ}, 1")
        A("s_cbranch_scc1 L_b_notw")
        A(f"v_lshlrev_b32 v{vT}, 16, v{vL}")
        A(f"buffer_load_dword v254, v{vT}, s[8:11], 0 offen sc1")
        srd(40, P_BWO, 512 * 1024)
        A(f"buffer_load_dword v254, v{vT}, s[40:43], 0 offen sc1")
        srd(40, P_AWO, 512 * 1024)
        A(f"buffer_load_dword v254, v{vT}, s[40:43], 0 offen sc1")
        A.label("L_b_notw")
    if "p3early" in OPT: team_wait(6, 4, 1)
    else: team_wait(7, 4, 2)
    stamp()
    if "nob" in OPT: A("s_branch L_b_skip")
    if "pf" in OPT:
        A(f"s_lshr_b32 s{sT}, s2, 3")
        A(f"s_and_b32 s{sT3}, s2, 1")
        A(f"s_lshl_b32 s{sT3}, s{sT3}, 9")
        A(f"s_mul_i32 s{sT2}, s{sT}, {16*3072}")
        A(f"s_add_u32 s{sT2}, s{sT2}, s{sT3}")
        A(f"s_lshl_b32 s{sT4}, s{sJ}, 10")
        A(f"s_add_u32 s{sT2}, s{sT2}, s{sT4}")
        A(f"v_lshrrev_b32 v{vT}, 2, v{vL}")
        A(f"v_and_b32 v{vT2}, 3, v{vL}")
        A(f"v_lshlrev_b32 v{vT2}, 7, v{vT2}")
        A(f"v_lshl_add_u32 v{vT3}, v{vT}, 10, v{vT2}")
        A(f"v_mul_u32_u24 v{vT}, 3072, v{vT}")
        A(f"v_add_u32 v{vT}, v{vT}, v{vT2}")
        A(f"buffer_load_dword v254, v{vT}, s[8:11], s{sT2} offen sc1")
        A(f"s_cmp_eq_u32 s{sJ}, 2")
        A("s_cbranch_scc1 L_b_nopf")
        A(f"s_cmp_eq_u32 s{sJ}, 0")
        A(f"s_cselect_b32 s40, s{P_BWO}, s{P_AWO}")
        A(f"s_cselect_b32 s41, s{P_BWO+1}, s{P_AWO+1}")
        A("s_and_b32 s41, s41, 0xffff")
        A(f"s_mov_b32 s42, {512*1024:#x}")
        A(f"s_lshl_b32 s{sT2}, s{sT}, 14")
        A(f"s_add_u32 s{sT2}, s{sT2}, s{sT3}")
        A(f"buffer_load_dword v254, v{vT3}, s[40:43], s{sT2} offen sc1")
        A.label("L_b_nopf")
    def p3_dma(slot):
        A(f"s_add_u32 m0, s{sA1}, {slot*2048}")
        A(f"s_add_u32 s{sT2}, s{sA0}, {8*3072}")
        A(f"buffer_load_dwordx4 v{vD1}, s[8:11], s{sA0} offen lds")
        A(f"s_add_u32 m0, s{sA1}, {slot*2048+1024}")
        A(f"s_add_u32 s{sA0}, s{sA0}, {16*3072}")
        A(f"buffer_load_dwordx4 v{vD1}, s[8:11], s{sT2} offen lds")
    def p3_wrap():
        A(f"s_cmp_ge_u32 s{sA0}, s{sP3W}")
        A(f"s_cselect_b32 s{sT2}, {512*3072}, 0")
        A(f"s_sub_u32 s{sA0}, s{sA0}, s{sT2}")
    def p3_rd(i):
        if "nop3rd" in OPT.get("abl", ""): return
        b = FR + 16 * (i & 1); sl = (i % 8) * 2048
        if i == 8:
            for q in range(4):
                A(f"v_add_u32 v{vX0+q}, 16384, v{vX0+q}")
                A(f"v_and_b32 v{vX0+q}, 0xffff, v{vX0+q}")
        A(f"ds_read_b64_tr_b16 v[{b}:{b+1}], v{vW1} offset:{sl}")
        A(f"ds_read_b64_tr_b16 v[{b+2}:{b+3}], v{vW1} offset:{sl+512}")
        A(f"ds_read_b128 v[{b+8}:{b+11}], v{vX0+(i&3)} offset:{((i%8)>>2)*8192}")
        A(f"ds_read_b128 v[{b+12}:{b+15}], v{vX0+(i&3)} offset:{((i%8)>>2)*8192+4096}")
        A(f"ds_read_b64_tr_b16 v[{b+4}:{b+5}], v{vW2} offset:{sl}")
        A(f"ds_read_b64_tr_b16 v[{b+6}:{b+7}], v{vW2} offset:{sl+512}")
    LA = int(OPT.get("p3d", 8))
    for s in range(LA): p3_dma(s)
    if OPT.get("il") != "2":
        A(f"s_waitcnt vmcnt({2*LA-2})")
        p3_rd(0)
    def p3_loop_il(name, swap):
        A.label(name)
        for i in range(8):
            b = FR + 16 * (i & 1)
            mark = len(A.lines); p3_rd(i + 1); rd = A.lines[mark:]; del A.lines[mark:]
            pre = [l for l in rd if "ds_read" not in l]; rd = [l for l in rd if "ds_read" in l]
            mf = []
            for ct in range(2):
                for ri in range(2):
                    a = AC + 16 * (2 * ct + ri); wv, xv = vr(b + 4 * ct, 4), vr(b + 8 + 4 * ri, 4)
                    mf.append(f"{MF} {vr(a,16)}, {xv if swap else wv}, {wv if swap else xv}, {vr(a,16)}")
            A("s_waitcnt lgkmcnt(0)")
            A(mf[0])
            if i == (8 - LA) % 8:
                p3_wrap()
                A(f"s_cmp_eq_u32 s{sCnt}, 1")
                A(f"s_cselect_b32 s{sA0}, {OOB:#x}, s{sA0}")
            p3_dma((i + LA) % 8)
            A(mf[1])
            for l in pre: A(l)
            A(f"s_waitcnt vmcnt({2*LA-2})")
            for l in rd[:3]: A(l)
            if PACE: A(f"s_nop {PACE-1}")
            A(mf[2])
            for l in rd[3:]: A(l)
            if PACE: A(f"s_nop {PACE-1}")
            A(mf[3])
        A(f"s_sub_u32 s{sCnt}, s{sCnt}, 1")
        A(f"s_cmp_lg_u32 s{sCnt}, 0")
        A(f"s_cbranch_scc1 {name}")
    def p3_loop_jit(name, swap):
        A.label(name)
        b = FR
        def mf(ct, ri):
            a = AC + 16 * (2 * ct + ri); wv, xv = vr(b + 4 * ct, 4), vr(b + 8 + 4 * ri, 4)
            if "nop3mf" not in OPT.get("abl", ""): A(f"{MF} {vr(a,16)}, {xv if swap else wv}, {wv if swap else xv}, {vr(a,16)}")
        for i in range(8):
            sl = i * 2048; xo = (i >> 2) * 8192
            A(f"s_waitcnt vmcnt({2*LA-2})")
            A(f"ds_read_b64_tr_b16 v[{b}:{b+1}], v{vW1} offset:{sl}")
            A(f"ds_read_b64_tr_b16 v[{b+2}:{b+3}], v{vW1} offset:{sl+512}")
            A(f"ds_read_b128 v[{b+8}:{b+11}], v{vX0+(i&3)} offset:{xo}")
            A("s_waitcnt lgkmcnt(0)")
            mf(0, 0)
            A(f"ds_read_b128 v[{b+12}:{b+15}], v{vX0+(i&3)} offset:{xo+4096}")
            A("s_waitcnt lgkmcnt(0)")
            mf(0, 1)
            A(f"ds_read_b64_tr_b16 v[{b+4}:{b+5}], v{vW2} offset:{sl}")
            A(f"ds_read_b64_tr_b16 v[{b+6}:{b+7}], v{vW2} offset:{sl+512}")
            A("s_waitcnt lgkmcnt(0)")
            mf(1, 1)
            if i == (8 - LA) % 8:
                p3_wrap()
                A(f"s_cmp_eq_u32 s{sCnt}, 1")
                A(f"s_cselect_b32 s{sA0}, {OOB:#x}, s{sA0}")
            p3_dma((i + LA) % 8)
            mf(1, 0)
        for q in range(4):
            A(f"v_add_u32 v{vX0+q}, 16384, v{vX0+q}")
            A(f"v_and_b32 v{vX0+q}, 0xffff, v{vX0+q}")
        A(f"s_sub_u32 s{sCnt}, s{sCnt}, 1")
        A(f"s_cmp_lg_u32 s{sCnt}, 0")
        A(f"s_cbranch_scc1 {name}")
    def p3_loop(name, swap):
        if OPT.get("il") == "2": return p3_loop_jit(name, swap)
        if OPT.get("il") == "1": return p3_loop_il(name, swap)
        A.label(name)
        for i in range(8):
            A(f"s_waitcnt vmcnt({2*LA-4})")
            p3_rd(i + 1)
            if i == (8 - LA) % 8:
                p3_wrap()
                A(f"s_cmp_eq_u32 s{sCnt}, 1")
                A(f"s_cselect_b32 s{sA0}, {OOB:#x}, s{sA0}")
            A("s_waitcnt lgkmcnt(6)")
            b = FR + 16 * (i & 1)
            n = 0
            for ct in range(2):
                for ri in range(2):
                    a = AC + 16 * (2 * ct + ri); wv, xv = vr(b + 4 * ct, 4), vr(b + 8 + 4 * ri, 4)
                    if "nop3mf" not in OPT.get("abl", ""): A(f"{MF} {vr(a,16)}, {xv if swap else wv}, {wv if swap else xv}, {vr(a,16)}")
                    if n == 0: p3_dma((i + LA) % 8)
                    elif PACE: A(f"s_nop {PACE-1}")
                    n += 1
        A(f"s_sub_u32 s{sCnt}, s{sCnt}, 1")
        A(f"s_cmp_lg_u32 s{sCnt}, 0")
        A(f"s_cbranch_scc1 {name}")
    PACE = int(OPT.get("pace", 0))
    A(f"s_cmp_eq_u32 s{sJ}, 2")
    A("s_cbranch_scc1 L_p3v")
    p3_loop("L_p3qk", False)
    svst = NST[0]
    stamp()
    A(f"s_lshl_b32 s{sKV}, s{sHG}, 8")
    A(f"s_add_u32 s{sKV}, s{sKV}, s{sRT0}")
    A(f"s_mul_i32 s{sKV}, s{sKV}, {TB}")
    A(f"s_add_u32 s{sKV}, s{sKV}, {WS_KVB:#x}")
    A(f"s_mov_b32 s{sT2}, {f2u(CSCALE):#x}")
    A(f"v_add_u32 v{vT3}, {L_QX}, v{vK}")
    A("s_waitcnt lgkmcnt(0)")
    A(f"s_cmp_eq_u32 s{sJ}, 1")
    A("s_cbranch_scc1 L_p3k")
    team_wait(7, 4, 2)
    for ct in range(2):
        for ri in range(2):
            for hh in range(2):
                a = AC + 16 * (2 * ct + ri) + 8 * hh; p = FR + 4 * ((2 * ri + hh) & 3)
                for r in range(8): A(f"v_mul_f32 v{a+r}, s{sT2}, v{a+r}")
                for r in range(4): A(f"v_cvt_pk_bf16_f32 v{p+r}, v{a+2*r}, v{a+2*r+1}")
                A(f"ds_write_b128 v{vT3}, {vr(p,4)} offset:{(4*ri + 2*ct + hh)*1024}")
        if ct == 0: A("s_waitcnt lgkmcnt(0)")
    A("s_waitcnt vmcnt(0) lgkmcnt(0)")
    A("s_branch L_p3done")
    A.label("L_p3k")
    for ct in range(2):
        for hh in range(2):
            for ri in range(2):
                a = AC + 16 * (2 * ct + ri) + 8 * hh; p = FR + 4 * (4 * ct + 2 * hh + ri)
                for r in range(4): A(f"v_cvt_pk_bf16_f32 v{p+r}, v{a+2*r}, v{a+2*r+1}")
                A(f"buffer_store_dwordx4 {vr(p,4)}, v{vK}, s[12:15], s{sKV} offen offset:{ri*TB} sc1")
            A(f"s_add_u32 s{sKV}, s{sKV}, {64*TB}")
    A("s_branch L_p3pub")
    A.label("L_p3v")
    p3_loop("L_p3vl", True)
    NST[0] = svst
    stamp()
    A(f"s_lshl_b32 s{sKV}, s{sHG}, 8")
    A(f"s_add_u32 s{sKV}, s{sKV}, s{sRT0}")
    A(f"s_mul_i32 s{sKV}, s{sKV}, {TB}")
    A(f"s_add_u32 s{sKV}, s{sKV}, {WS_KVB:#x}")
    A(f"s_mov_b32 s{sT3}, {64*TB}")
    A(f"v_lshrrev_b32 v{vT}, 4, v{vL}")
    A(f"v_mul_lo_u32 v{vT}, v{vT}, s{sT3}")
    A(f"v_bfe_u32 v{vT2}, v{vL}, 3, 1")
    A(f"v_mul_u32_u24 v{vT2}, {TB}, v{vT2}")
    A(f"v_add_u32 v{vT}, v{vT}, v{vT2}")
    A(f"v_and_b32 v{vT2}, 7, v{vL}")
    A(f"v_lshl_add_u32 v{vT3}, v{vT2}, 4, v{vT}")
    for r in range(4): A(f"v_mov_b32 v{120+r}, {ONES:#x}")
    A(f"v_bfe_u32 v{vT}, v{vL}, 4, 1")
    A(f"v_mul_lo_u32 v{vT}, v{vT}, s{sT3}")
    A(f"v_lshrrev_b32 v{vT2}, 5, v{vL}")
    A(f"v_lshl_add_u32 v{vT}, v{vT2}, 8, v{vT}")
    A(f"v_and_b32 v{vT2}, 15, v{vL}")
    A(f"v_lshl_add_u32 v{vT}, v{vT2}, 4, v{vT}")
    A("s_waitcnt lgkmcnt(0)")
    A(f"buffer_store_dwordx4 {vr(120,4)}, v{vT3}, s[12:15], s{sKV} offen offset:2048 sc1")
    for ct in range(2):
        for ri in range(2):
            for s in range(2):
                a = AC + 16 * (2 * ct + ri) + 8 * s; p = FR + 4 * (4 * ct + 2 * ri + s)
                for r in range(4): A(f"v_cvt_pk_bf16_f32 v{p+r}, v{a+2*r}, v{a+2*r+1}")
                A("s_nop 1")
                A(f"v_permlane32_swap_b32 v{p}, v{p+2}")
                A(f"v_permlane32_swap_b32 v{p+1}, v{p+3}")
                A(f"buffer_store_dwordx4 {vr(p,4)}, v{vT}, s[12:15], s{sKV} offen offset:{1024+ri*TB+s*512} sc1")
        if ct == 0: A(f"s_add_u32 s{sKV}, s{sKV}, {128*TB}")
    A.label("L_p3pub")
    A("s_waitcnt vmcnt(0)")
    team_add(0, "L_p3done", 2)
    A(f"s_lshl_b32 s{sT3}, s{sHG}, 5")
    A(f"s_add_u32 s{sT3}, s{sT3}, s{sRB}")
    A(f"s_lshl_b32 s{sT3}, s{sT3}, 5")
    A(f"s_add_u32 s{sT3}, s{sT3}, {FL_KVB:#x}")
    flag_store(sT3)
    A("s_branch L_p3done")
    A.label("L_b_gwave")
    NST[0] = svst - 1
    A(f"v_bfe_u32 v{vT3}, v{vL}, 1, 4")
    A(f"v_min_u32 v{vT3}, {G1-1}, v{vT3}")
    A(f"v_add_u32 v{vT3}, s{sRB}, v{vT3}")
    A(f"v_and_b32 v{vT3}, 31, v{vT3}")
    A(f"v_and_b32 v{vT}, 32, v{vL}")
    A(f"v_add_u32 v{vT3}, v{vT3}, v{vT}")
    A(f"v_and_b32 v{vT}, 1, v{vT3}")
    A(f"v_lshrrev_b32 v{vT3}, 1, v{vT3}")
    A(f"v_lshl_add_u32 v{vT3}, v{vT3}, 2, v{vT}")
    A(f"v_and_b32 v{vT}, 1, v{vL}")
    A(f"v_lshl_add_u32 v{vT3}, v{vT}, 1, v{vT3}")
    A(f"v_lshlrev_b32 v{vT3}, 5, v{vT3}")
    GE = int(OPT.get("ge", 0))
    A(f"v_lshrrev_b32 v{vW1}, 5, v{vL}")
    A(f"v_lshlrev_b32 v{vW1}, 4, v{vW1}")
    A(f"v_add_u32 v{vW1}, {L_GATE}, v{vW1}")
    def gate_loop(name, n):
        A(f"s_mov_b32 s{sCnt}, {n}")
        A.label(name)
        for i in range(4):
            A(f"ds_read_b128 {vr(FR,4)}, v{vW1} offset:{i*32}")
            A(f"ds_read_b128 {vr(FR+4,4)}, v{vX0+i}")
            A("s_waitcnt lgkmcnt(0)")
            A(f"{MF} {vr(AC,16)}, {vr(FR,4)}, {vr(FR+4,4)}, {vr(AC,16)}")
            A(f"ds_read_b128 {vr(FR+8,4)}, v{vX0+i} offset:4096")
            A(f"v_add_u32 v{vX0+i}, 8192, v{vX0+i}")
            A("s_waitcnt lgkmcnt(0)")
            A(f"{MF} {vr(AC+16,16)}, {vr(FR,4)}, {vr(FR+8,4)}, {vr(AC+16,16)}")
        A(f"v_add_u32 v{vW1}, 128, v{vW1}")
        A(f"s_sub_u32 s{sCnt}, s{sCnt}, 1")
        A(f"s_cmp_lg_u32 s{sCnt}, 0")
        A(f"s_cbranch_scc1 {name}")
    if GE:
        A("s_waitcnt vmcnt(0)")
        team_wait(5, 8, 1)
        gate_loop("L_gloop0", GE)
    elif OPT.get("pstart", "5") == "5": team_wait(5, 8, 2)
    elif OPT.get("pstart") == "6": team_wait(6, 4, 1)
    if NREP > 1:
        A(f"s_and_b32 s{sT3}, s{sHG}, {NREP-1}")
        A(f"s_lshl_b32 s{sT3}, s{sT3}, 12")
        A(f"s_add_u32 s{sT3}, s{sT3}, {FL_KVA:#x}")
    else:
        A(f"s_mov_b32 s{sT3}, {FL_KVA:#x}")
    if KVP:
        NST[0] = 5
        kstamp()
    poll_flags(vT3, sT3, slp=int(OPT.get("pslp", 1)))
    if KVP:
        kstamp()
        A("s_waitcnt lgkmcnt(0)")
        A(f"s_sub_u32 s{70+2*NST[0]}, {SPIN}, s{sSP}")
        A(f"s_add_u32 s{70+2*NST[0]}, s{70+2*NST[0]}, s72")
        NST[0] = svst
    A("s_waitcnt lgkmcnt(0)")
    team_add(11)
    if int(OPT.get('asl', 16)): A(f"s_sleep {OPT.get('asl', 16)}")
    A(f"v_lshlrev_b32 v{vT}, 5, v{vL}")
    poll_flags(vT, sT3, n2=2048, slp=4)
    team_add(9)
    if "nob" in OPT: A("s_branch L_b_skip")
    stamp()
    gate_loop("L_gloop", 8 - GE)
    stamp()
    A("s_mov_b32 s38, 0")
    A("s_mov_b32 s39, -1")
    A("s_nop 5")
    A(f"v_cndmask_b32_e64 v{vG}, v{AC}, v{AC+16}, s[38:39]")
    A(f"v_mul_f32 v{vG}, {f2u(-math.log2(math.e)):#x}, v{vG}")
    A(f"v_exp_f32 v{vG}, v{vG}")
    A(f"v_lshlrev_b32 v{vT}, 2, v{vL}")
    A(f"v_add_f32 v{vG}, 1.0, v{vG}")
    A(f"v_rcp_f32 v{vG}, v{vG}")
    A(f"v_add_u32 v{vT}, {L_G}, v{vT}")
    A(f"ds_write_b32 v{vT}, v{vG}")
    A("s_waitcnt lgkmcnt(0)")
    A.label("L_p3done")
    team_add(1)
    QB = 96; OB = 104; KV = 136
    A(f"s_lshl_b32 s{sKV}, s{sHEAD}, 6")
    A(f"s_add_u32 s{sKV}, s{sKV}, s{sRT0}")
    A(f"s_mul_i32 s{sKV}, s{sKV}, {TB}")
    A(f"s_add_u32 s{sKV}, s{sKV}, {WS_KVB:#x}")
    sWL, sWG, sWN = 37, 54, 55
    srd(8, P_BWO, 512 * 1024)
    srd(20, P_AWO, 512 * 1024)
    vWd2 = 11
    w128_dma_addr(vWd2, 1024)
    A(f"s_lshl_b32 s{sWL}, s{sJ}, 14")
    A(f"s_lshl_b32 s{sWG}, s{sJ}, 17")
    A(f"s_lshl_b32 s{sT}, s{sHG}, 7")
    A(f"s_add_u32 s{sWG}, s{sWG}, s{sT}")
    A(f"s_mov_b32 s{sWN}, 0")
    sWI, sWT = 56, 57
    if ROT:
        A(f"s_and_b32 s{sWI}, s{sRB}, {3 if 'map1' in OPT else 7}")
        A(f"s_lshl_b32 s{sWI}, s{sWI}, {2 if 'map1' in OPT else 1}")
    else:
        A(f"s_mov_b32 s{sWI}, 0")
    def w_loop(name, srd_, lds):
        A(f"s_mov_b32 s{sWN}, 16")
        A.label(name)
        A(f"s_lshl_b32 s{sWT}, s{sWI}, 10")
        A(f"s_add_u32 s{sWT}, s{sWT}, s{sWL}")
        A(f"s_add_u32 m0, s{sWT}, {lds}")
        A(f"s_lshl_b32 s{sWT}, s{sWI}, 13")
        A(f"s_add_u32 s{sWT}, s{sWT}, s{sWG}")
        A(f"buffer_load_dwordx4 v{vWd2}, s[{srd_}:{srd_+3}], s{sWT} offen lds")
        A(f"s_add_u32 s{sWI}, s{sWI}, 1")
        A(f"s_and_b32 s{sWI}, s{sWI}, 15")
        A(f"s_sub_u32 s{sWN}, s{sWN}, 1")
        A(f"s_waitcnt vmcnt({OPT.get('wd', 5)})")
        A(f"s_cmp_lg_u32 s{sWN}, 0")
        A(f"s_cbranch_scc1 {name}")
    A(f"s_lshl_b32 s{sT2}, s{sJ}, 10")
    A(f"s_add_u32 s{sT2}, s{sT2}, {L_QX}")
    A(f"v_add_u32 v7, s{sT2}, v{vK}")
    A(f"s_and_b32 s{sT2}, s{sJ}, 1")
    A(f"s_lshl_b32 s{sT2}, s{sT2}, 7")
    A(f"s_add_u32 s{sT2}, s{sT2}, {L_G}")
    A(f"v_and_b32 v9, 31, v{vL}")
    A(f"v_lshl_add_u32 v9, v9, 2, s{sT2}")
    stamp()
    team_wait(1)
    w_loop("L_wB", 8, L_X)
    A(f"s_cmp_lg_u32 s{sJ}, 3")
    A("s_cbranch_scc1 L_b_nokvb")
    A(f"v_min_u32 v{vT3}, 4, v{vL}")
    A(f"v_sub_u32 v{vT3}, s{sRB}, v{vT3}")
    A(f"v_max_i32 v{vT3}, 0, v{vT3}")
    A(f"v_lshlrev_b32 v{vT3}, 5, v{vT3}")
    A(f"s_lshl_b32 s{sT3}, s{sHG}, 10")
    A(f"s_add_u32 s{sT3}, s{sT3}, {FL_KVB:#x}")
    poll_flags(vT3, sT3, slp=2)
    team_add(10)
    A.label("L_b_nokvb")
    team_wait(10, 1)
    stamp()
    A(f"ds_read_b128 {vr(QB,4)}, v7")
    A(f"ds_read_b128 {vr(QB+4,4)}, v7 offset:4096")
    A(f"ds_read_b32 v{vG}, v9")
    A(f"s_add_u32 s{sA0}, s{sKV}, {TB}")
    A(f"s_add_u32 s{sA1}, s{sRT0}, 1")
    PRE = int(OPT.get("bpre", 4))
    def bkv(u):
        b = KV + 12 * u; o = []
        if u >= 2:
            o.append(f"s_cmp_ge_u32 s{sA1}, {u}")
            o.append(f"s_cselect_b32 s{sT}, s{sA0}, {OOB:#x}")
        sa = sT if u >= 2 else sA0
        o.append(f"buffer_load_dwordx4 {vr(b,4)}, v{vK}, s[12:15], s{sa} offen sc1")
        o.append(f"buffer_load_dwordx4 {vr(b+4,4)}, v{vV}, s[12:15], s{sa} offen sc1")
        o.append(f"buffer_load_dwordx4 {vr(b+8,4)}, v{vV1}, s[12:15], s{sa} offen sc1")
        if u < 9: o.append(f"s_sub_u32 s{sA0}, s{sA0}, {TB}")
        return "\n".join(o)
    order = []
    for u in range(PRE):
        A(bkv(u)); order += [("k", u), ("v", u), ("v2", u)]
    vBig = 7
    A(f"v_mov_b32 v{vIDX}, 0xdddddddd")
    A(f"v_mov_b32 v{vBig}, {f2u(-1e38):#x}")
    mask_tuple(NEG, f"v{vBig}", "0")
    for i in range(2):
        for r in range(0, 10, 2): A(f"v_pk_mov_b32 v[{OB+16*i+r}:{OB+16*i+r+1}], 0, 0")
    A(f"s_waitcnt vmcnt({3*PRE-4}) lgkmcnt(0)")
    A(f"{MF} {vr(S0,16)}, {vr(KV,4)}, {vr(QB+4,4)}, {vr(NEG,16)}")
    A(f"{MF} {vr(S1,16)}, {vr(KV+12,4)}, {vr(QB,4)}, {vr(NEG,16)}")
    A("s_nop 7")
    A("s_nop 3")
    lane_max_all(range(S0, S0 + 32), vT, vT2)
    A(f"v_sub_f32 v{NEG}, 0, v{vT}")
    A(f"v_sub_f32 v{NEG+1}, 0, v{vT}")
    for r in range(0, 32, 2): A(f"v_pk_add_f32 v[{S0+r}:{S0+r+1}], v[{S0+r}:{S0+r+1}], v[{NEG}:{NEG+1}]")
    for r in range(2, 16, 2): A(f"v_pk_mov_b32 v[{NEG+r}:{NEG+r+1}], v[{NEG}:{NEG+1}], v[{NEG}:{NEG+1}] op_sel:[0,1]")
    items = [(1, 0), (0, 1), (1, 1)]
    for u in range(2, 9): items += [(0, u), (1, u)]
    items += [(0, 9)]
    CF = KV
    waited = 3
    def need(tag):
        nonlocal waited
        k_ = order.index(tag)
        if k_ > waited:
            waited = k_
            return f"s_waitcnt vmcnt({len(order)-1-k_})"
        return None
    WPI = int(OPT.get("wpi", 1))
    wsteps = 0; nextu = PRE
    for n, (q, u) in enumerate(items):
        Sc, Sn = (S0, S1) if n % 2 == 0 else (S1, S0)
        ex = {}
        qk = None
        late = []
        if n % 2 == 1 and nextu < 10:
            ex["X4"] = bkv(nextu); late = [("k", nextu), ("v", nextu), ("v2", nextu)]; nextu += 1
        if n >= 1 and n + 1 < len(items):
            q2, u2 = items[n + 1]
            far = (q2, u2) in ((1, 8), (0, 9))
            ex["X3"] = need(("k", u2))
            qk = f"{MF} {vr(Sn,16)}, {vr(KV+12*u2,4)}, {vr(QB+4*q2,4)}, {vr(CF if far else NEG,16)}"
        ex["X5"] = need(("v2", u))
        order += late
        pv1 = None
        if n >= 1:
            qp, up = items[n - 1]
            pv1 = pv(OB + 16 * qp, KV + 12 * up + 8, Sn + 8)
        exit_here = (q == 1 and u in (1, 3, 5, 7))
        if exit_here: ex["X4"] = f"s_cmp_eq_u32 s{sA1}, {u}"
        if "nobat" in OPT.get("abl", ""):
            for x in sorted(ex):
                if ex[x]: A(ex[x])
            A("s_sleep 3")
        else:
            tile_code(Sc, qk, pv1, pv(OB + 16 * q, KV + 12 * u + 4, Sc), ex)
        if exit_here: A(f"s_cbranch_scc1 L_b_exit{u}")
        if n == 6: mask_tuple(CF, f"v{NEG}", f"v{vBig}")
    A("s_nop 1")
    A(pv(OB, KV + 12 * 9 + 8, S1 + 8))
    A.label("L_b_fin")
    stamp()
    A(f"s_lshl_b32 s{sA2}, s{sRT0}, 6")
    A(f"s_add_u32 s{sA2}, s{sA2}, s{sHEAD}")
    A(f"s_lshl_b32 s{sA2}, s{sA2}, 10")
    A(f"s_add_u32 s{sA2}, s{sA2}, {WS_O + 32*1024:#x}")
    A(f"s_min_u32 s{sCnt}, s{sA1}, 9")
    A("s_nop 7")
    for i in range(2):
        if not OPT.get("abl"): range_check(OB + 16 * i, f"L_b_slow{i}")
        A.label(f"L_b_ok{i}")
        normalize_store(OB + 16 * i, P + 4 * i, sA2)
        if i == 0:
            A(f"s_add_u32 s{sA2}, s{sA2}, 65536")
            A(f"s_add_u32 s{sKV}, s{sKV}, {TB}")
            A(f"s_add_u32 s{sCnt}, s{sRT0}, 2")
            A(f"s_min_u32 s{sCnt}, s{sCnt}, 9")
    A("s_waitcnt vmcnt(0)")
    team_add(2, "L_b_ob_nl")
    A(f"s_lshl_b32 s{sT3}, s{sRB}, 8")
    A(f"s_lshl_b32 s{sT4}, s{sHG}, 5")
    A(f"s_add_u32 s{sT3}, s{sT3}, s{sT4}")
    A(f"s_add_u32 s{sT3}, s{sT3}, {FL_OB:#x}")
    flag_store(sT3)
    A.label("L_b_ob_nl")
    A(f"s_and_b32 s{sT4}, s{sJ}, 1")
    A(f"s_lshr_b32 s{sT3}, s{sJ}, 1")
    vWp = 13
    w128_tr_addr(vWp, 4, None, sT3)
    A(f"v_and_b32 v{vT3}, 7, v{vL}")
    A(f"v_lshlrev_b32 v{vT3}, 5, v{vT3}")
    A(f"s_lshl_b32 s{sT3}, s{sRB}, 8")
    A(f"s_add_u32 s{sT3}, s{sT3}, {FL_OB:#x}")
    w_loop("L_wA", 20, L_WQ)
    A("s_waitcnt vmcnt(0)")
    team_add(3)
    OF = 128; WF = 64; ACB = 16; ACA = 32
    vWq = 12
    A(f"v_add_u32 v{vWq}, {L_WQ}, v{vWp}")
    team_wait(3)
    for s in range(32):
        if s % 7 == 0 and s: A("s_waitcnt lgkmcnt(0)")
        A(f"ds_read_b64_tr_b16 v[{OF+4*s}:{OF+4*s+1}], v{vWq} offset:{s*2048}")
        A(f"ds_read_b64_tr_b16 v[{OF+4*s+2}:{OF+4*s+3}], v{vWq} offset:{s*2048+1024}")
    A("s_waitcnt lgkmcnt(0)")
    team_add(12)
    poll_flags(vT3, sT3, slp=2)
    stamp()
    A(f"s_add_u32 s{sWG}, s{sRT0}, s{sT4}")
    A(f"s_lshl_b32 s{sWG}, s{sWG}, 16")
    A(f"s_lshr_b32 s{sA0}, s{sJ}, 1")
    A(f"s_lshl_b32 s{sA0}, s{sA0}, 14")
    A(f"s_add_u32 s{sWG}, s{sWG}, s{sA0}")
    A(f"s_add_u32 s{sWG}, s{sWG}, {WS_O + 32*1024:#x}")
    A(f"s_lshl_b32 s{sWL}, s{sT4}, 15")
    A(f"s_add_u32 s{sWL}, s{sWL}, s{sA0}")
    A(f"s_add_u32 s{sWL}, s{sWL}, {L_WQ}")
    team_wait(12)
    A(f"s_mov_b32 s{sWN}, 16")
    A.label("L_oB")
    A(f"s_mov_b32 m0, s{sWL}")
    A(f"s_add_u32 s{sWL}, s{sWL}, 1024")
    A(f"buffer_load_dwordx4 v{vK}, s[12:15], s{sWG} offen sc1 lds")
    A(f"s_add_u32 s{sWG}, s{sWG}, 1024")
    A(f"s_sub_u32 s{sWN}, s{sWN}, 1")
    A(f"s_waitcnt vmcnt({OPT.get('wd', 5)})")
    A(f"s_cmp_lg_u32 s{sWN}, 0")
    A("s_cbranch_scc1 L_oB")
    A.label("L_b_skip")
    A(f"s_and_b32 s{sT4}, s{sJ}, 1")
    srd(4, P_OUT, 2048 * 1024)
    vO = 8; vOa = 9
    A(f"v_and_b32 v{vT}, 31, v{vL}")
    A(f"v_lshlrev_b32 v{vT}, 10, v{vT}")
    A(f"v_lshrrev_b32 v{vT2}, 5, v{vL}")
    A(f"v_lshl_add_u32 v{vO}, v{vT2}, 4, v{vT}")
    A(f"s_add_u32 s{sKV}, s{sRT0}, s{sT4}")
    A(f"s_lshl_b32 s{sKV}, s{sKV}, 15")
    A(f"s_lshl_b32 s{sT}, s{sHG}, 7")
    A(f"s_add_u32 s{sKV}, s{sKV}, s{sT}")
    A(f"s_lshr_b32 s{sT}, s{sJ}, 1")
    A(f"s_lshl_b32 s{sT}, s{sT}, 6")
    A(f"s_add_u32 s{sKV}, s{sKV}, s{sT}")
    A(f"s_lshl_b32 s{sT}, s{sT4}, 15")
    A(f"v_add_u32 v{vOa}, s{sT}, v{vK}")
    if "touchout" in OPT:
        A(f"buffer_load_dword v{WF}, v{vO}, s[4:7], s{sKV} offen")
        A("s_waitcnt vmcnt(0)")
    OS = int(OPT.get("oarep", 5))
    A(f"s_lshl_b32 s{sA2}, s{sRB}, {OS+6 if 'oarep' in OPT else 8}")
    A(f"s_lshl_b32 s{sT}, s{sHG}, {OS}")
    A(f"s_add_u32 s{sA2}, s{sA2}, s{sT}")
    A(f"s_add_u32 s{sA2}, s{sA2}, {FL_OA:#x}")
    if "oarep" in OPT:
        A(f"s_lshl_b32 s{sT}, s{sRB}, 3")
        A(f"s_add_u32 s{sT}, s{sT}, s{sHG}")
        A(f"s_lshl_b32 s{sT}, s{sT}, {OS+3}")
        A(f"s_add_u32 s{sT}, s{sT}, {FL_OA:#x}")
        A(f"v_and_b32 v{vT}, 7, v{vL}")
        A(f"v_lshlrev_b32 v{vT}, {OS}, v{vT}")
        A(f"buffer_load_dword v{vT2}, v{vT}, s[12:15], s{sT} offen sc1")
        A("s_waitcnt vmcnt(0)")
    A(f"v_add_u32 v{vWq}, {L_WQ}, v{vOa}")
    A("s_waitcnt vmcnt(0) lgkmcnt(0)")
    stamp()
    if "lowp" in OPT: A("s_setprio 0")
    A("s_barrier")
    def rdb(s):
        b = WF + 8 * (s % 4)
        A(f"ds_read_b64_tr_b16 v[{b}:{b+1}], v{vWp} offset:{s*2048}")
        A(f"ds_read_b64_tr_b16 v[{b+2}:{b+3}], v{vWp} offset:{s*2048+1024}")
        A(f"ds_read_b128 v[{b+4}:{b+7}], v{vWq} offset:{s*1024}")
    NB1 = int(OPT.get("nb1", 32))
    for s in range(3): rdb(s)
    for s in range(32):
        if s == NB1:
            A("s_barrier")
        if s + 3 < 32: rdb(s + 3)
        A(f"s_waitcnt lgkmcnt({3 * (min(s + 3, 31) - s)})")
        b = WF + 8 * (s % 4)
        A(f"{MF} {vr(ACB,16)}, {vr(b,4)}, {vr(b+4,4)}, {'0' if s == 0 else vr(ACB,16)}")
    if NB1 == 32: A("s_barrier")
    tail_dma("B")
    A(f"v_sub_f32 v{vT3}, 1.0, v{vG}")
    A(f"v_mov_b32 v14, v{vG}")
    for r in range(16): A(f"v_mul_f32 v{ACB+r}, v{ACB+r}, v{vT3}")
    for m in range(len(MS)):
        A(f"s_waitcnt vmcnt({sum(MS[m+1:]) // 4})")
        A("s_barrier")
        n = MS[m]
        for i in range(n): A(f"ds_read_b128 {vr(WF+4*i,4)}, v{vOa} offset:{(sum(MS[:m])+i)*1024}")
        for i in range(n):
            s = sum(MS[:m]) + i
            A(f"s_waitcnt lgkmcnt({n-1-i})")
            c = "0" if s == 0 else vr(ACA, 16)
            A(f"{MF} {vr(ACA,16)}, {vr(OF+4*s,4)}, {vr(WF+4*i,4)}, {c}")
    A("s_nop 7")
    A("s_nop 3")
    for r in range(0, 16, 2): A(f"v_pk_fma_f32 v[{ACB+r}:{ACB+r+1}], v[{ACA+r}:{ACA+r+1}], v[14:15], v[{ACB+r}:{ACB+r+1}]")
    for r in range(8): A(f"v_cvt_pk_bf16_f32 v{WF+r}, v{ACB+2*r}, v{ACB+2*r+1}")
    A("s_nop 1")
    for g in range(2):
        A(f"v_permlane32_swap_b32 v{WF+4*g}, v{WF+4*g+2}")
        A(f"v_permlane32_swap_b32 v{WF+4*g+1}, v{WF+4*g+3}")
    for g in range(2): A(f"buffer_store_dwordx4 {vr(WF+4*g,4)}, v{vO}, s[4:7], s{sKV} offen offset:{g*32} {OPT.get('om', '').replace('_', ' ')}")
    if PROF: A("s_waitcnt vmcnt(0)")
    stamp_flush()
    A.label("L_exit")
    A("s_endpgm")
    for u in (1, 3, 5, 7):
        A.label(f"L_b_exit{u}")
        A("s_nop 0")
        A(pv(OB + 16, KV + 12 * u + 8, S0 + 8))
        A("s_branch L_b_fin")
    for i in range(2):
        slow_path(f"L_b_slow{i}", f"L_b_ok{i}", QB + 4 * i, OB + 16 * i, sKV, sCnt, -TB, True, KV, KV + 4, KV + 16)
    timeout_blocks()
    return k

DOC = """; One persistent launch, 256 workgroups (one per CU), each owning 64 rows x 4 heads.
;   waves 0-3 (A team): Q projection of the MQA branch, then MQA attention (4 query tiles per wave, half of the keys),
;                       the fp32 probabilities directly (only their high halves are selected); a ones row gives the row sum.
;   waves 4-7 (B team): shared K/V projection, QKV + gate projection, sliding-window attention, output projection.
;   The row shift is a sampled maximum; rows whose sum leaves the safe range are redone with the true row maximum.
"""

def main():
    hdr = open("cdna_kernels/" + NAME + ".s.ref").read().split("\n")
    head = [l for l in hdr if l.startswith(";") and "@launch" not in l]
    out = "\n".join(head) + "\n"
    out += "; @launch grid=(256,1,1) block=(512,1,1) lds=163840\n"
    out += '.amdgcn_target "amdgcn-amd-amdhsa--gfx950"\n.text\n'
    out += DOC
    k = gen()
    body = A.text()
    if "bfirst" in OPT:
        i = body.index("; @@A_BEGIN\n"); j = body.index("; @@A_END\n")
        body = body[:i] + body[j + len("; @@A_END\n"):] + body[i + len("; @@A_BEGIN\n"):j]
    body += "L_code_end:\n    s_endpgm\n"
    errs = check_hazards(body)
    for e in errs: print("HAZARD", e, file=sys.stderr)
    out += body
    out += f""".section .rodata,"a"
.p2align 6
.amdhsa_kernel {k}
  .amdhsa_next_free_vgpr 256
  .amdhsa_next_free_sgpr 102
  .amdhsa_accum_offset 256
  .amdhsa_group_segment_fixed_size 0
  .amdhsa_kernarg_size 96
  .amdhsa_user_sgpr_count 2
  .amdhsa_user_sgpr_kernarg_segment_ptr 1
  .amdhsa_system_sgpr_workgroup_id_x 1
.end_amdhsa_kernel
"""
    paths = [a for a in sys.argv[1:] if a.endswith(".s")]
    path = paths[0] if paths else "f20.s"
    open(path, "w").write(out)
    print("wrote", path, len(out), "bytes;", len(errs), "hazard warnings")
main()
```
